```python
import torch

def _softmax(x, axis=-1):
    return torch.softmax(x, dim=axis)
def _gelu(x):
    return torch.nn.functional.gelu(x, approximate="tanh")
def _silu(x):
    return torch.nn.functional.silu(x)
def _sigmoid(x):
    return torch.sigmoid(x)
def _layernorm(x, axis=-1, eps=1e-5):
    m = x.mean(dim=axis, keepdim=True)
    v = x.var(dim=axis, keepdim=True, unbiased=False)
    return (x - m) / torch.sqrt(v + eps)
def _scatter_add(tgt, idx, src, axis=0):
    return tgt.clone().index_add_(axis, idx, src)
def _segment_sum(src, seg, n):
    out = torch.zeros((n,) + src.shape[1:], dtype=src.dtype)
    return out.index_add_(0, seg, src)
def _pad(x, pw):
    flat = tuple(v for pair in reversed(pw) for v in pair)
    return torch.nn.functional.pad(x, flat)

kernel_name = 'gated_mix__linear_kernel_hedgehog__softmax_full_mha__prompt'

def setup_inputs():

    _w = (lambda a: (lambda t: t.to(torch.bfloat16) if t.is_floating_point() else t)(torch.as_tensor(a)))
    def _A_setup():
        B, S, D, H = 1, 2048, 448, 16
        Dh = D // H
        return {
            "x": _w((lambda *s: torch.randn(*s, dtype=torch.bfloat16) * 0.05)(B, S, D)),
            "wqkv": _w((lambda *s: torch.randn(*s, dtype=torch.bfloat16) * 3.2)(D, 3 * D)),
            "w_phi": _w((lambda *s: torch.randn(*s, dtype=torch.bfloat16) * 3.2)(H, Dh, Dh) * (Dh ** -0.5)),
            "wo": _w((lambda *s: torch.randn(*s, dtype=torch.bfloat16) * 0.05)(D, D)),
        }
    _A_in = _A_setup()

    def _B_setup():
        B, S, D = 1, 2048, 448
        return {
            "x": _w((lambda *s: torch.randn(*s, dtype=torch.bfloat16) * 0.05)(B, S, D)),
            "wqkv": _w((lambda *s: torch.randn(*s, dtype=torch.bfloat16) * 1.6)(D, 3 * D)),
            "wo": _w((lambda *s: torch.randn(*s, dtype=torch.bfloat16) * 0.05)(D, D)),
        }
    _B_in = _B_setup()

    return {
        "A_x": _A_in["x"],
        "A_wqkv": _A_in["wqkv"],
        "A_w_phi": _A_in["w_phi"],
        "A_wo": _A_in["wo"],
        "B_x": _B_in["x"],
        "B_wqkv": _B_in["wqkv"],
        "B_wo": _B_in["wo"],
        "gate_w": _w((lambda *s: torch.randn(*s, dtype=torch.bfloat16) * 0.05)(448) * 16.0),
    }

def reference(A_x, A_wqkv, A_w_phi, A_wo, B_x, B_wqkv, B_wo, gate_w):
    def _A_ref(x, wqkv, w_phi, wo):
        B, S, D = x.shape
        H = 16; Dh = D // H
        qkv = (lambda x, *d: x.permute(*d))((x @ wqkv).reshape(B, S, 3, H, Dh), 2, 0, 3, 1, 4)
        q, k, v = qkv[0], qkv[1], qkv[2]
        pq = torch.einsum("bhsd,hdf->bhsf", q, w_phi)
        pk = torch.einsum("bhsd,hdf->bhsf", k, w_phi)
        phi_q = torch.concatenate([_softmax(pq, axis=-1), _softmax(-pq, axis=-1)], axis=-1)
        phi_k = torch.concatenate([_softmax(pk, axis=-1), _softmax(-pk, axis=-1)], axis=-1)
        kv = torch.einsum("bhsf,bhsd->bhfd", phi_k, v)
        z  = torch.einsum("bhsf->bhf", phi_k)
        num = torch.einsum("bhqf,bhfd->bhqd", phi_q, kv)
        den = torch.einsum("bhqf,bhf->bhq", phi_q, z)[..., None] + 1e-6
        o = num / den
        return (lambda x, *d: x.permute(*d))(o, 0, 2, 1, 3).reshape(B, S, D) @ wo

    def _B_ref(x, wqkv, wo):
        B, S, D = x.shape
        H = 16; Dh = D // H
        qkv = (lambda x, *d: x.permute(*d))((x @ wqkv).reshape(B, S, 3, H, Dh), 2, 0, 3, 1, 4)
        q, k, v = qkv[0], qkv[1], qkv[2]
        scale = Dh ** -0.5
        scores = torch.einsum("bhqd,bhkd->bhqk", q, k) * scale
        p = _softmax(scores, axis=-1)
        o = torch.einsum("bhqk,bhkd->bhqd", p, v)
        return (lambda x, *d: x.permute(*d))(o, 0, 2, 1, 3).reshape(B, S, D) @ wo

    x = A_x
    g = _sigmoid((x * gate_w).sum(-1, keepdims=True))
    a = _A_ref(x, A_wqkv, A_w_phi, A_wo)
    b = _B_ref(x, B_wqkv, B_wo)
    return g * a + (1 - g) * b
```

```python
import re

class Stream:
    def __init__(self):
        self.L = []
        self.vm = []
        self._id = [0]
        self.dq = []
    def fork(self):
        s = Stream(); s.vm = [list(x) for x in self.vm]; s._id = self._id; s.dq = list(self.dq); return s
    def ds(self, txt):
        self._id[0] += 1; self.dq.append(self._id[0]); self.e(txt); return self._id[0]
    def dswait(self, id):
        if id not in self.dq: return
        i = self.dq.index(id); n = min(14, len(self.dq) - i - 1)
        self.e(f's_waitcnt lgkmcnt({n})'); self.dq = self.dq[len(self.dq)-n:] if n else []
    def dsall(self, emit=True):
        if emit: self.e('s_waitcnt lgkmcnt(0)')
        self.dq = []
    def e(self, txt):
        for ln in txt.strip('\n').split('\n'):
            if ln.strip(): self.L.append(ln.strip())
    def c(self, txt): self.L.append('; ' + txt)
    def vmop(self, txt, opt=False):
        self._id[0] += 1
        self.vm.append([self._id[0], opt]); self.e(txt); return self._id[0]
    def vmcount(self, id, count_opt=False):
        idx = [k for k, x in enumerate(self.vm) if x[0] == id]
        if not idx: return None
        return sum(1 for x in self.vm[idx[0]+1:] if count_opt or not x[1])
    def vmwait(self, id, extra='', count_opt=False, keep=False):
        n = self.vmcount(id, count_opt) if id is not None else None
        if n is None:
            if extra: self.e('s_waitcnt ' + extra)
            return
        assert n <= 63
        self.e(f's_waitcnt vmcnt({n}) {extra}'.strip())
        if not keep:
            idx = [k for k, x in enumerate(self.vm) if x[0] == id][0]
            self.vm = self.vm[idx+1:]
    def vmall(self, extra=''):
        self.e(f's_waitcnt vmcnt(0) {extra}'.strip()); self.vm = []
    def text(self):
        out = []
        for ln in self.L:
            out.append(ln if (ln.endswith(':') or ln.startswith('.')) else '  ' + ln)
        return '\n'.join(out) + '\n'

def regs_of(tok):
    tok = tok.strip()
    m = re.fullmatch(r'-?\|?(?:abs\()?([vsa])(\d+)\)?\|?', tok)
    if m: return [(m.group(1), int(m.group(2)))]
    m = re.fullmatch(r'-?\|?([vsa])\[(\d+):(\d+)\]\|?', tok)
    if m: return [(m.group(1), k) for k in range(int(m.group(2)), int(m.group(3))+1)]
    if tok == 'vcc': return [('s', 'vcc')]
    if tok in ('exec', 'exec_lo', 'exec_hi'): return [('s', 'exec')]
    if tok == 'm0': return [('s', 'm0')]
    return []
TRANS = ('v_exp_', 'v_log_', 'v_rcp_', 'v_rsq_', 'v_sqrt_', 'v_sin_', 'v_cos_')
def parse(ln):
    ln = ln.split(';')[0].strip()
    if not ln or ln.endswith(':') or ln.startswith('.'): return None
    parts = ln.split(None, 1)
    op = parts[0]
    rest = parts[1] if len(parts) > 1 else ''
    ops = [t.strip() for t in rest.split(',')]
    if ops:
        last = ops[-1].split()
        if last: ops[-1] = last[0]
    mods = rest
    d = dict(op=op, ops=ops, mods=mods, W=[], R=[], kind='other')
    R = lambda toks: [x for t in toks for x in regs_of(t)]
    if op.startswith('v_mfma'):
        d.update(kind='mfma', W=R(ops[:1]), A=R(ops[1:3]), C=R(ops[3:4])); d['R'] = d['A'] + d['C']
        d['passes'] = 8 if '32x32' in op else 4
    elif op.startswith('v_smfmac'):
        d.update(kind='mfma', W=R(ops[:1]), A=R(ops[1:4]), C=R(ops[:1])); d['R'] = d['A'] + d['C']
        d['passes'] = 8 if '32x32' in op else 4
    elif op.startswith('v_cmp'):
        d.update(kind='valu', W=R(ops[:1]), R=R(ops[1:]))
    elif op.startswith('v_permlane'):
        d.update(kind='valu', W=R(ops[:2]), R=R(ops[:2]), perm=True)
    elif op.startswith('v_readfirstlane') or op.startswith('v_readlane'):
        d.update(kind='valu', W=R(ops[:1]), R=R(ops[1:]), rdlane=True)
    elif op.startswith('v_'):
        d.update(kind='valu', W=R(ops[:1]), R=R(ops[1:]))
        if op.startswith('v_fmac') or op.startswith('v_dot2c') or 'UNUSED_PRESERVE' in mods: d['R'] += d['W']
        if op.startswith('v_cndmask') and len(ops) == 3: d['R'] += [('s', 'vcc')]
        if '_co_' in op: d['W'] = R(ops[:2]); d['R'] = R(ops[2:])
        d['trans'] = op.startswith(TRANS)
        d['dpp'] = '_dpp' in op or 'row_' in mods or 'quad_perm' in mods
        d['sdwa'] = '_sdwa' in op
    elif op.startswith('buffer_load') or op.startswith('global_load'):
        if ' lds' in (' ' + mods) or '_lds_' in op: d.update(kind='vmem', R=R(ops) + [('s', 'm0')], dma=True)
        else: d.update(kind='vmem', W=R(ops[:1]), R=R(ops[1:]), load=True)
    elif op.startswith('buffer_store') or op.startswith('buffer_atomic'):
        d.update(kind='vmem', R=R(ops), data=R(ops[:1]), wide=('x3' in op or 'x4' in op))
    elif op.startswith('buffer_') or op.startswith('global_'):
        d.update(kind='vmem', R=R(ops))
    elif op.startswith('ds_read') or op.startswith('ds_bpermute') or op.startswith('ds_swizzle'):
        d.update(kind='ds', W=R(ops[:1]), R=R(ops[1:]), load=True)
    elif op.startswith('ds_'):
        d.update(kind='ds', R=R(ops))
    elif op == 's_nop':
        d.update(kind='nop', n=int(ops[0], 0) + 1)
    elif op.startswith('s_'):
        nodst = op.startswith(('s_cmp', 's_cbranch', 's_branch', 's_waitcnt', 's_barrier', 's_endpgm', 's_sleep', 's_setprio', 's_bitcmp'))
        d.update(kind='salu', W=[] if nodst else R(ops[:1]), R=R(ops if nodst else ops[1:]))
        if 'saveexec' in op: d['W'] += [('s', 'exec')]
    return d

def need_between(p, c):
    need = 0; why = ''
    pw = set(p['W']); cr = set(c['R']); cw = set(c['W'])
    vw = {x for x in pw if x[0] in 'va'}; sw = {x for x in pw if x[0] == 's'}
    def up(n, w):
        nonlocal need, why
        if n > need: need, why = n, w
    if p['kind'] == 'valu':
        if c['kind'] == 'mfma' and vw & cr: up(2, 'valu->mfma')
        if c['kind'] == 'valu':
            if p.get('trans') and vw & cr: up(1, 'trans->valu')
            if c.get('perm') and vw & cr: up(2, 'valu->permlane')
            if c.get('dpp') and vw & cr: up(2, 'valu->dpp')
            if c.get('rdlane') and vw & cr: up(1, 'valu->readlane')
            if p.get('sdwa') and vw & (cr | cw): up(1, 'sdwa->valu')
            if sw & cr: up(2, 'valu sgpr->valu')
        if c['kind'] == 'vmem' and sw & cr: up(5, 'valu sgpr->vmem')
        if c['kind'] == 'salu' and sw & cr: up(1, 'valu sgpr->salu')
        if p.get('trans') and c['kind'] in ('vmem', 'ds') and vw & cr: up(1, 'trans->mem')
    if p['kind'] == 'mfma':
        n = {8: 12, 4: 8}[p['passes']]
        if c['kind'] == 'mfma':
            if vw & set(c['A']): up(n, 'mfma D->mfma AB')
            elif vw & set(c['C']):
                if not (p['W'] == c['C'] and p['passes'] == c['passes']): up(n-2, 'mfma D->mfma C overlap')
            elif vw & cw and not (p['W'] == c['W']): up(n-2, 'mfma WAW overlap')
        elif c['kind'] in ('valu', 'vmem', 'ds'):
            if vw & (cr | cw): up(n, 'mfma D->valu/mem')
        if c['kind'] == 'valu' and set(p['C']) & cw: up({8: 7, 4: 3}[p['passes']], 'mfma C WAR valu')
    if p['kind'] == 'vmem' and p.get('wide') and set(p['data']) & cw:
        up(2 if c['kind'] == 'valu' else 1, 'store data WAR')
    if p['kind'] == 'salu' and ('s', 'm0') in pw and c.get('dma'): up(1, 'm0->dma')
    return need, why

def fix_hazards(lines):
    log = []
    while True:
        ins = []; lab = {}
        for k, ln in enumerate(lines):
            t = ln.strip()
            if t.endswith(':'): lab[t[:-1]] = len(ins); continue
            p = parse(t)
            if p: p['k'] = k; p['ln'] = t; ins.append(p)
        br = {}
        for i, p in enumerate(ins):
            if p['op'].startswith(('s_cbranch', 's_branch')): br.setdefault(lab[p['ops'][0]], []).append(i)
        def preds(i):
            r = list(br.get(i, []))
            if i > 0 and ins[i-1]['op'] not in ('s_branch', 's_endpgm'): r.append(i-1)
            return r
        fixes = []
        for i, c in enumerate(ins):
            if c['kind'] in ('nop', 'other'): continue
            worst = 0; info = None
            best = {}; stack = [(j, 0) for j in preds(i)]
            while stack:
                j, d = stack.pop()
                if best.get(j, 99) <= d: continue
                best[j] = d
                n, why = need_between(ins[j], c)
                if n - d > worst: worst, info = n - d, (why, ins[j]['ln'])
                d2 = d + ins[j].get('n', 1)
                if d2 < 12: stack += [(q, d2) for q in preds(j)]
            if worst > 0:
                fixes.append((c['k'], worst)); log.append(f'nop {worst} before [{c["ln"]}] ({info[0]}: {info[1]})')
                break
        if not fixes: return lines, log
        k, w = fixes[0]
        lines = lines[:k] + [f'  s_nop {w-1}'] + lines[k:]
```

```python
import sys, struct
from asmlib import Stream, fix_hazards

NAME = 'gated_mix__linear_kernel_hedgehog__softmax_full_mha__prompt_kernel'
def fbits(x): return '0x%08x' % struct.unpack('<I', struct.pack('<f', x))[0]
LOG2E = 1.4426950408889634
QSCALE = 28 ** -0.5 * LOG2E

WS_FLAG1, WS_FLAGX, WS_FLAG2A, WS_FLAG2B, WS_FLAG3A, WS_FLAG3B = 0x1000, 0x1400, 0x8000, 0x2000, 0x3000, 0x4000
WS_KB, WS_VB, WS_KVP, WS_KVF, WS_OX, WS_DBG = 0x100000, 0x300000, 0x500000, 0x700000, 0x800000, 0x1000000
WS_SIZE = 0x2000000
OOB = 0x40000000
L_PHI, L_WPHI, L_WR = 98304, 114688, 122880
L_QX, L_STG, L_G = L_WR + 8192, L_WR + 16384, L_WR + 24576
L_WOA, L_CX = 98304, 32768
NWS = 5
SPIN = 0x8000

class S:
    X, W, WS, M1, M2 = 4, 8, 12, 16, 20
    pX, pWA, pPHI, pWOA, pWB, pWOB, pGW, pOUT, pWS = 24, 26, 28, 30, 32, 34, 36, 38, 40
    h, tb, w, tt, grp, hA, j, tag, r0, cx, cw, col = 44, 45, 46, 47, 48, 49, 50, 51, 52, 53, 54, 55
    mX, mW, t0, t1, t2, t3, t4, t5 = 56, 57, 58, 59, 60, 61, 62, 63
    vcm = 64
    xcc, rot, sK, sV, mK, loc, spin, cwn = 68, 69, 70, 71, 72, 73, 74, 75
    lo28 = 76
    hi32 = 78
    t6, t7, t8, t9 = 80, 81, 82, 83
    ow, ox = 84, 91
def srd(b): return f's[{b}:{b+3}]'
def vr(b, n): return f'v[{b}:{b+n-1}]' if n > 1 else f'v{b}'

class V:
    lane, i32, hh = 1, 2, 3
    xa0, xa1, w0, ws = 4, 5, 6, 7
    xr = 8
    t0r, t1r, t2r = 12, 13, 14
    g = 15
    acc0, acc1, P, EP, EM = 16, 32, 48, 64, 80
    wf = 96
    xf = 128
    gw = 240
    tmp = 247

def mfma(d, a, b, c): return f'v_mfma_f32_32x32x16_bf16 {vr(d,16)}, {vr(a,4)}, {vr(b,4)}, {c if isinstance(c,str) else vr(c,16)}'
def smfma(d, a, b, idx): return f'v_smfmac_f32_32x32x32_bf16 {vr(d,16)}, {vr(a,4)}, {vr(b,8)}, v{idx}'

PROF = [False, 0]
DBG = set()
STAMPS = []
def stamp(k, name):
    if not PROF[0]: return
    if PROF[0] != True and name not in PROF[0]: return
    if name not in STAMPS: STAMPS.append(name)
    n = STAMPS.index(name)
    k.e(f's_memtime s[98:99]\ns_waitcnt lgkmcnt(0)\ns_sub_u32 s98, s98, s100\nv_writelane_b32 v0, s98, {n}')
    k.dq = []
def stamp_dump(k):
    if not PROF[0]: return
    k.e(f'''s_memrealtime s[98:99]
s_waitcnt lgkmcnt(0)
v_writelane_b32 v0, s98, 63
v_writelane_b32 v0, s101, 62
s_lshl_b32 s98, s2, 3
s_add_u32 s98, s98, s{S.w}
s_lshl_b32 s98, s98, 8
s_add_u32 s98, s98, {WS_DBG}
v_lshl_add_u32 v{V.tmp}, v{V.lane}, 2, s98
buffer_store_dword v0, v{V.tmp}, {srd(S.WS)}, 0 offen''')

def set_srd(k, b, ptr, n):
    k.e(f's_mov_b32 s{b}, s{ptr}\ns_mov_b32 s{b+1}, s{ptr+1}\ns_mov_b32 s{b+2}, {n}\ns_mov_b32 s{b+3}, 0x20000')

def prologue(k, NH):
    T = V.tmp
    lg = {2: 1, 4: 2, 8: 3, 16: 4}[NH]; ng = 16 // NH
    k.e(f'''
s_cmp_ge_u32 s2, 256
s_cbranch_scc1 L_end
{'s_memtime s[100:101]' if PROF[0] else ''}
{'s_memrealtime s[98:99]' if PROF[0] else ''}
s_load_dwordx4 s[24:27], s[0:1], 0
s_load_dwordx4 s[32:35], s[0:1], 40
s_load_dwordx2 s[40:41], s[0:1], 80
s_load_dwordx4 s[28:31], s[0:1], 16
s_load_dwordx4 s[36:39], s[0:1], 56
v_lshrrev_b32 v{T}, 6, v0
v_and_b32 v{V.lane}, 63, v0
v_readfirstlane_b32 s{S.w}, v{T}
s_and_b32 s{S.t0}, s2, 7
s_lshr_b32 s{S.t1}, s2, 3
s_and_b32 s{S.h}, s{S.t0}, {ng-1}
s_lshl_b32 s{S.h}, s{S.h}, {lg}
s_and_b32 s{S.t2}, s{S.t1}, {NH-1}
s_add_u32 s{S.h}, s{S.h}, s{S.t2}
s_lshr_b32 s{S.tb}, s{S.t0}, {4-lg}
s_mul_i32 s{S.tb}, s{S.tb}, {32//NH}
s_lshr_b32 s{S.t2}, s{S.t1}, {lg}
s_add_u32 s{S.tb}, s{S.tb}, s{S.t2}
s_and_b32 s{S.tt}, s{S.w}, 3
s_lshr_b32 s{S.grp}, s{S.w}, 2
s_xor_b32 s{S.hA}, s{S.h}, 1
s_cmp_gt_u32 s{S.h}, 5
s_cselect_b32 s{S.t2}, 1, 0
s_sub_u32 s{S.j}, s{S.h}, s{S.t2}
s_cmp_gt_u32 s{S.h}, 10
s_cselect_b32 s{S.t2}, 1, 0
s_sub_u32 s{S.j}, s{S.j}, s{S.t2}
s_mul_i32 s{S.t2}, s{S.tb}, 3
s_add_u32 s{S.r0}, s{S.h}, s{S.t2}
s_mul_i32 s{S.t2}, s{S.r0}, 37
s_lshr_b32 s{S.t2}, s{S.t2}, 8
s_mul_i32 s{S.t2}, s{S.t2}, 7
s_sub_u32 s{S.r0}, s{S.r0}, s{S.t2}
s_lshl_b32 s{S.ox}, s{S.r0}, 7
s_mul_i32 s{S.ow}, s{S.r0}, 172032
s_lshl_b32 s{S.mX}, s{S.w}, 11
s_lshl_b32 s{S.mW}, s{S.w}, 10
s_add_u32 s{S.mW}, s{S.mW}, {L_WR}
v_lshrrev_b32 v{T}, 3, v{V.lane}
v_and_b32 v{T+1}, 7, v{V.lane}
v_bfe_u32 v{T+2}, v{V.lane}, 4, 2
v_xor_b32 v{T+2}, v{T+1}, v{T+2}
v_mul_u32_u24 v{V.xa0}, 896, v{T}
v_lshl_add_u32 v{V.xa0}, v{T+2}, 4, v{V.xa0}
s_lshl_b32 s{S.t2}, s{S.tb}, 3
s_add_u32 s{S.t2}, s{S.t2}, s{S.w}
s_mul_i32 s{S.t2}, s{S.t2}, 14336
v_add_u32 v{V.xa0}, s{S.t2}, v{V.xa0}
v_add_u32 v{V.xa1}, 7168, v{V.xa0}
v_xor_b32 v{V.xa1}, 64, v{V.xa1}
v_bfe_u32 v{T+2}, v{V.lane}, 4, 1
v_lshlrev_b32 v{T+2}, 2, v{T+2}
v_xor_b32 v{T+2}, v{T+1}, v{T+2}
v_mul_u32_u24 v{V.w0}, 2688, v{T}
v_lshl_add_u32 v{V.w0}, v{T+2}, 4, v{V.w0}
s_mul_i32 s{S.t2}, s{S.w}, 21504
s_lshl_b32 s{S.t3}, s{S.j}, 7
s_add_u32 s{S.t2}, s{S.t2}, s{S.t3}
s_add_u32 s{S.t2}, s{S.t2}, 896
v_add_u32 v{V.w0}, s{S.t2}, v{V.w0}
s_cmp_eq_u32 s{S.h}, 5
s_cselect_b32 s{S.t4}, 0, 1204224
s_cmp_eq_u32 s{S.h}, 10
s_cselect_b32 s{S.t4}, 0, s{S.t4}
s_mov_b32 s{S.X+2}, 1835008
s_mov_b32 s{S.X+3}, 0x20000
s_mov_b32 s{S.W+2}, s{S.t4}
s_mov_b32 s{S.W+3}, 0x20000
s_waitcnt lgkmcnt(0)
{'s_mov_b32 s101, s98' if PROF[0] else ''}
s_mov_b32 s{S.X}, s{S.pX}
s_mov_b32 s{S.X+1}, s{S.pX+1}
s_mov_b32 s{S.W}, s{S.pWB}
s_mov_b32 s{S.W+1}, s{S.pWB+1}
s_load_dword s{S.tag}, s[{S.pWS}:{S.pWS+1}], 0
''')

def rot_offsets(k):
    for q in range(1, 7):
        k.e(f's_add_u32 s{S.ox+q}, s{S.ox+q-1}, 128\ns_cmp_eq_u32 s{S.ox+q}, 896\ns_cselect_b32 s{S.ox+q}, 0, s{S.ox+q}\ns_mul_i32 s{S.ow+q}, s{S.ox+q}, 1344')
def dma_x(k, s):
    k.e(f's_add_u32 m0, s{S.mX}, {s*16384}\ns_nop 0')
    a = k.vmop(f'buffer_load_dwordx4 v{V.xa0}, {srd(S.X)}, s{S.ox+s} offen lds')
    k.e(f's_add_u32 m0, s{S.mX}, {s*16384+1024}\ns_nop 0')
    a = k.vmop(f'buffer_load_dwordx4 v{V.xa1}, {srd(S.X)}, s{S.ox+s} offen lds')
    return a
def dma_w(k, s):
    st = s // 7
    if s == 7:
        k.e(f's_mov_b32 s{S.W}, s{S.pWA}\ns_mov_b32 s{S.W+1}, s{S.pWA+1}\ns_mov_b32 s{S.W+2}, 1204224')
        k.e(f's_xor_b32 s{S.col}, s{S.grp}, 1\ns_mul_i32 s{S.col}, s{S.col}, 896\ns_mul_i32 s{S.t0}, s{S.hA}, 56\ns_add_u32 s{S.col}, s{S.col}, s{S.t0}')
        k.e(f'v_add_u32 v{V.ws}, s{S.col}, v{V.ws}')
    if s == 14:
        k.e(f's_cmp_eq_u32 s{S.grp}, 0\ns_cselect_b32 s{S.W}, s{S.pWB}, s{S.pWA}\ns_cselect_b32 s{S.W+1}, s{S.pWB+1}, s{S.pWA+1}')
        k.e(f's_cselect_b32 s{S.t0}, s{S.h}, s{S.hA}\ns_cselect_b32 s{S.t1}, 0, 1792\ns_mul_i32 s{S.t0}, s{S.t0}, 56\ns_add_u32 s{S.t0}, s{S.t0}, s{S.t1}\ns_sub_u32 s{S.t0}, s{S.t0}, s{S.col}')
        k.e(f'v_add_u32 v{V.ws}, s{S.t0}, v{V.ws}')
    k.e(f's_add_u32 m0, s{S.mW}, {(s % NWS)*8192}\ns_nop 0')
    return k.vmop(f'buffer_load_dwordx4 v{V.w0 if st == 0 else V.ws}, {srd(S.W)}, s{S.ow + s % 7} offen lds')

def setup2(k):
    T = V.tmp
    k.e(f'''
v_and_b32 v{V.i32}, 31, v{V.lane}
v_lshrrev_b32 v{V.hh}, 5, v{V.lane}
v_lshrrev_b32 v{T}, 2, v{V.lane}
v_mul_u32_u24 v{V.ws}, 2688, v{T}
v_and_b32 v{T+1}, 3, v{V.lane}
v_lshl_add_u32 v{V.ws}, v{T+1}, 4, v{V.ws}
v_lshrrev_b32 v{T+2}, 1, v{T+1}
v_and_b32 v{T+2}, v{T+2}, v{T+1}
v_lshlrev_b32 v{T+2}, 3, v{T+2}
v_sub_u32 v{V.ws}, v{V.ws}, v{T+2}
s_mul_i32 s{S.t2}, s{S.tt}, 43008
v_add_u32 v{V.ws}, s{S.t2}, v{V.ws}
v_bfe_u32 v{T}, v{V.lane}, 1, 3
v_xor_b32 v{T}, v{T}, v{V.hh}
v_lshlrev_b32 v{T}, 4, v{T}
v_lshl_add_u32 v{T}, v{V.i32}, 7, v{T}
s_lshl_b32 s{S.t2}, s{S.tt}, 12
v_add_u32 v{V.xr}, s{S.t2}, v{T}
v_xor_b32 v{V.xr+1}, 32, v{V.xr}
v_xor_b32 v{V.xr+2}, 64, v{V.xr}
v_xor_b32 v{V.xr+3}, 96, v{V.xr}
; c, swap(c), G, r
v_and_b32 v{T}, 3, v{V.lane}
v_lshrrev_b32 v{T+1}, 1, v{T}
v_and_b32 v{T+2}, 1, v{T}
v_lshl_or_b32 v{T+1}, v{T+2}, 1, v{T+1}
v_bfe_u32 v{T+2}, v{V.lane}, 4, 1
v_lshl_or_b32 v{T}, v{T+2}, 2, v{T}
v_lshl_or_b32 v{T+1}, v{T+2}, 2, v{T+1}
v_bfe_u32 v{T+2}, v{V.lane}, 2, 2
v_lshl_or_b32 v{T+3}, v{V.hh}, 3, v{T+2}
s_cmp_lt_u32 s{S.j}, 7
s_cselect_b64 s[{S.vcm}:{S.vcm+1}], -1, 0
v_cndmask_b32 v{T+4}, v{T}, v{T+1}, s[{S.vcm}:{S.vcm+1}]
v_lshrrev_b32 v{T+5}, 1, v{T+2}
v_xor_b32 v{T+5}, s{S.grp}, v{T+5}
v_lshlrev_b32 v{T+5}, 6, v{T+5}
v_lshl_add_u32 v{T+5}, v{T+4}, 3, v{T+5}
v_lshl_add_u32 v{T+5}, v{T+3}, 7, v{T+5}
v_add_u32 v{V.t0r}, {L_WR}, v{T+5}
; stage 1: swapped order for both groups ; position p = g ^ ((g>>1)&(g>>2)&1)
s_cmp_eq_u32 s{S.grp}, 0
s_cselect_b64 s[{S.vcm}:{S.vcm+1}], -1, 0
s_cselect_b32 s{S.t3}, s{S.h}, 0
s_and_b32 s{S.t3}, s{S.t3}, 1
s_lshl_b32 s{S.t2}, s{S.grp}, 12
s_add_u32 s{S.t2}, s{S.t2}, {L_WR}
v_lshrrev_b32 v{T+5}, 1, v{T+1}
v_lshrrev_b32 v{T+6}, 2, v{T+1}
v_and_b32 v{T+5}, v{T+5}, v{T+6}
v_and_b32 v{T+5}, 1, v{T+5}
v_xor_b32 v{T+4}, v{T+1}, v{T+5}
v_lshlrev_b32 v{T+4}, 3, v{T+4}
v_lshl_add_u32 v{T+4}, v{T+3}, 6, v{T+4}
v_add_u32 v{V.t1r}, s{S.t2}, v{T+4}
v_cndmask_b32 v{T+4}, v{T}, v{T+1}, s[{S.vcm}:{S.vcm+1}]
v_subrev_u32 v{T+4}, s{S.t3}, v{T+4}
v_and_b32 v{T+4}, 7, v{T+4}
v_lshrrev_b32 v{T+5}, 1, v{T+4}
v_lshrrev_b32 v{T+6}, 2, v{T+4}
v_and_b32 v{T+5}, v{T+5}, v{T+6}
v_and_b32 v{T+5}, 1, v{T+5}
v_xor_b32 v{T+4}, v{T+4}, v{T+5}
v_lshlrev_b32 v{T+4}, 3, v{T+4}
v_lshl_add_u32 v{T+4}, v{T+3}, 6, v{T+4}
v_add_u32 v{V.t2r}, s{S.t2}, v{T+4}
s_mov_b32 s{S.lo28}, 0x0fffffff
s_mov_b32 s{S.lo28+1}, 0x0fffffff
s_mov_b32 s{S.hi32}, 0
s_mov_b32 s{S.hi32+1}, -1
s_getreg_b32 s{S.xcc}, hwreg(HW_REG_XCC_ID, 0, 4)
''')
    set_srd(k, S.WS, S.pWS, WS_SIZE)

def small_loads(k, opts):
    T = V.tmp
    set_srd(k, S.M1, S.pGW, 896)
    set_srd(k, S.M2, S.pPHI, 25088)
    k.e(f'''
v_and_b32 v{T}, 15, v{V.lane}
v_lshlrev_b32 v{T}, 1, v{T}
s_lshl_b32 s{S.t2}, s{S.tt}, 5
v_add_u32 v{T}, s{S.t2}, v{T}
''')
    for q in range(7):
        k.vmop(f'buffer_load_ushort v{V.gw+q}, v{T}, {srd(S.M1)}, s{S.ox+q} offen')
    k.e(f'''
s_lshl_b32 s{S.t2}, s{S.tt}, 3
v_lshrrev_b32 v{T+1}, 3, v{V.lane}
v_add_u32 v{T+1}, s{S.t2}, v{T+1}
v_and_b32 v{T+2}, 7, v{V.lane}
v_mul_u32_u24 v{T+3}, 56, v{T+1}
v_lshl_add_u32 v{T+3}, v{T+2}, 3, v{T+3}
s_mul_i32 s{S.t2}, s{S.hA}, 1568
v_add_u32 v{T+3}, s{S.t2}, v{T+3}
v_add_u32 v{T+1}, 4, v{T+1}
v_add_u32 v{T+2}, 1, v{T+2}
v_lshrrev_b32 v{T+1}, 5, v{T+1}
v_lshrrev_b32 v{T+2}, 3, v{T+2}
v_or_b32 v{T+1}, v{T+1}, v{T+2}
v_lshl_or_b32 v{T+3}, v{T+1}, 30, v{T+3}
''')
    a = k.vmop(f'buffer_load_dwordx2 v[{V.EM}:{V.EM+1}], v{T+3}, {srd(S.M2)}, 0 offen')
    k.e(f'''s_lshl_b32 s{S.t2}, s{S.j}, 6
s_add_u32 s{S.t2}, s{S.t2}, {WS_FLAG1}
v_mov_b32 v{T}, s{S.t2}
s_lshl_b32 s{S.t2}, s{S.hA}, 3
s_add_u32 s{S.t2}, s{S.t2}, s{S.w}
s_lshl_b32 s{S.t2}, s{S.t2}, 6
s_add_u32 s{S.t2}, s{S.t2}, {WS_FLAG2A}
v_writelane_b32 v{T}, s{S.t2}, 1
s_lshl_b32 s{S.t2}, s{S.hA}, 6
s_add_u32 s{S.t2}, s{S.t2}, {WS_FLAG2B}
v_writelane_b32 v{T}, s{S.t2}, 2
s_lshl_b32 s{S.t2}, s{S.tb}, 6
s_add_u32 s{S.t2}, s{S.t2}, {WS_FLAGX}
v_writelane_b32 v{T}, s{S.t2}, 3''')
    if opts['touch0']: k.vmop(f'buffer_load_dword v{V.EM+2}, v{T}, {srd(S.WS)}, 0 offen sc1')
    return a

def reads(s):
    st = s // 7; buf = V.wf + 16*(s % 2); out = []
    base = [V.t0r, V.t1r, V.t2r][st]; qs, js = (2048, 512) if st == 0 else (1024, 256)
    for q in range(4):
        if st == 0:
            if s == 4: out.append(f'v_add_u32 v{V.xr+q}, 0x10000, v{V.xr+q}')
            out.append(f'ds_read_b128 {vr(V.xf+16*s+4*q,4)}, v{V.xr+q} offset:{(s % 4)*16384}')
        for jh in range(2):
            out.append(f'ds_read_b64_tr_b16 {vr(buf+4*q+2*jh,2)}, v{base} offset:{(s % NWS)*8192+q*qs+jh*js}')
    return out
def mfmas(s, wfirst):
    st = s // 7; c = s % 7; buf = V.wf + 16*(s % 2); acc = V.acc0 if st != 1 else V.acc1; out = []
    for q in range(4):
        x = V.xf + 16*c + 4*q; w = buf + 4*q
        cin = '0' if (c == 0 and q == 0) else acc
        out.append(mfma(acc, w, x, cin) if wfirst else mfma(acc, x, w, cin))
    return out
def nlines(p): return len([l for l in p.strip().split('\n') if l.strip()]) if isinstance(p, str) else p.n
class Job:
    def __init__(self, f, n): self.f, self.n = f, n
def emit(k, p):
    if isinstance(p, str): k.e(p)
    else: p.f()
def split_pieces(pieces, nslots):
    tot = sum(nlines(p) for p in pieces); out = [[] for _ in range(nslots)]; acc = 0
    for p in pieces:
        out[min(nslots-1, int((acc + nlines(p)/2) * nslots / max(tot, 1)))].append(p); acc += nlines(p)
    return out
def lines(txt): return [l for l in txt.strip().split('\n') if l.strip()]

def cvt16(k, dst, src):
    for q in range(8): k.e(f'v_cvt_pk_bf16_f32 v{dst+q}, v{src+2*q}, v{src+2*q+1}')

def epi0_addr_k():
    T = V.tmp; k = Stream()
    k.e(f'''
s_lshl_b32 s{S.t2}, s{S.j}, 3
s_lshl_b32 s{S.t3}, s{S.grp}, 2
s_add_u32 s{S.t2}, s{S.t2}, s{S.t3}
v_and_b32 v{T}, 0x13, v{V.i32}
v_bfe_u32 v{T+1}, v{V.i32}, 2, 1
v_lshl_or_b32 v{T}, v{T+1}, 3, v{T}
v_bfe_u32 v{T+1}, v{V.i32}, 3, 1
v_lshl_or_b32 v{T}, v{T+1}, 2, v{T}
v_lshlrev_b32 v{T}, 4, v{T}
s_lshl_b32 s{S.t3}, s{S.tb}, 2
s_add_u32 s{S.t3}, s{S.t3}, s{S.tt}
s_lshl_b32 s{S.t3}, s{S.t3}, 11
s_add_u32 s{S.t3}, s{S.t3}, {WS_KB}
v_add_u32 v{T}, s{S.t3}, v{T}
''')
    for s in range(2):
        k.e(f'''
v_add_u32 v{T+1}, s{S.t2}, v{V.hh}
v_add_u32 v{T+1}, {2*s}, v{T+1}
v_mul_u32_u24 v{T+2}, 37, v{T+1}
v_lshrrev_b32 v{T+2}, 8, v{T+2}
v_mul_u32_u24 v{T+3}, 7, v{T+2}
v_sub_u32 v{T+3}, v{T+1}, v{T+3}
v_lshrrev_b32 v{T+4}, 2, v{T+3}
v_lshl_add_u32 v{T+5}, v{T+2}, 1, v{T+4}
v_mul_u32_u24 v{T+4}, 3, v{T+4}
v_sub_u32 v{T+4}, v{T+3}, v{T+4}
v_lshl_add_u32 v{V.EP+s}, v{T+5}, 17, v{T}
v_lshl_add_u32 v{V.EP+s}, v{T+4}, 9, v{V.EP+s}
v_lshl_add_u32 v{V.EP+2+s}, v{T+2}, 18, v{T}
v_add_u32 v{V.EP+2+s}, 0x20000, v{V.EP+2+s}
v_xor_b32 v{T+3}, 3, v{T+3}
v_min_u32 v{T+3}, 1, v{T+3}
v_lshl_or_b32 v{V.EP+2+s}, v{T+3}, 30, v{V.EP+2+s}
''')
    return k.L
def epi0_addr_v():
    T = V.tmp; k = Stream()
    k.e(f'''
s_sub_u32 s{S.t2}, s{S.j}, 7
s_lshl_b32 s{S.t2}, s{S.t2}, 6
s_lshl_b32 s{S.t3}, s{S.grp}, 5
s_add_u32 s{S.t2}, s{S.t2}, s{S.t3}
v_add_u32 v{T}, s{S.t2}, v{V.i32}
v_mul_u32_u24 v{T+1}, 2341, v{T}
v_lshrrev_b32 v{T+1}, 16, v{T+1}
v_mul_u32_u24 v{T+2}, 28, v{T+1}
v_sub_u32 v{T+2}, v{T}, v{T+2}
s_lshl_b32 s{S.t3}, s{S.tb}, 2
s_add_u32 s{S.t3}, s{S.t3}, s{S.tt}
s_mul_i32 s{S.t3}, s{S.t3}, 1792
s_add_u32 s{S.t3}, s{S.t3}, {WS_VB}
v_mul_u32_u24 v{T+1}, 114688, v{T+1}
v_lshl_add_u32 v{T+1}, v{T+2}, 4, v{T+1}
v_mul_u32_u24 v{T+2}, 448, v{V.hh}
v_add3_u32 v{V.EP}, v{T+1}, v{T+2}, s{S.t3}
v_add_u32 v{V.EP+1}, 896, v{V.EP}
v_mov_b32 v{V.EP+2}, {OOB}
v_mov_b32 v{V.EP+3}, {OOB}
''')
    return k.L


class A:
    ks, vs, kv0, kv1, idx, m = 6, 12, 8, 9, 10, 11
    a0, a1, a2 = 7, 13, 14
    f0, f1 = 4, 5
    Q, KF, V0, V1, O, NM, SA, SB, PHQ = 128, 136, 144, 112, 160, 176, 192, 208, 32
    l = 152; t = 153
    WOA, OF, RED = 16, 80, 48
    WOB, ACC = 176, 128
    wsrc = 124

def wphi_reads():
    T = V.tmp
    a = lines(f'''v_and_b32 v{T}, 3, v{V.lane}
v_bfe_u32 v{T+1}, v{V.lane}, 4, 1
v_lshl_or_b32 v{T}, v{T+1}, 2, v{T}
v_bfe_u32 v{T+1}, v{V.lane}, 2, 2
v_lshl_or_b32 v{T+1}, v{V.hh}, 3, v{T+1}
v_lshlrev_b32 v{T}, 3, v{T}
v_lshl_add_u32 v{T}, v{T+1}, 6, v{T}
v_add_u32 v{T}, {L_WPHI}, v{T}''')
    for s in range(2):
        for jh in range(2): a.append(f'ds_read_b64_tr_b16 {vr(V.EM+4*s+2*jh,2)}, v{T} offset:{s*1024+jh*256}')
    a.append(f's_mov_b32 s{S.t6}, {fbits(LOG2E)}')
    return a

def feat_pieces(src, dst, round_p=True):
    T = V.tmp+2; P, EP, EM = V.P, V.EP, V.EM
    sA = S.t6; c = []
    c += [f'v_cvt_pk_bf16_f32 v{EM+8+q}, v{src+2*q}, v{src+2*q+1}' for q in range(8)]
    c += [mfma(P, EM, EM+8, '0') + '\n' + mfma(P, EM+4, EM+12, P), 'WAITP']
    if round_p:
        c += [f'v_cvt_pk_bf16_f32 v{EP+q}, v{P+2*q}, v{P+2*q+1}' for q in range(8)]
        for q in range(8): c += [f'v_lshlrev_b32 v{P+2*q}, 16, v{EP+q}', f'v_and_b32 v{P+2*q+1}, 0xffff0000, v{EP+q}']
    c.append(f's_mov_b64 exec, s[{S.hi32}:{S.hi32+1}]\n' + ''.join(f'v_mov_b32 v{P+12+q}, v{P}\n' for q in range(4)) + 's_mov_b64 exec, -1')
    c += [f'v_max3_f32 v{T}, v{P}, v{P+1}, v{P+2}', f'v_max3_f32 v{T+1}, -v{P}, -v{P+1}, -v{P+2}']
    for q in range(3, 15, 2):
        c += [f'v_max3_f32 v{T}, v{T}, v{P+q}, v{P+q+1}', f'v_max3_f32 v{T+1}, v{T+1}, -v{P+q}, -v{P+q+1}']
    c.append(f'''v_max_f32 v{T}, v{T}, v{P+15}
v_max_f32_e64 v{T+1}, v{T+1}, -v{P+15}
s_nop 1
v_permlane32_swap_b32 v{T}, v{T+1}
v_max_f32 v{T}, v{T}, v{T+1}
v_mul_f32 v{T+1}, s{sA}, v{T}
v_mul_f32 v{T+3}, s{sA}, v{T}
s_nop 1
v_permlane32_swap_b32 v{T+1}, v{T+3}''')
    for q in range(8):
        c.append(f'v_pk_fma_f32 {vr(EP+2*q,2)}, {vr(P+2*q,2)}, s[{sA}:{sA+1}], {vr(T+1,2)} op_sel_hi:[1,0,0] neg_lo:[0,0,1] neg_hi:[0,0,1]')
        c.append(f'v_pk_fma_f32 {vr(EM+2*q,2)}, {vr(P+2*q,2)}, s[{sA}:{sA+1}], {vr(T+3,2)} op_sel_hi:[1,0,0] neg_lo:[1,0,1] neg_hi:[1,0,1]')
    c += [f'v_exp_f32 v{EP+q}, v{EP+q}\n; x' for q in range(16)]
    c += [f'v_exp_f32 v{EM+q}, v{EM+q}\n; x' for q in range(16)]
    c.append(f's_mov_b64 exec, s[{S.hi32}:{S.hi32+1}]\n' + ''.join(f'v_mov_b32 v{EP+12+q}, 0\n' for q in range(4)) + ''.join(f'v_mov_b32 v{EM+12+q}, 0\n' for q in range(4)) + 's_mov_b64 exec, -1')
    c += [f'v_pk_add_f32 {vr(T+1,2)}, {vr(EP,2)}, {vr(EP+2,2)}', f'v_pk_add_f32 {vr(T+3,2)}, {vr(EM,2)}, {vr(EM+2,2)}']
    for q in range(2, 8):
        c += [f'v_pk_add_f32 {vr(T+1,2)}, {vr(T+1,2)}, {vr(EP+2*q,2)}', f'v_pk_add_f32 {vr(T+3,2)}, {vr(T+3,2)}, {vr(EM+2*q,2)}']
    c.append(f'''v_add_f32 v{T+1}, v{T+1}, v{T+2}
v_add_f32 v{T+3}, v{T+3}, v{T+4}
s_nop 1
v_permlane32_swap_b32 v{T+1}, v{T+3}
v_add_f32 v{T+1}, v{T+1}, v{T+3}
v_rcp_f32 v{T+1}, v{T+1}
s_nop 0
v_mov_b32 v{T+3}, v{T+1}
s_nop 1
v_permlane32_swap_b32 v{T+1}, v{T+3}''')
    for q in range(8):
        c.append(f'v_pk_mul_f32 {vr(EP+2*q,2)}, {vr(EP+2*q,2)}, {vr(T+1,2)} op_sel_hi:[1,0]')
        c.append(f'v_pk_mul_f32 {vr(EM+2*q,2)}, {vr(EM+2*q,2)}, {vr(T+3,2)} op_sel_hi:[1,0]')
    for q in range(8):
        c += [f'v_cvt_pk_bf16_f32 v{dst+q}, v{EP+2*q}, v{EP+2*q+1}', f'v_cvt_pk_bf16_f32 v{dst+8+q}, v{EM+2*q}, v{EM+2*q+1}']
    return c

def phi_base():
    T = V.tmp; D = A.m
    return lines(f'''v_and_b32 v{D}, 1, v{V.i32}
v_bfe_u32 v{T}, v{V.i32}, 2, 2
v_lshl_or_b32 v{D}, v{T}, 1, v{D}
v_bfe_u32 v{T}, v{V.i32}, 1, 1
v_lshl_or_b32 v{D}, v{T}, 3, v{D}
v_xor_b32 v{D}, v{D}, v{V.hh}
v_lshlrev_b32 v{D}, 3, v{D}
v_lshl_add_u32 v{D}, v{V.i32}, 7, v{D}
s_lshl_b32 s{S.t2}, s{S.tt}, 12
s_add_u32 s{S.t2}, s{S.t2}, {L_PHI}
v_add_u32 v{D}, s{S.t2}, v{D}''')
def phi_write(src):
    T = V.tmp; out = []
    for s in range(2):
        for g in range(4):
            u = 8*s + 2*g
            out.append((f'v_xor_b32 v{T}, {u*8}, v{A.m}\n' if u else '') + f'ds_write_b64 v{T if u else A.m}, {vr(src+8*s+2*g,2)}')
    return out

def va_stage(k):
    cvt16(k, V.P, V.acc0)
    k.e(f's_mov_b32 exec_lo, 0xf0000000\ns_mov_b32 exec_hi, 0xf0000000')
    for q in range(8): k.e(f'v_mov_b32 v{V.P+q}, 0')
    k.e(f's_mov_b32 exec_lo, 0x10000000\ns_mov_b32 exec_hi, 0x10000000')
    for q in range(8): k.e(f'v_mov_b32 v{V.P+q}, 0x3f803f80')
    k.e(f'''s_mov_b64 exec, -1
ds_write_b128 v{A.a0}, {vr(V.P,4)} offset:{L_STG-L_QX}
ds_write_b128 v{A.a0}, {vr(V.P+4,4)} offset:{L_STG-L_QX+1024}''')

KVB = 240
def kv_addr_setup(D):
    T = V.tmp
    return lines(f'''s_lshr_b32 s{S.t2}, s{S.w}, 1
s_lshl_b32 s{S.t3}, s{S.t2}, 2
v_and_b32 v{T}, 3, v{V.lane}
v_or_b32 v{T}, s{S.t3}, v{T}
v_bfe_u32 v{T+1}, v{V.lane}, 2, 1
v_bfe_u32 v{D}, v{V.lane}, 4, 1
v_lshl_or_b32 v{T+1}, v{D}, 1, v{T+1}
v_bfe_u32 v{D+1}, v{V.lane}, 3, 1
v_lshl_or_b32 v{T+1}, v{D+1}, 3, v{T+1}
v_xor_b32 v{T}, v{T}, v{T+1}
v_bfe_u32 v{T+1}, v{V.lane}, 2, 2
v_lshl_or_b32 v{T+1}, v{D}, 2, v{T+1}
v_lshl_or_b32 v{T+1}, v{V.hh}, 4, v{T+1}
v_lshlrev_b32 v{T}, 3, v{T}
v_lshl_add_u32 v{T}, v{T+1}, 7, v{T}
v_and_b32 v{T+1}, 15, v{V.lane}
s_and_b32 s{S.t3}, s{S.w}, 1
s_lshl_b32 s{S.t3}, s{S.t3}, 4
v_add_u32 v{T+1}, s{S.t3}, v{T+1}
v_lshl_add_u32 v{D+3}, v{D}, 5, v{T+1}
v_lshlrev_b32 v{D+3}, 5, v{D+3}
v_lshl_add_u32 v{D+3}, v{V.hh}, 4, v{D+3}
s_lshl_b32 s{S.t3}, s{S.hA}, 4
s_add_u32 s{S.t3}, s{S.t3}, s{S.tb}
s_lshl_b32 s{S.t3}, s{S.t3}, 2
s_add_u32 s{S.t3}, s{S.t3}, s{S.t2}
s_lshl_b32 s{S.t3}, s{S.t3}, 11
s_add_u32 s{S.t3}, s{S.t3}, {WS_KVP}
v_add_u32 v{D+3}, s{S.t3}, v{D+3}
v_lshlrev_b32 v{T+1}, 4, v{T+1}
v_lshrrev_b32 v{D+2}, 4, v{V.lane}
v_lshl_add_u32 v{D+2}, v{D+2}, 9, v{T+1}
v_add_u32 v{D+2}, {L_STG}, v{D+2}
v_add_u32 v{D}, {L_PHI}, v{T}
v_add_u32 v{D+1}, 1024, v{D}
v_xor_b32 v{D+1}, 32, v{D+1}''')
def kv_partial(k):
    D = KVB; ids = []
    for Tt in range(4):
        k.ds(f'ds_read_b64_tr_b16 {vr(V.EP+4*Tt,2)}, v{D} offset:{Tt*4096}')
        k.ds(f'ds_read_b64_tr_b16 {vr(V.EP+4*Tt+2,2)}, v{D+1} offset:{Tt*4096}')
        ids.append(k.ds(f'ds_read_b128 {vr(V.EM+4*Tt,4)}, v{D+2} offset:{Tt*2048}'))
    return ids
def kv_partial2(k, ids):
    for Tt in range(4):
        k.dswait(ids[Tt])
        k.e(f'v_mfma_f32_16x16x32_bf16 {vr(V.P,4)}, {vr(V.EP+4*Tt,4)}, {vr(V.EM+4*Tt,4)}, {"0" if Tt == 0 else vr(V.P,4)}')
def kv_partial3(k):
    return k.vmop(f'buffer_store_dwordx4 {vr(V.P,4)}, v{KVB+3}, {srd(S.WS)}, 0 offen sc1')

def flag_store(k, addr_s, val_s, sc='sc1', opt=True):
    T = V.tmp
    k.e(f'v_mov_b32 v{T}, s{addr_s}\nv_mov_b32 v{T+1}, s{val_s}\ns_mov_b64 exec, 1')
    a = k.vmop(f'buffer_store_dword v{T+1}, v{T}, {srd(S.WS)}, 0 offen {sc}', opt=opt)
    k.e('s_mov_b64 exec, -1')
    return a

_lbl = [0]
def lbl(p):
    _lbl[0] += 1; return f'L_{p}_{_lbl[0]}'

def flag_check(k, ld_id, vflag, vaddr, mask=False):
    L1, L2 = lbl('poll'), lbl('polled')
    k.vmwait(ld_id)
    T = V.tmp
    cmp = f'v_and_b32 v{T}, -16, v{vflag}\nv_cmp_ne_u32 vcc, s{S.tag}, v{T}' if mask else f'v_cmp_ne_u32 vcc, s{S.tag}, v{vflag}'
    k.e(f'{cmp}\ns_cbranch_vccnz {L1}\n{L2}:')
    k.cold.e(f'''{L1}:
s_mov_b32 s{S.spin}, {SPIN}
{L1}_a:
s_sleep 1
buffer_load_dword v{vflag}, v{vaddr}, {srd(S.WS)}, 0 offen sc1
s_waitcnt vmcnt(0)
{cmp}
s_cbranch_vccz {L2}
s_sub_u32 s{S.spin}, s{S.spin}, 1
s_cbranch_scc0 {L1}_a
s_branch {L2}''')

def vconst_rows(k):
    T = V.tmp
    L = lbl('vc')
    k.e(f's_cmp_ge_u32 s{S.w}, 6\ns_cbranch_scc1 {L}')
    k.e(f's_lshr_b32 s{S.t2}, s{S.w}, 1\ns_lshl_b32 s{S.t2}, s{S.t2}, 15\ns_and_b32 s{S.t3}, s{S.w}, 1\ns_lshl_b32 s{S.t3}, s{S.t3}, 13\ns_add_u32 s{S.t2}, s{S.t2}, s{S.t3}\ns_add_u32 s{S.t2}, s{S.t2}, 16384')
    k.e(f'''
v_lshrrev_b32 v{T}, 2, v{V.lane}
v_and_b32 v{T+5}, 3, v{V.lane}
v_lshlrev_b32 v{T}, 9, v{T}
v_lshl_add_u32 v{T}, v{T+5}, 4, v{T}
v_add_u32 v{T}, s{S.t2}, v{T}
v_min_u32 v{T+5}, 1, v{T+5}
v_subrev_u32 v{T+5}, 1, v{T+5}
v_and_b32 v{T+1}, 0x3f803f80, v{T+5}
v_mov_b32 v{T+2}, v{T+1}
v_mov_b32 v{T+3}, v{T+1}
v_mov_b32 v{T+4}, v{T+1}
ds_write_b128 v{T}, {vr(T+1,4)} offset:448
{L}:
''')

def step(k, s, ids, wfirst, pieces=(), gate=False, tailp=()):
    k.c(f'---- step {s}')
    if gate: k.e(f'v_mov_b32 v{V.tmp+7}, v{V.gw + s - 14}')
    k.vmwait(ids[s])
    stamp(k, f'step{s}')
    if gate: k.e(f'ds_write_b64 v{V.g}, {vr(V.tmp+7,2)} offset:{(s % NWS)*8192}')
    k.e('s_waitcnt lgkmcnt(0)\ns_barrier')
    mf = mfmas(s-1, wfirst) if s >= 1 else [None]*4
    rd = reads(s); n = len(rd)
    if 'rd' in DBG: rd = [r for r in rd if not r.startswith('ds_')]; n = len(rd)
    if 'mf' in DBG: mf = [None]*4
    if 'pc' in DBG and s >= 14: pieces = [p for p in pieces if not isinstance(p, str)]
    rds = [rd[:n//2], rd[n//2:], [], []]
    pcs = split_pieces(list(pieces), 4)
    for q in range(4):
        if mf[q]: k.e(mf[q])
        for r in rds[q]: k.e(r)
        for p in pcs[q]: emit(k, p)
    if s + 3 <= 6: ids[s+3] = dma_x(k, s + 3)
    if s + 4 <= 20: ids[s+4] = dma_w(k, s + 4)
    for p in tailp: emit(k, p)

def stage0(k, ids, ktype, opts):
    def fx():
        L = lbl('fx')
        k.e(f'''s_add_u32 s{S.tag}, s{S.tag}, 0x9e3779b0
s_and_b32 s{S.tag}, s{S.tag}, -16
s_cmp_lg_u32 s{S.w}, 0
s_cbranch_scc1 {L}
s_lshl_b32 s{S.t2}, s{S.tb}, 4
s_add_u32 s{S.t2}, s{S.t2}, s{S.h}
s_lshl_b32 s{S.t2}, s{S.t2}, 2
s_add_u32 s{S.t2}, s{S.t2}, {WS_FLAGX}
s_or_b32 s{S.t3}, s{S.tag}, s{S.xcc}''')
        flag_store(k, S.t2, S.t3)
        k.e(f'{L}:')
    ep = (epi0_addr_k if ktype else epi0_addr_v)()
    P = {opts['fx_step']: [Job(fx, 4)], 1: ['\n'.join(ep)],
         4: [f's_lshl_b32 s{S.t2}, s{S.tt}, 9\ns_add_u32 s{S.t2}, s{S.t2}, {L_WPHI}\nv_lshl_add_u32 v{V.tmp}, v{V.lane}, 3, s{S.t2}\nds_write_b64 v{V.tmp}, {vr(V.EM,2)}'],
         5: [f's_cmp_eq_u32 s{S.h}, 5\ns_cselect_b32 s{S.t4}, 0, {WS_SIZE}\ns_cmp_eq_u32 s{S.h}, 10\ns_cselect_b32 s{S.M1+2}, 0, s{S.t4}\ns_mov_b32 s{S.M1}, s{S.pWS}\ns_mov_b32 s{S.M1+1}, s{S.pWS+1}']}
    for s in range(0, 8): step(k, s, ids, ktype, P.get(s, ()))

def stage0_epilogue(k):
    vconst_rows(k)
    cvt16(k, V.P, V.acc0)
    for q in range(4):
        a = k.vmop(f'buffer_store_dwordx4 {vr(V.P+4*(q%2),4)}, v{V.EP+q}, {srd(S.M1)}, 0 offen sc1')
    return a

def attn_addr(grp, first):
    T = V.tmp
    return [f'''s_lshr_b32 s{S.rot}, s{S.tb}, 1
s_and_b32 s{S.t2}, s{S.tb}, 1
s_lshl_b32 s{S.t2}, s{S.t2}, 2
s_add_u32 s{S.rot}, s{S.rot}, s{S.t2}
s_add_u32 s{S.rot}, s{S.rot}, {first}
s_and_b32 s{S.rot}, s{S.rot}, 7
s_lshl_b32 s{S.sK}, s{S.rot}, 13
s_mul_i32 s{S.sV}, s{S.rot}, 7168
s_lshl_b32 s{S.mK}, s{S.tt}, 11''', f'''s_lshl_b32 s{S.t2}, s{S.h}, 17
s_add_u32 s{S.t2}, s{S.t2}, s{S.mK}
s_add_u32 s{S.t2}, s{S.t2}, {WS_KB}
v_lshl_add_u32 v{A.ks}, v{V.lane}, 4, s{S.t2}''', f'''s_mul_i32 s{S.t2}, s{S.h}, 114688
s_mul_i32 s{S.t3}, s{S.tt}, 1792
s_add_u32 s{S.t2}, s{S.t2}, s{S.t3}
s_add_u32 s{S.t2}, s{S.t2}, {WS_VB}
v_mul_u32_u24 v{T}, 448, v{V.hh}
v_lshl_add_u32 v{T}, v{V.i32}, 4, v{T}
v_add_u32 v{A.vs}, s{S.t2}, v{T}''', f'''v_lshlrev_b32 v{A.kv0}, 4, v{V.lane}
v_add_u32 v{A.kv0}, {grp*8192}, v{A.kv0}
v_add_u32 v{A.kv1}, 0x10000, v{A.kv0}
v_mov_b32 v{A.idx}, 0xdddddddd''']

def kv_dma_jobs(k, stage, out):
    slot = stage % 3; J = []
    for g in range(2):
        def jk(g=g):
            k.e(f's_add_u32 m0, s{S.mK}, {slot*32768+g*8192}\ns_add_u32 s{S.t0}, s{S.sK}, {g*65536}')
            k.vmop(f'buffer_load_dwordx4 v{A.ks}, {srd(S.WS)}, s{S.t0} offen sc1 lds')
            k.vmop(f'buffer_load_dwordx4 v{A.ks}, {srd(S.WS)}, s{S.t0} offen offset:1024 sc1 lds')
        def jv(g=g):
            k.e(f's_add_u32 m0, s{S.mK}, {slot*32768+16384+g*8192}\ns_add_u32 s{S.t0}, s{S.sV}, {g*57344}\ns_mov_b64 exec, s[{S.lo28}:{S.lo28+1}]')
            k.vmop(f'buffer_load_dwordx4 v{A.vs}, {srd(S.WS)}, s{S.t0} offen sc1 lds')
            k.e(f's_add_u32 m0, s{S.mK}, {slot*32768+16384+128+g*8192}\ns_nop 0')
            out[stage] = k.vmop(f'buffer_load_dwordx4 v{A.vs}, {srd(S.WS)}, s{S.t0} offen offset:896 sc1 lds')
            k.e('s_mov_b64 exec, -1')
            if g: k.e(f's_add_u32 s{S.rot}, s{S.rot}, 1\ns_and_b32 s{S.rot}, s{S.rot}, 7\ns_lshl_b32 s{S.sK}, s{S.rot}, 13\ns_mul_i32 s{S.sV}, s{S.rot}, 7168')
        J += [Job(jk, 8), Job(jv, 12)]
    return J

def stages12(k, ids, grp, st_id, opts):
    T = V.tmp; out = {}; st = {}
    P = {s: [] for s in range(8, 21)}; TP = {s: [] for s in range(8, 21)}
    npre = opts['npre']
    P[8] += attn_addr(grp, npre if grp == 0 else 0)
    if grp == 0:
        P[9] += ['\n'.join(phi_base())]
        P[10] += [f'v_and_b32 v{V.g}, 15, v{V.lane}\nv_lshlrev_b32 v{V.g}, 6, v{V.g}\ns_add_u32 s{S.t2}, s{S.mW}, 48\nv_add_u32 v{V.g}, s{S.t2}, v{V.g}']
    else:
        P[9] += [f'''s_mul_i32 s{S.t2}, s{S.h}, 28
s_add_u32 s{S.t3}, s{S.t2}, 27
s_lshr_b32 s{S.t2}, s{S.t2}, 6
s_lshr_b32 s{S.t3}, s{S.t3}, 6
s_sub_u32 s{S.t3}, s{S.t3}, s{S.t2}
v_bfe_u32 v{T}, v{V.lane}, 4, 1
v_mul_u32_u24 v{T}, s{S.t3}, v{T}
v_mul_u32_u24 v{T+1}, 7, v{V.hh}
v_add3_u32 v{T}, v{T}, v{T+1}, s{S.t2}
v_and_b32 v{T+1}, 15, v{V.lane}
v_lshlrev_b32 v{T+1}, 2, v{T+1}
v_lshl_add_u32 v{T}, v{T}, 6, v{T+1}
v_add_u32 v{A.f1}, {WS_FLAG1}, v{T}''']
        P[10] += ['\n'.join(kv_addr_setup(KVB))]
    P[13] += ['\n'.join(wphi_reads()), f'v_mov_b32 v{V.tmp+8}, 0']
    def f1pub():
        assert k.vmcount(st_id) is None
        L = lbl('f1')
        k.e(f'''s_cmp_lg_u32 s{S.w}, 0
s_cbranch_scc1 {L}
s_cmp_eq_u32 s{S.M1+2}, 0
s_cbranch_scc1 {L}
s_lshl_b32 s{S.t2}, s{S.j}, 4
s_add_u32 s{S.t2}, s{S.t2}, s{S.tb}
s_lshl_b32 s{S.t2}, s{S.t2}, 2
s_add_u32 s{S.t2}, s{S.t2}, {WS_FLAG1}''')
        flag_store(k, S.t2, S.tag)
        k.e(f'{L}:')
    if grp == 0: P[opts['f1_step']].insert(0, Job(f1pub, 2))
    fp = feat_pieces(V.acc1, V.acc1, opts['round_p'])
    i = fp.index('WAITP')
    TP[14] += fp[:i]
    rest = fp[i+1:] + (phi_write(V.acc1) if grp == 0 else [])
    last = 20 if grp == 0 else opts['qfeat_last']
    for n, grpp in enumerate(split_pieces(rest, last - 14)): P[15+n] += grpp
    if grp == 0: TP[18].append('\n'.join(kv_addr_setup(KVB)))
    TP[16].append(f's_lshl_b32 s{S.t2}, s{S.tt}, 11\ns_add_u32 s{S.t2}, s{S.t2}, {L_QX}\nv_lshl_add_u32 v{A.a0}, v{V.lane}, 4, s{S.t2}')
    if grp == 1:
        def f1ld(): out['f1'] = k.vmop(f'buffer_load_dword v{A.f0}, v{A.f1}, {srd(S.WS)}, 0 offen sc1')
        c = opts['f1_check']
        TP[c-2].append(Job(f1ld, 1))
        TP[c].append(Job(lambda: (flag_check(k, out['f1'], A.f0, A.f1), stamp(k, 'f1seen')), 3))
        dj = []
        for s_ in range(npre): dj += kv_dma_jobs(k, s_, st)
        TP[c] += dj[:2]; dj = dj[2:]
        for s_ in range(c+1, 21):
            n = min(len(dj), 4); P[s_] += dj[:n]; dj = dj[n:]
        out['left'] = dj
    for s in range(8, 21):
        if s == opts['f1_step']: k.vmwait(st_id)
        step(k, s, ids, not (grp == 1 and s-1 >= 14), P[s], gate=(grp == 0 and s >= 14), tailp=TP[s])
    for m in mfmas(20, grp == 0): k.e(m)
    out['st'] = st
    return out

def attn_prologue(k, grp, pend, opts):
    T = V.tmp
    k.c('---- attention prologue')
    stamp(k, 'p1done')
    st = pend['st']
    if grp == 0:
        a0 = V.acc0
        k.e(f'''v_mov_b32 v{T+1}, v{a0+12}
v_mov_b32 v{T+3}, v{a0+12}
v_mov_b32 v{T+2}, v{a0}
v_mov_b32 v{T+4}, v{a0}
s_mov_b32 s{S.t6}, {fbits(QSCALE)}
v_permlane32_swap_b32 v{T+1}, v{T+3}
v_permlane32_swap_b32 v{T+2}, v{T+4}
s_bitcmp1_b32 s{S.h}, 0
s_cselect_b64 s[{S.vcm}:{S.vcm+1}], -1, 0
v_cndmask_b32 v{T+3}, v{T+3}, v{T+2}, s[{S.vcm}:{S.vcm+1}]
v_mul_f32 v{T+3}, {fbits(-LOG2E)}, v{T+3}
v_exp_f32 v{T+3}, v{T+3}''')
        for q in range(8): k.e(f'v_pk_mul_f32 {vr(a0+2*q,2)}, {vr(a0+2*q,2)}, s[{S.t6}:{S.t6+1}] op_sel_hi:[1,0]')
        k.e(f'v_add_f32 v{T+3}, 1.0, v{T+3}\nv_rcp_f32 v{V.g}, v{T+3}')
        cvt16(k, A.Q, a0)
        k.e(f'''s_cselect_b32 exec_lo, -1, 0
s_mov_b32 exec_hi, 0
v_mov_b32 v{A.Q}, 0
v_mov_b32 v{A.Q+1}, 0
s_mov_b32 exec_lo, 0
s_cselect_b32 exec_hi, 0, -1
v_mov_b32 v{A.Q+6}, 0
v_mov_b32 v{A.Q+7}, 0
s_mov_b64 exec, -1
v_lshrrev_b32 v{T}, 2, v{A.a0}
ds_write_b128 v{A.a0}, {vr(A.Q,4)}
ds_write_b128 v{A.a0}, {vr(A.Q+4,4)} offset:1024
v_and_b32 v{T}, 0x7fc, v{T}
v_add_u32 v{T}, {L_G}, v{T}
ds_write_b32 v{T}, v{V.g}''')
    else:
        for j in pend['left']: j.f()
        va_stage(k)
        k.e(f'v_lshrrev_b32 v{T}, 2, v{A.a0}\nv_and_b32 v{T}, 0x7fc, v{T}\nv_add_u32 v{T}, {L_G}, v{T}')
    stamp(k, 'preB0')
    k.vmwait(st.get(0), 'lgkmcnt(0)')
    stamp(k, 'B0wait')
    k.e('s_barrier')
    if grp == 1:
        k.ds(f'ds_read_b128 {vr(A.Q,4)}, v{A.a0}')
        k.ds(f'ds_read_b128 {vr(A.Q+4,4)}, v{A.a0} offset:1024')
        k.ds(f'ds_read_b32 v{V.g}, v{T}')
    return st

def kv_addr(t):
    s, T = t // 4, t % 4; slot = s % 3
    base = A.kv0 if slot < 2 else A.kv1
    return base, (slot % 2)*32768 + T*2048
def rdK(k, t, q):
    b, o = kv_addr(t); return k.ds(f'ds_read_b128 {vr(A.KF+4*q,4)}, v{b} offset:{o+q*1024}')
def rdV(k, t):
    b, o = kv_addr(t)
    k.ds(f'ds_read_b128 {vr(A.V0+4*(t%2),4)}, v{b} offset:{o+16384}')
    return k.ds(f'ds_read_b128 {vr(A.V1+4*(t%3),4)}, v{b} offset:{o+16384+1024}')

def both_ways(k, txts_plain):
    L1, L2 = lbl('wt'), lbl('wtd')
    k.e(f's_cmp_eq_u32 s{S.loc}, 0\ns_cbranch_scc1 {L1}')
    for t in txts_plain: k.e(t)
    k.e(f's_branch {L2}\n{L1}:')
    for t in txts_plain: a = k.vmop(t + ' sc1')
    k.e(f'{L2}:')
    return a
def flag_store_loc(k, addr_s):
    T = V.tmp
    k.e(f'v_mov_b32 v{T}, s{addr_s}\nv_mov_b32 v{T+1}, s{S.tag}\ns_mov_b64 exec, 1')
    a = both_ways(k, [f'buffer_store_dword v{T+1}, v{T}, {srd(S.WS)}, 0 offen'])
    k.e('s_mov_b64 exec, -1')
    return a

def wo_jobs(k, br, rowmul, row0, ldsmul, ldsbase, n, out, key):
    J = []
    for q in range(n):
        def j(q=q):
            if q == 0: k.e(f's_mul_i32 s{S.t8}, s{S.tt}, {ldsmul}\ns_mul_i32 s{S.t7}, s{S.tt}, {rowmul}')
            k.e(f's_add_u32 m0, s{S.t8}, {ldsbase + q*1024}\ns_add_u32 s{S.t9}, s{S.t7}, {row0 + q*7168}')
            out[key] = k.vmop(f'buffer_load_dwordx4 v{A.wsrc}, {srd(S.M1 if br == 0 else S.M2)}, s{S.t9} offen lds')
        J.append(Job(j, 3))
    return J

def side_jobs(k, grp, opts, kvst):
    T = V.tmp; J = {}; st = {}
    def at(t, f): J.setdefault(t, []).append(f)
    def touch():
        k.e(f'''
s_lshl_b32 s{S.t2}, s{S.tb}, 2
s_add_u32 s{S.t2}, s{S.t2}, s{S.tt}
s_lshl_b32 s{S.t3}, s{S.t2}, 16
s_add_u32 s{S.t3}, s{S.t3}, {WS_OX + grp*1024}
s_lshl_b32 s{S.t4}, s{S.h}, 11
s_add_u32 s{S.t4}, s{S.t4}, 32768
s_lshl_b32 s{S.t5}, s{S.hA}, 11
s_sub_u32 s{S.t5}, s{S.t5}, s{S.t4}
s_add_u32 s{S.t3}, s{S.t3}, s{S.t4}
v_bfe_u32 v{T}, v{V.lane}, 3, 1
v_mul_lo_u32 v{T}, v{T}, s{S.t5}
v_and_b32 v{T+1}, 7, v{V.lane}
v_lshl_add_u32 v{T}, v{T+1}, 7, v{T}
v_add_u32 v{T}, s{S.t3}, v{T}
s_lshl_b32 s{S.t3}, s{S.t2}, 6
s_add_u32 s{S.t3}, s{S.t3}, {WS_FLAG3A}
v_writelane_b32 v{T}, s{S.t3}, 16
s_lshl_b32 s{S.t3}, s{S.t2}, 7
s_add_u32 s{S.t3}, s{S.t3}, {WS_FLAG3B}
v_writelane_b32 v{T}, s{S.t3}, 17
s_lshl_b32 s{S.t3}, s{S.tb}, 6
s_add_u32 s{S.t3}, s{S.t3}, {WS_FLAGX}
v_and_b32 v{A.a2}, 15, v{V.lane}
v_lshl_add_u32 v{A.a2}, v{A.a2}, 2, s{S.t3}
''')
        k.vmop(f'buffer_load_dword v{A.l}, v{T}, {srd(S.WS)}, 0 offen sc1')
        st['fx'] = k.vmop(f'buffer_load_dword v{A.a1}, v{A.a2}, {srd(S.WS)}, 0 offen sc1')
    at(opts['touch_at'], touch)
    def xcheck():
        flag_check(k, st['fx'], A.a1, A.a2, mask=True)
        k.e(f'''s_or_b32 s{S.t2}, s{S.tag}, s{S.xcc}
v_cmp_ne_u32 vcc, s{S.t2}, v{A.a1}
s_nop 0
s_cmp_eq_u64 vcc, 0
s_cselect_b32 s{S.loc}, {1 if opts['local'] else 0}, 0''')
    at(opts['xchk_at'][grp], xcheck)
    def f2a():
        k.vmwait(kvst)
        k.e(f's_lshl_b32 s{S.t2}, s{S.hA}, 3\ns_add_u32 s{S.t2}, s{S.t2}, s{S.w}\ns_lshl_b32 s{S.t2}, s{S.t2}, 4\ns_add_u32 s{S.t2}, s{S.t2}, s{S.tb}\ns_lshl_b32 s{S.t2}, s{S.t2}, 2\ns_add_u32 s{S.t2}, s{S.t2}, {WS_FLAG2A}')
        flag_store(k, S.t2, S.tag, opt=False)
    at(opts['f2a_at'], f2a)
    if grp == 1:
        def only0(f):
            def g():
                L = lbl('w0'); k.e(f's_cmp_lg_u32 s{S.w}, 4\ns_cbranch_scc1 {L}'); f(); k.e(f'{L}:')
            return g
        def r1():
            k.e(f's_lshr_b32 s{S.t2}, s{S.tb}, 2\ns_lshl_b32 s{S.t2}, s{S.t2}, 1\ns_and_b32 s{S.t3}, s{S.tb}, 1\ns_add_u32 s{S.t2}, s{S.t2}, s{S.t3}\ns_lshl_b32 s{S.t3}, s{S.hA}, 3\ns_add_u32 s{S.t2}, s{S.t2}, s{S.t3}\ns_lshl_b32 s{S.t2}, s{S.t2}, 6\ns_add_u32 s{S.t2}, s{S.t2}, {WS_FLAG2A}\nv_and_b32 v{A.f1}, 15, v{V.lane}\nv_lshl_add_u32 v{A.f1}, v{A.f1}, 2, s{S.t2}')
            st['f2a'] = k.vmop(f'buffer_load_dword v{A.f0}, v{A.f1}, {srd(S.WS)}, 0 offen sc1', opt=True)
        def r2():
            save = [list(x) for x in k.vm]
            flag_check(k, st['f2a'], A.f0, A.f1); k.vm = save
            k.e(f'''s_lshl_b32 s{S.t2}, s{S.hA}, 17
s_lshl_b32 s{S.t3}, s{S.tb}, 9
s_add_u32 s{S.t2}, s{S.t2}, s{S.t3}
s_add_u32 s{S.t2}, s{S.t2}, {WS_KVP}
v_lshl_add_u32 v{A.a0}, v{V.i32}, 4, s{S.t2}
v_lshl_add_u32 v{A.a0}, v{V.hh}, 13, v{A.a0}''')
            for q in range(8):
                k.e(f's_mov_b32 s{S.t3}, {q*16384}')
                st['red'] = k.vmop(f'buffer_load_dwordx4 {vr(A.RED+4*q,4)}, v{A.a0}, {srd(S.WS)}, s{S.t3} offen sc1', opt=True)
        def r3():
            k.vmwait(st['red'], keep=True)
            R = A.RED
            for (d, a) in [(0,4),(8,12),(16,20),(24,28),(0,8),(16,24),(0,16)]:
                k.e(f'v_pk_add_f32 {vr(R+d,2)}, {vr(R+d,2)}, {vr(R+a,2)}\nv_pk_add_f32 {vr(R+d+2,2)}, {vr(R+d+2,2)}, {vr(R+a+2,2)}')
            k.e(f'''s_lshl_b32 s{S.t2}, s{S.hA}, 12
s_lshl_b32 s{S.t3}, s{S.tb}, 8
s_add_u32 s{S.t2}, s{S.t2}, s{S.t3}
s_add_u32 s{S.t2}, s{S.t2}, {WS_KVF}
v_permlane32_swap_b32 v{R}, v{R+2}
v_permlane32_swap_b32 v{R+1}, v{R+3}
v_lshl_add_u32 v{A.a0}, v{V.i32}, 3, s{S.t2}
v_lshl_add_u32 v{A.a0}, v{V.hh}, 2, v{A.a0}
v_pk_add_f32 {vr(R,2)}, {vr(R,2)}, {vr(R+2,2)}
v_cvt_pk_bf16_f32 v{R}, v{R}, v{R+1}''')
            st['kvf'] = k.vmop(f'buffer_store_dword v{R}, v{A.a0}, {srd(S.WS)}, 0 offen sc1', opt=True)
        def r4():
            k.vmwait(st['kvf'], keep=True)
            k.e(f's_lshl_b32 s{S.t2}, s{S.hA}, 4\ns_add_u32 s{S.t2}, s{S.t2}, s{S.tb}\ns_lshl_b32 s{S.t2}, s{S.t2}, 2\ns_add_u32 s{S.t2}, s{S.t2}, {WS_FLAG2B}')
            flag_store(k, S.t2, S.tag)
        p = opts['red_at']
        at(p[0], only0(r1)); at(p[1], only0(r2)); at(p[2], only0(r3)); at(p[3], only0(r4))
        KF_, NUM = 80, 96
        def a1():
            k.e(f's_lshl_b32 s{S.t2}, s{S.hA}, 6\ns_add_u32 s{S.t2}, s{S.t2}, {WS_FLAG2B}\nv_and_b32 v{A.f1}, 15, v{V.lane}\nv_lshl_add_u32 v{A.f1}, v{A.f1}, 2, s{S.t2}')
            st['f2b'] = k.vmop(f'buffer_load_dword v{A.f0}, v{A.f1}, {srd(S.WS)}, 0 offen sc1')
        def a2():
            flag_check(k, st['f2b'], A.f0, A.f1)
            k.e(f's_lshl_b32 s{S.t2}, s{S.hA}, 12\ns_add_u32 s{S.t2}, s{S.t2}, {WS_KVF}\nv_lshl_add_u32 v{A.a0}, v{V.lane}, 4, s{S.t2}')
            for q in range(4):
                st['kvl'] = k.vmop(f'buffer_load_dwordx4 {vr(KF_+4*q,4)}, v{A.a0}, {srd(S.WS)}, 0 offen offset:{q*1024} sc1')
        def a3():
            k.vmwait(st['kvl'])
            for q in range(4): k.e(mfma(NUM, KF_+4*q, A.PHQ+4*q, '0' if q == 0 else NUM))
        def a4():
            k.e(f'''v_mov_b32 v{T+1}, v{NUM+12}
v_mov_b32 v{T+3}, v{NUM+12}
s_lshl_b32 s{S.t2}, s{S.tb}, 2
s_add_u32 s{S.t2}, s{S.t2}, s{S.tt}
v_permlane32_swap_b32 v{T+1}, v{T+3}
v_add_f32 v{T+3}, {fbits(1e-6)}, v{T+3}
v_rcp_f32 v{T+3}, v{T+3}
s_lshl_b32 s{S.t2}, s{S.t2}, 16
v_mul_f32 v{T+3}, v{V.g}, v{T+3}
s_lshl_b32 s{S.t3}, s{S.hA}, 11
s_add_u32 s{S.t2}, s{S.t2}, s{S.t3}
s_add_u32 s{S.t2}, s{S.t2}, {WS_OX}
v_lshl_add_u32 v{A.a0}, v{V.lane}, 4, s{S.t2}''')
            for q in range(8): k.e(f'v_pk_mul_f32 {vr(NUM+2*q,2)}, {vr(NUM+2*q,2)}, {vr(T+3,2)} op_sel_hi:[1,0]')
            cvt16(k, KF_, NUM)
            k.e(f's_mov_b64 exec, s[{S.hi32}:{S.hi32+1}]\nv_mov_b32 v{KF_+6}, 0\nv_mov_b32 v{KF_+7}, 0\ns_mov_b64 exec, -1')
            st['oa'] = both_ways(k, [f'buffer_store_dwordx4 {vr(KF_,4)}, v{A.a0}, {srd(S.WS)}, 0 offen',
                                     f'buffer_store_dwordx4 {vr(KF_+4,4)}, v{A.a0}, {srd(S.WS)}, 0 offen offset:1024'])
        def a5():
            k.vmwait(st['oa'])
            k.e(f's_lshl_b32 s{S.t2}, s{S.tb}, 2\ns_add_u32 s{S.t2}, s{S.t2}, s{S.tt}\ns_lshl_b32 s{S.t2}, s{S.t2}, 4\ns_add_u32 s{S.t2}, s{S.t2}, s{S.hA}\ns_lshl_b32 s{S.t2}, s{S.t2}, 2\ns_add_u32 s{S.t2}, s{S.t2}, {WS_FLAG3A}')
            flag_store_loc(k, S.t2)
        p = opts['afin_at']
        at(p[0], a1); at(p[1], a2); at(p[2], a3); at(p[2]+1, a4); at(p[3], a5)
    def wo_setup():
        k.e(f's_and_b32 s{S.t2}, s{S.h}, 7\ns_cmp_eq_u32 s{S.t2}, 7\ns_cselect_b32 s{S.t3}, 0, 401408')
        set_srd(k, S.M1, S.pWOA, f's{S.t3}'); set_srd(k, S.M2, S.pWOB, f's{S.t3}')
        k.e(f'''s_lshl_b32 s{S.t2}, s{S.t2}, 7
v_lshrrev_b32 v{T}, 3, v{V.lane}
v_and_b32 v{T+1}, 7, v{V.lane}
v_bfe_u32 v{T+2}, v{V.lane}, 4, 1
v_lshlrev_b32 v{T+2}, 2, v{T+2}
v_xor_b32 v{T+1}, v{T+1}, v{T+2}
v_mul_u32_u24 v{T}, 896, v{T}
v_lshl_add_u32 v{T}, v{T+1}, 4, v{T}
v_add_u32 v{A.wsrc}, s{S.t2}, v{T}''')
    if grp == 0: at(opts['wo_at'] - 1, wo_setup)
    def oa1():
        k.e(f'''s_lshr_b32 s{S.t2}, s{S.h}, 3
s_lshl_b32 s{S.t2}, s{S.t2}, 1
s_and_b32 s{S.t3}, s{S.w}, 1
s_add_u32 s{S.t2}, s{S.t2}, s{S.t3}
s_lshl_b32 s{S.t3}, s{S.tb}, 2
s_add_u32 s{S.col}, s{S.t2}, s{S.t3}
s_lshr_b32 s{S.cw}, s{S.w}, 1
s_lshl_b32 s{S.t2}, s{S.col}, 6
s_lshl_b32 s{S.t3}, s{S.cw}, 4
s_add_u32 s{S.t2}, s{S.t2}, s{S.t3}
s_add_u32 s{S.t2}, s{S.t2}, {WS_FLAG3A}
v_and_b32 v{A.f1}, 3, v{V.lane}
v_lshl_add_u32 v{A.f1}, v{A.f1}, 2, s{S.t2}''')
        st['f3a'] = k.vmop(f'buffer_load_dword v{A.f0}, v{A.f1}, {srd(S.WS)}, 0 offen sc1')
    def oa2():
        flag_check(k, st['f3a'], A.f0, A.f1)
        k.e(f'''s_lshl_b32 s{S.t2}, s{S.col}, 16
s_lshl_b32 s{S.t3}, s{S.cw}, 13
s_add_u32 s{S.t2}, s{S.t2}, s{S.t3}
s_add_u32 s{S.t2}, s{S.t2}, {WS_OX}
v_lshl_add_u32 v{A.a0}, v{V.lane}, 4, s{S.t2}
s_mov_b32 s{S.t3}, 4096''')
        for q in range(8):
            st[f'oa{q}'] = k.vmop(f'buffer_load_dwordx4 {vr(A.OF+4*q,4)}, v{A.a0}, {srd(S.WS)}, {"0" if q < 4 else "s%d" % S.t3} offen offset:{(q%4)*1024} sc1')
    p = opts['oa_at']
    at(p[0], oa1); at(p[1], oa2)
    return J, st

def wo_bases(k, b0, base_s):
    T = V.tmp
    k.e(f'''
v_and_b32 v{T}, 1, v{V.lane}
v_bfe_u32 v{T+1}, v{V.lane}, 1, 1
v_lshl_or_b32 v{T}, v{T}, 1, v{T+1}
v_bfe_u32 v{T+1}, v{V.lane}, 4, 1
v_lshl_or_b32 v{T}, v{T+1}, 2, v{T}
v_bfe_u32 v{T+1}, v{V.lane}, 3, 1
v_lshl_or_b32 v{T}, v{T+1}, 3, v{T}
v_bfe_u32 v{T+1}, v{V.lane}, 2, 2
v_lshlrev_b32 v{T}, 3, v{T}
v_lshl_add_u32 v{T}, v{T+1}, 7, v{T}
v_add_u32 v{b0+2}, s{base_s}, v{T}
v_xor_b32 v{b0+3}, 64, v{b0+2}
v_lshl_add_u32 v{b0}, v{V.hh}, 9, v{b0+2}
v_xor_b32 v{b0+1}, 64, v{b0}
''')
def wo_reads(k, dst, b0, lo, hi):
    a = None
    for n in range(lo, hi):
        hd, t, oc = n // 4, (n // 2) % 2, n % 2
        k.ds(f'ds_read_b64_tr_b16 {vr(dst+4*n,2)}, v{b0+oc} offset:{hd*3584+t*2048}')
        a = k.ds(f'ds_read_b64_tr_b16 {vr(dst+4*n+2,2)}, v{b0+oc+(2 if t else 0)} offset:{hd*3584+t*2048+1024}')
    return a

def attention(k, grp, st, opts):
    T = V.tmp
    wo = {'A': None, 'lo': None, 'hi': None}
    rdK(k, 0, 0); k0 = rdK(k, 0, 1)
    kvi = kv_partial(k)
    for q in range(16): k.e(f'v_mov_b32 v{A.O+q}, 0')
    k.dswait(k0)
    k.e(mfma(A.SA, A.KF, A.Q, '0')); rdK(k, 1, 0)
    k.e(mfma(A.SA, A.KF+4, A.Q+4, A.SA)); kk = rdK(k, 1, 1)
    rdV(k, 0); rdV(k, 1)
    kv_partial2(k, kvi)
    k.e(f'v_mov_b32 v{A.t}, {fbits(2.0**60)}')
    k.e(f'v_max3_f32 v{A.m}, v{A.SA}, v{A.SA+1}, v{A.SA+2}')
    for q in range(3, 15, 2): k.e(f'v_max3_f32 v{A.m}, v{A.m}, v{A.SA+q}, v{A.SA+q+1}')
    k.e(f'v_max_f32 v{A.m}, v{A.m}, v{A.SA+15}\nv_mov_b32 v{T}, v{A.m}')
    kvst = kv_partial3(k)
    k.e(f'''s_nop 0
v_permlane32_swap_b32 v{A.m}, v{T}
v_max_f32 v{A.m}, v{A.m}, v{T}
v_sub_f32 v{A.NM}, 0, v{A.m}''')
    for q in range(1, 16): k.e(f'v_mov_b32 v{A.NM+q}, v{A.NM}')
    for q in range(8): k.e(f'v_pk_add_f32 {vr(A.SA+2*q,2)}, {vr(A.SA+2*q,2)}, {vr(A.NM,2)}')
    J, js = side_jobs(k, grp, opts, kvst)
    dq = []
    if grp == 0:
        for s_ in range(opts['npre'], 3): dq += kv_dma_jobs(k, s_, st)
    def pump(n):
        for _ in range(n):
            if dq:
                j = dq.pop(0)
                if not opts['nodma']: j.f()
    for t in range(32):
        cur, oth = (A.SA, A.SB) if t % 2 == 0 else (A.SB, A.SA)
        ex = lambda a, b: [k.e(f'v_exp_f32 v{cur+q}, v{cur+q}') for q in range(a, b)]
        k.c(f'---- tile {t}')
        ex(0, 2)
        if t >= 1: k.e(smfma(A.O, A.V1+4*((t-1) % 3), oth+8, A.idx))
        ex(2, 5)
        if t % 4 == 2:
            b = t//4 + 1
            stamp(k, f'preB{b}')
            if b == 8: pump(99)
            k.vmwait(st.get(b) if b <= 7 else wo['lo'], 'lgkmcnt(0)'); k.dsall(False)
            stamp(k, f'B{b}wait')
            k.e('s_barrier')
            if grp == 0:
                if b + 2 <= 7: dq[0:0] = kv_dma_jobs(k, b + 2, st)
                if b == 6: dq += wo_jobs(k, 1, 50176, 0, 7168, 65536, 7, wo, 'lo')
                if b == 7: dq += wo_jobs(k, 1, 50176, 224*896, 7168, 0, 7, wo, 'hi')
            if b == 8:
                k.e(f's_mul_i32 s{S.t2}, s{S.cw}, 14336\ns_add_u32 s{S.t2}, s{S.t2}, {L_WOA}')
                wo_bases(k, A.t+1, S.t2)
        elif t + 1 <= 31:
            k.dswait(kk)
        if opts['prio']: k.e(f's_setprio {3 - (t + 2) % 4}')
        if t == opts['wo_at'] and grp == 0: dq += wo_jobs(k, 0, 100352, 0, 14336, L_WOA, 14, wo, 'A')
        if t + 1 <= 31:
            k.e(mfma(oth, A.KF, A.Q, A.NM))
            if t + 2 <= 31: rdK(k, t+2, 0)
        pump(opts['pump'][0])
        if t >= 30: wo_reads(k, A.WOA, A.t+1, (t-30)*8, (t-30)*8+4)
        ex(5, 8)
        if t + 1 <= 31:
            k.e(mfma(oth, A.KF+4, A.Q+4, oth))
            if t + 2 <= 31: kk = rdK(k, t+2, 1)
        ex(8, 13)
        k.e(smfma(A.O, A.V0+4*(t % 2), cur, A.idx))
        if t + 2 <= 31: rdV(k, t+2)
        pump(opts['pump'][1])
        if t >= 30: wa = wo_reads(k, A.WOA, A.t+1, (t-30)*8+4, (t-30)*8+8)
        ex(13, 16)
        for f in J.get(t, []):
            stamp(k, f'j{t}{grp}pre')
            if not (opts['nojobs'] and 3 <= t < 26 and f.__name__ not in ('wo_setup', 'xcheck')): f()
            stamp(k, f'j{t}{grp}post')
    assert not dq
    k.e('s_nop 1')
    k.e(smfma(A.O, A.V1+4*(31 % 3), A.SB+8, A.idx))
    if opts['prio']: k.e('s_setprio 0')
    return js, wo, wa

def fallback(k, grp, Lback):
    T = V.tmp; L = lbl('fbl')
    k.e(f'''
s_lshl_b32 s{S.t2}, s{S.tt}, 11
v_subrev_u32 v{A.ks}, s{S.t2}, v{A.ks}
s_mul_i32 s{S.t2}, s{S.tt}, 1792
v_subrev_u32 v{A.vs}, s{S.t2}, v{A.vs}
v_add_u32 v{T}, 4, v{V.i32}
v_lshrrev_b32 v{T}, 5, v{T}
v_lshl_or_b32 v{A.vs}, v{T}, 30, v{A.vs}
v_xor_b32 v{T}, 28, v{V.i32}
v_min_u32 v{T}, 1, v{T}
v_subrev_u32 v{T}, 1, v{T}
v_and_b32 v{A.NM}, 0x3f803f80, v{T}
v_mov_b32 v{A.m}, 0xff7fffff
s_mov_b32 s{S.sK}, {grp*65536}
s_mov_b32 s{S.sV}, {grp*57344}
''')
    for q in range(16): k.e(f'v_mov_b32 v{A.O+q}, 0')
    k.e(f'''{L}:
buffer_load_dwordx4 {vr(A.KF,4)}, v{A.ks}, {srd(S.WS)}, s{S.sK} offen sc1
buffer_load_dwordx4 {vr(A.KF+4,4)}, v{A.ks}, {srd(S.WS)}, s{S.sK} offen offset:1024 sc1
buffer_load_dwordx4 {vr(A.V0,4)}, v{A.vs}, {srd(S.WS)}, s{S.sV} offen sc1
buffer_load_dwordx4 {vr(A.V0+4,4)}, v{A.vs}, {srd(S.WS)}, s{S.sV} offen offset:896 sc1
s_waitcnt vmcnt(0)''')
    k.e(mfma(A.SA, A.KF, A.Q, '0')); k.e(mfma(A.SA, A.KF+4, A.Q+4, A.SA))
    for q in range(8): k.e(f'v_or_b32 v{A.V0+q}, v{A.NM}, v{A.V0+q}')
    k.e('s_nop 4')
    k.e(f'v_max3_f32 v{T}, v{A.m}, v{A.SA}, v{A.SA+1}')
    for q in range(2, 16, 2): k.e(f'v_max3_f32 v{T}, v{T}, v{A.SA+q}, v{A.SA+q+1}')
    k.e(f'''v_mov_b32 v{T+1}, v{T}
s_nop 1
v_permlane32_swap_b32 v{T}, v{T+1}
v_max_f32 v{T}, v{T}, v{T+1}
v_sub_f32 v{T+1}, v{A.m}, v{T}
v_exp_f32 v{T+1}, v{T+1}
v_mov_b32 v{A.m}, v{T}''')
    for q in range(16): k.e(f'v_sub_f32 v{A.SA+q}, v{A.SA+q}, v{T}\nv_mul_f32 v{A.O+q}, v{A.O+q}, v{T+1}')
    for q in range(16): k.e(f'v_exp_f32 v{A.SA+q}, v{A.SA+q}')
    k.e('s_nop 1')
    k.e(smfma(A.O, A.V0, A.SA, A.idx)); k.e(smfma(A.O, A.V0+4, A.SA+8, A.idx))
    k.e(f'''s_add_u32 s{S.sK}, s{S.sK}, 2048
s_add_u32 s{S.sV}, s{S.sV}, 1792
s_nop 9
s_cmp_lt_u32 s{S.sK}, {65536+grp*65536}
s_cbranch_scc1 {L}
v_mov_b32 v{A.l}, v{A.O+12}
v_mov_b32 v{T}, v{A.O+12}
s_nop 1
v_permlane32_swap_b32 v{T}, v{A.l}
s_branch {Lback}''')

def tail(k, grp, js, wo, wa, opts, fb):
    T = V.tmp
    k.c('---- end of attention: safety check of the stand-in maximum')
    stamp(k, 'attnend')
    Lfb, Lback = lbl('fb'), lbl('fbback')
    own, oth = (A.O, A.O+8) if grp == 0 else (A.O+8, A.O)
    k.e(f'''
s_lshl_b32 s{S.t2}, s{S.w}, 12
s_add_u32 s{S.t2}, s{S.t2}, {L_CX}
v_lshl_add_u32 v{A.a1}, v{V.lane}, 4, s{S.t2}
v_xor_b32 v{A.f0}, 16384, v{A.a1}
s_lshl_b32 s{S.t2}, s{S.tb}, 2
s_add_u32 s{S.t2}, s{S.t2}, s{S.tt}
s_lshl_b32 s{S.t4}, s{S.t2}, 7
s_lshl_b32 s{S.t2}, s{S.t2}, 16
s_lshl_b32 s{S.t3}, s{S.h}, 11
s_add_u32 s{S.t2}, s{S.t2}, s{S.t3}
s_add_u32 s{S.t2}, s{S.t2}, {WS_OX + 32768 + grp*1024}
v_lshl_add_u32 v{A.f1}, v{V.lane}, 4, s{S.t2}
s_lshl_b32 s{S.t3}, s{S.h}, 3
s_add_u32 s{S.t4}, s{S.t4}, s{S.t3}
s_add_u32 s{S.t4}, s{S.t4}, {WS_FLAG3B + grp*4}
v_mov_b32 v{A.l}, v{A.O+12}
v_mov_b32 v{T}, v{A.O+12}
v_mul_f32 v{T+1}, 0, v{A.O}
v_mul_f32 v{T+2}, 0, v{A.O+1}
v_permlane32_swap_b32 v{T}, v{A.l}''')
    for q in range(1, 8): k.e(f'v_pk_fma_f32 {vr(T+1,2)}, {vr(A.O+2*q,2)}, 0, {vr(T+1,2)} op_sel_hi:[1,0,1]')
    k.e(f'''v_add3_f32_placeholder''')
    k.L.pop()
    k.e(f'''v_add_f32 v{T+1}, v{T+1}, v{T+2}
v_add_f32 v{T+1}, v{T+1}, v{A.l}
v_cmp_nle_f32 vcc, v{T+1}, v{A.t}
s_cbranch_vccnz {Lfb}
{Lback}:''')
    fb.e(f'{Lfb}:'); fallback(fb, grp, Lback)
    k.e(f'v_mov_b32 v{A.t}, v{A.m}')
    k.ds(f'ds_write_b128 v{A.a1}, {vr(oth,4)}')
    k.ds(f'ds_write_b128 v{A.a1}, {vr(oth+4,4)} offset:1024')
    k.e(f'v_lshrrev_b32 v{T}, 1, v{A.a1}\nv_and_b32 v{T}, 0x1f8, v{T}\nv_and_b32 v{T+1}, 0xf000, v{A.a1}\nv_or_b32 v{T}, v{T}, v{T+1}')
    k.ds(f'ds_write_b64 v{T}, {vr(A.l,2)} offset:2048')
    k.vmwait(wo['hi'], 'lgkmcnt(0)'); k.dsall(False)
    k.e(f's_barrier\nv_xor_b32 v{T}, 16384, v{T}')
    k.ds(f'ds_read_b64 {vr(T+1,2)}, v{T} offset:2048')
    k.ds(f'ds_read_b128 {vr(A.SA,4)}, v{A.f0}')
    a = k.ds(f'ds_read_b128 {vr(A.SA+4,4)}, v{A.f0} offset:1024')
    k.e(f'''s_waitcnt lgkmcnt(2)
v_max_f32 v{T}, v{A.m}, v{T+2}
v_sub_f32 v{T+3}, v{A.m}, v{T}
v_sub_f32 v{T+5}, v{T+2}, v{T}
v_exp_f32 v{T+3}, v{T+3}
v_exp_f32 v{T+5}, v{T+5}
v_sub_f32 v{T}, 1.0, v{V.g}
v_mul_f32 v{A.l}, v{A.l}, v{T+3}
v_fmac_f32 v{A.l}, v{T+1}, v{T+5}
v_rcp_f32 v{A.l}, v{A.l}
s_nop 0
v_mul_f32 v{T}, v{T}, v{A.l}
v_mul_f32 v{T+3}, v{T+3}, v{T}
v_mul_f32 v{T+5}, v{T+5}, v{T}''')
    for q in range(4): k.e(f'v_pk_mul_f32 {vr(own+2*q,2)}, {vr(own+2*q,2)}, {vr(T+3,2)} op_sel_hi:[1,0]')
    k.dswait(a)
    for q in range(4): k.e(f'v_pk_fma_f32 {vr(own+2*q,2)}, {vr(A.SA+2*q,2)}, {vr(T+5,2)}, {vr(own+2*q,2)} op_sel_hi:[1,0,1]')
    for q in range(4): k.e(f'v_cvt_pk_bf16_f32 v{A.SA+8+q}, v{own+2*q}, v{own+2*q+1}')
    if grp == 1:
        k.e(f's_mov_b64 exec, s[{S.hi32}:{S.hi32+1}]\nv_mov_b32 v{A.SA+10}, 0\nv_mov_b32 v{A.SA+11}, 0\ns_mov_b64 exec, -1')
    ob = both_ways(k, [f'buffer_store_dwordx4 {vr(A.SA+8,4)}, v{A.f1}, {srd(S.WS)}, 0 offen'])
    stamp(k, 'obstored')
    Lidle = lbl('idle')
    k.e(f's_and_b32 s{S.t2}, s{S.h}, 7\ns_cmp_eq_u32 s{S.t2}, 7\ns_cbranch_scc1 {Lidle}')
    idle = k.fork()
    for n in range(8):
        if n == opts['flag3b_after']:
            k.vmwait(ob); flag_store_loc(k, S.t4)
        k.vmwait(js[f'oa{n}'])
        for oc in range(2):
            k.e(mfma(A.ACC+16*oc, A.WOA+4*(2*n+oc), A.OF+4*n, '0' if n == 0 else A.ACC+16*oc))
    if opts['flag3b_after'] >= 8:
        k.vmwait(ob); flag_store_loc(k, S.t4)
    k.e(f'''s_lshl_b32 s{S.t2}, s{S.col}, 7
s_lshl_b32 s{S.t3}, s{S.cw}, 5
s_add_u32 s{S.t2}, s{S.t2}, s{S.t3}
s_add_u32 s{S.t2}, s{S.t2}, {WS_FLAG3B}
v_and_b32 v{A.f1}, 7, v{V.lane}
v_lshl_add_u32 v{A.f1}, v{A.f1}, 2, s{S.t2}''')
    f3 = k.vmop(f'buffer_load_dword v{A.f0}, v{A.f1}, {srd(S.WS)}, 0 offen sc1')
    k.e(f'''s_and_b32 s{S.t2}, s{S.cw}, 1
s_mul_i32 s{S.t2}, s{S.t2}, 14336
s_cmp_lt_u32 s{S.cw}, 2
s_cselect_b32 s{S.t3}, 65536, 0
s_add_u32 s{S.t2}, s{S.t2}, s{S.t3}''')
    wo_bases(k, A.O, S.t2)
    wb = wo_reads(k, A.WOB, A.O, 0, 16)
    set_srd(k, S.M1, S.pOUT, 1835008)
    k.e(f'''s_lshl_b32 s{S.t2}, s{S.col}, 5
v_add_u32 v{T}, s{S.t2}, v{V.i32}
v_mul_u32_u24 v{T}, 896, v{T}
v_lshl_add_u32 v{T}, v{V.hh}, 4, v{T}
s_and_b32 s{S.t2}, s{S.h}, 7
s_lshl_b32 s{S.t2}, s{S.t2}, 7
s_lshl_b32 s{S.t3}, s{S.cw}, 5
s_add_u32 s{S.t2}, s{S.t2}, s{S.t3}
v_add_u32 v{A.a2}, s{S.t2}, v{T}
v_add_u32 v{A.a0}, 32768, v{A.a0}
s_mov_b32 s{S.t5}, 4096
s_and_b32 s{S.t2}, s{S.w}, 1
s_lshl_b32 s{S.t2}, s{S.t2}, 15
s_lshl_b32 s{S.t3}, s{S.cw}, 11
s_add_u32 s{S.t3}, s{S.t3}, s{S.t2}
v_lshl_add_u32 v{A.ks}, v{V.lane}, 4, s{S.t3}
s_lshl_b32 s{S.t3}, s{S.cw}, 13
s_add_u32 s{S.t3}, s{S.t3}, s{S.t2}
v_lshl_add_u32 v{A.vs}, v{V.lane}, 4, s{S.t3}''')
    k.dsall()
    stamp(k, 'Ahalf')
    k.e('s_barrier')
    flag_check(k, f3, A.f0, A.f1)
    stamp(k, 'f3seen')
    ids = []
    for q in range(8):
        ids.append(k.vmop(f'buffer_load_dwordx4 {vr(A.OF+4*q,4)}, v{A.a0}, {srd(S.WS)}, {"0" if q < 4 else "s%d" % S.t5} offen offset:{(q%4)*1024} sc1'))
    for n in range(8):
        k.vmwait(ids[n])
        for oc in range(2):
            k.e(mfma(A.ACC+16*oc, A.WOB+4*(2*n+oc), A.OF+4*n, A.ACC+16*oc))
    stamp(k, 'Bhalf')
    Ls = [lbl('kq') for _ in range(2)]; Lj = lbl('kqj')
    k.e(f's_bitcmp1_b32 s{S.cw}, 0\ns_cbranch_scc1 {Ls[1]}')
    paths = []
    for par in range(2):
        kq = 2*grp + par
        if par: k.e(f'{Ls[1]}:')
        k.e('s_nop 10')
        for p in range(4):
            if p == kq: continue
            k.e(f'ds_write_b128 v{A.ks}, {vr(A.ACC+8*p,4)} offset:{p*8192}\nds_write_b128 v{A.ks}, {vr(A.ACC+8*p+4,4)} offset:{p*8192+1024}')
        k.e('s_waitcnt lgkmcnt(0)\ns_barrier')
        srcs = [p for p in range(4) if p != kq]
        for n, p in enumerate(srcs):
            k.e(f'ds_read_b128 {vr(A.OF+8*n,4)}, v{A.vs} offset:{p*2048}\nds_read_b128 {vr(A.OF+8*n+4,4)}, v{A.vs} offset:{p*2048+1024}')
        for n in range(3):
            k.e(f's_waitcnt lgkmcnt({4-2*n})')
            for q in range(4): k.e(f'v_pk_add_f32 {vr(A.ACC+8*kq+2*q,2)}, {vr(A.ACC+8*kq+2*q,2)}, {vr(A.OF+8*n+2*q,2)}')
        for q in range(4): k.e(f'v_cvt_pk_bf16_f32 v{A.OF+q}, v{A.ACC+8*kq+2*q}, v{A.ACC+8*kq+2*q+1}')
        if par == 0: k.e(f's_branch {Lj}')
    k.e(f'{Lj}:\nbuffer_store_dwordx4 {vr(A.OF,4)}, v{A.a2}, {srd(S.M1)}, 0 offen')
    if grp == 0:
        L = lbl('ep')
        k.e(f'''s_or_b32 s{S.t2}, s{S.h}, s{S.tb}
s_or_b32 s{S.t2}, s{S.t2}, s{S.w}
s_cmp_lg_u32 s{S.t2}, 0
s_cbranch_scc1 {L}''')
        flag_store(k, S.t2, S.tag, sc='')
        k.e(f'{L}:')
    stamp(k, 'end'); stamp_dump(k)
    k.e('s_endpgm')
    k.e(f'{Lidle}:')
    idle.vmwait(ob); flag_store_loc(idle, S.t4); stamp(idle, 'end'); stamp_dump(idle); idle.e('s_endpgm')
    k.L += idle.L

DEFAULTS = dict(NH=16, dbg=(), nojobs=False, nodma=False, fx_step=6, touch0=False, round_p=True, local=True, prio=True, npre=3, f1_step=11, f1_check=18, qfeat_last=19, pump=(1, 1),
                touch_at=0, xchk_at=(6, 3), f2a_at=3, wo_at=3, red_at=(6, 8, 11, 15), afin_at=(18, 20, 23, 26), oa_at=(28, 29),
                flag3b_after=3, prof=False)

def build(**kw):
    opts = dict(DEFAULTS); opts.update(kw)
    _lbl[0] = 0; PROF[0] = opts['prof']; STAMPS.clear(); DBG.clear(); DBG.update(opts['dbg'])
    k = Stream(); k.cold = Stream()
    prologue(k, opts['NH'])
    ids = {}
    dma_x(k, 0); ids[0] = dma_w(k, 0)
    rot_offsets(k)
    dma_x(k, 1); ids[1] = dma_w(k, 1)
    setup2(k)
    dma_x(k, 2); ids[2] = dma_w(k, 2)
    ids[3] = dma_w(k, 3)
    small_loads(k, opts)
    head = k
    kk, kv = head.fork(), head.fork()
    idk, idv = dict(ids), dict(ids)
    stage0(kk, idk, True, opts); stage0(kv, idv, False, opts)
    assert [x[1] for x in kk.vm] == [x[1] for x in kv.vm]
    mid = kk.fork()
    st_id = stage0_epilogue(mid)
    streams = []; checks = []
    for grp in range(2):
        g = mid.fork(); fb = Stream(); g.cold = Stream()
        pend = stages12(g, dict(idk), grp, st_id, opts)
        st = attn_prologue(g, grp, pend, opts)
        js, wo, wa = attention(g, grp, st, opts)
        tail(g, grp, js, wo, wa, opts, fb)
        fb2 = Stream(); fb2.L = fb.L + g.cold.L
        streams.append((g, fb2))
    body = head.text()
    body += f'  s_cmp_ge_u32 s{S.j}, 7\n  s_cbranch_scc1 L_vtile\n' + kk.text() + '  s_branch L_mid\nL_vtile:\n' + kv.text() + 'L_mid:\n' + mid.text()
    body += f'  s_cmp_lg_u32 s{S.grp}, 0\n  s_cbranch_scc1 L_grp1\n' + streams[0][0].text() + streams[0][1].text() + 'L_grp1:\n' + streams[1][0].text() + streams[1][1].text()
    body += 'L_end:\n  s_endpgm\n'
    bl, checks = fix_hazards(body.rstrip('\n').split('\n')); body = '\n'.join(bl) + '\n'
    ref = open('gated_mix__linear_kernel_hedgehog__softmax_full_mha__prompt.s.ref').read()
    hdr = ref[:ref.index('; @launch')]
    txt = hdr + f'''; @launch grid=(256,1,1) block=(512,1,1) lds=163840
.amdgcn_target "amdgcn-amd-amdhsa--gfx950"
.text
.globl {NAME}
.p2align 8
.type {NAME},@function
{NAME}:
{body}.section .rodata,"a"
.p2align 6
.amdhsa_kernel {NAME}
  .amdhsa_next_free_vgpr 256
  .amdhsa_next_free_sgpr 102
  .amdhsa_accum_offset 256
  .amdhsa_group_segment_fixed_size 0
  .amdhsa_kernarg_size 88
  .amdhsa_user_sgpr_count 2
  .amdhsa_user_sgpr_kernarg_segment_ptr 1
  .amdhsa_system_sgpr_workgroup_id_x 1
.end_amdhsa_kernel
'''
    return txt, checks

if __name__ == '__main__':
    out = sys.argv[1] if len(sys.argv) > 1 else 'gated_mix__linear_kernel_hedgehog__softmax_full_mha__prompt.s'
    kw = {}
    for a in sys.argv[2:]:
        n, v = a.split('='); kw[n] = eval(v)
    txt, msgs = build(**kw)
    for m in msgs: print('  auto', m)
    open(out, 'w').write(txt)
    print('wrote', out, len(txt), 'bytes')
    if STAMPS: open(out + '.stamps', 'w').write('\n'.join(STAMPS))
```

```python
import re

class Stream:
    def __init__(self):
        self.L = []
        self.vm = []
        self._id = [0]
        self.dq = []
    def fork(self):
        s = Stream(); s.vm = [list(x) for x in self.vm]; s._id = self._id; s.dq = list(self.dq); return s
    def ds(self, txt):
        if len(self.dq) >= 14:
            self.e('s_waitcnt lgkmcnt(8)'); self.dq = self.dq[-8:]
        self._id[0] += 1; self.dq.append(self._id[0]); self.e(txt); return self._id[0]
    def dswait(self, id):
        if id not in self.dq: return
        i = self.dq.index(id); n = min(14, len(self.dq) - i - 1)
        self.e(f's_waitcnt lgkmcnt({n})'); self.dq = self.dq[len(self.dq)-n:] if n else []
    def dsall(self, emit=True):
        if emit: self.e('s_waitcnt lgkmcnt(0)')
        self.dq = []
    def e(self, txt):
        for ln in txt.strip('\n').split('\n'):
            if ln.strip(): self.L.append(ln.strip())
    def c(self, txt): self.L.append('; ' + txt)
    def vmop(self, txt, opt=False):
        self._id[0] += 1
        self.vm.append([self._id[0], opt]); self.e(txt); return self._id[0]
    def vmcount(self, id, count_opt=False):
        idx = [k for k, x in enumerate(self.vm) if x[0] == id]
        if not idx: return None
        return sum(1 for x in self.vm[idx[0]+1:] if count_opt or not x[1])
    def vmwait(self, id, extra='', count_opt=False, keep=False):
        n = self.vmcount(id, count_opt) if id is not None else None
        if n is None:
            if extra: self.e('s_waitcnt ' + extra)
            return
        assert n <= 63
        self.e(f's_waitcnt vmcnt({n}) {extra}'.strip())
        if not keep:
            idx = [k for k, x in enumerate(self.vm) if x[0] == id][0]
            self.vm = self.vm[idx+1:]
    def vmall(self, extra=''):
        self.e(f's_waitcnt vmcnt(0) {extra}'.strip()); self.vm = []
    def text(self):
        out = []
        for ln in self.L:
            out.append(ln if (ln.endswith(':') or ln.startswith('.')) else '  ' + ln)
        return '\n'.join(out) + '\n'

def regs_of(tok):
    tok = tok.strip()
    m = re.fullmatch(r'-?\|?(?:abs\()?([vsa])(\d+)\)?\|?', tok)
    if m: return [(m.group(1), int(m.group(2)))]
    m = re.fullmatch(r'-?\|?([vsa])\[(\d+):(\d+)\]\|?', tok)
    if m: return [(m.group(1), k) for k in range(int(m.group(2)), int(m.group(3))+1)]
    if tok == 'vcc': return [('s', 'vcc')]
    if tok in ('exec', 'exec_lo', 'exec_hi'): return [('s', 'exec')]
    if tok == 'm0': return [('s', 'm0')]
    return []
TRANS = ('v_exp_', 'v_log_', 'v_rcp_', 'v_rsq_', 'v_sqrt_', 'v_sin_', 'v_cos_')
def parse(ln):
    ln = ln.split(';')[0].strip()
    if not ln or ln.endswith(':') or ln.startswith('.'): return None
    parts = ln.split(None, 1)
    op = parts[0]
    rest = parts[1] if len(parts) > 1 else ''
    ops = [t.strip() for t in rest.split(',')]
    if ops:
        last = ops[-1].split()
        if last: ops[-1] = last[0]
    mods = rest
    d = dict(op=op, ops=ops, mods=mods, W=[], R=[], kind='other')
    R = lambda toks: [x for t in toks for x in regs_of(t)]
    if op.startswith('v_mfma'):
        d.update(kind='mfma', W=R(ops[:1]), A=R(ops[1:3]), C=R(ops[3:4])); d['R'] = d['A'] + d['C']
        d['passes'] = 8 if '32x32' in op else 4
    elif op.startswith('v_smfmac'):
        d.update(kind='mfma', W=R(ops[:1]), A=R(ops[1:4]), C=R(ops[:1])); d['R'] = d['A'] + d['C']
        d['passes'] = 8 if '32x32' in op else 4
    elif op.startswith('v_cmp'):
        d.update(kind='valu', W=R(ops[:1]), R=R(ops[1:]))
    elif op.startswith('v_permlane'):
        d.update(kind='valu', W=R(ops[:2]), R=R(ops[:2]), perm=True)
    elif op.startswith('v_readfirstlane') or op.startswith('v_readlane'):
        d.update(kind='valu', W=R(ops[:1]), R=R(ops[1:]), rdlane=True)
    elif op.startswith('v_'):
        d.update(kind='valu', W=R(ops[:1]), R=R(ops[1:]))
        if op.startswith('v_fmac') or op.startswith('v_dot2c') or 'UNUSED_PRESERVE' in mods: d['R'] += d['W']
        if op.startswith('v_cndmask') and len(ops) == 3: d['R'] += [('s', 'vcc')]
        if '_co_' in op: d['W'] = R(ops[:2]); d['R'] = R(ops[2:])
        d['trans'] = op.startswith(TRANS)
        d['dpp'] = '_dpp' in op or 'row_' in mods or 'quad_perm' in mods
        d['sdwa'] = '_sdwa' in op
    elif op.startswith('buffer_load') or op.startswith('global_load'):
        if ' lds' in (' ' + mods) or '_lds_' in op: d.update(kind='vmem', R=R(ops) + [('s', 'm0')], dma=True)
        else: d.update(kind='vmem', W=R(ops[:1]), R=R(ops[1:]), load=True)
    elif op.startswith('buffer_store') or op.startswith('buffer_atomic'):
        d.update(kind='vmem', R=R(ops), data=R(ops[:1]), wide=('x3' in op or 'x4' in op))
    elif op.startswith('buffer_') or op.startswith('global_'):
        d.update(kind='vmem', R=R(ops))
    elif op.startswith('ds_read') or op.startswith('ds_bpermute') or op.startswith('ds_swizzle'):
        d.update(kind='ds', W=R(ops[:1]), R=R(ops[1:]), load=True)
    elif op.startswith('ds_'):
        d.update(kind='ds', R=R(ops))
    elif op == 's_nop':
        d.update(kind='nop', n=int(ops[0], 0) + 1)
    elif op.startswith('s_'):
        nodst = op.startswith(('s_cmp', 's_cbranch', 's_branch', 's_waitcnt', 's_barrier', 's_endpgm', 's_sleep', 's_setprio', 's_bitcmp'))
        d.update(kind='salu', W=[] if nodst else R(ops[:1]), R=R(ops if nodst else ops[1:]))
        if 'saveexec' in op: d['W'] += [('s', 'exec')]
    return d

def need_between(p, c):
    need = 0; why = ''
    pw = set(p['W']); cr = set(c['R']); cw = set(c['W'])
    vw = {x for x in pw if x[0] in 'va'}; sw = {x for x in pw if x[0] == 's'}
    def up(n, w):
        nonlocal need, why
        if n > need: need, why = n, w
    if p['kind'] == 'valu':
        if c['kind'] == 'mfma' and vw & cr: up(2, 'valu->mfma')
        if c['kind'] == 'valu':
            if p.get('trans') and vw & cr: up(1, 'trans->valu')
            if c.get('perm') and vw & cr: up(2, 'valu->permlane')
            if c.get('dpp') and vw & cr: up(2, 'valu->dpp')
            if c.get('rdlane') and vw & cr: up(1, 'valu->readlane')
            if p.get('sdwa') and vw & (cr | cw): up(1, 'sdwa->valu')
            if sw & cr: up(2, 'valu sgpr->valu')
        if c['kind'] == 'vmem' and sw & cr: up(5, 'valu sgpr->vmem')
        if c['kind'] == 'salu' and sw & cr: up(1, 'valu sgpr->salu')
        if p.get('trans') and c['kind'] in ('vmem', 'ds') and vw & cr: up(1, 'trans->mem')
    if p['kind'] == 'mfma':
        n = {8: 12, 4: 8}[p['passes']]
        if c['kind'] == 'mfma':
            if vw & set(c['A']): up(n, 'mfma D->mfma AB')
            elif vw & set(c['C']):
                if not (p['W'] == c['C'] and p['passes'] == c['passes']): up(n-2, 'mfma D->mfma C overlap')
            elif vw & cw and not (p['W'] == c['W']): up(n-2, 'mfma WAW overlap')
        elif c['kind'] in ('valu', 'vmem', 'ds'):
            if vw & (cr | cw): up(n, 'mfma D->valu/mem')
        if c['kind'] == 'valu' and set(p['C']) & cw: up({8: 7, 4: 3}[p['passes']], 'mfma C WAR valu')
    if p['kind'] == 'vmem' and p.get('wide') and set(p['data']) & cw:
        up(2 if c['kind'] == 'valu' else 1, 'store data WAR')
    if p['kind'] == 'salu' and ('s', 'm0') in pw and c.get('dma'): up(1, 'm0->dma')
    return need, why

def fix_hazards(lines):
    log = []
    while True:
        ins = []; lab = {}
        for k, ln in enumerate(lines):
            t = ln.strip()
            if t.endswith(':'): lab[t[:-1]] = len(ins); continue
            p = parse(t)
            if p: p['k'] = k; p['ln'] = t; ins.append(p)
        br = {}
        for i, p in enumerate(ins):
            if p['op'].startswith(('s_cbranch', 's_branch')): br.setdefault(lab[p['ops'][0]], []).append(i)
        def preds(i):
            r = list(br.get(i, []))
            if i > 0 and ins[i-1]['op'] not in ('s_branch', 's_endpgm'): r.append(i-1)
            return r
        fixes = []
        for i, c in enumerate(ins):
            if c['kind'] in ('nop', 'other'): continue
            worst = 0; info = None
            best = {}; stack = [(j, 0) for j in preds(i)]
            while stack:
                j, d = stack.pop()
                if best.get(j, 99) <= d: continue
                best[j] = d
                n, why = need_between(ins[j], c)
                if n - d > worst: worst, info = n - d, (why, ins[j]['ln'])
                d2 = d + ins[j].get('n', 1)
                if d2 < 12: stack += [(q, d2) for q in preds(j)]
            if worst > 0:
                fixes.append((c['k'], worst)); log.append(f'nop {worst} before [{c["ln"]}] ({info[0]}: {info[1]})')
                break
        if not fixes: return lines, log
        k, w = fixes[0]
        lines = lines[:k] + [f'  s_nop {w-1}'] + lines[k:]


import subprocess, os, tempfile
WIDEN = ('v_mov_b32', 'v_add_f32', 'v_mul_f32', 'v_sub_f32', 'v_max_f32', 'v_exp_f32', 'v_rcp_f32', 'v_lshlrev_b32', 'v_lshrrev_b32',
         'v_and_b32', 'v_xor_b32', 'v_or_b32', 'v_add_u32', 'v_sub_u32', 'v_subrev_u32', 'v_max_u32', 'v_min_u32', 'v_mul_u32_u24')
def sizes(lines):
    src = '.amdgcn_target "amdgcn-amd-amdhsa--gfx950"\n.text\n' + '\n'.join(lines) + '\n'
    with tempfile.TemporaryDirectory() as d:
        open(d + '/a.s', 'w').write(src)
        subprocess.run(['clang', '-x', 'assembler', '-target', 'amdgcn-amd-amdhsa', '-mcpu=gfx950', '-c', d + '/a.s', '-o', d + '/a.o'], check=True)
        out = subprocess.run(['llvm-objdump', '-d', '--mcpu=gfx950', d + '/a.o'], capture_output=True, text=True).stdout
    sz = [4*len(m.group(1).split()) for m in re.finditer(r'// [0-9A-F]{12}: ([0-9A-F ]+)', out)]
    idx = [k for k, ln in enumerate(lines) if parse(ln.strip())]
    assert len(sz) == len(idx), (len(sz), len(idx))
    return idx, sz
def align_runs(lines, minrun=4):
    idx, sz = sizes(lines); lines = list(lines); ins = []; shift = 0; addr = 0; n = len(idx); stats = [0, 0, 0]
    i = 0
    while i < n:
        if sz[i] == 8:
            j = i
            while j < n and sz[j] == 8: j += 1
            slow = sum(lines[idx[q]].strip().startswith(('v_mfma', 'v_smfmac', 'buffer_')) for q in range(i, j))
            if (addr + shift) % 8 == 4 and (j - i) - slow >= minrun:
                p = lines[idx[i-1]].strip(); op = p.split()[0]
                contiguous = all(not lines[q].strip().endswith(':') for q in range(idx[i-1], idx[i]))
                if op in WIDEN and sz[i-1] == 4 and contiguous:
                    lines[idx[i-1]] = lines[idx[i-1]].replace(op, op + '_e64', 1); shift += 4; stats[0] += 1
                elif (j - i) - slow >= 6:
                    ins.append(idx[i]); shift += 4; stats[1] += 1
                else: stats[2] += 1
            addr += 8*(j - i); i = j
        else:
            addr += sz[i]; i += 1
    for k in reversed(ins): lines.insert(k, '  s_nop 0')
    return lines, stats
```

```python
import sys, struct
from asmlib import Stream, fix_hazards, align_runs

NAME = 'gated_mix__linear_kernel_hedgehog__softmax_full_mha__prompt_kernel'
def fbits(x): return '0x%08x' % struct.unpack('<I', struct.pack('<f', x))[0]
LOG2E = 1.4426950408889634
QSCALE = 28 ** -0.5 * LOG2E

WS_FLAG1, WS_FLAGX, WS_FLAGY = 0x4000, 0x8000, 0xc000
WS_KV, WS_KVP, WS_KVF, WS_OX, WS_DBG = 0x100000, 0x500000, 0x700000, 0x800000, 0x1000000
WS_SIZE = 0x2000000
OOB = 0x40000000
L_WR = 65536
WSLOT = [4, 5, 6, 7, 8, 9, 10, 0, 2, 3, 4, 5, 6, 7, 1, 4, 5, 0, 2, 3, 6]
WBASE = [4, 0, 0]
L_PHI, L_QX, L_STG = L_WR + 8*8192, L_WR + 7*8192, L_WR + 10*8192
L_WPHI, L_G = 155648, 159744
HQ = [4, 6, 2, 3, 0, 5, 1, 7, 8, 14, 10, 15, 12, 13, 9, 11]
L_WOA, L_CX = 98304, 32768
SPIN = 0x8000

class S:
    X, W, WS, M1, M2, W2 = 4, 8, 12, 16, 20, 68
    pX, pWA, pPHI, pWOA, pWB, pWOB, pGW, pOUT, pWS = 24, 26, 28, 30, 32, 34, 36, 38, 40
    h, tb, w, tt, grp, hA, j, tag, r0, hQ, cw, col = 44, 45, 46, 47, 48, 49, 50, 51, 52, 53, 54, 55
    mX, mW, t0, t1, t2, t3, t4, t5 = 56, 57, 58, 59, 60, 61, 62, 63
    vcm = 64
    rot, sK, mK, spin = 72, 73, 74, 75
    lo28 = 76
    hi32 = 78
    t6, t7, t8, t9 = 80, 81, 82, 83
    ow, ox = 84, 91
def srd(b): return f's[{b}:{b+3}]'
def vr(b, n): return f'v[{b}:{b+n-1}]' if n > 1 else f'v{b}'

class V:
    lane, i32, hh = 1, 2, 3
    xa0, xa1, w0, ws = 4, 5, 6, 7
    xr = 8
    t0r, t1r, t2r = 12, 6, 14
    g = 15
    wsb, ws2, ws2b = 13, 244, 245
    acc0, acc1, P, EP, EM = 16, 32, 48, 64, 80
    wf = 96
    xf = 128
    gw0, gw1, ob = 4, 254, 246
    tmp = 247

def mfma(d, a, b, c): return f'v_mfma_f32_32x32x16_bf16 {vr(d,16)}, {vr(a,4)}, {vr(b,4)}, {c if isinstance(c,str) else vr(c,16)}'
def smfma(d, a, b, idx): return f'v_smfmac_f32_32x32x32_bf16 {vr(d,16)}, {vr(a,4)}, {vr(b,8)}, v{idx}'

PROF = [False, 0]
DBG = set()
KVSC = ['sc1']
STAMPS = []
def stamp(k, name):
    if not PROF[0]: return
    if PROF[0] != True and name not in PROF[0]: return
    if name not in STAMPS: STAMPS.append(name)
    n = STAMPS.index(name)
    k.e(f's_memtime s[98:99]\ns_waitcnt lgkmcnt(0)\ns_sub_u32 s98, s98, s100\nv_writelane_b32 v0, s98, {n}')
    k.dq = []
def stamp_dump(k):
    if not PROF[0]: return
    k.e(f'''s_memrealtime s[98:99]
s_waitcnt lgkmcnt(0)
v_writelane_b32 v0, s98, 63
v_writelane_b32 v0, s101, 62
s_lshl_b32 s98, s2, 3
s_add_u32 s98, s98, s{S.w}
s_lshl_b32 s98, s98, 8
s_add_u32 s98, s98, {WS_DBG}
v_lshl_add_u32 v{V.tmp}, v{V.lane}, 2, s98
buffer_store_dword v0, v{V.tmp}, {srd(S.WS)}, 0 offen''')

def set_srd(k, b, ptr, n):
    k.e(f's_mov_b32 s{b}, s{ptr}\ns_mov_b32 s{b+1}, s{ptr+1}\ns_mov_b32 s{b+2}, {n}\ns_mov_b32 s{b+3}, 0x20000')

def prologue(k, NH):
    T = V.tmp
    lg = {2: 1, 4: 2, 8: 3, 16: 4}[NH]; ng = 16 // NH
    k.e(f'''
s_cmp_ge_u32 s2, 256
s_cbranch_scc1 L_end
{'s_memtime s[100:101]' if PROF[0] else ''}
{'s_memrealtime s[98:99]' if PROF[0] else ''}
s_load_dwordx4 s[24:27], s[0:1], 0
s_load_dwordx4 s[32:35], s[0:1], 40
s_load_dwordx2 s[40:41], s[0:1], 80
s_load_dwordx4 s[28:31], s[0:1], 16
s_load_dwordx4 s[36:39], s[0:1], 56
v_lshrrev_b32 v{T}, 6, v0
v_and_b32 v{V.lane}, 63, v0
v_readfirstlane_b32 s{S.w}, v{T}
s_and_b32 s{S.t0}, s2, 7
s_lshr_b32 s{S.t1}, s2, 3
s_and_b32 s{S.h}, s{S.t0}, {ng-1}
s_lshl_b32 s{S.h}, s{S.h}, {lg}
s_and_b32 s{S.t2}, s{S.t1}, {NH-1}
s_add_u32 s{S.h}, s{S.h}, s{S.t2}
s_lshr_b32 s{S.tb}, s{S.t0}, {4-lg}
s_mul_i32 s{S.tb}, s{S.tb}, {32//NH}
s_lshr_b32 s{S.t2}, s{S.t1}, {lg}
s_add_u32 s{S.tb}, s{S.tb}, s{S.t2}
s_and_b32 s{S.tt}, s{S.w}, 3
s_lshr_b32 s{S.grp}, s{S.w}, 2
s_xor_b32 s{S.hA}, s{S.h}, 1
s_mov_b32 s{S.vcm}, {sum(HQ[i] << (4*i) for i in range(8))}
s_mov_b32 s{S.vcm+1}, {sum(HQ[8+i] << (4*i) for i in range(8))}
s_lshl_b32 s{S.t2}, s{S.h}, 2
s_lshr_b64 s[{S.vcm}:{S.vcm+1}], s[{S.vcm}:{S.vcm+1}], s{S.t2}
s_and_b32 s{S.hQ}, s{S.vcm}, 15
s_cmp_gt_u32 s{S.h}, 5
s_cselect_b32 s{S.t2}, 1, 0
s_sub_u32 s{S.j}, s{S.h}, s{S.t2}
s_cmp_gt_u32 s{S.h}, 10
s_cselect_b32 s{S.t2}, 1, 0
s_sub_u32 s{S.j}, s{S.j}, s{S.t2}
s_mul_i32 s{S.t2}, s{S.tb}, 3
s_lshl1_add_u32 s{S.r0}, s{S.h}, s{S.t2}
s_mul_i32 s{S.t2}, s{S.r0}, 147
s_lshr_b32 s{S.t2}, s{S.t2}, 10
s_mul_i32 s{S.t2}, s{S.t2}, 7
s_sub_u32 s{S.r0}, s{S.r0}, s{S.t2}
s_lshl_b32 s{S.ox}, s{S.r0}, 7
s_mul_i32 s{S.ow}, s{S.r0}, 172032
s_lshl_b32 s{S.mX}, s{S.w}, 11
s_lshl_b32 s{S.mW}, s{S.w}, 10
s_add_u32 s{S.mW}, s{S.mW}, {L_WR}
v_lshrrev_b32 v{T}, 3, v{V.lane}
v_and_b32 v{T+1}, 7, v{V.lane}
v_bfe_u32 v{T+2}, v{V.lane}, 4, 2
v_xor_b32 v{T+2}, v{T+1}, v{T+2}
v_mul_u32_u24 v{V.xa0}, 896, v{T}
v_lshl_add_u32 v{V.xa0}, v{T+2}, 4, v{V.xa0}
s_lshl_b32 s{S.t2}, s{S.tb}, 3
s_add_u32 s{S.t2}, s{S.t2}, s{S.w}
s_mul_i32 s{S.t2}, s{S.t2}, 14336
v_add_u32 v{V.xa0}, s{S.t2}, v{V.xa0}
v_add_u32 v{V.xa1}, 7168, v{V.xa0}
v_xor_b32 v{V.xa1}, 64, v{V.xa1}
; ---- stage-0 W DMA source
v_bfe_u32 v{T+2}, v{V.lane}, 4, 1
v_lshlrev_b32 v{T+2}, 2, v{T+2}
v_xor_b32 v{T+2}, v{T+1}, v{T+2}
v_mul_u32_u24 v{V.w0}, 2688, v{T}
v_lshl_add_u32 v{V.w0}, v{T+2}, 4, v{V.w0}
s_mul_i32 s{S.t2}, s{S.w}, 21504
s_lshl_b32 s{S.t3}, s{S.j}, 7
s_add_u32 s{S.t2}, s{S.t2}, s{S.t3}
s_add_u32 s{S.t2}, s{S.t2}, 896
v_add_u32 v{V.w0}, s{S.t2}, v{V.w0}
s_cmp_eq_u32 s{S.h}, 5
s_cselect_b32 s{S.t4}, 0, 1204224
s_cmp_eq_u32 s{S.h}, 10
s_cselect_b32 s{S.t4}, 0, s{S.t4}
s_mov_b32 s{S.X+2}, 1835008
s_mov_b32 s{S.X+3}, 0x20000
s_mov_b32 s{S.W+2}, s{S.t4}
s_mov_b32 s{S.W+3}, 0x20000
s_waitcnt lgkmcnt(0)
{'s_mov_b32 s101, s98' if PROF[0] else ''}
s_mov_b32 s{S.X}, s{S.pX}
s_mov_b32 s{S.X+1}, s{S.pX+1}
s_mov_b32 s{S.W}, s{S.pWB}
s_mov_b32 s{S.W+1}, s{S.pWB+1}
s_load_dword s{S.tag}, s[{S.pWS}:{S.pWS+1}], 0
''')

def rot_offsets(k):
    for q in range(1, 7):
        k.e(f's_add_u32 s{S.ox+q}, s{S.ox+q-1}, 128\ns_cmp_eq_u32 s{S.ox+q}, 896\ns_cselect_b32 s{S.ox+q}, 0, s{S.ox+q}\ns_mul_i32 s{S.ow+q}, s{S.ox+q}, 1344')
def dma_x(k, s, both=False):
    for p in range(2 if both else 1):
        so = S.ox + s
        for a, v in ((0, V.xa0), (1, V.xa1)):
            k.e(f's_add_u32 m0, s{S.mX}, {(s%4)*16384 + p*8192 + a*1024}')
            if p and not a: k.e(f's_add_u32 s{S.t0}, s{so}, 57344')
            else: k.e('s_nop 0')
            x = k.vmop(f'buffer_load_dwordx4 v{v}, {srd(S.X)}, s{S.t0 if p else so} offen lds')
    return x
def dma_w(k, s, both=False):
    st = s // 7; so = S.ow + s % 7
    for p in range(2 if both else 1):
        k.e(f's_add_u32 m0, s{S.mW}, {WSLOT[s]*8192 + p*4096}')
        if st == 0:
            k.e(f's_add_u32 s{S.t0}, s{so}, 86016' if p else 's_nop 0')
            x = k.vmop(f'buffer_load_dwordx4 v{V.w0}, {srd(S.W)}, s{S.t0 if p else so} offen lds')
        else:
            k.e('s_nop 0')
            x = k.vmop(f'buffer_load_dwordx4 v{[[V.ws, V.wsb], [V.ws2, V.ws2b]][st-1][p]}, {srd(S.W2 if (st == 2 and p == 0) else S.M2)}, s{so} offen lds')
    return x
def slice_setup(k):
    T = V.tmp
    set_srd(k, S.M2, S.pWA, 1204224); set_srd(k, S.W2, S.pWB, 1204224)
    k.e(f'''s_mul_i32 s{S.t2}, s{S.tt}, 43008
v_lshrrev_b32 v{T}, 2, v{V.lane}
v_mul_u32_u24 v{T}, 2688, v{T}
v_and_b32 v{T+1}, 3, v{V.lane}
v_lshl_add_u32 v{T}, v{T+1}, 4, v{T}
v_lshrrev_b32 v{T+2}, 1, v{T+1}
v_and_b32 v{T+2}, v{T+2}, v{T+1}
v_lshlrev_b32 v{T+2}, 3, v{T+2}
v_sub_u32 v{T}, v{T}, v{T+2}
v_add_u32 v{T}, s{S.t2}, v{T}
s_mul_i32 s{S.t0}, s{S.hA}, 56
s_mul_i32 s{S.t1}, s{S.hQ}, 56
s_mul_i32 s{S.t3}, s{S.h}, 56
s_add_u32 s{S.t0}, s{S.t0}, 896
v_add_u32 v{V.ws}, s{S.t0}, v{T}
v_add_u32 v{V.wsb}, s{S.t1}, v{T}
v_add_u32 v{V.ws2}, s{S.t3}, v{T}
v_add_u32 v{V.ws2b}, 896, v{V.ws}''')

def setup2(k):
    T = V.tmp
    k.e(f'''
v_and_b32 v{V.i32}, 31, v{V.lane}
v_lshrrev_b32 v{V.hh}, 5, v{V.lane}
v_bfe_u32 v{T}, v{V.lane}, 1, 3
v_xor_b32 v{T}, v{T}, v{V.hh}
v_lshlrev_b32 v{T}, 4, v{T}
v_lshl_add_u32 v{T}, v{V.i32}, 7, v{T}
s_lshl_b32 s{S.t2}, s{S.tt}, 12
v_add_u32 v{V.xr}, s{S.t2}, v{T}
v_xor_b32 v{V.xr+1}, 32, v{V.xr}
v_xor_b32 v{V.xr+2}, 64, v{V.xr}
v_xor_b32 v{V.xr+3}, 96, v{V.xr}
s_mov_b32 s{S.hi32}, 0
s_mov_b32 s{S.hi32+1}, -1
''')
    set_srd(k, S.WS, S.pWS, WS_SIZE)
def colgrp(dst, swap):
    a = f'v_and_b32 v{dst}, 3, v{V.lane}\n' if not swap else f'v_and_b32 v{dst}, 1, v{V.lane}\nv_bfe_u32 v{dst+1}, v{V.lane}, 1, 1\nv_lshl_or_b32 v{dst}, v{dst}, 1, v{dst+1}\n'
    return a + f'''v_bfe_u32 v{dst+1}, v{V.lane}, 4, 1
v_lshl_or_b32 v{dst}, v{dst+1}, 2, v{dst}
v_bfe_u32 v{dst+1}, v{V.lane}, 2, 2
v_lshl_or_b32 v{dst+1}, v{V.hh}, 3, v{dst+1}
'''
def tr_base0(ktype):
    T = V.tmp
    return colgrp(T, ktype) + f'''v_bfe_u32 v{T+2}, v{V.lane}, 3, 1
v_lshlrev_b32 v{T+2}, 6, v{T+2}
v_lshl_add_u32 v{T+2}, v{T}, 3, v{T+2}
v_lshl_add_u32 v{T+2}, v{T+1}, 7, v{T+2}
v_add_u32 v{V.t0r}, {L_WR + WBASE[0]*8192}, v{T+2}
v_xor_b32 v{V.t0r+1}, 64, v{V.t0r}'''
def tr_base(dst, grp, swap, parity):
    T = V.tmp
    a = colgrp(T, swap)
    if parity: a += f's_and_b32 s{S.t3}, s{S.h}, 1\nv_subrev_u32 v{T}, s{S.t3}, v{T}\nv_and_b32 v{T}, 7, v{T}\n'
    return a + f'''v_lshrrev_b32 v{T+2}, 1, v{T}
v_lshrrev_b32 v{T+3}, 2, v{T}
v_and_b32 v{T+2}, v{T+2}, v{T+3}
v_and_b32 v{T+2}, 1, v{T+2}
v_xor_b32 v{T}, v{T}, v{T+2}
v_lshlrev_b32 v{T}, 3, v{T}
v_lshl_add_u32 v{T}, v{T+1}, 6, v{T}
v_add_u32 v{dst}, {L_WR + grp*4096}, v{T}'''

def wphi_load(k):
    T = V.tmp
    set_srd(k, S.X, S.pPHI, 25088)
    k.e(f'''
s_lshl_b32 s{S.t2}, s{S.tt}, 3
v_lshrrev_b32 v{T+1}, 3, v{V.lane}
v_add_u32 v{T+1}, s{S.t2}, v{T+1}
v_add_u32 v{T+2}, 1, v{V.lane}
v_and_b32 v{T+2}, 7, v{T+2}
v_max_u32 v{T+2}, 1, v{T+2}
v_mul_u32_u24 v{T+3}, 56, v{T+1}
v_lshl_add_u32 v{T+3}, v{T+2}, 3, v{T+3}
v_add_u32 v{T+1}, 4, v{T+1}
v_lshrrev_b32 v{T+1}, 5, v{T+1}
v_subrev_u32 v{T+3}, 8, v{T+3}
v_lshl_or_b32 v{T+3}, v{T+1}, 30, v{T+3}
s_mul_i32 s{S.t2}, s{S.hA}, 1568
s_mul_i32 s{S.t3}, s{S.hQ}, 1568
''')
    k.vmop(f'buffer_load_dwordx2 v[{V.EM}:{V.EM+1}], v{T+3}, {srd(S.X)}, s{S.t2} offen')
    return k.vmop(f'buffer_load_dwordx2 v[{V.EM+2}:{V.EM+3}], v{T+3}, {srd(S.X)}, s{S.t3} offen')
def gate_load(k):
    T = V.tmp
    set_srd(k, S.X, S.pGW, 896)
    k.e(f'''v_lshrrev_b32 v{T}, 4, v{V.lane}
v_add_u32 v{T}, s{S.r0}, v{T}
v_and_b32 v{T+2}, 15, v{V.lane}
v_lshlrev_b32 v{T+2}, 1, v{T+2}
s_lshl_b32 s{S.t2}, s{S.tt}, 5
v_add_u32 v{T+2}, s{S.t2}, v{T+2}
v_mov_b32 v{V.gw0+1}, 0
v_mov_b32 v{V.gw1+1}, 0''')
    for a, r in ((0, V.gw0), (4, V.gw1)):
        k.e(f'v_add_u32 v{T+1}, {a}, v{T}\nv_subrev_u32 v{T+3}, 7, v{T+1}\nv_min_u32 v{T+1}, v{T+1}, v{T+3}\nv_lshl_add_u32 v{T+1}, v{T+1}, 7, v{T+2}')
        x = k.vmop(f'buffer_load_ushort v{r}, v{T+1}, {srd(S.X)}, 0 offen')
    return x

def reads(s, grp):
    st = s // 7; buf = V.wf + 16*(s % 2); out = []
    for q in range(4):
        if st == 0:
            out.append(f'ds_read_b128 {vr(V.xf+16*s+4*q,4)}, v{V.xr+q} offset:{(s % 4)*16384}')
            if grp == 1:
                for cs, b in ((0, buf), (1, [V.P, V.EM][s % 2])):
                    for jh in range(2):
                        out.append(f'ds_read_b64_tr_b16 {vr(b+4*q+2*jh,2)}, v{V.t0r+cs} offset:{(WSLOT[s]-WBASE[0])*8192+q*2048+jh*512}')
        else:
            for jh in range(2):
                out.append(f'ds_read_b64_tr_b16 {vr(buf+4*q+2*jh,2)}, v{[V.t1r, V.t2r][st-1]} offset:{WSLOT[s]*8192+q*1024+jh*256}')
    return out
def mfmas(s, grp, wfirst):
    st = s // 7; c = s % 7; buf = V.wf + 16*(s % 2); out = []
    if st == 0 and grp == 0: return []
    tiles = [(V.acc0, buf), (V.acc1, [V.P, V.EM][s % 2])] if st == 0 else [(V.acc1 if st == 1 else V.acc0, buf)]
    for q in range(4):
        for acc, b in tiles:
            x = V.xf + 16*c + 4*q; w = b + 4*q
            cin = '0' if (c == 0 and q == 0) else acc
            out.append(mfma(acc, w, x, cin) if wfirst else mfma(acc, x, w, cin))
    return out
def nlines(p): return len([l for l in p.strip().split('\n') if l.strip()]) if isinstance(p, str) else p.n
class Job:
    def __init__(self, f, n): self.f, self.n = f, n
def emit(k, p):
    if isinstance(p, str): k.e(p)
    else: p.f()
def split_pieces(pieces, nslots):
    tot = sum(nlines(p) for p in pieces); out = [[] for _ in range(nslots)]; acc = 0
    for p in pieces:
        out[min(nslots-1, int((acc + nlines(p)/2) * nslots / max(tot, 1)))].append(p); acc += nlines(p)
    return out
def lines(txt): return [l for l in txt.strip().split('\n') if l.strip()]

def cvt16(k, dst, src):
    for q in range(8): k.e(f'v_cvt_pk_bf16_f32 v{dst+q}, v{src+2*q}, v{src+2*q+1}')

def epi0_addr_k():
    T = V.tmp; k = Stream()
    k.e(f'''
s_lshl_b32 s{S.t2}, s{S.j}, 3
v_and_b32 v{T}, 0x13, v{V.i32}
v_bfe_u32 v{T+1}, v{V.i32}, 2, 1
v_lshl_or_b32 v{T}, v{T+1}, 3, v{T}
v_bfe_u32 v{T+1}, v{V.i32}, 3, 1
v_lshl_or_b32 v{T}, v{T+1}, 2, v{T}
v_lshlrev_b32 v{T}, 4, v{T}
s_lshl_b32 s{S.t3}, s{S.tb}, 2
s_add_u32 s{S.t3}, s{S.t3}, s{S.tt}
s_lshl_b32 s{S.t3}, s{S.t3}, 12
s_add_u32 s{S.t3}, s{S.t3}, {WS_KV}
v_add_u32 v{V.EP+8}, s{S.t3}, v{T}
v_add_u32 v{V.EP+9}, s{S.t2}, v{V.hh}
''')
    out = ['\n'.join(k.L)]
    for n in range(4):
        D = V.EP + 4*(n//2) + n % 2
        out.append(f'''v_add_u32 v{T+1}, {2*n}, v{V.EP+9}
v_mul_u32_u24 v{T+2}, 37, v{T+1}
v_lshrrev_b32 v{T+2}, 8, v{T+2}
v_mul_u32_u24 v{T+3}, 7, v{T+2}
v_sub_u32 v{T+3}, v{T+1}, v{T+3}
v_lshrrev_b32 v{T+4}, 2, v{T+3}
v_lshl_add_u32 v{T+5}, v{T+2}, 1, v{T+4}
v_mul_u32_u24 v{T+4}, 3, v{T+4}
v_sub_u32 v{T+4}, v{T+3}, v{T+4}
v_lshl_add_u32 v{D}, v{T+5}, 18, v{V.EP+8}
v_lshl_add_u32 v{D}, v{T+4}, 9, v{D}
v_lshl_add_u32 v{D+2}, v{T+2}, 19, v{V.EP+8}
v_add_u32 v{D+2}, 0x40000, v{D+2}
v_xor_b32 v{T+3}, 3, v{T+3}
v_min_u32 v{T+3}, 1, v{T+3}
v_lshl_or_b32 v{D+2}, v{T+3}, 30, v{D+2}''')
    return out
def epi0_addr_v():
    T = V.tmp; out = []
    for cs in range(2):
        D = V.EP + 4*cs; C = V.EP + 8 + 4*cs
        out.append(f'''s_sub_u32 s{S.t2}, s{S.j}, 7
s_lshl_b32 s{S.t2}, s{S.t2}, 6
s_add_u32 s{S.t2}, s{S.t2}, {32*cs}
v_add_u32 v{T}, s{S.t2}, v{V.i32}
v_mul_u32_u24 v{T+1}, 2341, v{T}
v_lshrrev_b32 v{T+1}, 16, v{T+1}
v_mul_u32_u24 v{T+2}, 28, v{T+1}
v_sub_u32 v{T+2}, v{T}, v{T+2}
s_lshl_b32 s{S.t3}, s{S.tb}, 2
s_add_u32 s{S.t3}, s{S.t3}, s{S.tt}
s_lshl_b32 s{S.t3}, s{S.t3}, 12
s_add_u32 s{S.t3}, s{S.t3}, {WS_KV + 2048}
v_lshlrev_b32 v{T+1}, 18, v{T+1}
v_lshl_add_u32 v{T+1}, v{T+2}, 4, v{T+1}
v_lshlrev_b32 v{T+3}, 9, v{V.hh}
v_add3_u32 v{D}, v{T+1}, v{T+3}, s{S.t3}
v_add_u32 v{D+1}, 1024, v{D}
v_lshrrev_b32 v{T+3}, 2, v{T+2}
v_min_u32 v{T+3}, 1, v{T+3}
v_add_u32 v{D+2}, 448, v{D}
v_lshl_or_b32 v{D+2}, v{T+3}, 30, v{D+2}
v_add_u32 v{D+3}, 1024, v{D+2}
v_min_u32 v{T+2}, 1, v{T+2}
v_subrev_u32 v{T+2}, 1, v{T+2}
v_and_b32 v{C}, 0x3f803f80, v{T+2}
v_mov_b32 v{C+1}, v{C}
v_mov_b32 v{C+2}, v{C}
v_mov_b32 v{C+3}, v{C}''')
    return out

class A:
    ks, vs, kv0, kv1, idx, m = 12, 6, 8, 9, 10, 11
    a0, a1, a2 = 7, 13, 14
    f0, f1 = 4, 5
    Q, KF, V0, V1, O, NM, SA, SB, PHQ = 128, 136, 144, 112, 160, 176, 192, 208, 32
    l = 152; t = 153
    WOA, OF, RED = 16, 80, 48
    WOB, ACC = 176, 128
    wsrc = 124
    eps = 245

def wphi_reads(grp):
    T = V.tmp
    a = lines(colgrp(T, False) + f'v_lshlrev_b32 v{T}, 3, v{T}\nv_lshl_add_u32 v{T}, v{T+1}, 6, v{T}\nv_add_u32 v{T}, {L_WPHI + grp*2048}, v{T}')
    for s in range(2):
        for jh in range(2): a.append(f'ds_read_b64_tr_b16 {vr(V.EM+4*s+2*jh,2)}, v{T} offset:{s*1024+jh*256}')
    a.append(f's_mov_b32 s{S.t6}, {fbits(LOG2E)}')
    return a

def feat_pieces(src, dst, grp, round_p=True):
    T = V.tmp; P, EP, EM = V.P, V.EP, V.EM
    sA = S.t6; c = []
    c += [f'v_cvt_pk_bf16_f32 v{EM+8+q}, v{src+2*q}, v{src+2*q+1}' for q in range(8)]
    c += [mfma(P, EM, EM+8, '0') + '\n' + mfma(P, EM+4, EM+12, P), 'WAITP']
    if round_p:
        c += [f'v_cvt_pk_bf16_f32 v{EP+q}, v{P+2*q}, v{P+2*q+1}' for q in range(8)]
        for q in range(8): c += [f'v_lshlrev_b32 v{P+2*q}, 16, v{EP+q}', f'v_and_b32 v{P+2*q+1}, 0xffff0000, v{EP+q}']
    c += [f'v_max3_f32 v{T}, v{P}, v{P+1}, v{P+2}', f'v_max3_f32 v{T+1}, -v{P}, -v{P+1}, -v{P+2}']
    for q in range(3, 15, 2):
        c += [f'v_max3_f32 v{T}, v{T}, v{P+q}, v{P+q+1}', f'v_max3_f32 v{T+1}, v{T+1}, -v{P+q}, -v{P+q+1}']
    c.append(f'''v_max_f32 v{T}, v{T}, v{P+15}
v_max_f32_e64 v{T+1}, v{T+1}, -v{P+15}
v_sub_u32 v{T+2}, 0, v{V.hh}
v_and_b32 v{T+2}, 0x7f800000, v{T+2}
v_permlane32_swap_b32 v{T}, v{T+1}
v_max_f32 v{T}, v{T}, v{T+1}
v_mul_f32 v{T+1}, s{sA}, v{T}
v_mul_f32 v{T+3}, s{sA}, v{T}
s_nop 1
v_permlane32_swap_b32 v{T+1}, v{T+3}''')
    for q in range(8):
        if q == 6: c.append(f'v_add_f32 v{T+1}, v{T+1}, v{T+2}\nv_add_f32 v{T+3}, v{T+3}, v{T+2}')
        c.append(f'v_pk_fma_f32 {vr(EP+2*q,2)}, {vr(P+2*q,2)}, s[{sA}:{sA+1}], {vr(T+1,2)} op_sel_hi:[1,0,0] neg_lo:[0,0,1] neg_hi:[0,0,1]')
        c.append(f'v_pk_fma_f32 {vr(EM+2*q,2)}, {vr(P+2*q,2)}, s[{sA}:{sA+1}], {vr(T+3,2)} op_sel_hi:[1,0,0] neg_lo:[1,0,1] neg_hi:[1,0,1]')
    c += [f'v_exp_f32 v{EP+q}, v{EP+q}\n; x' for q in range(16)]
    c += [f'v_exp_f32 v{EM+q}, v{EM+q}\n; x' for q in range(16)]
    c += [f'v_pk_add_f32 {vr(T+1,2)}, {vr(EP,2)}, {vr(EP+2,2)}', f'v_pk_add_f32 {vr(T+3,2)}, {vr(EM,2)}, {vr(EM+2,2)}']
    for q in range(2, 8):
        c += [f'v_pk_add_f32 {vr(T+1,2)}, {vr(T+1,2)}, {vr(EP+2*q,2)}', f'v_pk_add_f32 {vr(T+3,2)}, {vr(T+3,2)}, {vr(EM+2*q,2)}']
    a = f'''v_add_f32 v{T+1}, v{T+1}, v{T+2}
v_add_f32 v{T+3}, v{T+3}, v{T+4}
s_nop 1
v_permlane32_swap_b32 v{T+1}, v{T+3}
v_add_f32 v{T+1}, v{T+1}, v{T+3}
'''
    if grp == 0:
        a += f'v_rcp_f32 v{T+1}, v{T+1}\ns_nop 0\nv_mov_b32 v{T+3}, v{T+1}\ns_nop 1\nv_permlane32_swap_b32 v{T+1}, v{T+3}'
    else:
        a += f'v_mov_b32 v{T+3}, v{T+1}\ns_nop 1\nv_permlane32_swap_b32 v{T+1}, v{T+3}\nv_rcp_f32 v{T+3}, v{T+3}\nv_mul_f32 v{A.eps}, {fbits(1e-6)}, v{T+1}\nv_mul_f32 v{T+3}, v{T+3}, v{T+1}'
    c.append(a)
    for q in range(8):
        if grp == 0: c.append(f'v_pk_mul_f32 {vr(EP+2*q,2)}, {vr(EP+2*q,2)}, {vr(T+1,2)} op_sel_hi:[1,0]')
        c.append(f'v_pk_mul_f32 {vr(EM+2*q,2)}, {vr(EM+2*q,2)}, {vr(T+3,2)} op_sel_hi:[1,0]')
    for q in range(8):
        c += [f'v_cvt_pk_bf16_f32 v{dst+q}, v{EP+2*q}, v{EP+2*q+1}', f'v_cvt_pk_bf16_f32 v{dst+8+q}, v{EM+2*q}, v{EM+2*q+1}']
    return c

def phi_base():
    T = V.tmp; D = A.m
    return lines(f'''v_and_b32 v{D}, 1, v{V.i32}
v_bfe_u32 v{T}, v{V.i32}, 2, 2
v_lshl_or_b32 v{D}, v{T}, 1, v{D}
v_bfe_u32 v{T}, v{V.i32}, 1, 1
v_lshl_or_b32 v{D}, v{T}, 3, v{D}
v_xor_b32 v{D}, v{D}, v{V.hh}
v_lshlrev_b32 v{D}, 3, v{D}
v_lshl_add_u32 v{D}, v{V.i32}, 7, v{D}
s_lshl_b32 s{S.t2}, s{S.tt}, 12
s_add_u32 s{S.t2}, s{S.t2}, {L_PHI}
v_add_u32 v{D}, s{S.t2}, v{D}''')
def phi_write(src):
    T = V.tmp; out = []
    for s in range(2):
        for g in range(4):
            u = 8*s + 2*g
            out.append((f'v_xor_b32 v{T}, {u*8}, v{A.m}\n' if u else '') + f'ds_write_b64 v{T if u else A.m}, {vr(src+8*s+2*g,2)}')
    return out

def va_stage(k):
    cvt16(k, V.P, V.acc0)
    k.e(f's_mov_b32 exec_lo, 0xf0000000\ns_mov_b32 exec_hi, 0xf0000000')
    for q in range(8): k.e(f'v_mov_b32 v{V.P+q}, 0')
    k.e(f's_mov_b32 exec_lo, 0x10000000\ns_mov_b32 exec_hi, 0x10000000')
    for q in range(8): k.e(f'v_mov_b32 v{V.P+q}, 0x3f803f80')
    k.e(f'''s_mov_b64 exec, -1
ds_write_b128 v{A.a0}, {vr(V.P,4)} offset:{L_STG-L_QX}
ds_write_b128 v{A.a0}, {vr(V.P+4,4)} offset:{L_STG-L_QX+1024}''')

KVB = 240
def kv_addr_setup(D):
    T = V.tmp
    return lines(f'''s_lshr_b32 s{S.t2}, s{S.w}, 1
s_lshl_b32 s{S.t3}, s{S.t2}, 2
v_and_b32 v{T}, 3, v{V.lane}
v_or_b32 v{T}, s{S.t3}, v{T}
v_bfe_u32 v{T+1}, v{V.lane}, 2, 1
v_bfe_u32 v{D}, v{V.lane}, 4, 1
v_lshl_or_b32 v{T+1}, v{D}, 1, v{T+1}
v_bfe_u32 v{D+1}, v{V.lane}, 3, 1
v_lshl_or_b32 v{T+1}, v{D+1}, 3, v{T+1}
v_xor_b32 v{T}, v{T}, v{T+1}
v_bfe_u32 v{T+1}, v{V.lane}, 2, 2
v_lshl_or_b32 v{T+1}, v{D}, 2, v{T+1}
v_lshl_or_b32 v{T+1}, v{V.hh}, 4, v{T+1}
v_lshlrev_b32 v{T}, 3, v{T}
v_lshl_add_u32 v{T}, v{T+1}, 7, v{T}
v_and_b32 v{T+1}, 15, v{V.lane}
s_and_b32 s{S.t3}, s{S.w}, 1
s_lshl_b32 s{S.t3}, s{S.t3}, 4
v_add_u32 v{T+1}, s{S.t3}, v{T+1}
v_lshl_add_u32 v{D+3}, v{D}, 5, v{T+1}
v_lshlrev_b32 v{D+3}, 5, v{D+3}
v_lshl_add_u32 v{D+3}, v{V.hh}, 4, v{D+3}
s_lshl_b32 s{S.t3}, s{S.hA}, 4
s_add_u32 s{S.t3}, s{S.t3}, s{S.tb}
s_lshl_b32 s{S.t3}, s{S.t3}, 2
s_add_u32 s{S.t3}, s{S.t3}, s{S.t2}
s_lshl_b32 s{S.t3}, s{S.t3}, 11
s_add_u32 s{S.t3}, s{S.t3}, {WS_KVP}
v_add_u32 v{D+3}, s{S.t3}, v{D+3}
v_lshlrev_b32 v{T+1}, 4, v{T+1}
v_lshrrev_b32 v{D+2}, 4, v{V.lane}
v_lshl_add_u32 v{D+2}, v{D+2}, 9, v{T+1}
v_add_u32 v{D+2}, {L_STG}, v{D+2}
v_add_u32 v{D}, {L_PHI}, v{T}
v_add_u32 v{D+1}, 1024, v{D}
v_xor_b32 v{D+1}, 32, v{D+1}''')
def kv_partial(k):
    D = KVB; ids = []
    for Tt in range(4):
        k.ds(f'ds_read_b64_tr_b16 {vr(V.EP+4*Tt,2)}, v{D} offset:{Tt*4096}')
        k.ds(f'ds_read_b64_tr_b16 {vr(V.EP+4*Tt+2,2)}, v{D+1} offset:{Tt*4096}')
        ids.append(k.ds(f'ds_read_b128 {vr(V.EM+4*Tt,4)}, v{D+2} offset:{Tt*2048}'))
    return ids
def kv_partial2(k, ids):
    for Tt in range(4):
        k.dswait(ids[Tt])
        k.e(f'v_mfma_f32_16x16x32_bf16 {vr(V.P,4)}, {vr(V.EP+4*Tt,4)}, {vr(V.EM+4*Tt,4)}, {"0" if Tt == 0 else vr(V.P,4)}')
def kv_partial3(k):
    return k.vmop(f'buffer_store_dwordx4 {vr(V.P,4)}, v{KVB+3}, {srd(S.WS)}, 0 offen sc1')

def flag_store(k, addr_s, val_s, sc='sc1', opt=True, T=None):
    T = T or V.tmp
    k.e(f'v_mov_b32 v{T}, s{addr_s}\nv_mov_b32 v{T+1}, s{val_s}\ns_mov_b64 exec, 1')
    a = k.vmop(f'buffer_store_dword v{T+1}, v{T}, {srd(S.WS)}, 0 offen {sc}', opt=opt)
    k.e('s_mov_b64 exec, -1')
    return a

_lbl = [0]
def lbl(p):
    _lbl[0] += 1; return f'L_{p}_{_lbl[0]}'

def flag_check(k, ld_id, vflag, vaddr, mask=False, keep=False):
    L1, L2 = lbl('poll'), lbl('polled')
    k.vmwait(ld_id, keep=keep)
    T = V.tmp
    cmp = f'v_and_b32 v{T}, -16, v{vflag}\nv_cmp_ne_u32 vcc, s{S.tag}, v{T}' if mask else f'v_cmp_ne_u32 vcc, s{S.tag}, v{vflag}'
    k.e(f'{cmp}\ns_cbranch_vccnz {L1}\n{L2}:')
    k.cold.e(f'''{L1}:
s_mov_b32 s{S.spin}, {SPIN}
{L1}_a:
s_sleep 4
buffer_load_dword v{vflag}, v{vaddr}, {srd(S.WS)}, 0 offen sc1
s_waitcnt vmcnt(0)
{cmp}
s_cbranch_vccz {L2}
s_sub_u32 s{S.spin}, s{S.spin}, 1
s_cbranch_scc0 {L1}_a
s_branch {L2}''')

def step(k, s, grp, ids, wfirst, opts, pieces=(), tailp=()):
    k.c(f'---- step {s}')
    gate = grp == 0 and 13 <= s <= 19
    if gate: k.vmwait(ids.get(s + 1))
    k.vmwait(ids.get(s))
    stamp(k, f'step{s}')
    k.e('s_waitcnt lgkmcnt(0)\ns_barrier')
    stamp(k, f'bar{s}')
    mf = mfmas(s-1, grp, wfirst) if s not in (0, 7) else []
    rd = reads(s, grp)
    if gate:
        q = (s - 13) % 4
        rd.append(f's_mov_b32 exec_lo, {hex(0xffff << (16*q)) if q < 2 else 0}\ns_mov_b32 exec_hi, {hex(0xffff << (16*(q-2))) if q >= 2 else 0}\n'
                  f'ds_write_b64 v{V.g}, {vr(V.gw0 if s < 17 else V.gw1,2)} offset:{WSLOT[s+1]*8192}\ns_mov_b64 exec, -1')
    if opts['stagger'] and 15 <= s <= opts['feat_last']:
        pat = opts['stagger'][grp]; qs = split_pieces(list(pieces) + list(tailp if grp else ()), 4); mi = 0
        if grp: tailp = ()
        for tok in pat.split():
            if tok == 'M':
                for m in mf[mi:]: k.e(m)
            elif tok == 'm': k.e(mf[mi]); mi += 1
            elif tok == 'R':
                for r in rd: k.e(r)
            elif tok[0] == 'p': k.e(f's_setprio {tok[1]}')
            else:
                for _ in range(int(tok)):
                    for p in qs.pop(0): emit(k, p)
    else:
        n = max(len(mf), 1); nr = max(1, (n+1)//2)
        pcs = split_pieces(list(pieces), n)
        for q in range(n):
            if opts['prio1'] and 14 <= s <= opts['feat_last']: k.e(f's_setprio {3-q}')
            if mf: k.e(mf[q])
            if q < nr:
                for r in rd[q*len(rd)//nr:(q+1)*len(rd)//nr]: k.e(r)
            for p in pcs[q]: emit(k, p)
    stamp(k, f'body{s}')
    if grp == 0:
        if s + 3 <= 6: ids[s+3] = dma_x(k, s + 3, True)
        for w in opts['wsched'].get(s, ()):
            x = dma_w(k, w, True)
            if w not in ids or w > 6: ids[w] = x
    for p in tailp: emit(k, p)
    stamp(k, f'done{s}')

def stage0(k, grp, ids, ktype, opts):
    T = V.tmp
    ob = f'''s_lshl_b32 s{S.t2}, s{S.tb}, 2
s_add_u32 s{S.t2}, s{S.t2}, s{S.tt}
s_lshl_b32 s{S.t2}, s{S.t2}, 16
s_lshl_b32 s{S.t3}, s{S.h}, 11
s_add_u32 s{S.t2}, s{S.t2}, s{S.t3}
s_add_u32 s{S.t2}, s{S.t2}, {WS_OX + 32768 + grp*1024}
v_lshl_add_u32 v{V.ob}, v{V.lane}, 4, s{S.t2}
s_add_u32 s{S.tag}, s{S.tag}, 0x9e3779b0'''
    P = {0: [ob], 6: ['\n'.join(kv_addr_setup(KVB))], 4: [tr_base(V.t2r, grp, grp == 0, grp == 0)], 5: [tr_base(V.t1r, grp, True, False)]}
    if grp == 1:
        ep = (epi0_addr_k if ktype else epi0_addr_v)()
        P[1] = ep[:len(ep)//2]; P[2] = ep[len(ep)//2:]; P[0] += P.pop(6)
        P[3] = [f's_cmp_eq_u32 s{S.h}, 5\ns_cselect_b32 s{S.t4}, 0, {WS_SIZE}\ns_cmp_eq_u32 s{S.h}, 10\ns_cselect_b32 s{S.M1+2}, 0, s{S.t4}\ns_mov_b32 s{S.M1}, s{S.pWS}\ns_mov_b32 s{S.M1+1}, s{S.pWS+1}\ns_mov_b32 s{S.M1+3}, 0x20000']
    else:
        P[6] += [Job(lambda: wphi_load(k), 20)]
    for s in range(0, 7): step(k, s, grp, ids, ktype, opts, P.get(s, ()))
    if grp == 1:
        k.e('s_waitcnt lgkmcnt(0)')
        for m in mfmas(6, grp, ktype): k.e(m)

def stage0_epilogue(k, ktype):
    def extra(n):
        L = lbl('dup'); a = V.EP + 4*(n//2) + 2 + n % 2
        k.e(f'v_cmp_gt_u32 vcc, {OOB}, v{a}\ns_cbranch_vccz {L}')
        k.vmop(f'buffer_store_dwordx4 {vr(V.P+4*n if ktype else V.EP+8+4*(n//2),4)}, v{a}, {srd(S.M1)}, 0 offen sc1', opt=True)
        k.e(f'{L}:')
    if not ktype:
        for n in range(4): extra(n)
    for n in range(4):
        for q in range(4): k.e(f'v_cvt_pk_bf16_f32 v{V.P+4*n+q}, v{V.acc0+8*n+2*q}, v{V.acc0+8*n+2*q+1}')
        if ktype: extra(n)
        a = k.vmop(f'buffer_store_dwordx4 {vr(V.P+4*n,4)}, v{V.EP+4*(n//2)+n%2}, {srd(S.M1)}, 0 offen sc1')
    return a

def clear_jobs(k, out):
    T = V.tmp + 5; C = V.xf
    def c0():
        for q in range(4): k.e(f'v_mov_b32 v{C+q}, -1')
        L = lbl('cl')
        k.e(f'''s_cmp_lg_u32 s{S.w}, 4
s_cbranch_scc1 {L}
s_lshl_b32 s{S.t2}, s{S.hA}, 4
s_add_u32 s{S.t2}, s{S.t2}, s{S.tb}
s_lshl_b32 s{S.t2}, s{S.t2}, 8
s_add_u32 s{S.t2}, s{S.t2}, {WS_KVF}
v_lshl_add_u32 v{T+1}, v{V.lane}, 2, s{S.t2}''')
        k.vmop(f'buffer_store_dword v{C}, v{T+1}, {srd(S.WS)}, 0 offen sc1', opt=True)
        k.e(f'{L}:')
        k.vmop(f'buffer_store_dwordx4 {vr(C,4)}, v{KVB+3}, {srd(S.WS)}, 0 offen sc1')
    def c1():
        k.e(f'v_subrev_u32 v{T}, 4096, v{KVB+3}')
        out['clr'] = k.vmop(f'buffer_store_dwordx4 {vr(C,4)}, v{T}, {srd(S.WS)}, 0 offen sc1')
    return [Job(c0, 8), Job(c1, 2)]

def attn_addr(grp, first):
    return [f'''s_lshr_b32 s{S.rot}, s{S.tb}, 1
s_and_b32 s{S.t2}, s{S.tb}, 1
s_lshl_b32 s{S.t2}, s{S.t2}, 2
s_add_u32 s{S.rot}, s{S.rot}, s{S.t2}
s_add_u32 s{S.rot}, s{S.rot}, {first}
s_and_b32 s{S.rot}, s{S.rot}, 7
s_lshl_b32 s{S.sK}, s{S.rot}, 14
s_lshl_b32 s{S.mK}, s{S.w}, 12''', f'''s_lshl_b32 s{S.t2}, s{S.h}, 18
s_lshl_b32 s{S.t3}, s{S.tt}, 12
s_add_u32 s{S.t2}, s{S.t2}, s{S.t3}
s_add_u32 s{S.t2}, s{S.t2}, {WS_KV + grp*131072}
v_lshl_add_u32 v{A.ks}, v{V.lane}, 4, s{S.t2}''', f'''v_lshlrev_b32 v{A.kv0}, 4, v{V.lane}
v_add_u32 v{A.kv0}, {grp*16384}, v{A.kv0}
v_add_u32 v{A.kv1}, 0x10000, v{A.kv0}
v_mov_b32 v{A.idx}, 0xdddddddd''']

def kv_dma_jobs(k, stage, out, both=False):
    slot = stage % 3
    def j(q, other):
        if other: k.e(f's_add_u32 m0, s{S.mK}, {slot*32768-16384}\nv_subrev_u32 v{A.a1}, 0x20000, v{A.ks}')
        else: k.e(f's_add_u32 m0, s{S.mK}, {slot*32768}\ns_nop 0')
        out[stage] = k.vmop(f'buffer_load_dwordx4 v{A.a1 if other else A.ks}, {srd(S.WS)}, s{S.sK} offen offset:{q*1024} {KVSC[0]} lds')
        if q == 3 and not other: k.e(f's_add_u32 s{S.sK}, s{S.sK}, 16384\ns_and_b32 s{S.sK}, s{S.sK}, 0x1ffff')
    J = [Job(lambda q=q: j(q, 1), 4) for q in range(4)] if both else []
    return J + [Job(lambda q=q: j(q, 0), 4) for q in range(4)]

def only(k, w, f):
    def g():
        L = lbl('w'); k.e(f's_cmp_lg_u32 s{S.w}, {w}\ns_cbranch_scc1 {L}'); f(); k.e(f'{L}:')
    g.__name__ = f.__name__
    return g

def stages12(k, ids, grp, st_id, opts):
    T = V.tmp; out = {}; st = {}
    P = {s: [] for s in range(7, 21)}; TP = {s: [] for s in range(7, 21)}
    npre = opts['npre']; pub = opts['f1_step']; xpub = opts['fx_step']
    if grp == 1:
        out['st'] = st_id
        for n, j in enumerate(clear_jobs(k, out)): TP[opts['clr_at'][n]].append(j)
    P[14] += attn_addr(grp, opts['npre'] if grp == 0 else 0)
    if grp == 0:
        P[10] += [f's_lshl_b32 s{S.t2}, s{S.tt}, 9\ns_add_u32 s{S.t2}, s{S.t2}, {L_WPHI}\nv_lshl_add_u32 v{T}, v{V.lane}, 3, s{S.t2}\nds_write_b64 v{T}, {vr(V.EM,2)}\nds_write_b64 v{T}, {vr(V.EM+2,2)} offset:2048']
        P[8] += [Job(lambda: gate_load(k), 20)]
        P[11] += ['\n'.join(phi_base())]
        P[12] += [f'v_and_b32 v{V.g}, 15, v{V.lane}\nv_lshlrev_b32 v{V.g}, 6, v{V.g}\ns_add_u32 s{S.t2}, s{S.mW}, 48\nv_add_u32 v{V.g}, s{S.t2}, v{V.g}']
    else:
        P[11] += [f'''s_mul_i32 s{S.t2}, s{S.h}, 28
s_add_u32 s{S.t3}, s{S.t2}, 27
s_lshr_b32 s{S.t2}, s{S.t2}, 6
s_lshr_b32 s{S.t3}, s{S.t3}, 6
s_sub_u32 s{S.t3}, s{S.t3}, s{S.t2}
v_bfe_u32 v{T}, v{V.lane}, 4, 1
v_mul_u32_u24 v{T}, s{S.t3}, v{T}
v_mul_u32_u24 v{T+1}, 7, v{V.hh}
v_add3_u32 v{T}, v{T}, v{T+1}, s{S.t2}
v_and_b32 v{T+1}, 15, v{V.lane}
v_lshl_add_u32 v{T}, v{T}, 4, v{T+1}
v_lshlrev_b32 v{T}, 6, v{T}
v_add_u32 v{A.f1}, {WS_FLAG1}, v{T}''']
    P[13] += ['\n'.join(wphi_reads(grp))]
    def f1pub():
        assert k.vmcount(out['st']) is None
        k.e(f'''s_lshl_b32 s{S.t2}, s{S.j}, 4
s_add_u32 s{S.t2}, s{S.t2}, s{S.tb}
s_lshl_b32 s{S.t2}, s{S.t2}, 6
s_add_u32 s{S.t2}, s{S.t2}, {WS_FLAG1}
s_cmp_eq_u32 s{S.M1+2}, 0
s_cselect_b32 s{S.t2}, {OOB}, s{S.t2}''')
        flag_store(k, S.t2, S.tag, T=V.tmp+5)
    def fxpub():
        assert k.vmcount(out['clr']) is None
        k.e(f's_lshl_b32 s{S.t2}, s{S.tb}, 4\ns_add_u32 s{S.t2}, s{S.t2}, s{S.h}\ns_lshl_b32 s{S.t2}, s{S.t2}, 6\ns_add_u32 s{S.t2}, s{S.t2}, {WS_FLAGX}')
        flag_store(k, S.t2, S.tag, T=V.tmp+5)
    if grp == 1: P[pub].insert(0, Job(only(k, 5, f1pub), 2)); P[xpub].insert(0, Job(only(k, 5, fxpub), 2))
    fp = feat_pieces(V.acc1, V.acc1, grp, opts['round_p'])
    i = fp.index('WAITP')
    TP[14] += fp[:i]
    rest = fp[i+1:] + (phi_write(V.acc1) if grp == 0 else [])
    for n, grpp in enumerate(split_pieces(rest, opts['feat_last'] - 14)): P[15+n] += grpp
    TP[19].append(f's_lshl_b32 s{S.t2}, s{S.tt}, 11\ns_add_u32 s{S.t2}, s{S.t2}, {L_QX}\nv_lshl_add_u32 v{A.a0}, v{V.lane}, 4, s{S.t2}')
    TP[18] += [f'v_mov_b32 v{A.O+q}, 0' for q in range(16)]
    if grp == 1:
        c = opts['f1_check']
        def f1ld(): out['f1'] = k.vmop(f'buffer_load_dword v{A.f0}, v{A.f1}, {srd(S.WS)}, 0 offen sc1', opt=True)
        def f1ck():
            flag_check(k, out['f1'], A.f0, A.f1, keep=True); stamp(k, 'f1seen')
        def fxld():
            k.e(f'''s_xor_b32 s{S.t2}, s{S.hQ}, 1
s_sub_u32 s{S.t2}, s{S.t2}, s{S.h}
v_and_b32 v{T+5}, 15, v{V.lane}
v_mul_lo_u32 v{T+6}, v{V.hh}, s{S.t2}
v_add_u32 v{T+6}, s{S.h}, v{T+6}
v_lshl_add_u32 v{T+6}, v{T+5}, 4, v{T+6}
v_lshlrev_b32 v{T+6}, 6, v{T+6}
v_add_u32 v{A.f1}, {WS_FLAGX}, v{T+6}''')
            out['fx'] = k.vmop(f'buffer_load_dword v{A.f0}, v{A.f1}, {srd(S.WS)}, 0 offen sc1', opt=True)
        out['fxld'] = only(k, 4, fxld)
        TP[c-2].insert(0, Job(only(k, 4, f1ld), 1))
        TP[c-1].insert(0, Job(only(k, 4, f1ck), 3))
    dj = []
    if grp == 1:
        for s_ in range(npre): dj += kv_dma_jobs(k, s_, st, both=True)
    for s_ in range(opts['f1_check'], 21):
        n = min(len(dj), opts['pre_rate']); TP[s_] += dj[:n]; dj = dj[n:]
    out['left'] = dj
    for s in range(7, 21):
        if s == pub and grp == 1: k.vmwait(out['st'])
        if s == xpub and grp == 1: k.vmwait(out['clr'])
        step(k, s, grp, ids, not (grp == 1 and s-1 >= 14), opts, P[s], TP[s])
    k.e('s_waitcnt lgkmcnt(0)')
    for m in mfmas(20, grp, grp == 0): k.e(m)
    out['kvst'] = st
    return out

def attn_prologue(k, grp, pend, opts):
    T = V.tmp
    k.c('---- attention prologue')
    stamp(k, 'p1done')
    st = pend['kvst']
    for j in pend['left']: j.f()
    if grp == 0:
        a0 = V.acc0
        k.e(f'''v_mov_b32 v{T+1}, v{a0+12}
v_mov_b32 v{T+3}, v{a0+12}
v_mov_b32 v{T+2}, v{a0}
v_mov_b32 v{T+4}, v{a0}
s_mov_b32 s{S.t6}, {fbits(QSCALE)}
v_permlane32_swap_b32 v{T+1}, v{T+3}
v_permlane32_swap_b32 v{T+2}, v{T+4}
s_bitcmp1_b32 s{S.h}, 0
s_cselect_b64 s[{S.vcm}:{S.vcm+1}], -1, 0
v_cndmask_b32 v{T+3}, v{T+3}, v{T+2}, s[{S.vcm}:{S.vcm+1}]
v_mul_f32 v{T+3}, {fbits(-LOG2E)}, v{T+3}
v_exp_f32 v{T+3}, v{T+3}''')
        for q in range(8): k.e(f'v_pk_mul_f32 {vr(a0+2*q,2)}, {vr(a0+2*q,2)}, s[{S.t6}:{S.t6+1}] op_sel_hi:[1,0]')
        k.e(f'v_add_f32 v{T+3}, 1.0, v{T+3}\nv_rcp_f32 v{V.g}, v{T+3}')
        cvt16(k, A.Q, a0)
        k.e(f'''s_cselect_b32 exec_lo, -1, 0
s_mov_b32 exec_hi, 0
v_mov_b32 v{A.Q}, 0
v_mov_b32 v{A.Q+1}, 0
s_mov_b32 exec_lo, 0
s_cselect_b32 exec_hi, 0, -1
v_mov_b32 v{A.Q+6}, 0
v_mov_b32 v{A.Q+7}, 0
s_mov_b64 exec, -1
v_lshrrev_b32 v{T}, 2, v{A.a0}
ds_write_b128 v{A.a0}, {vr(A.Q,4)}
ds_write_b128 v{A.a0}, {vr(A.Q+4,4)} offset:1024
v_and_b32 v{T}, 0x7fc, v{T}
v_add_u32 v{T}, {L_G}, v{T}
ds_write_b32 v{T}, v{V.g}''')
    else:
        va_stage(k)
        k.e(f'v_lshrrev_b32 v{T}, 2, v{A.a0}\nv_and_b32 v{T}, 0x7fc, v{T}\nv_add_u32 v{T}, {L_G}, v{T}')
    stamp(k, 'preB0')
    k.vmwait(st.get(0), 'lgkmcnt(0)')
    stamp(k, 'B0wait')
    k.e('s_barrier')
    if grp == 1:
        k.ds(f'ds_read_b128 {vr(A.Q,4)}, v{A.a0}')
        k.ds(f'ds_read_b128 {vr(A.Q+4,4)}, v{A.a0} offset:1024')
        k.ds(f'ds_read_b32 v{V.g}, v{T}')
    return st

def kv_addr(t):
    s, T = t // 4, t % 4; slot = s % 3
    base = A.kv0 if slot < 2 else A.kv1
    return base, (slot % 2)*32768 + T*4096
def rdK(k, t, q):
    b, o = kv_addr(t); return k.ds(f'ds_read_b128 {vr(A.KF+4*q,4)}, v{b} offset:{o+q*1024}')
def rdV(k, t):
    b, o = kv_addr(t)
    k.ds(f'ds_read_b128 {vr(A.V0+4*(t%2),4)}, v{b} offset:{o+2048}')
    return k.ds(f'ds_read_b128 {vr(A.V1+4*(t%3),4)}, v{b} offset:{o+3072}')

def both_ways(k, txts):
    for t in txts: a = k.vmop(t + ' sc1')
    return a
def maxchain(dst, src, n):
    out = [f'v_max3_u32 v{dst}, v{src}, v{src+1}, v{src+2}']; q = 3
    while q < n:
        out.append(f'v_max3_u32 v{dst}, v{dst}, v{src+q}, v{src+q+1}' if q+1 < n else f'v_max_u32 v{dst}, v{dst}, v{src+q}'); q += 2
    return out
def sent_check(k, dst, src, n, loads, redo=''):
    L1, L2 = lbl('sp'), lbl('spd')
    k.e(f'v_cmp_eq_u32 vcc, -1, v{dst}\ns_cbranch_vccnz {L1}\n{L2}:')
    k.cold.e(f'{L1}:\ns_mov_b32 s{S.spin}, {SPIN}\n{L1}_a:\ns_sleep 4')
    for l in loads: k.cold.e(l)
    k.cold.e('s_waitcnt vmcnt(0)')
    for l in maxchain(dst, src, n): k.cold.e(l)
    k.cold.e(f'v_cmp_eq_u32 vcc, -1, v{dst}\ns_cbranch_vccz {L1}_b\ns_sub_u32 s{S.spin}, s{S.spin}, 1\ns_cbranch_scc0 {L1}_a\n{L1}_b:')
    if redo: k.cold.e(redo)
    k.cold.e(f's_branch {L2}')

def wo_jobs(k, br, sidx, rowmul, row0, ldsmul, ldsbase, n, out, key):
    J = []
    for q in range(n):
        def j(q=q):
            if q == 0: k.e(f's_mul_i32 s{S.t8}, s{sidx}, {ldsmul}\ns_mul_i32 s{S.t7}, s{sidx}, {rowmul}')
            k.e(f's_add_u32 m0, s{S.t8}, {ldsbase + q*1024}\ns_add_u32 s{S.t9}, s{S.t7}, {row0 + q*7168}')
            out[key] = k.vmop(f'buffer_load_dwordx4 v{A.wsrc}, {srd(S.M1 if br == 0 else S.M2)}, s{S.t9} offen lds')
        J.append(Job(j, 3))
    return J

def o_loads(dst, addr):
    return [f'buffer_load_dwordx4 {vr(dst+4*q,4)}, v{addr}, {srd(S.WS)}, {"0" if q < 4 else "s%d" % S.r0} offen offset:{(q%4)*1024} sc1' for q in range(8)]

def side_jobs(k, grp, opts, pend):
    T = V.tmp; J = {}; st = {}
    def at(t, f): J.setdefault(t, []).append(f)
    def oclear0():
        for q in range(4): k.e(f'v_mov_b32 v{16+q}, -1')
        k.e(f's_sub_u32 s{S.t2}, s{S.hQ}, s{S.h}\ns_lshl_b32 s{S.t2}, s{S.t2}, 11\ns_sub_u32 s{S.t2}, s{S.t2}, 32768\nv_add_u32 v{T}, s{S.t2}, v{V.ob}')
        k.vmop(f'buffer_store_dwordx4 {vr(16,4)}, v{T}, {srd(S.WS)}, 0 offen sc1')
    def oclear1():
        pend['barwait'] = {opts['ybar']: k.vmop(f'buffer_store_dwordx4 {vr(16,4)}, v{V.ob}, {srd(S.WS)}, 0 offen sc1')}
    at(opts['oclr_at'][grp], oclear0); at(opts['oclr_at'][2+grp], oclear1)
    yt = opts['ybar']*4 - 2
    def xcheck(): flag_check(k, pend['fx'], A.f0, A.f1, keep=True)
    def ypub():
        k.e(f'''s_lshl_b32 s{S.t2}, s{S.tb}, 10
s_add_u32 s{S.t2}, s{S.t2}, {WS_FLAGY}
v_and_b32 v{A.f1}, 15, v{V.lane}
v_lshl_add_u32 v{A.f1}, v{A.f1}, 6, s{S.t2}
s_lshl_b32 s{S.t3}, s{S.h}, 6
s_add_u32 s{S.t2}, s{S.t2}, s{S.t3}''')
        flag_store(k, S.t2, S.tag)
    def yld(): st['fy'] = k.vmop(f'buffer_load_dword v{A.f0}, v{A.f1}, {srd(S.WS)}, 0 offen sc1', opt=True)
    def ycheck(): flag_check(k, st['fy'], A.f0, A.f1, keep=True)
    if grp == 1: at(0, pend['fxld']); at(opts['red_at'][0], only(k, 4, xcheck))
    else:
        yc = opts['ychk_at']
        at(yt, only(k, 0, ypub)); at(yc - 4, only(k, 0, yld)); at(yc, only(k, 0, ycheck))
        assert yc % 4 == 1 and opts['oa_at'] > yc
    if grp == 1:
        R = A.RED
        rl = [f's_mov_b32 s{S.t3}, {q*16384}\nbuffer_load_dwordx4 {vr(R+4*q,4)}, v{A.a0}, {srd(S.WS)}, s{S.t3} offen sc1' for q in range(8)]
        def r2():
            k.e(f'''s_lshl_b32 s{S.t2}, s{S.hA}, 17
s_lshl_b32 s{S.t3}, s{S.tb}, 9
s_add_u32 s{S.t2}, s{S.t2}, s{S.t3}
s_add_u32 s{S.t2}, s{S.t2}, {WS_KVP}
v_lshl_add_u32 v{A.a0}, v{V.i32}, 4, s{S.t2}
v_lshl_add_u32 v{A.a0}, v{V.hh}, 13, v{A.a0}''')
            for l in rl: st['red'] = k.vmop(l, opt=True)
        def r3():
            k.vmwait(st['red'], keep=True)
            for l in maxchain(T, R, 32): k.e(l)
            sent_check(k, T, R, 32, rl)
            for (d, a) in [(0,4),(8,12),(16,20),(24,28),(0,8),(16,24),(0,16)]:
                k.e(f'v_pk_add_f32 {vr(R+d,2)}, {vr(R+d,2)}, {vr(R+a,2)}\nv_pk_add_f32 {vr(R+d+2,2)}, {vr(R+d+2,2)}, {vr(R+a+2,2)}')
            k.e(f'''s_lshl_b32 s{S.t2}, s{S.hA}, 12
s_lshl_b32 s{S.t3}, s{S.tb}, 8
s_add_u32 s{S.t2}, s{S.t2}, s{S.t3}
s_add_u32 s{S.t2}, s{S.t2}, {WS_KVF}
v_permlane32_swap_b32 v{R}, v{R+2}
v_permlane32_swap_b32 v{R+1}, v{R+3}
v_lshl_add_u32 v{A.a0}, v{V.i32}, 3, s{S.t2}
v_lshl_add_u32 v{A.a0}, v{V.hh}, 2, v{A.a0}
v_pk_add_f32 {vr(R,2)}, {vr(R,2)}, {vr(R+2,2)}
v_cvt_pk_bf16_f32 v{R}, v{R}, v{R+1}''')
            k.vmop(f'buffer_store_dword v{R}, v{A.a0}, {srd(S.WS)}, 0 offen sc1', opt=True)
        p = opts['red_at']
        at(p[0], only(k, 4, r2)); at(p[1], only(k, 4, r3))
        KF_, NUM = 80, 96
        kl = [f'buffer_load_dwordx4 {vr(KF_+4*q,4)}, v{A.a2}, {srd(S.WS)}, 0 offen offset:{q*1024} sc1' for q in range(4)]
        def a2():
            k.e(f's_lshl_b32 s{S.t2}, s{S.hQ}, 12\ns_add_u32 s{S.t2}, s{S.t2}, {WS_KVF}\nv_lshl_add_u32 v{A.a2}, v{V.lane}, 4, s{S.t2}')
            for l in kl: st['kvl'] = k.vmop(l)
        def a3():
            k.vmwait(st['kvl'])
            for l in maxchain(T, KF_, 16): k.e(l)
            sent_check(k, T, KF_, 16, kl)
            for q in range(4): k.e(mfma(NUM, KF_+4*q, A.PHQ+4*q, '0' if q == 0 else NUM))
        def a4():
            k.e(f'''v_mov_b32 v{T+1}, v{NUM+12}
v_mov_b32 v{T+3}, v{NUM+12}
s_sub_u32 s{S.t2}, s{S.hQ}, s{S.h}
s_lshl_b32 s{S.t2}, s{S.t2}, 11
v_permlane32_swap_b32 v{T+1}, v{T+3}
v_add_f32 v{T+3}, v{A.eps}, v{T+3}
v_rcp_f32 v{T+3}, v{T+3}
s_sub_u32 s{S.t2}, s{S.t2}, 33792
v_mul_f32 v{T+3}, v{V.g}, v{T+3}
v_add_u32 v{A.a2}, s{S.t2}, v{V.ob}''')
            for q in range(8): k.e(f'v_pk_mul_f32 {vr(NUM+2*q,2)}, {vr(NUM+2*q,2)}, {vr(T+3,2)} op_sel_hi:[1,0]')
            cvt16(k, KF_, NUM)
            k.e(f's_mov_b64 exec, s[{S.hi32}:{S.hi32+1}]\nv_mov_b32 v{KF_+6}, 0\nv_mov_b32 v{KF_+7}, 0\ns_mov_b64 exec, -1')
            both_ways(k, [f'buffer_store_dwordx4 {vr(KF_,4)}, v{A.a2}, {srd(S.WS)}, 0 offen',
                          f'buffer_store_dwordx4 {vr(KF_+4,4)}, v{A.a2}, {srd(S.WS)}, 0 offen offset:1024'])
        p = opts['afin_at']
        at(p[0], a2); at(p[1], a3); at(p[1]+1, a4)
    def wo_setup():
        k.e(f's_and_b32 s{S.t2}, s{S.h}, 7\ns_cmp_eq_u32 s{S.t2}, 7\ns_cselect_b32 s{S.t3}, 0, 401408')
        set_srd(k, S.M1, S.pWOA, f's{S.t3}'); set_srd(k, S.M2, S.pWOB, f's{S.t3}')
        k.e(f'''s_lshl_b32 s{S.t2}, s{S.t2}, 7
v_lshrrev_b32 v{T}, 3, v{V.lane}
v_and_b32 v{T+1}, 7, v{V.lane}
v_bfe_u32 v{T+2}, v{V.lane}, 4, 1
v_lshlrev_b32 v{T+2}, 2, v{T+2}
v_xor_b32 v{T+1}, v{T+1}, v{T+2}
v_mul_u32_u24 v{T}, 896, v{T}
v_lshl_add_u32 v{T}, v{T+1}, 4, v{T}
v_add_u32 v{A.wsrc}, s{S.t2}, v{T}''')
    at(opts['wo_at'] - 1, wo_setup)
    def oa():
        k.e(f'''s_lshr_b32 s{S.t2}, s{S.h}, 3
s_lshl_b32 s{S.t2}, s{S.t2}, 1
s_and_b32 s{S.t3}, s{S.w}, 1
s_add_u32 s{S.t2}, s{S.t2}, s{S.t3}
s_lshl_b32 s{S.t3}, s{S.tb}, 2
s_add_u32 s{S.col}, s{S.t2}, s{S.t3}
s_lshr_b32 s{S.cw}, s{S.w}, 1
s_mov_b32 s{S.r0}, 4096
s_lshl_b32 s{S.t2}, s{S.col}, 16
s_lshl_b32 s{S.t3}, s{S.cw}, 13
s_add_u32 s{S.t2}, s{S.t2}, s{S.t3}
s_add_u32 s{S.t2}, s{S.t2}, {WS_OX}
s_and_b32 s{S.t3}, s{S.h}, 7
s_cmp_eq_u32 s{S.t3}, 7
s_cselect_b32 s{S.t2}, {OOB}, s{S.t2}
v_lshl_add_u32 v{A.a0}, v{V.lane}, 4, s{S.t2}''')
        for q, l in enumerate(o_loads(A.OF, A.a0)): st[f'oa{q}'] = k.vmop(l)
    at(opts['oa_at'], oa)
    return J, st

def wo_bases(k, b0, base_s):
    T = V.tmp
    k.e(f'''
v_and_b32 v{T}, 1, v{V.lane}
v_bfe_u32 v{T+1}, v{V.lane}, 1, 1
v_lshl_or_b32 v{T}, v{T}, 1, v{T+1}
v_bfe_u32 v{T+1}, v{V.lane}, 4, 1
v_lshl_or_b32 v{T}, v{T+1}, 2, v{T}
v_bfe_u32 v{T+1}, v{V.lane}, 3, 1
v_lshl_or_b32 v{T}, v{T+1}, 3, v{T}
v_bfe_u32 v{T+1}, v{V.lane}, 2, 2
v_lshlrev_b32 v{T}, 3, v{T}
v_lshl_add_u32 v{T}, v{T+1}, 7, v{T}
v_add_u32 v{b0+2}, s{base_s}, v{T}
v_xor_b32 v{b0+3}, 64, v{b0+2}
v_lshl_add_u32 v{b0}, v{V.hh}, 9, v{b0+2}
v_xor_b32 v{b0+1}, 64, v{b0}
''')
def wo_reads(k, dst, b0, lo, hi):
    a = None
    for n in range(lo, hi):
        hd, t, oc = n // 4, (n // 2) % 2, n % 2
        k.ds(f'ds_read_b64_tr_b16 {vr(dst+4*n,2)}, v{b0+oc} offset:{hd*3584+t*2048}')
        a = k.ds(f'ds_read_b64_tr_b16 {vr(dst+4*n+2,2)}, v{b0+oc+(2 if t else 0)} offset:{hd*3584+t*2048+1024}')
    return a

def attention(k, grp, st, opts, pend):
    T = V.tmp
    wo = {'A': None, 'B': None}
    rdK(k, 0, 0); k0 = rdK(k, 0, 1)
    kvi = kv_partial(k)
    k.dswait(k0)
    k.e(mfma(A.SA, A.KF, A.Q, '0')); rdK(k, 1, 0)
    k.e(mfma(A.SA, A.KF+4, A.Q+4, A.SA)); kk = rdK(k, 1, 1)
    rdV(k, 0); rdV(k, 1)
    kv_partial2(k, kvi)
    k.e(f'v_max3_f32 v{A.m}, v{A.SA}, v{A.SA+1}, v{A.SA+2}')
    for q in range(3, 15, 2): k.e(f'v_max3_f32 v{A.m}, v{A.m}, v{A.SA+q}, v{A.SA+q+1}')
    k.e(f'v_max_f32 v{A.m}, v{A.m}, v{A.SA+15}\nv_mov_b32 v{T}, v{A.m}')
    kvst = kv_partial3(k)
    k.e(f'''s_nop 0
v_permlane32_swap_b32 v{A.m}, v{T}
v_max_f32 v{A.m}, v{A.m}, v{T}
v_sub_f32 v{A.NM}, 0, v{A.m}''')
    for q in range(1, 16): k.e(f'v_mov_b32 v{A.NM+q}, v{A.NM}')
    for q in range(8): k.e(f'v_pk_add_f32 {vr(A.SA+2*q,2)}, {vr(A.SA+2*q,2)}, {vr(A.NM,2)}')
    J, js = side_jobs(k, grp, opts, pend)
    dq = []; wq = []
    for s_ in range(opts['npre'], 3): dq += kv_dma_jobs(k, s_, st)
    def pump(n):
        for _ in range(n):
            if dq or wq:
                j = (dq or wq).pop(0)
                if not opts['nodma']: j.f()
    for t in range(32):
        cur, oth = (A.SA, A.SB) if t % 2 == 0 else (A.SB, A.SA)
        ex = lambda a, b: [k.e(f'v_exp_f32 v{cur+q}, v{cur+q}') for q in range(a, b)]
        k.c(f'---- tile {t}')
        ex(0, 2)
        if t >= 1: k.e(smfma(A.O, A.V1+4*((t-1) % 3), oth+8, A.idx))
        ex(2, 5)
        if t % 4 == 2:
            b = t//4 + 1
            stamp(k, f'preB{b}')
            k.vmwait(pend.get('barwait', {}).get(b))
            k.vmwait(st.get(b) if b <= 7 else wo['A'], 'lgkmcnt(0)'); k.dsall(False)
            stamp(k, f'B{b}wait')
            k.e('s_barrier')
            if b + 2 <= 7: dq += kv_dma_jobs(k, b + 2, st)
            if b == 6 + grp: wq += wo_jobs(k, 1, S.tt, 50176, grp*224*896, 7168, 65536*(1-grp), 7, wo, 'B')
            if b == 8:
                k.e(f's_mul_i32 s{S.t2}, s{S.cw}, 14336\ns_add_u32 s{S.t2}, s{S.t2}, {L_WOA}')
                wo_bases(k, A.t+1, S.t2)
        elif t + 1 <= 31:
            k.dswait(kk)
        if opts['prio']: k.e(f's_setprio {3 - (t + 2) % 4}')
        if t == opts['wo_at']: wq += wo_jobs(k, 0, S.w, 50176, 0, 7168, L_WOA, 7, wo, 'A')
        if t + 1 <= 31:
            k.e(mfma(oth, A.KF, A.Q, A.NM))
            if t + 2 <= 31: rdK(k, t+2, 0)
        pump(1 if len(dq) + len(wq) > opts['pump_hi'] else 0)
        if t >= 30: wo_reads(k, A.WOA, A.t+1, (t-30)*8, (t-30)*8+4)
        ex(5, 8)
        if t + 1 <= 31:
            k.e(mfma(oth, A.KF+4, A.Q+4, oth))
            if t + 2 <= 31: kk = rdK(k, t+2, 1)
        ex(8, 13)
        k.e(smfma(A.O, A.V0+4*(t % 2), cur, A.idx))
        if t + 2 <= 31: rdV(k, t+2)
        pump(1)
        if t >= 30: wa = wo_reads(k, A.WOA, A.t+1, (t-30)*8+4, (t-30)*8+8)
        ex(13, 16)
        for f in J.get(t, []):
            stamp(k, f'j{t}{grp}pre')
            f()
            stamp(k, f'j{t}{grp}post')
    assert not dq and not wq
    k.e('s_nop 1')
    k.e(smfma(A.O, A.V1+4*(31 % 3), A.SB+8, A.idx))
    if opts['prio']: k.e('s_setprio 0')
    return js, wo, wa

def fallback(k, grp):
    T = V.tmp; L = lbl('fbl')
    k.e(f'''
s_lshl_b32 s{S.t2}, s{S.tt}, 12
v_subrev_u32 v{A.ks}, s{S.t2}, v{A.ks}
v_mov_b32 v{A.m}, 0xff7fffff
s_mov_b32 s{S.sK}, 0
''')
    for q in range(16): k.e(f'v_mov_b32 v{A.O+q}, 0')
    k.e(f'''{L}:
buffer_load_dwordx4 {vr(A.KF,4)}, v{A.ks}, {srd(S.WS)}, s{S.sK} offen sc1
buffer_load_dwordx4 {vr(A.KF+4,4)}, v{A.ks}, {srd(S.WS)}, s{S.sK} offen offset:1024 sc1
buffer_load_dwordx4 {vr(A.V0,4)}, v{A.ks}, {srd(S.WS)}, s{S.sK} offen offset:2048 sc1
buffer_load_dwordx4 {vr(A.V0+4,4)}, v{A.ks}, {srd(S.WS)}, s{S.sK} offen offset:3072 sc1
s_waitcnt vmcnt(0)''')
    k.e(mfma(A.SA, A.KF, A.Q, '0')); k.e(mfma(A.SA, A.KF+4, A.Q+4, A.SA))
    k.e(f'v_max3_f32 v{T}, v{A.m}, v{A.SA}, v{A.SA+1}')
    for q in range(2, 16, 2): k.e(f'v_max3_f32 v{T}, v{T}, v{A.SA+q}, v{A.SA+q+1}')
    k.e(f'''v_mov_b32 v{T+1}, v{T}
s_nop 1
v_permlane32_swap_b32 v{T}, v{T+1}
v_max_f32 v{T}, v{T}, v{T+1}
v_sub_f32 v{T+1}, v{A.m}, v{T}
v_exp_f32 v{T+1}, v{T+1}
v_mov_b32 v{A.m}, v{T}''')
    for q in range(16): k.e(f'v_sub_f32 v{A.SA+q}, v{A.SA+q}, v{T}\nv_mul_f32 v{A.O+q}, v{A.O+q}, v{T+1}')
    for q in range(16): k.e(f'v_exp_f32 v{A.SA+q}, v{A.SA+q}')
    k.e('s_nop 1')
    k.e(smfma(A.O, A.V0, A.SA, A.idx)); k.e(smfma(A.O, A.V0+4, A.SA+8, A.idx))
    k.e(f'''s_add_u32 s{S.sK}, s{S.sK}, 4096
s_cmp_lt_u32 s{S.sK}, 131072
s_cbranch_scc1 {L}
v_mov_b32 v{A.l}, v{A.O+12}
v_mov_b32 v{T}, v{A.O+12}
s_nop 1
v_permlane32_swap_b32 v{T}, v{A.l}''')

def tail(k, grp, js, wo, wa, opts, fb):
    T = V.tmp
    k.c('---- end of attention: exchange with the partner wave, safety check of the stand-in maximum')
    stamp(k, 'attnend')
    Lfb, Lback = lbl('fb'), lbl('fbback')
    own, oth = (A.O, A.O+8) if grp == 0 else (A.O+8, A.O)
    CXa, CXb, CXl = A.a1, A.f0, A.f1
    k.e(f'''
s_lshl_b32 s{S.t2}, s{S.w}, 12
s_add_u32 s{S.t2}, s{S.t2}, {L_CX}
v_lshl_add_u32 v{CXa}, v{V.lane}, 4, s{S.t2}
v_xor_b32 v{CXb}, 16384, v{CXa}
v_lshl_add_u32 v{CXl}, v{V.lane}, 3, s{S.t2}
v_sub_f32 v{A.kv0}, 1.0, v{V.g}
s_mov_b32 s{S.t3}, {fbits(2.0**60)}
v_mov_b32 v{A.t}, v{A.m}''')
    xw = [f'ds_write_b128 v{CXa}, {vr(oth,4)}', f'ds_write_b128 v{CXa}, {vr(oth+4,4)} offset:1024']
    k.e(f'v_mov_b32 v{A.l}, v{A.O+12}\nv_mov_b32 v{T}, v{A.O+12}')
    for l in xw: k.ds(l)
    k.e(f'''v_permlane32_swap_b32 v{T}, v{A.l}
v_mul_f32 v{T+1}, 0, v{A.O}
v_mul_f32 v{T+2}, 0, v{A.O+1}''')
    k.ds(f'ds_write_b64 v{CXl}, {vr(A.l,2)} offset:2048')
    for q in range(1, 8): k.e(f'v_pk_fma_f32 {vr(T+1,2)}, {vr(A.O+2*q,2)}, 0, {vr(T+1,2)} op_sel_hi:[1,0,1]')
    k.e(f'''v_add_f32 v{T+1}, v{T+1}, v{T+2}
v_add_f32 v{T+1}, v{T+1}, v{A.l}
v_cmp_nge_f32 vcc, s{S.t3}, v{T+1}
s_cbranch_vccnz {Lfb}
{Lback}:''')
    fb.e(f'{Lfb}:'); fallback(fb, grp)
    fb.e(f'v_mov_b32 v{A.t}, v{A.m}')
    for l in xw: fb.e(l)
    fb.e(f'ds_write_b64 v{CXl}, {vr(A.l,2)} offset:2048\ns_branch {Lback}')
    k.vmwait(wo['B'], 'lgkmcnt(0)'); k.dsall(False)
    k.e(f's_barrier\nv_xor_b32 v{CXl}, 16384, v{CXl}')
    k.ds(f'ds_read_b64 {vr(T+1,2)}, v{CXl} offset:2048')
    k.ds(f'ds_read_b128 {vr(A.SA,4)}, v{CXb}')
    a = k.ds(f'ds_read_b128 {vr(A.SA+4,4)}, v{CXb} offset:1024')
    k.e(f'''s_and_b32 s{S.t2}, s{S.cw}, 1
s_mul_i32 s{S.t2}, s{S.t2}, 14336
s_cmp_lt_u32 s{S.cw}, 2
s_cselect_b32 s{S.t3}, 65536, 0
s_add_u32 s{S.t2}, s{S.t2}, s{S.t3}
s_waitcnt lgkmcnt(2)
v_max_f32 v{T}, v{A.m}, v{T+2}
v_sub_f32 v{T+3}, v{A.m}, v{T}
v_sub_f32 v{T+5}, v{T+2}, v{T}
v_exp_f32 v{T+3}, v{T+3}
v_exp_f32 v{T+5}, v{T+5}
v_mul_f32 v{A.l}, v{A.l}, v{T+3}
v_fmac_f32 v{A.l}, v{T+1}, v{T+5}
v_rcp_f32 v{A.l}, v{A.l}
v_mul_f32 v{T+3}, v{T+3}, v{A.kv0}
v_mul_f32 v{T+5}, v{T+5}, v{A.kv0}
v_mul_f32 v{T+3}, v{T+3}, v{A.l}
v_mul_f32 v{T+5}, v{T+5}, v{A.l}''')
    for q in range(4): k.e(f'v_pk_mul_f32 {vr(own+2*q,2)}, {vr(own+2*q,2)}, {vr(T+3,2)} op_sel_hi:[1,0]')
    k.dswait(a)
    for q in range(4): k.e(f'v_pk_fma_f32 {vr(own+2*q,2)}, {vr(A.SA+2*q,2)}, {vr(T+5,2)}, {vr(own+2*q,2)} op_sel_hi:[1,0,1]')
    OB = 112
    for q in range(4): k.e(f'v_cvt_pk_bf16_f32 v{OB+q}, v{own+2*q}, v{own+2*q+1}')
    if grp == 1:
        k.e(f's_mov_b64 exec, s[{S.hi32}:{S.hi32+1}]\nv_mov_b32 v{OB+2}, 0\nv_mov_b32 v{OB+3}, 0\ns_mov_b64 exec, -1')
    ob = both_ways(k, [f'buffer_store_dwordx4 {vr(OB,4)}, v{V.ob}, {srd(S.WS)}, 0 offen'])
    stamp(k, 'obstored')
    Lidle = lbl('idle')
    k.e(f's_and_b32 s{S.t3}, s{S.h}, 7\ns_cmp_eq_u32 s{S.t3}, 7\ns_cbranch_scc1 {Lidle}')
    ACC = AC2 = A.ACC
    wo_bases(k, A.O, S.t2)
    k.vmwait(js['oa7'])
    amf = [mfma(ACC+16*oc, A.WOA+4*(2*n+oc), A.OF+4*n, '0' if n == 0 else ACC+16*oc) for n in range(8) for oc in range(2)]
    mx = maxchain(T, A.OF, 32)
    for n, m in enumerate(amf):
        k.e(m); k.e(mx[n])
        if n < 16: wo_reads(k, A.WOB, A.O, n, n+1)
    sent_check(k, T, A.OF, 32, o_loads(A.OF, A.a0), redo='\n'.join(amf))
    set_srd(k, S.M1, S.pOUT, 1835008)
    k.e(f'''v_add_u32 v{A.a0}, 32768, v{A.a0}''')
    stamp(k, 'Ahalf')
    k.vmwait(ob)
    stamp(k, 'f3seen')
    ol = o_loads(A.OF, A.a0); ids = [k.vmop(l) for l in ol]
    k.e(f'''s_lshl_b32 s{S.t2}, s{S.col}, 5
v_add_u32 v{T}, s{S.t2}, v{V.i32}
v_mul_u32_u24 v{T}, 896, v{T}
v_lshl_add_u32 v{T}, v{V.hh}, 4, v{T}
s_and_b32 s{S.t2}, s{S.h}, 7
s_lshl_b32 s{S.t2}, s{S.t2}, 7
s_lshl_b32 s{S.t3}, s{S.cw}, 5
s_add_u32 s{S.t2}, s{S.t2}, s{S.t3}
v_add_u32 v{A.a2}, s{S.t2}, v{T}
s_and_b32 s{S.t2}, s{S.w}, 1
s_lshl_b32 s{S.t2}, s{S.t2}, 15
s_lshl_b32 s{S.t3}, s{S.cw}, 11
s_add_u32 s{S.t3}, s{S.t3}, s{S.t2}
v_lshl_add_u32 v{A.ks}, v{V.lane}, 4, s{S.t3}
s_lshl_b32 s{S.t3}, s{S.cw}, 13
s_add_u32 s{S.t3}, s{S.t3}, s{S.t2}
v_lshl_add_u32 v{A.vs}, v{V.lane}, 4, s{S.t3}
s_mov_b32 s{S.spin}, {SPIN}''')
    k.dsall()
    k.e('s_barrier')
    for n in range(8):
        L1, L2 = lbl('ob'), lbl('obd'); F = A.OF + 4*n
        chk = f'v_max3_u32 v{T}, v{F}, v{F+1}, v{F+2}\nv_max_u32 v{T}, v{T}, v{F+3}\nv_cmp_eq_u32 vcc, -1, v{T}'
        k.vmwait(ids[n])
        k.e(f'{chk}\ns_cbranch_vccnz {L1}\n{L2}:')
        for oc in range(2): k.e(mfma(ACC+16*oc, A.WOB+4*(2*n+oc), F, ACC+16*oc))
        c = k.cold
        c.e(f'{L1}:\ns_sleep 2')
        for l in ol[n:]: c.e(l)
        c.e(f's_waitcnt vmcnt({7-n})\n{chk}\ns_sub_u32 s{S.spin}, s{S.spin}, 1\ns_cbranch_scc1 {L2}\ns_cbranch_vccnz {L1}\ns_branch {L2}')
    stamp(k, 'Bhalf')
    Ls = [lbl('kq') for _ in range(2)]; Lj = lbl('kqj')
    k.e(f's_bitcmp1_b32 s{S.cw}, 0\ns_cbranch_scc1 {Ls[1]}')
    for par in range(2):
        kq = 2*grp + par
        if par: k.e(f'{Ls[1]}:')
        for p in range(4):
            if p == kq: continue
            k.e(f'ds_write_b128 v{A.ks}, {vr(AC2+8*p,4)} offset:{p*8192}\nds_write_b128 v{A.ks}, {vr(AC2+8*p+4,4)} offset:{p*8192+1024}')
        k.e('s_waitcnt lgkmcnt(0)\ns_barrier')
        srcs = [p for p in range(4) if p != kq]
        for n, p in enumerate(srcs):
            k.e(f'ds_read_b128 {vr(A.OF+8*n,4)}, v{A.vs} offset:{p*2048}\nds_read_b128 {vr(A.OF+8*n+4,4)}, v{A.vs} offset:{p*2048+1024}')
        for n in range(3):
            k.e(f's_waitcnt lgkmcnt({4-2*n})')
            for q in range(4): k.e(f'v_pk_add_f32 {vr(AC2+8*kq+2*q,2)}, {vr(AC2+8*kq+2*q,2)}, {vr(A.OF+8*n+2*q,2)}')
        for q in range(4): k.e(f'v_cvt_pk_bf16_f32 v{A.OF+q}, v{AC2+8*kq+2*q}, v{AC2+8*kq+2*q+1}')
        if par == 0: k.e(f's_branch {Lj}')
    k.e(f'{Lj}:\nbuffer_store_dwordx4 {vr(A.OF,4)}, v{A.a2}, {srd(S.M1)}, 0 offen')
    if grp == 0:
        L = lbl('ep')
        k.e(f'''s_or_b32 s{S.t2}, s{S.h}, s{S.tb}
s_or_b32 s{S.t2}, s{S.t2}, s{S.w}
s_cmp_lg_u32 s{S.t2}, 0
s_cbranch_scc1 {L}''')
        flag_store(k, S.t2, S.tag, sc='')
        k.e(f'{L}:')
    k.e(f'{Lidle}:')
    stamp(k, 'end'); stamp_dump(k)
    k.e('s_endpgm')

DEFAULTS = dict(NH=4, kvsc='sc1', dbg=(), nodma=False, round_p=True, prio=True, npre=2, clr_at=(15, 16), f1_step=12, fx_step=20, f1_check=17, oclr_at=(2, 3, 4, 5), pre_rate=4,
                wsched={0: [4], 1: [5], 2: [6, 7], 3: [8], 4: [9], 5: [10, 14], 6: [11], 7: [12], 8: [13], 11: [15], 12: [16, 17], 13: [18, 19], 14: [20]},
                pump_hi=3, stagger=False, prio1=False, align=True, feat_last=19, ybar=3, ychk_at=21, wo_at=11, red_at=(4, 7), afin_at=(13, 16), oa_at=27, prof=False)

def build(**kw):
    opts = dict(DEFAULTS); opts.update(kw)
    _lbl[0] = 0; PROF[0] = opts['prof']; STAMPS.clear(); DBG.clear(); DBG.update(opts['dbg']); KVSC[0] = opts['kvsc']
    k = Stream(); k.cold = Stream()
    prologue(k, opts['NH'])
    ids = {}
    head = k
    streams = []; checks = []
    for grp in range(2):
        fb = Stream(); idg = dict(ids); st_id = None
        if grp == 0:
            g = head.fork()
            dma_x(g, 0, True); idg[0] = dma_w(g, 0, True)
            rot_offsets(g)
            dma_x(g, 1, True); idg[1] = dma_w(g, 1, True)
            setup2(g)
            dma_x(g, 2, True); idg[2] = dma_w(g, 2, True)
            slice_setup(g); idg[3] = dma_w(g, 3, True); stage0(g, 0, idg, True, opts); pre = g.text()
        else:
            h1 = head.fork(); setup2(h1)
            kk, kv = head.fork(), head.fork()
            for z, kt in ((kv, False), (kk, True)):
                z.e(tr_base0(kt)); stage0(z, 1, dict(ids), kt, opts); st_id = stage0_epilogue(z, kt)
            assert [x[1] for x in kk.vm if not x[1]] == [x[1] for x in kv.vm if not x[1]]
            pre = h1.text() + f'  s_cmp_ge_u32 s{S.j}, 7\n  s_cbranch_scc1 L_vtile\n' + kk.text() + '  s_branch L_mid\nL_vtile:\n' + kv.text() + 'L_mid:\n'
            g = kk
        g = g.fork(); g.cold = Stream(); g.pre = pre
        pend = stages12(g, idg, grp, st_id, opts)
        st = attn_prologue(g, grp, pend, opts)
        js, wo, wa = attention(g, grp, st, opts, pend)
        tail(g, grp, js, wo, wa, opts, fb)
        fb2 = Stream(); fb2.L = fb.L + g.cold.L
        streams.append((g, fb2))
    body = head.text()
    body += f'  s_cmp_lg_u32 s{S.grp}, 0\n  s_cbranch_scc1 L_grp1\n' + streams[0][0].pre + streams[0][0].text() + streams[0][1].text()
    body += 'L_grp1:\n' + streams[1][0].pre + streams[1][0].text() + streams[1][1].text()
    body += 'L_end:\n  s_endpgm\n'
    bl, checks = fix_hazards(body.rstrip('\n').split('\n'));
    if opts['align']: bl, st_ = align_runs(bl); checks.append(f'align: widened {st_[0]}, nops {st_[1]}, left {st_[2]}')
    body = '\n'.join(bl) + '\n'
    ref = open('gated_mix__linear_kernel_hedgehog__softmax_full_mha__prompt.s.ref').read()
    hdr = ref[:ref.index('; @launch')]
    txt = hdr + f'''; @launch grid=(256,1,1) block=(512,1,1) lds=163840
.amdgcn_target "amdgcn-amd-amdhsa--gfx950"
.text
.globl {NAME}
.p2align 8
.type {NAME},@function
{NAME}:
{body}.section .rodata,"a"
.p2align 6
.amdhsa_kernel {NAME}
  .amdhsa_next_free_vgpr 256
  .amdhsa_next_free_sgpr 102
  .amdhsa_accum_offset 256
  .amdhsa_group_segment_fixed_size 0
  .amdhsa_kernarg_size 88
  .amdhsa_user_sgpr_count 2
  .amdhsa_user_sgpr_kernarg_segment_ptr 1
  .amdhsa_system_sgpr_workgroup_id_x 1
.end_amdhsa_kernel
'''
    return txt, checks

if __name__ == '__main__':
    out = sys.argv[1] if len(sys.argv) > 1 else 'gated_mix__linear_kernel_hedgehog__softmax_full_mha__prompt.s'
    kw = {}
    for a in sys.argv[2:]:
        n, v = a.split('='); kw[n] = eval(v)
    txt, msgs = build(**kw)
    for m in msgs: print('  auto', m)
    open(out, 'w').write(txt)
    print('wrote', out, len(txt), 'bytes')
    if STAMPS: open(out + '.stamps', 'w').write('\n'.join(STAMPS))
```

```python
import sys, struct
from asmlib import Stream, fix_hazards, align_runs

NAME = 'gated_mix__linear_kernel_hedgehog__softmax_full_mha__prompt_kernel'
def fbits(x): return '0x%08x' % struct.unpack('<I', struct.pack('<f', x))[0]
LOG2E = 1.4426950408889634
QSCALE = 28 ** -0.5 * LOG2E

WS_FLAG1, WS_FLAGX, WS_FLAGY = 0x4000, 0x8000, 0xc000
WS_KV, WS_KVP, WS_KVF, WS_OX, WS_DBG = 0x100000, 0x500000, 0x700000, 0x800000, 0x1000000
WS_SIZE = 0x2000000
OOB = 0x40000000
L_WR = 65536
WSLOT = [4, 5, 6, 7, 8, 9, 10, 0, 2, 3, 4, 5, 6, 7, 1, 4, 5, 0, 2, 3, 6]
WBASE = [4, 0, 0]
L_PHI, L_QX, L_STG = L_WR + 8*8192, L_WR + 7*8192, L_WR + 10*8192
L_WPHI, L_G = 155648, 159744
HQ = [4, 6, 2, 3, 0, 5, 1, 7, 8, 14, 10, 15, 12, 13, 9, 11]
L_WOA, L_CX = 98304, 32768
SPIN = 0x8000

class S:
    X, W, WS, M1, M2, W2 = 4, 8, 12, 16, 20, 68
    pX, pWA, pPHI, pWOA, pWB, pWOB, pGW, pOUT, pWS = 24, 26, 28, 30, 32, 34, 36, 38, 40
    h, tb, w, tt, grp, hA, j, tag, r0, hQ, cw, col = 44, 45, 46, 47, 48, 49, 50, 51, 52, 53, 54, 55
    mX, mW, t0, t1, t2, t3, t4, t5 = 56, 57, 58, 59, 60, 61, 62, 63
    vcm = 64
    rot, sK, mK, spin = 72, 73, 74, 75
    lo28 = 76
    hi32 = 78
    t6, t7, t8, t9 = 80, 81, 82, 83
    ow, ox = 84, 91
def srd(b): return f's[{b}:{b+3}]'
def vr(b, n): return f'v[{b}:{b+n-1}]' if n > 1 else f'v{b}'

class V:
    lane, i32, hh = 1, 2, 3
    xa0, xa1, w0, ws = 4, 5, 6, 7
    xr = 8
    t0r, t1r, t2r = 12, 6, 14
    g = 15
    wsb, ws2, ws2b = 13, 244, 245
    acc0, acc1, P, EP, EM = 16, 32, 48, 64, 80
    wf = 96
    xf = 128
    gw0, gw1, ob = 4, 254, 246
    tmp = 247

def mfma(d, a, b, c): return f'v_mfma_f32_32x32x16_bf16 {vr(d,16)}, {vr(a,4)}, {vr(b,4)}, {c if isinstance(c,str) else vr(c,16)}'
def smfma(d, a, b, idx): return f'v_smfmac_f32_32x32x32_bf16 {vr(d,16)}, {vr(a,4)}, {vr(b,8)}, v{idx}'

PROF = [False, 0]
DBG = set()
KVSC = ['sc1']
STAMPS = []
def stamp(k, name):
    if not PROF[0]: return
    if PROF[0] != True and name not in PROF[0]: return
    if name not in STAMPS: STAMPS.append(name)
    n = STAMPS.index(name)
    k.e(f's_memtime s[98:99]\ns_waitcnt lgkmcnt(0)\ns_sub_u32 s98, s98, s100\nv_writelane_b32 v0, s98, {n}')
    k.dq = []
def stamp_dump(k):
    if not PROF[0]: return
    if 'dbg' in PROF[0]:
        T = V.tmp
        k.e(f'''s_memrealtime s[98:99]
s_memtime s[96:97]
s_load_dwordx2 s[92:93], s[0:1], 72
s_getreg_b32 s90, hwreg(HW_REG_XCC_ID, 0, 4)
s_waitcnt lgkmcnt(0)
s_mov_b32 s94, 256
s_mov_b32 s95, 0x20000
s_sub_u32 s96, s96, s100
s_sub_u32 s91, s98, s101
s_not_b32 s89, s101
v_mov_b32 v{T}, 0
v_mov_b32 v{T+1}, s98
v_writelane_b32 v{T}, 4, 1
v_writelane_b32 v{T+1}, s89, 1
v_writelane_b32 v{T}, 8, 2
v_writelane_b32 v{T+1}, s101, 2
v_writelane_b32 v{T}, 12, 3
v_writelane_b32 v{T+1}, s96, 3
v_writelane_b32 v{T}, 16, 4
v_writelane_b32 v{T+1}, s91, 4
s_lshl_b32 s90, s90, 2
s_add_u32 s90, s90, 32
v_writelane_b32 v{T}, s90, 5
v_writelane_b32 v{T+1}, s89, 5
s_mov_b64 exec, 63
buffer_atomic_umax v{T+1}, v{T}, s[92:95], 0 offen''')
        return
    k.e(f'''s_memrealtime s[98:99]
s_waitcnt lgkmcnt(0)
v_writelane_b32 v0, s98, 63
v_writelane_b32 v0, s101, 62
s_lshl_b32 s98, s2, 3
s_add_u32 s98, s98, s{S.w}
s_lshl_b32 s98, s98, 8
s_add_u32 s98, s98, {WS_DBG}
v_lshl_add_u32 v{V.tmp}, v{V.lane}, 2, s98
buffer_store_dword v0, v{V.tmp}, {srd(S.WS)}, 0 offen''')

def set_srd(k, b, ptr, n):
    k.e(f's_mov_b32 s{b}, s{ptr}\ns_mov_b32 s{b+1}, s{ptr+1}\ns_mov_b32 s{b+2}, {n}\ns_mov_b32 s{b+3}, 0x20000')

def prologue(k, NH):
    T = V.tmp
    lg = {2: 1, 4: 2, 8: 3, 16: 4}[NH]; ng = 16 // NH
    k.e(f'''
s_cmp_ge_u32 s2, 256
s_cbranch_scc1 L_end
{'s_memtime s[100:101]' if PROF[0] else ''}
{'s_memrealtime s[98:99]' if PROF[0] else ''}
s_load_dwordx4 s[24:27], s[0:1], 0
s_load_dwordx4 s[32:35], s[0:1], 40
s_load_dwordx2 s[40:41], s[0:1], 80
s_load_dwordx4 s[28:31], s[0:1], 16
s_load_dwordx4 s[36:39], s[0:1], 56
v_lshrrev_b32 v{T}, 6, v0
v_and_b32 v{V.lane}, 63, v0
v_readfirstlane_b32 s{S.w}, v{T}
s_and_b32 s{S.t0}, s2, 7
s_lshr_b32 s{S.t1}, s2, 3
s_and_b32 s{S.h}, s{S.t0}, {ng-1}
s_lshl_b32 s{S.h}, s{S.h}, {lg}
s_and_b32 s{S.t2}, s{S.t1}, {NH-1}
s_add_u32 s{S.h}, s{S.h}, s{S.t2}
s_lshr_b32 s{S.tb}, s{S.t0}, {4-lg}
s_mul_i32 s{S.tb}, s{S.tb}, {32//NH}
s_lshr_b32 s{S.t2}, s{S.t1}, {lg}
s_add_u32 s{S.tb}, s{S.tb}, s{S.t2}
s_and_b32 s{S.tt}, s{S.w}, 3
s_lshr_b32 s{S.grp}, s{S.w}, 2
s_xor_b32 s{S.hA}, s{S.h}, 1
s_mov_b32 s{S.vcm}, {sum(HQ[i] << (4*i) for i in range(8))}
s_mov_b32 s{S.vcm+1}, {sum(HQ[8+i] << (4*i) for i in range(8))}
s_lshl_b32 s{S.t2}, s{S.h}, 2
s_lshr_b64 s[{S.vcm}:{S.vcm+1}], s[{S.vcm}:{S.vcm+1}], s{S.t2}
s_and_b32 s{S.hQ}, s{S.vcm}, 15
s_cmp_gt_u32 s{S.h}, 5
s_cselect_b32 s{S.t2}, 1, 0
s_sub_u32 s{S.j}, s{S.h}, s{S.t2}
s_cmp_gt_u32 s{S.h}, 10
s_cselect_b32 s{S.t2}, 1, 0
s_sub_u32 s{S.j}, s{S.j}, s{S.t2}
s_mul_i32 s{S.t2}, s{S.tb}, 3
s_lshl1_add_u32 s{S.r0}, s{S.h}, s{S.t2}
s_mul_i32 s{S.t2}, s{S.r0}, 147
s_lshr_b32 s{S.t2}, s{S.t2}, 10
s_mul_i32 s{S.t2}, s{S.t2}, 7
s_sub_u32 s{S.r0}, s{S.r0}, s{S.t2}
s_lshl_b32 s{S.ox}, s{S.r0}, 7
s_mul_i32 s{S.ow}, s{S.r0}, 172032
s_lshl_b32 s{S.mX}, s{S.w}, 11
s_lshl_b32 s{S.mW}, s{S.w}, 10
s_add_u32 s{S.mW}, s{S.mW}, {L_WR}
v_lshrrev_b32 v{T}, 3, v{V.lane}
v_and_b32 v{T+1}, 7, v{V.lane}
v_bfe_u32 v{T+2}, v{V.lane}, 4, 2
v_xor_b32 v{T+2}, v{T+1}, v{T+2}
v_mul_u32_u24 v{V.xa0}, 896, v{T}
v_lshl_add_u32 v{V.xa0}, v{T+2}, 4, v{V.xa0}
s_lshl_b32 s{S.t2}, s{S.tb}, 3
s_add_u32 s{S.t2}, s{S.t2}, s{S.w}
s_mul_i32 s{S.t2}, s{S.t2}, 14336
v_add_u32 v{V.xa0}, s{S.t2}, v{V.xa0}
v_add_u32 v{V.xa1}, 7168, v{V.xa0}
v_xor_b32 v{V.xa1}, 64, v{V.xa1}
; ---- stage-0 W DMA source
v_bfe_u32 v{T+2}, v{V.lane}, 4, 1
v_lshlrev_b32 v{T+2}, 2, v{T+2}
v_xor_b32 v{T+2}, v{T+1}, v{T+2}
v_mul_u32_u24 v{V.w0}, 2688, v{T}
v_lshl_add_u32 v{V.w0}, v{T+2}, 4, v{V.w0}
s_mul_i32 s{S.t2}, s{S.w}, 21504
s_lshl_b32 s{S.t3}, s{S.j}, 7
s_add_u32 s{S.t2}, s{S.t2}, s{S.t3}
s_add_u32 s{S.t2}, s{S.t2}, 896
v_add_u32 v{V.w0}, s{S.t2}, v{V.w0}
s_cmp_eq_u32 s{S.h}, 5
s_cselect_b32 s{S.t4}, 0, 1204224
s_cmp_eq_u32 s{S.h}, 10
s_cselect_b32 s{S.t4}, 0, s{S.t4}
s_mov_b32 s{S.X+2}, 1835008
s_mov_b32 s{S.X+3}, 0x20000
s_mov_b32 s{S.W+2}, s{S.t4}
s_mov_b32 s{S.W+3}, 0x20000
s_waitcnt lgkmcnt(0)
{'s_mov_b32 s101, s98' if PROF[0] else ''}
s_mov_b32 s{S.X}, s{S.pX}
s_mov_b32 s{S.X+1}, s{S.pX+1}
s_mov_b32 s{S.W}, s{S.pWB}
s_mov_b32 s{S.W+1}, s{S.pWB+1}
s_load_dword s{S.tag}, s[{S.pWS}:{S.pWS+1}], 0
''')

def rot_offsets(k):
    for q in range(1, 7):
        k.e(f's_add_u32 s{S.ox+q}, s{S.ox+q-1}, 128\ns_cmp_eq_u32 s{S.ox+q}, 896\ns_cselect_b32 s{S.ox+q}, 0, s{S.ox+q}\ns_mul_i32 s{S.ow+q}, s{S.ox+q}, 1344')
def dma_x(k, s, both=False):
    for p in range(2 if both else 1):
        so = S.ox + s
        for a, v in ((0, V.xa0), (1, V.xa1)):
            k.e(f's_add_u32 m0, s{S.mX}, {(s%4)*16384 + p*8192 + a*1024}')
            if p and not a: k.e(f's_add_u32 s{S.t0}, s{so}, 57344')
            else: k.e('s_nop 0')
            x = k.vmop(f'buffer_load_dwordx4 v{v}, {srd(S.X)}, s{S.t0 if p else so} offen lds')
    return x
def dma_w(k, s, both=False):
    st = s // 7; so = S.ow + s % 7
    for p in range(2 if both else 1):
        k.e(f's_add_u32 m0, s{S.mW}, {WSLOT[s]*8192 + p*4096}')
        if st == 0:
            k.e(f's_add_u32 s{S.t0}, s{so}, 86016' if p else 's_nop 0')
            x = k.vmop(f'buffer_load_dwordx4 v{V.w0}, {srd(S.W)}, s{S.t0 if p else so} offen lds')
        else:
            k.e('s_nop 0')
            x = k.vmop(f'buffer_load_dwordx4 v{[[V.ws, V.wsb], [V.ws2, V.ws2b]][st-1][p]}, {srd(S.W2 if (st == 2 and p == 0) else S.M2)}, s{so} offen lds')
    return x
def slice_setup(k):
    T = V.tmp
    set_srd(k, S.M2, S.pWA, 1204224); set_srd(k, S.W2, S.pWB, 1204224)
    k.e(f'''s_mul_i32 s{S.t2}, s{S.tt}, 43008
v_lshrrev_b32 v{T}, 2, v{V.lane}
v_mul_u32_u24 v{T}, 2688, v{T}
v_and_b32 v{T+1}, 3, v{V.lane}
v_lshl_add_u32 v{T}, v{T+1}, 4, v{T}
v_lshrrev_b32 v{T+2}, 1, v{T+1}
v_and_b32 v{T+2}, v{T+2}, v{T+1}
v_lshlrev_b32 v{T+2}, 3, v{T+2}
v_sub_u32 v{T}, v{T}, v{T+2}
v_add_u32 v{T}, s{S.t2}, v{T}
s_mul_i32 s{S.t0}, s{S.hA}, 56
s_mul_i32 s{S.t1}, s{S.hQ}, 56
s_mul_i32 s{S.t3}, s{S.h}, 56
s_add_u32 s{S.t0}, s{S.t0}, 896
v_add_u32 v{V.ws}, s{S.t0}, v{T}
v_add_u32 v{V.wsb}, s{S.t1}, v{T}
v_add_u32 v{V.ws2}, s{S.t3}, v{T}
v_add_u32 v{V.ws2b}, 896, v{V.ws}''')

def setup2(k):
    T = V.tmp
    k.e(f'''
v_and_b32 v{V.i32}, 31, v{V.lane}
v_lshrrev_b32 v{V.hh}, 5, v{V.lane}
v_bfe_u32 v{T}, v{V.lane}, 1, 3
v_xor_b32 v{T}, v{T}, v{V.hh}
v_lshlrev_b32 v{T}, 4, v{T}
v_lshl_add_u32 v{T}, v{V.i32}, 7, v{T}
s_lshl_b32 s{S.t2}, s{S.tt}, 12
v_add_u32 v{V.xr}, s{S.t2}, v{T}
v_xor_b32 v{V.xr+1}, 32, v{V.xr}
v_xor_b32 v{V.xr+2}, 64, v{V.xr}
v_xor_b32 v{V.xr+3}, 96, v{V.xr}
s_mov_b32 s{S.hi32}, 0
s_mov_b32 s{S.hi32+1}, -1
''')
    set_srd(k, S.WS, S.pWS, WS_SIZE)
def colgrp(dst, swap):
    a = f'v_and_b32 v{dst}, 3, v{V.lane}\n' if not swap else f'v_and_b32 v{dst}, 1, v{V.lane}\nv_bfe_u32 v{dst+1}, v{V.lane}, 1, 1\nv_lshl_or_b32 v{dst}, v{dst}, 1, v{dst+1}\n'
    return a + f'''v_bfe_u32 v{dst+1}, v{V.lane}, 4, 1
v_lshl_or_b32 v{dst}, v{dst+1}, 2, v{dst}
v_bfe_u32 v{dst+1}, v{V.lane}, 2, 2
v_lshl_or_b32 v{dst+1}, v{V.hh}, 3, v{dst+1}
'''
def tr_base0(ktype):
    T = V.tmp
    return colgrp(T, ktype) + f'''v_bfe_u32 v{T+2}, v{V.lane}, 3, 1
v_lshlrev_b32 v{T+2}, 6, v{T+2}
v_lshl_add_u32 v{T+2}, v{T}, 3, v{T+2}
v_lshl_add_u32 v{T+2}, v{T+1}, 7, v{T+2}
v_add_u32 v{V.t0r}, {L_WR + WBASE[0]*8192}, v{T+2}
v_xor_b32 v{V.t0r+1}, 64, v{V.t0r}'''
def tr_base(dst, grp, swap, parity):
    T = V.tmp
    a = colgrp(T, swap)
    if parity: a += f's_and_b32 s{S.t3}, s{S.h}, 1\nv_subrev_u32 v{T}, s{S.t3}, v{T}\nv_and_b32 v{T}, 7, v{T}\n'
    return a + f'''v_lshrrev_b32 v{T+2}, 1, v{T}
v_lshrrev_b32 v{T+3}, 2, v{T}
v_and_b32 v{T+2}, v{T+2}, v{T+3}
v_and_b32 v{T+2}, 1, v{T+2}
v_xor_b32 v{T}, v{T}, v{T+2}
v_lshlrev_b32 v{T}, 3, v{T}
v_lshl_add_u32 v{T}, v{T+1}, 6, v{T}
v_add_u32 v{dst}, {L_WR + grp*4096}, v{T}'''

def wphi_load(k):
    T = V.tmp
    set_srd(k, S.X, S.pPHI, 25088)
    k.e(f'''
s_lshl_b32 s{S.t2}, s{S.tt}, 3
v_lshrrev_b32 v{T+1}, 3, v{V.lane}
v_add_u32 v{T+1}, s{S.t2}, v{T+1}
v_add_u32 v{T+2}, 1, v{V.lane}
v_and_b32 v{T+2}, 7, v{T+2}
v_max_u32 v{T+2}, 1, v{T+2}
v_mul_u32_u24 v{T+3}, 56, v{T+1}
v_lshl_add_u32 v{T+3}, v{T+2}, 3, v{T+3}
v_add_u32 v{T+1}, 4, v{T+1}
v_lshrrev_b32 v{T+1}, 5, v{T+1}
v_subrev_u32 v{T+3}, 8, v{T+3}
v_lshl_or_b32 v{T+3}, v{T+1}, 30, v{T+3}
s_mul_i32 s{S.t2}, s{S.hA}, 1568
s_mul_i32 s{S.t3}, s{S.hQ}, 1568
''')
    k.vmop(f'buffer_load_dwordx2 v[{V.EM}:{V.EM+1}], v{T+3}, {srd(S.X)}, s{S.t2} offen')
    return k.vmop(f'buffer_load_dwordx2 v[{V.EM+2}:{V.EM+3}], v{T+3}, {srd(S.X)}, s{S.t3} offen')
def gate_load(k):
    T = V.tmp
    set_srd(k, S.X, S.pGW, 896)
    k.e(f'''v_lshrrev_b32 v{T}, 4, v{V.lane}
v_add_u32 v{T}, s{S.r0}, v{T}
v_and_b32 v{T+2}, 15, v{V.lane}
v_lshlrev_b32 v{T+2}, 1, v{T+2}
s_lshl_b32 s{S.t2}, s{S.tt}, 5
v_add_u32 v{T+2}, s{S.t2}, v{T+2}
v_mov_b32 v{V.gw0+1}, 0
v_mov_b32 v{V.gw1+1}, 0''')
    for a, r in ((0, V.gw0), (4, V.gw1)):
        k.e(f'v_add_u32 v{T+1}, {a}, v{T}\nv_subrev_u32 v{T+3}, 7, v{T+1}\nv_min_u32 v{T+1}, v{T+1}, v{T+3}\nv_lshl_add_u32 v{T+1}, v{T+1}, 7, v{T+2}')
        x = k.vmop(f'buffer_load_ushort v{r}, v{T+1}, {srd(S.X)}, 0 offen')
    return x

def reads(s, grp):
    st = s // 7; buf = V.wf + 16*(s % 2); out = []
    for q in range(4):
        if st == 0:
            out.append(f'ds_read_b128 {vr(V.xf+16*s+4*q,4)}, v{V.xr+q} offset:{(s % 4)*16384}')
            if grp == 1:
                for cs, b in ((0, buf), (1, [V.P, V.EM][s % 2])):
                    for jh in range(2):
                        out.append(f'ds_read_b64_tr_b16 {vr(b+4*q+2*jh,2)}, v{V.t0r+cs} offset:{(WSLOT[s]-WBASE[0])*8192+q*2048+jh*512}')
        else:
            for jh in range(2):
                out.append(f'ds_read_b64_tr_b16 {vr(buf+4*q+2*jh,2)}, v{[V.t1r, V.t2r][st-1]} offset:{WSLOT[s]*8192+q*1024+jh*256}')
    return out
def mfmas(s, grp, wfirst):
    st = s // 7; c = s % 7; buf = V.wf + 16*(s % 2); out = []
    if st == 0 and grp == 0: return []
    tiles = [(V.acc0, buf), (V.acc1, [V.P, V.EM][s % 2])] if st == 0 else [(V.acc1 if st == 1 else V.acc0, buf)]
    for q in range(4):
        for acc, b in tiles:
            x = V.xf + 16*c + 4*q; w = b + 4*q
            cin = '0' if (c == 0 and q == 0) else acc
            out.append(mfma(acc, w, x, cin) if wfirst else mfma(acc, x, w, cin))
    return out
def nlines(p): return len([l for l in p.strip().split('\n') if l.strip()]) if isinstance(p, str) else p.n
class Job:
    def __init__(self, f, n): self.f, self.n = f, n
def emit(k, p):
    if isinstance(p, str): k.e(p)
    else: p.f()
def split_pieces(pieces, nslots):
    tot = sum(nlines(p) for p in pieces); out = [[] for _ in range(nslots)]; acc = 0
    for p in pieces:
        out[min(nslots-1, int((acc + nlines(p)/2) * nslots / max(tot, 1)))].append(p); acc += nlines(p)
    return out
def lines(txt): return [l for l in txt.strip().split('\n') if l.strip()]

def cvt16(k, dst, src):
    for q in range(8): k.e(f'v_cvt_pk_bf16_f32 v{dst+q}, v{src+2*q}, v{src+2*q+1}')

def epi0_addr_k():
    T = V.tmp; k = Stream()
    k.e(f'''
s_lshl_b32 s{S.t2}, s{S.j}, 3
v_and_b32 v{T}, 0x13, v{V.i32}
v_bfe_u32 v{T+1}, v{V.i32}, 2, 1
v_lshl_or_b32 v{T}, v{T+1}, 3, v{T}
v_bfe_u32 v{T+1}, v{V.i32}, 3, 1
v_lshl_or_b32 v{T}, v{T+1}, 2, v{T}
v_lshlrev_b32 v{T}, 4, v{T}
s_lshl_b32 s{S.t3}, s{S.tb}, 2
s_add_u32 s{S.t3}, s{S.t3}, s{S.tt}
s_lshl_b32 s{S.t3}, s{S.t3}, 12
s_add_u32 s{S.t3}, s{S.t3}, {WS_KV}
v_add_u32 v{V.EP+8}, s{S.t3}, v{T}
v_add_u32 v{V.EP+9}, s{S.t2}, v{V.hh}
''')
    out = ['\n'.join(k.L)]
    for n in range(4):
        D = V.EP + 4*(n//2) + n % 2
        out.append(f'''v_add_u32 v{T+1}, {2*n}, v{V.EP+9}
v_mul_u32_u24 v{T+2}, 37, v{T+1}
v_lshrrev_b32 v{T+2}, 8, v{T+2}
v_mul_u32_u24 v{T+3}, 7, v{T+2}
v_sub_u32 v{T+3}, v{T+1}, v{T+3}
v_lshrrev_b32 v{T+4}, 2, v{T+3}
v_lshl_add_u32 v{T+5}, v{T+2}, 1, v{T+4}
v_mul_u32_u24 v{T+4}, 3, v{T+4}
v_sub_u32 v{T+4}, v{T+3}, v{T+4}
v_lshl_add_u32 v{D}, v{T+5}, 18, v{V.EP+8}
v_lshl_add_u32 v{D}, v{T+4}, 9, v{D}
v_lshl_add_u32 v{D+2}, v{T+2}, 19, v{V.EP+8}
v_add_u32 v{D+2}, 0x40000, v{D+2}
v_xor_b32 v{T+3}, 3, v{T+3}
v_min_u32 v{T+3}, 1, v{T+3}
v_lshl_or_b32 v{D+2}, v{T+3}, 30, v{D+2}''')
    return out
def epi0_addr_v():
    T = V.tmp; out = []
    for cs in range(2):
        D = V.EP + 4*cs; C = V.EP + 8 + 4*cs
        out.append(f'''s_sub_u32 s{S.t2}, s{S.j}, 7
s_lshl_b32 s{S.t2}, s{S.t2}, 6
s_add_u32 s{S.t2}, s{S.t2}, {32*cs}
v_add_u32 v{T}, s{S.t2}, v{V.i32}
v_mul_u32_u24 v{T+1}, 2341, v{T}
v_lshrrev_b32 v{T+1}, 16, v{T+1}
v_mul_u32_u24 v{T+2}, 28, v{T+1}
v_sub_u32 v{T+2}, v{T}, v{T+2}
s_lshl_b32 s{S.t3}, s{S.tb}, 2
s_add_u32 s{S.t3}, s{S.t3}, s{S.tt}
s_lshl_b32 s{S.t3}, s{S.t3}, 12
s_add_u32 s{S.t3}, s{S.t3}, {WS_KV + 2048}
v_lshlrev_b32 v{T+1}, 18, v{T+1}
v_lshl_add_u32 v{T+1}, v{T+2}, 4, v{T+1}
v_lshlrev_b32 v{T+3}, 9, v{V.hh}
v_add3_u32 v{D}, v{T+1}, v{T+3}, s{S.t3}
v_add_u32 v{D+1}, 1024, v{D}
v_lshrrev_b32 v{T+3}, 2, v{T+2}
v_min_u32 v{T+3}, 1, v{T+3}
v_add_u32 v{D+2}, 448, v{D}
v_lshl_or_b32 v{D+2}, v{T+3}, 30, v{D+2}
v_add_u32 v{D+3}, 1024, v{D+2}
v_min_u32 v{T+2}, 1, v{T+2}
v_subrev_u32 v{T+2}, 1, v{T+2}
v_and_b32 v{C}, 0x3f803f80, v{T+2}
v_mov_b32 v{C+1}, v{C}
v_mov_b32 v{C+2}, v{C}
v_mov_b32 v{C+3}, v{C}''')
    return out

class A:
    ks, vs, kv0, kv1, idx, m = 12, 6, 8, 9, 10, 11
    a0, a1, a2 = 7, 13, 14
    f0, f1 = 4, 5
    Q, KF, V0, V1, O, NM, SA, SB, PHQ = 128, 136, 144, 112, 160, 176, 192, 208, 32
    l = 152; t = 153
    WOA, OF, RED = 16, 80, 48
    WOB, ACC = 176, 128
    wsrc = 124
    eps = 245

def wphi_reads(grp):
    T = V.tmp
    a = lines(colgrp(T, False) + f'v_lshlrev_b32 v{T}, 3, v{T}\nv_lshl_add_u32 v{T}, v{T+1}, 6, v{T}\nv_add_u32 v{T}, {L_WPHI + grp*2048}, v{T}')
    for s in range(2):
        for jh in range(2): a.append(f'ds_read_b64_tr_b16 {vr(V.EM+4*s+2*jh,2)}, v{T} offset:{s*1024+jh*256}')
    a.append(f's_mov_b32 s{S.t6}, {fbits(LOG2E)}')
    return a

def feat_pieces(src, dst, grp, round_p=True):
    T = V.tmp; P, EP, EM = V.P, V.EP, V.EM
    sA = S.t6; c = []
    c += [f'v_cvt_pk_bf16_f32 v{EM+8+q}, v{src+2*q}, v{src+2*q+1}' for q in range(8)]
    c += [mfma(P, EM, EM+8, '0') + '\n' + mfma(P, EM+4, EM+12, P), 'WAITP']
    if round_p:
        c += [f'v_cvt_pk_bf16_f32 v{EP+q}, v{P+2*q}, v{P+2*q+1}' for q in range(8)]
        for q in range(8): c += [f'v_lshlrev_b32 v{P+2*q}, 16, v{EP+q}', f'v_and_b32 v{P+2*q+1}, 0xffff0000, v{EP+q}']
    c += [f'v_max3_f32 v{T}, v{P}, v{P+1}, v{P+2}', f'v_max3_f32 v{T+1}, -v{P}, -v{P+1}, -v{P+2}']
    for q in range(3, 15, 2):
        c += [f'v_max3_f32 v{T}, v{T}, v{P+q}, v{P+q+1}', f'v_max3_f32 v{T+1}, v{T+1}, -v{P+q}, -v{P+q+1}']
    c.append(f'''v_max_f32 v{T}, v{T}, v{P+15}
v_max_f32_e64 v{T+1}, v{T+1}, -v{P+15}
v_sub_u32 v{T+2}, 0, v{V.hh}
v_and_b32 v{T+2}, 0x7f800000, v{T+2}
v_permlane32_swap_b32 v{T}, v{T+1}
v_max_f32 v{T}, v{T}, v{T+1}
v_mul_f32 v{T+1}, s{sA}, v{T}
v_mul_f32 v{T+3}, s{sA}, v{T}
s_nop 1
v_permlane32_swap_b32 v{T+1}, v{T+3}''')
    for q in range(8):
        if q == 6: c.append(f'v_add_f32 v{T+1}, v{T+1}, v{T+2}\nv_add_f32 v{T+3}, v{T+3}, v{T+2}')
        c.append(f'v_pk_fma_f32 {vr(EP+2*q,2)}, {vr(P+2*q,2)}, s[{sA}:{sA+1}], {vr(T+1,2)} op_sel_hi:[1,0,0] neg_lo:[0,0,1] neg_hi:[0,0,1]')
        c.append(f'v_pk_fma_f32 {vr(EM+2*q,2)}, {vr(P+2*q,2)}, s[{sA}:{sA+1}], {vr(T+3,2)} op_sel_hi:[1,0,0] neg_lo:[1,0,1] neg_hi:[1,0,1]')
    c += [f'v_exp_f32 v{EP+q}, v{EP+q}\n; x' for q in range(16)]
    c += [f'v_exp_f32 v{EM+q}, v{EM+q}\n; x' for q in range(16)]
    c += [f'v_pk_add_f32 {vr(T+1,2)}, {vr(EP,2)}, {vr(EP+2,2)}', f'v_pk_add_f32 {vr(T+3,2)}, {vr(EM,2)}, {vr(EM+2,2)}']
    for q in range(2, 8):
        c += [f'v_pk_add_f32 {vr(T+1,2)}, {vr(T+1,2)}, {vr(EP+2*q,2)}', f'v_pk_add_f32 {vr(T+3,2)}, {vr(T+3,2)}, {vr(EM+2*q,2)}']
    a = f'''v_add_f32 v{T+1}, v{T+1}, v{T+2}
v_add_f32 v{T+3}, v{T+3}, v{T+4}
s_nop 1
v_permlane32_swap_b32 v{T+1}, v{T+3}
v_add_f32 v{T+1}, v{T+1}, v{T+3}
'''
    if grp == 0:
        a += f'v_rcp_f32 v{T+1}, v{T+1}\ns_nop 0\nv_mov_b32 v{T+3}, v{T+1}\ns_nop 1\nv_permlane32_swap_b32 v{T+1}, v{T+3}'
    else:
        a += f'v_mov_b32 v{T+3}, v{T+1}\ns_nop 1\nv_permlane32_swap_b32 v{T+1}, v{T+3}\nv_rcp_f32 v{T+3}, v{T+3}\nv_mul_f32 v{A.eps}, {fbits(1e-6)}, v{T+1}\nv_mul_f32 v{T+3}, v{T+3}, v{T+1}'
    c.append(a)
    for q in range(8):
        if grp == 0: c.append(f'v_pk_mul_f32 {vr(EP+2*q,2)}, {vr(EP+2*q,2)}, {vr(T+1,2)} op_sel_hi:[1,0]')
        c.append(f'v_pk_mul_f32 {vr(EM+2*q,2)}, {vr(EM+2*q,2)}, {vr(T+3,2)} op_sel_hi:[1,0]')
    for q in range(8):
        c += [f'v_cvt_pk_bf16_f32 v{dst+q}, v{EP+2*q}, v{EP+2*q+1}', f'v_cvt_pk_bf16_f32 v{dst+8+q}, v{EM+2*q}, v{EM+2*q+1}']
    return c

def phi_base():
    T = V.tmp; D = A.m
    return lines(f'''v_and_b32 v{D}, 1, v{V.i32}
v_bfe_u32 v{T}, v{V.i32}, 2, 2
v_lshl_or_b32 v{D}, v{T}, 1, v{D}
v_bfe_u32 v{T}, v{V.i32}, 1, 1
v_lshl_or_b32 v{D}, v{T}, 3, v{D}
v_xor_b32 v{D}, v{D}, v{V.hh}
v_lshlrev_b32 v{D}, 3, v{D}
v_lshl_add_u32 v{D}, v{V.i32}, 7, v{D}
s_lshl_b32 s{S.t2}, s{S.tt}, 12
s_add_u32 s{S.t2}, s{S.t2}, {L_PHI}
v_add_u32 v{D}, s{S.t2}, v{D}''')
def phi_write(src):
    T = V.tmp; out = []
    for s in range(2):
        for g in range(4):
            u = 8*s + 2*g
            out.append((f'v_xor_b32 v{T}, {u*8}, v{A.m}\n' if u else '') + f'ds_write_b64 v{T if u else A.m}, {vr(src+8*s+2*g,2)}')
    return out

def va_stage(k):
    cvt16(k, V.P, V.acc0)
    k.e(f's_mov_b32 exec_lo, 0xf0000000\ns_mov_b32 exec_hi, 0xf0000000')
    for q in range(8): k.e(f'v_mov_b32 v{V.P+q}, 0')
    k.e(f's_mov_b32 exec_lo, 0x10000000\ns_mov_b32 exec_hi, 0x10000000')
    for q in range(8): k.e(f'v_mov_b32 v{V.P+q}, 0x3f803f80')
    k.e(f'''s_mov_b64 exec, -1
ds_write_b128 v{A.a0}, {vr(V.P,4)} offset:{L_STG-L_QX}
ds_write_b128 v{A.a0}, {vr(V.P+4,4)} offset:{L_STG-L_QX+1024}''')

KVB = 240
def kv_addr_setup(D):
    T = V.tmp
    return lines(f'''s_lshr_b32 s{S.t2}, s{S.w}, 1
s_lshl_b32 s{S.t3}, s{S.t2}, 2
v_and_b32 v{T}, 3, v{V.lane}
v_or_b32 v{T}, s{S.t3}, v{T}
v_bfe_u32 v{T+1}, v{V.lane}, 2, 1
v_bfe_u32 v{D}, v{V.lane}, 4, 1
v_lshl_or_b32 v{T+1}, v{D}, 1, v{T+1}
v_bfe_u32 v{D+1}, v{V.lane}, 3, 1
v_lshl_or_b32 v{T+1}, v{D+1}, 3, v{T+1}
v_xor_b32 v{T}, v{T}, v{T+1}
v_bfe_u32 v{T+1}, v{V.lane}, 2, 2
v_lshl_or_b32 v{T+1}, v{D}, 2, v{T+1}
v_lshl_or_b32 v{T+1}, v{V.hh}, 4, v{T+1}
v_lshlrev_b32 v{T}, 3, v{T}
v_lshl_add_u32 v{T}, v{T+1}, 7, v{T}
v_and_b32 v{T+1}, 15, v{V.lane}
s_and_b32 s{S.t3}, s{S.w}, 1
s_lshl_b32 s{S.t3}, s{S.t3}, 4
v_add_u32 v{T+1}, s{S.t3}, v{T+1}
v_lshl_add_u32 v{D+3}, v{D}, 5, v{T+1}
v_lshlrev_b32 v{D+3}, 5, v{D+3}
v_lshl_add_u32 v{D+3}, v{V.hh}, 4, v{D+3}
s_lshl_b32 s{S.t3}, s{S.hA}, 4
s_add_u32 s{S.t3}, s{S.t3}, s{S.tb}
s_lshl_b32 s{S.t3}, s{S.t3}, 2
s_add_u32 s{S.t3}, s{S.t3}, s{S.t2}
s_lshl_b32 s{S.t3}, s{S.t3}, 11
s_add_u32 s{S.t3}, s{S.t3}, {WS_KVP}
v_add_u32 v{D+3}, s{S.t3}, v{D+3}
v_lshlrev_b32 v{T+1}, 4, v{T+1}
v_lshrrev_b32 v{D+2}, 4, v{V.lane}
v_lshl_add_u32 v{D+2}, v{D+2}, 9, v{T+1}
v_add_u32 v{D+2}, {L_STG}, v{D+2}
v_add_u32 v{D}, {L_PHI}, v{T}
v_add_u32 v{D+1}, 1024, v{D}
v_xor_b32 v{D+1}, 32, v{D+1}''')
def kv_partial(k):
    D = KVB; ids = []
    for Tt in range(4):
        k.ds(f'ds_read_b64_tr_b16 {vr(V.EP+4*Tt,2)}, v{D} offset:{Tt*4096}')
        k.ds(f'ds_read_b64_tr_b16 {vr(V.EP+4*Tt+2,2)}, v{D+1} offset:{Tt*4096}')
        ids.append(k.ds(f'ds_read_b128 {vr(V.EM+4*Tt,4)}, v{D+2} offset:{Tt*2048}'))
    return ids
def kv_partial2(k, ids):
    for Tt in range(4):
        k.dswait(ids[Tt])
        k.e(f'v_mfma_f32_16x16x32_bf16 {vr(V.P,4)}, {vr(V.EP+4*Tt,4)}, {vr(V.EM+4*Tt,4)}, {"0" if Tt == 0 else vr(V.P,4)}')
def kv_partial3(k):
    return k.vmop(f'buffer_store_dwordx4 {vr(V.P,4)}, v{KVB+3}, {srd(S.WS)}, 0 offen sc1')

def flag_store(k, addr_s, val_s, sc='sc1', opt=True, T=None):
    T = T or V.tmp
    k.e(f'v_mov_b32 v{T}, s{addr_s}\nv_mov_b32 v{T+1}, s{val_s}\ns_mov_b64 exec, 1')
    a = k.vmop(f'buffer_store_dword v{T+1}, v{T}, {srd(S.WS)}, 0 offen {sc}', opt=opt)
    k.e('s_mov_b64 exec, -1')
    return a

_lbl = [0]
def lbl(p):
    _lbl[0] += 1; return f'L_{p}_{_lbl[0]}'

def flag_check(k, ld_id, vflag, vaddr, mask=False, keep=False):
    L1, L2 = lbl('poll'), lbl('polled')
    k.vmwait(ld_id, keep=keep)
    T = V.tmp
    cmp = f'v_and_b32 v{T}, -16, v{vflag}\nv_cmp_ne_u32 vcc, s{S.tag}, v{T}' if mask else f'v_cmp_ne_u32 vcc, s{S.tag}, v{vflag}'
    k.e(f'{cmp}\ns_cbranch_vccnz {L1}\n{L2}:')
    k.cold.e(f'''{L1}:
s_mov_b32 s{S.spin}, {SPIN}
{L1}_a:
s_sleep 4
buffer_load_dword v{vflag}, v{vaddr}, {srd(S.WS)}, 0 offen sc1
s_waitcnt vmcnt(0)
{cmp}
s_cbranch_vccz {L2}
s_sub_u32 s{S.spin}, s{S.spin}, 1
s_cbranch_scc0 {L1}_a
s_branch {L2}''')

def step(k, s, grp, ids, wfirst, opts, pieces=(), tailp=()):
    k.c(f'---- step {s}')
    gate = grp == 0 and 13 <= s <= 19
    if gate: k.vmwait(ids.get(s + 1))
    k.vmwait(ids.get(s))
    stamp(k, f'step{s}')
    k.e('s_waitcnt lgkmcnt(0)\ns_barrier')
    stamp(k, f'bar{s}')
    mf = mfmas(s-1, grp, wfirst) if s not in (0, 7) else []
    rd = reads(s, grp)
    if gate:
        q = (s - 13) % 4
        rd.append(f's_mov_b32 exec_lo, {hex(0xffff << (16*q)) if q < 2 else 0}\ns_mov_b32 exec_hi, {hex(0xffff << (16*(q-2))) if q >= 2 else 0}\n'
                  f'ds_write_b64 v{V.g}, {vr(V.gw0 if s < 17 else V.gw1,2)} offset:{WSLOT[s+1]*8192}\ns_mov_b64 exec, -1')
    if opts['stagger'] and 15 <= s <= opts['feat_last']:
        pat = opts['stagger'][grp]; qs = split_pieces(list(pieces) + list(tailp if grp else ()), 4); mi = 0
        if grp: tailp = ()
        for tok in pat.split():
            if tok == 'M':
                for m in mf[mi:]: k.e(m)
            elif tok == 'm': k.e(mf[mi]); mi += 1
            elif tok == 'R':
                for r in rd: k.e(r)
            elif tok[0] == 'p': k.e(f's_setprio {tok[1]}')
            else:
                for _ in range(int(tok)):
                    for p in qs.pop(0): emit(k, p)
    else:
        n = max(len(mf), 1); nr = max(1, (n+1)//2)
        pcs = split_pieces(list(pieces), n)
        for q in range(n):
            if opts['prio1'] and 14 <= s <= opts['feat_last']: k.e(f's_setprio {3-q}')
            if mf: k.e(mf[q])
            if q < nr:
                for r in rd[q*len(rd)//nr:(q+1)*len(rd)//nr]: k.e(r)
            for p in pcs[q]: emit(k, p)
    stamp(k, f'body{s}')
    if grp == 0:
        if s + 3 <= 6: ids[s+3] = dma_x(k, s + 3, True)
        for w in opts['wsched'].get(s, ()):
            x = dma_w(k, w, True)
            if w not in ids or w > 6: ids[w] = x
    for p in tailp: emit(k, p)
    stamp(k, f'done{s}')

def stage0(k, grp, ids, ktype, opts):
    T = V.tmp
    ob = f'''s_lshl_b32 s{S.t2}, s{S.tb}, 2
s_add_u32 s{S.t2}, s{S.t2}, s{S.tt}
s_lshl_b32 s{S.t2}, s{S.t2}, 16
s_lshl_b32 s{S.t3}, s{S.h}, 11
s_add_u32 s{S.t2}, s{S.t2}, s{S.t3}
s_add_u32 s{S.t2}, s{S.t2}, {WS_OX + 32768 + grp*1024}
v_lshl_add_u32 v{V.ob}, v{V.lane}, 4, s{S.t2}
s_add_u32 s{S.tag}, s{S.tag}, 0x9e3779b0'''
    P = {0: [ob], 6: ['\n'.join(kv_addr_setup(KVB))], 4: [tr_base(V.t2r, grp, grp == 0, grp == 0)], 5: [tr_base(V.t1r, grp, True, False)]}
    if grp == 1:
        ep = (epi0_addr_k if ktype else epi0_addr_v)()
        P[1] = ep[:len(ep)//2]; P[2] = ep[len(ep)//2:]; P[0] += P.pop(6)
        P[3] = [f's_cmp_eq_u32 s{S.h}, 5\ns_cselect_b32 s{S.t4}, 0, {WS_SIZE}\ns_cmp_eq_u32 s{S.h}, 10\ns_cselect_b32 s{S.M1+2}, 0, s{S.t4}\ns_mov_b32 s{S.M1}, s{S.pWS}\ns_mov_b32 s{S.M1+1}, s{S.pWS+1}\ns_mov_b32 s{S.M1+3}, 0x20000']
    else:
        P[6] += [Job(lambda: wphi_load(k), 20)]
    for s in range(0, 7): step(k, s, grp, ids, ktype, opts, P.get(s, ()))
    if grp == 1:
        k.e('s_waitcnt lgkmcnt(0)')
        for m in mfmas(6, grp, ktype): k.e(m)

def stage0_epilogue(k, ktype):
    def extra(n):
        L = lbl('dup'); a = V.EP + 4*(n//2) + 2 + n % 2
        k.e(f'v_cmp_gt_u32 vcc, {OOB}, v{a}\ns_cbranch_vccz {L}')
        k.vmop(f'buffer_store_dwordx4 {vr(V.P+4*n if ktype else V.EP+8+4*(n//2),4)}, v{a}, {srd(S.M1)}, 0 offen sc1', opt=True)
        k.e(f'{L}:')
    if not ktype:
        for n in range(4): extra(n)
    for n in range(4):
        for q in range(4): k.e(f'v_cvt_pk_bf16_f32 v{V.P+4*n+q}, v{V.acc0+8*n+2*q}, v{V.acc0+8*n+2*q+1}')
        if ktype: extra(n)
        a = k.vmop(f'buffer_store_dwordx4 {vr(V.P+4*n,4)}, v{V.EP+4*(n//2)+n%2}, {srd(S.M1)}, 0 offen sc1')
    return a

def clear_jobs(k, out):
    T = V.tmp + 5; C = V.xf
    def c0():
        for q in range(4): k.e(f'v_mov_b32 v{C+q}, -1')
        L = lbl('cl')
        k.e(f'''s_cmp_lg_u32 s{S.w}, 4
s_cbranch_scc1 {L}
s_lshl_b32 s{S.t2}, s{S.hA}, 4
s_add_u32 s{S.t2}, s{S.t2}, s{S.tb}
s_lshl_b32 s{S.t2}, s{S.t2}, 8
s_add_u32 s{S.t2}, s{S.t2}, {WS_KVF}
v_lshl_add_u32 v{T+1}, v{V.lane}, 2, s{S.t2}''')
        k.vmop(f'buffer_store_dword v{C}, v{T+1}, {srd(S.WS)}, 0 offen sc1', opt=True)
        k.e(f'{L}:')
        k.vmop(f'buffer_store_dwordx4 {vr(C,4)}, v{KVB+3}, {srd(S.WS)}, 0 offen sc1')
    def c1():
        k.e(f'v_subrev_u32 v{T}, 4096, v{KVB+3}')
        out['clr'] = k.vmop(f'buffer_store_dwordx4 {vr(C,4)}, v{T}, {srd(S.WS)}, 0 offen sc1')
    return [Job(c0, 8), Job(c1, 2)]

def attn_addr(grp, first):
    return [f'''s_lshr_b32 s{S.rot}, s{S.tb}, 1
s_and_b32 s{S.t2}, s{S.tb}, 1
s_lshl_b32 s{S.t2}, s{S.t2}, 2
s_add_u32 s{S.rot}, s{S.rot}, s{S.t2}
s_add_u32 s{S.rot}, s{S.rot}, {first}
s_and_b32 s{S.rot}, s{S.rot}, 7
s_lshl_b32 s{S.sK}, s{S.rot}, 14
s_lshl_b32 s{S.mK}, s{S.w}, 12''', f'''s_lshl_b32 s{S.t2}, s{S.h}, 18
s_lshl_b32 s{S.t3}, s{S.tt}, 12
s_add_u32 s{S.t2}, s{S.t2}, s{S.t3}
s_add_u32 s{S.t2}, s{S.t2}, {WS_KV + grp*131072}
v_lshl_add_u32 v{A.ks}, v{V.lane}, 4, s{S.t2}''', f'''v_lshlrev_b32 v{A.kv0}, 4, v{V.lane}
v_add_u32 v{A.kv0}, {grp*16384}, v{A.kv0}
v_add_u32 v{A.kv1}, 0x10000, v{A.kv0}
v_mov_b32 v{A.idx}, 0xdddddddd''']

def kv_dma_jobs(k, stage, out, both=False):
    slot = stage % 3
    def j(q, other):
        if other: k.e(f's_add_u32 m0, s{S.mK}, {slot*32768-16384}\nv_subrev_u32 v{A.a1}, 0x20000, v{A.ks}')
        else: k.e(f's_add_u32 m0, s{S.mK}, {slot*32768}\ns_nop 0')
        out[stage] = k.vmop(f'buffer_load_dwordx4 v{A.a1 if other else A.ks}, {srd(S.WS)}, s{S.sK} offen offset:{q*1024} {KVSC[0]} lds')
        if q == 3 and not other: k.e(f's_add_u32 s{S.sK}, s{S.sK}, 16384\ns_and_b32 s{S.sK}, s{S.sK}, 0x1ffff')
    J = [Job(lambda q=q: j(q, 1), 4) for q in range(4)] if both else []
    return J + [Job(lambda q=q: j(q, 0), 4) for q in range(4)]

def only(k, w, f):
    def g():
        L = lbl('w'); k.e(f's_cmp_lg_u32 s{S.w}, {w}\ns_cbranch_scc1 {L}'); f(); k.e(f'{L}:')
    g.__name__ = f.__name__
    return g

def stages12(k, ids, grp, st_id, opts):
    T = V.tmp; out = {}; st = {}
    P = {s: [] for s in range(7, 21)}; TP = {s: [] for s in range(7, 21)}
    npre = opts['npre']; pub = opts['f1_step']; xpub = opts['fx_step']
    if grp == 1:
        out['st'] = st_id
        for n, j in enumerate(clear_jobs(k, out)): TP[opts['clr_at'][n]].append(j)
    P[14] += attn_addr(grp, opts['npre'] if grp == 0 else 0)
    if grp == 0:
        P[10] += [f's_lshl_b32 s{S.t2}, s{S.tt}, 9\ns_add_u32 s{S.t2}, s{S.t2}, {L_WPHI}\nv_lshl_add_u32 v{T}, v{V.lane}, 3, s{S.t2}\nds_write_b64 v{T}, {vr(V.EM,2)}\nds_write_b64 v{T}, {vr(V.EM+2,2)} offset:2048']
        P[8] += [Job(lambda: gate_load(k), 20)]
        P[11] += ['\n'.join(phi_base())]
        P[12] += [f'v_and_b32 v{V.g}, 15, v{V.lane}\nv_lshlrev_b32 v{V.g}, 6, v{V.g}\ns_add_u32 s{S.t2}, s{S.mW}, 48\nv_add_u32 v{V.g}, s{S.t2}, v{V.g}']
    else:
        P[11] += [f'''s_mul_i32 s{S.t2}, s{S.h}, 28
s_add_u32 s{S.t3}, s{S.t2}, 27
s_lshr_b32 s{S.t2}, s{S.t2}, 6
s_lshr_b32 s{S.t3}, s{S.t3}, 6
s_sub_u32 s{S.t3}, s{S.t3}, s{S.t2}
v_bfe_u32 v{T}, v{V.lane}, 4, 1
v_mul_u32_u24 v{T}, s{S.t3}, v{T}
v_mul_u32_u24 v{T+1}, 7, v{V.hh}
v_add3_u32 v{T}, v{T}, v{T+1}, s{S.t2}
v_and_b32 v{T+1}, 15, v{V.lane}
v_lshl_add_u32 v{T}, v{T}, 4, v{T+1}
v_lshlrev_b32 v{T}, 6, v{T}
v_add_u32 v{A.f1}, {WS_FLAG1}, v{T}''']
    P[13] += ['\n'.join(wphi_reads(grp))]
    def f1pub():
        assert k.vmcount(out['st']) is None
        k.e(f'''s_lshl_b32 s{S.t2}, s{S.j}, 4
s_add_u32 s{S.t2}, s{S.t2}, s{S.tb}
s_lshl_b32 s{S.t2}, s{S.t2}, 6
s_add_u32 s{S.t2}, s{S.t2}, {WS_FLAG1}
s_cmp_eq_u32 s{S.M1+2}, 0
s_cselect_b32 s{S.t2}, {OOB}, s{S.t2}''')
        flag_store(k, S.t2, S.tag, T=V.tmp+5)
    def fxpub():
        assert k.vmcount(out['clr']) is None
        k.e(f's_lshl_b32 s{S.t2}, s{S.tb}, 4\ns_add_u32 s{S.t2}, s{S.t2}, s{S.h}\ns_lshl_b32 s{S.t2}, s{S.t2}, 6\ns_add_u32 s{S.t2}, s{S.t2}, {WS_FLAGX}')
        flag_store(k, S.t2, S.tag, T=V.tmp+5)
    if grp == 1: P[pub].insert(0, Job(only(k, 5, f1pub), 2)); P[xpub].insert(0, Job(only(k, 5, fxpub), 2))
    fp = feat_pieces(V.acc1, V.acc1, grp, opts['round_p'])
    i = fp.index('WAITP')
    TP[14] += fp[:i]
    rest = fp[i+1:] + (phi_write(V.acc1) if grp == 0 else [])
    for n, grpp in enumerate(split_pieces(rest, opts['feat_last'] - 14)): P[15+n] += grpp
    TP[19].append(f's_lshl_b32 s{S.t2}, s{S.tt}, 11\ns_add_u32 s{S.t2}, s{S.t2}, {L_QX}\nv_lshl_add_u32 v{A.a0}, v{V.lane}, 4, s{S.t2}')
    TP[18] += [f'v_mov_b32 v{A.O+q}, 0' for q in range(16)]
    if grp == 1:
        c = opts['f1_check']
        def f1ld(): out['f1'] = k.vmop(f'buffer_load_dword v{A.f0}, v{A.f1}, {srd(S.WS)}, 0 offen sc1', opt=True)
        def f1ck():
            flag_check(k, out['f1'], A.f0, A.f1, keep=True); stamp(k, 'f1seen')
        def fxld():
            k.e(f'''s_xor_b32 s{S.t2}, s{S.hQ}, 1
s_sub_u32 s{S.t2}, s{S.t2}, s{S.h}
v_and_b32 v{T+5}, 15, v{V.lane}
v_mul_lo_u32 v{T+6}, v{V.hh}, s{S.t2}
v_add_u32 v{T+6}, s{S.h}, v{T+6}
v_lshl_add_u32 v{T+6}, v{T+5}, 4, v{T+6}
v_lshlrev_b32 v{T+6}, 6, v{T+6}
v_add_u32 v{A.f1}, {WS_FLAGX}, v{T+6}''')
            out['fx'] = k.vmop(f'buffer_load_dword v{A.f0}, v{A.f1}, {srd(S.WS)}, 0 offen sc1', opt=True)
        out['fxld'] = only(k, 4, fxld)
        TP[c-2].insert(0, Job(only(k, 4, f1ld), 1))
        TP[c-1].insert(0, Job(only(k, 4, f1ck), 3))
    dj = []
    if grp == 1:
        for s_ in range(npre): dj += kv_dma_jobs(k, s_, st, both=True)
    for s_ in range(opts['f1_check'], 21):
        n = min(len(dj), opts['pre_rate']); TP[s_] += dj[:n]; dj = dj[n:]
    out['left'] = dj
    for s in range(7, 21):
        if s == pub and grp == 1: k.vmwait(out['st'])
        if s == xpub and grp == 1: k.vmwait(out['clr'])
        step(k, s, grp, ids, not (grp == 1 and s-1 >= 14), opts, P[s], TP[s])
    k.e('s_waitcnt lgkmcnt(0)')
    for m in mfmas(20, grp, grp == 0): k.e(m)
    out['kvst'] = st
    return out

def attn_prologue(k, grp, pend, opts):
    T = V.tmp
    k.c('---- attention prologue')
    stamp(k, 'p1done')
    st = pend['kvst']
    for j in pend['left']: j.f()
    if grp == 0:
        a0 = V.acc0
        k.e(f'''v_mov_b32 v{T+1}, v{a0+12}
v_mov_b32 v{T+3}, v{a0+12}
v_mov_b32 v{T+2}, v{a0}
v_mov_b32 v{T+4}, v{a0}
s_mov_b32 s{S.t6}, {fbits(QSCALE)}
v_permlane32_swap_b32 v{T+1}, v{T+3}
v_permlane32_swap_b32 v{T+2}, v{T+4}
s_bitcmp1_b32 s{S.h}, 0
s_cselect_b64 s[{S.vcm}:{S.vcm+1}], -1, 0
v_cndmask_b32 v{T+3}, v{T+3}, v{T+2}, s[{S.vcm}:{S.vcm+1}]
v_mul_f32 v{T+3}, {fbits(-LOG2E)}, v{T+3}
v_exp_f32 v{T+3}, v{T+3}''')
        for q in range(8): k.e(f'v_pk_mul_f32 {vr(a0+2*q,2)}, {vr(a0+2*q,2)}, s[{S.t6}:{S.t6+1}] op_sel_hi:[1,0]')
        k.e(f'v_add_f32 v{T+3}, 1.0, v{T+3}\nv_rcp_f32 v{V.g}, v{T+3}')
        cvt16(k, A.Q, a0)
        k.e(f'''s_cselect_b32 exec_lo, -1, 0
s_mov_b32 exec_hi, 0
v_mov_b32 v{A.Q}, 0
v_mov_b32 v{A.Q+1}, 0
s_mov_b32 exec_lo, 0
s_cselect_b32 exec_hi, 0, -1
v_mov_b32 v{A.Q+6}, 0
v_mov_b32 v{A.Q+7}, 0
s_mov_b64 exec, -1
v_lshrrev_b32 v{T}, 2, v{A.a0}
ds_write_b128 v{A.a0}, {vr(A.Q,4)}
ds_write_b128 v{A.a0}, {vr(A.Q+4,4)} offset:1024
v_and_b32 v{T}, 0x7fc, v{T}
v_add_u32 v{T}, {L_G}, v{T}
ds_write_b32 v{T}, v{V.g}''')
    else:
        va_stage(k)
        k.e(f'v_lshrrev_b32 v{T}, 2, v{A.a0}\nv_and_b32 v{T}, 0x7fc, v{T}\nv_add_u32 v{T}, {L_G}, v{T}')
    stamp(k, 'preB0')
    k.vmwait(st.get(0), 'lgkmcnt(0)')
    stamp(k, 'B0wait')
    k.e('s_barrier')
    if grp == 1:
        k.ds(f'ds_read_b128 {vr(A.Q,4)}, v{A.a0}')
        k.ds(f'ds_read_b128 {vr(A.Q+4,4)}, v{A.a0} offset:1024')
        k.ds(f'ds_read_b32 v{V.g}, v{T}')
    return st

def kv_addr(t):
    s, T = t // 4, t % 4; slot = s % 3
    base = A.kv0 if slot < 2 else A.kv1
    return base, (slot % 2)*32768 + T*4096
def rdK(k, t, q):
    b, o = kv_addr(t); return k.ds(f'ds_read_b128 {vr(A.KF+4*q,4)}, v{b} offset:{o+q*1024}')
def rdV(k, t):
    b, o = kv_addr(t)
    k.ds(f'ds_read_b128 {vr(A.V0+4*(t%2),4)}, v{b} offset:{o+2048}')
    return k.ds(f'ds_read_b128 {vr(A.V1+4*(t%3),4)}, v{b} offset:{o+3072}')

def both_ways(k, txts):
    for t in txts: a = k.vmop(t + ' sc1')
    return a
def maxchain(dst, src, n):
    out = [f'v_max3_u32 v{dst}, v{src}, v{src+1}, v{src+2}']; q = 3
    while q < n:
        out.append(f'v_max3_u32 v{dst}, v{dst}, v{src+q}, v{src+q+1}' if q+1 < n else f'v_max_u32 v{dst}, v{dst}, v{src+q}'); q += 2
    return out
def sent_check(k, dst, src, n, loads, redo=''):
    L1, L2 = lbl('sp'), lbl('spd')
    k.e(f'v_cmp_eq_u32 vcc, -1, v{dst}\ns_cbranch_vccnz {L1}\n{L2}:')
    k.cold.e(f'{L1}:\ns_mov_b32 s{S.spin}, {SPIN}\n{L1}_a:\ns_sleep 4')
    for l in loads: k.cold.e(l)
    k.cold.e('s_waitcnt vmcnt(0)')
    for l in maxchain(dst, src, n): k.cold.e(l)
    k.cold.e(f'v_cmp_eq_u32 vcc, -1, v{dst}\ns_cbranch_vccz {L1}_b\ns_sub_u32 s{S.spin}, s{S.spin}, 1\ns_cbranch_scc0 {L1}_a\n{L1}_b:')
    if redo: k.cold.e(redo)
    k.cold.e(f's_branch {L2}')

def wo_jobs(k, br, sidx, rowmul, row0, ldsmul, ldsbase, n, out, key):
    J = []
    for q in range(n):
        def j(q=q):
            if q == 0: k.e(f's_mul_i32 s{S.t8}, s{sidx}, {ldsmul}\ns_mul_i32 s{S.t7}, s{sidx}, {rowmul}')
            k.e(f's_add_u32 m0, s{S.t8}, {ldsbase + q*1024}\ns_add_u32 s{S.t9}, s{S.t7}, {row0 + q*7168}')
            out[key] = k.vmop(f'buffer_load_dwordx4 v{A.wsrc}, {srd(S.M1 if br == 0 else S.M2)}, s{S.t9} offen lds')
        J.append(Job(j, 3))
    return J

def o_loads(dst, addr):
    return [f'buffer_load_dwordx4 {vr(dst+4*q,4)}, v{addr}, {srd(S.WS)}, {"0" if q < 4 else "s%d" % S.r0} offen offset:{(q%4)*1024} sc1' for q in range(8)]

def side_jobs(k, grp, opts, pend):
    T = V.tmp; J = {}; st = {}
    def at(t, f): J.setdefault(t, []).append(f)
    def oclear0():
        for q in range(4): k.e(f'v_mov_b32 v{16+q}, -1')
        k.e(f's_sub_u32 s{S.t2}, s{S.hQ}, s{S.h}\ns_lshl_b32 s{S.t2}, s{S.t2}, 11\ns_sub_u32 s{S.t2}, s{S.t2}, 32768\nv_add_u32 v{T}, s{S.t2}, v{V.ob}')
        k.vmop(f'buffer_store_dwordx4 {vr(16,4)}, v{T}, {srd(S.WS)}, 0 offen sc1')
    def oclear1():
        pend['barwait'] = {opts['ybar']: k.vmop(f'buffer_store_dwordx4 {vr(16,4)}, v{V.ob}, {srd(S.WS)}, 0 offen sc1')}
    at(opts['oclr_at'][grp], oclear0); at(opts['oclr_at'][2+grp], oclear1)
    yt = opts['ybar']*4 - 2
    def xcheck(): flag_check(k, pend['fx'], A.f0, A.f1, keep=True)
    def ypub():
        k.e(f'''s_lshl_b32 s{S.t2}, s{S.tb}, 10
s_add_u32 s{S.t2}, s{S.t2}, {WS_FLAGY}
v_and_b32 v{A.f1}, 15, v{V.lane}
v_lshl_add_u32 v{A.f1}, v{A.f1}, 6, s{S.t2}
s_lshl_b32 s{S.t3}, s{S.h}, 6
s_add_u32 s{S.t2}, s{S.t2}, s{S.t3}''')
        flag_store(k, S.t2, S.tag)
    def yld(): st['fy'] = k.vmop(f'buffer_load_dword v{A.f0}, v{A.f1}, {srd(S.WS)}, 0 offen sc1', opt=True)
    def ycheck(): flag_check(k, st['fy'], A.f0, A.f1, keep=True)
    if grp == 1: at(0, pend['fxld']); at(opts['red_at'][0], only(k, 4, xcheck))
    else:
        yc = opts['ychk_at']
        at(yt, only(k, 0, ypub)); at(yc - 4, only(k, 0, yld)); at(yc, only(k, 0, ycheck))
        assert yc % 4 == 1 and opts['oa_at'] > yc
    if grp == 1:
        R = A.RED
        rl = [f's_mov_b32 s{S.t3}, {q*16384}\nbuffer_load_dwordx4 {vr(R+4*q,4)}, v{A.a0}, {srd(S.WS)}, s{S.t3} offen sc1' for q in range(8)]
        def r2():
            k.e(f'''s_lshl_b32 s{S.t2}, s{S.hA}, 17
s_lshl_b32 s{S.t3}, s{S.tb}, 9
s_add_u32 s{S.t2}, s{S.t2}, s{S.t3}
s_add_u32 s{S.t2}, s{S.t2}, {WS_KVP}
v_lshl_add_u32 v{A.a0}, v{V.i32}, 4, s{S.t2}
v_lshl_add_u32 v{A.a0}, v{V.hh}, 13, v{A.a0}''')
            for l in rl: st['red'] = k.vmop(l, opt=True)
        def r3():
            k.vmwait(st['red'], keep=True)
            for l in maxchain(T, R, 32): k.e(l)
            sent_check(k, T, R, 32, rl)
            for (d, a) in [(0,4),(8,12),(16,20),(24,28),(0,8),(16,24),(0,16)]:
                k.e(f'v_pk_add_f32 {vr(R+d,2)}, {vr(R+d,2)}, {vr(R+a,2)}\nv_pk_add_f32 {vr(R+d+2,2)}, {vr(R+d+2,2)}, {vr(R+a+2,2)}')
            k.e(f'''s_lshl_b32 s{S.t2}, s{S.hA}, 12
s_lshl_b32 s{S.t3}, s{S.tb}, 8
s_add_u32 s{S.t2}, s{S.t2}, s{S.t3}
s_add_u32 s{S.t2}, s{S.t2}, {WS_KVF}
v_permlane32_swap_b32 v{R}, v{R+2}
v_permlane32_swap_b32 v{R+1}, v{R+3}
v_lshl_add_u32 v{A.a0}, v{V.i32}, 3, s{S.t2}
v_lshl_add_u32 v{A.a0}, v{V.hh}, 2, v{A.a0}
v_pk_add_f32 {vr(R,2)}, {vr(R,2)}, {vr(R+2,2)}
v_cvt_pk_bf16_f32 v{R}, v{R}, v{R+1}''')
            k.vmop(f'buffer_store_dword v{R}, v{A.a0}, {srd(S.WS)}, 0 offen sc1', opt=True)
        p = opts['red_at']
        at(p[0], only(k, 4, r2)); at(p[1], only(k, 4, r3))
        KF_, NUM = 80, 96
        kl = [f'buffer_load_dwordx4 {vr(KF_+4*q,4)}, v{A.a2}, {srd(S.WS)}, 0 offen offset:{q*1024} sc1' for q in range(4)]
        def a2():
            k.e(f's_lshl_b32 s{S.t2}, s{S.hQ}, 12\ns_add_u32 s{S.t2}, s{S.t2}, {WS_KVF}\nv_lshl_add_u32 v{A.a2}, v{V.lane}, 4, s{S.t2}')
            for l in kl: st['kvl'] = k.vmop(l)
        def a3():
            k.vmwait(st['kvl'])
            for l in maxchain(T, KF_, 16): k.e(l)
            sent_check(k, T, KF_, 16, kl)
            for q in range(4): k.e(mfma(NUM, KF_+4*q, A.PHQ+4*q, '0' if q == 0 else NUM))
        def a4():
            k.e(f'''v_mov_b32 v{T+1}, v{NUM+12}
v_mov_b32 v{T+3}, v{NUM+12}
s_sub_u32 s{S.t2}, s{S.hQ}, s{S.h}
s_lshl_b32 s{S.t2}, s{S.t2}, 11
v_permlane32_swap_b32 v{T+1}, v{T+3}
v_add_f32 v{T+3}, v{A.eps}, v{T+3}
v_rcp_f32 v{T+3}, v{T+3}
s_sub_u32 s{S.t2}, s{S.t2}, 33792
v_mul_f32 v{T+3}, v{V.g}, v{T+3}
v_add_u32 v{A.a2}, s{S.t2}, v{V.ob}''')
            for q in range(8): k.e(f'v_pk_mul_f32 {vr(NUM+2*q,2)}, {vr(NUM+2*q,2)}, {vr(T+3,2)} op_sel_hi:[1,0]')
            cvt16(k, KF_, NUM)
            k.e(f's_mov_b64 exec, s[{S.hi32}:{S.hi32+1}]\nv_mov_b32 v{KF_+6}, 0\nv_mov_b32 v{KF_+7}, 0\ns_mov_b64 exec, -1')
            both_ways(k, [f'buffer_store_dwordx4 {vr(KF_,4)}, v{A.a2}, {srd(S.WS)}, 0 offen',
                          f'buffer_store_dwordx4 {vr(KF_+4,4)}, v{A.a2}, {srd(S.WS)}, 0 offen offset:1024'])
        p = opts['afin_at']
        at(p[0], a2); at(p[1], a3); at(p[1]+1, a4)
    def wo_setup():
        k.e(f's_and_b32 s{S.t2}, s{S.h}, 7\ns_cmp_eq_u32 s{S.t2}, 7\ns_cselect_b32 s{S.t3}, 0, 401408')
        set_srd(k, S.M1, S.pWOA, f's{S.t3}'); set_srd(k, S.M2, S.pWOB, f's{S.t3}')
        k.e(f'''s_lshl_b32 s{S.t2}, s{S.t2}, 7
v_lshrrev_b32 v{T}, 3, v{V.lane}
v_and_b32 v{T+1}, 7, v{V.lane}
v_bfe_u32 v{T+2}, v{V.lane}, 4, 1
v_lshlrev_b32 v{T+2}, 2, v{T+2}
v_xor_b32 v{T+1}, v{T+1}, v{T+2}
v_mul_u32_u24 v{T}, 896, v{T}
v_lshl_add_u32 v{T}, v{T+1}, 4, v{T}
v_add_u32 v{A.wsrc}, s{S.t2}, v{T}''')
    at(opts['wo_at'] - 1, wo_setup)
    def oa():
        k.e(f'''s_lshr_b32 s{S.t2}, s{S.h}, 3
s_lshl_b32 s{S.t2}, s{S.t2}, 1
s_and_b32 s{S.t3}, s{S.w}, 1
s_add_u32 s{S.t2}, s{S.t2}, s{S.t3}
s_lshl_b32 s{S.t3}, s{S.tb}, 2
s_add_u32 s{S.col}, s{S.t2}, s{S.t3}
s_lshr_b32 s{S.cw}, s{S.w}, 1
s_mov_b32 s{S.r0}, 4096
s_lshl_b32 s{S.t2}, s{S.col}, 16
s_lshl_b32 s{S.t3}, s{S.cw}, 13
s_add_u32 s{S.t2}, s{S.t2}, s{S.t3}
s_add_u32 s{S.t2}, s{S.t2}, {WS_OX}
s_and_b32 s{S.t3}, s{S.h}, 7
s_cmp_eq_u32 s{S.t3}, 7
s_cselect_b32 s{S.t2}, {OOB}, s{S.t2}
v_lshl_add_u32 v{A.a0}, v{V.lane}, 4, s{S.t2}''')
        for q, l in enumerate(o_loads(A.OF, A.a0)): st[f'oa{q}'] = k.vmop(l)
    at(opts['oa_at'], oa)
    return J, st

def wo_bases(k, b0, base_s):
    T = V.tmp
    k.e(f'''
v_and_b32 v{T}, 1, v{V.lane}
v_bfe_u32 v{T+1}, v{V.lane}, 1, 1
v_lshl_or_b32 v{T}, v{T}, 1, v{T+1}
v_bfe_u32 v{T+1}, v{V.lane}, 4, 1
v_lshl_or_b32 v{T}, v{T+1}, 2, v{T}
v_bfe_u32 v{T+1}, v{V.lane}, 3, 1
v_lshl_or_b32 v{T}, v{T+1}, 3, v{T}
v_bfe_u32 v{T+1}, v{V.lane}, 2, 2
v_lshlrev_b32 v{T}, 3, v{T}
v_lshl_add_u32 v{T}, v{T+1}, 7, v{T}
v_add_u32 v{b0+2}, s{base_s}, v{T}
v_xor_b32 v{b0+3}, 64, v{b0+2}
v_lshl_add_u32 v{b0}, v{V.hh}, 9, v{b0+2}
v_xor_b32 v{b0+1}, 64, v{b0}
''')
def wo_reads(k, dst, b0, lo, hi):
    a = None
    for n in range(lo, hi):
        hd, t, oc = n // 4, (n // 2) % 2, n % 2
        k.ds(f'ds_read_b64_tr_b16 {vr(dst+4*n,2)}, v{b0+oc} offset:{hd*3584+t*2048}')
        a = k.ds(f'ds_read_b64_tr_b16 {vr(dst+4*n+2,2)}, v{b0+oc+(2 if t else 0)} offset:{hd*3584+t*2048+1024}')
    return a

def attention(k, grp, st, opts, pend):
    T = V.tmp
    wo = {'A': None, 'B': None}
    rdK(k, 0, 0); k0 = rdK(k, 0, 1)
    kvi = kv_partial(k)
    k.dswait(k0)
    k.e(mfma(A.SA, A.KF, A.Q, '0')); rdK(k, 1, 0)
    k.e(mfma(A.SA, A.KF+4, A.Q+4, A.SA)); kk = rdK(k, 1, 1)
    rdV(k, 0); rdV(k, 1)
    kv_partial2(k, kvi)
    k.e(f'v_max3_f32 v{A.m}, v{A.SA}, v{A.SA+1}, v{A.SA+2}')
    for q in range(3, 15, 2): k.e(f'v_max3_f32 v{A.m}, v{A.m}, v{A.SA+q}, v{A.SA+q+1}')
    k.e(f'v_max_f32 v{A.m}, v{A.m}, v{A.SA+15}\nv_mov_b32 v{T}, v{A.m}')
    kvst = kv_partial3(k)
    k.e(f'''s_nop 0
v_permlane32_swap_b32 v{A.m}, v{T}
v_max_f32 v{A.m}, v{A.m}, v{T}
v_sub_f32 v{A.NM}, 0, v{A.m}''')
    for q in range(1, 16): k.e(f'v_mov_b32 v{A.NM+q}, v{A.NM}')
    for q in range(8): k.e(f'v_pk_add_f32 {vr(A.SA+2*q,2)}, {vr(A.SA+2*q,2)}, {vr(A.NM,2)}')
    J, js = side_jobs(k, grp, opts, pend)
    dq = []; wq = []
    for s_ in range(opts['npre'], 3): dq += kv_dma_jobs(k, s_, st)
    def pump(n):
        for _ in range(n):
            if dq or wq:
                j = (dq or wq).pop(0)
                if not opts['nodma']: j.f()
    for t in range(32):
        cur, oth = (A.SA, A.SB) if t % 2 == 0 else (A.SB, A.SA)
        ex = lambda a, b: [k.e(f'v_exp_f32 v{cur+q}, v{cur+q}') for q in range(a, b)]
        k.c(f'---- tile {t}')
        ex(0, 2)
        if t >= 1: k.e(smfma(A.O, A.V1+4*((t-1) % 3), oth+8, A.idx))
        ex(2, 5)
        if t % 4 == 2:
            b = t//4 + 1
            stamp(k, f'preB{b}')
            k.vmwait(pend.get('barwait', {}).get(b))
            k.vmwait(st.get(b) if b <= 7 else wo['A'], 'lgkmcnt(0)'); k.dsall(False)
            stamp(k, f'B{b}wait')
            k.e('s_barrier')
            if b + 2 <= 7: dq += kv_dma_jobs(k, b + 2, st)
            if b == 6 + grp: wq += wo_jobs(k, 1, S.tt, 50176, grp*224*896, 7168, 65536*(1-grp), 7, wo, 'B')
            if b == 8:
                k.e(f's_mul_i32 s{S.t2}, s{S.cw}, 14336\ns_add_u32 s{S.t2}, s{S.t2}, {L_WOA}')
                wo_bases(k, A.t+1, S.t2)
        elif t + 1 <= 31:
            k.dswait(kk)
        if opts['prio']: k.e(f's_setprio {3 - (t + 2) % 4}')
        if t == opts['wo_at']: wq += wo_jobs(k, 0, S.w, 50176, 0, 7168, L_WOA, 7, wo, 'A')
        if t + 1 <= 31:
            k.e(mfma(oth, A.KF, A.Q, A.NM))
            if t + 2 <= 31: rdK(k, t+2, 0)
        pump(1 if len(dq) + len(wq) > opts['pump_hi'] else 0)
        if t >= 30: wo_reads(k, A.WOA, A.t+1, (t-30)*8, (t-30)*8+4)
        ex(5, 8)
        if t + 1 <= 31:
            k.e(mfma(oth, A.KF+4, A.Q+4, oth))
            if t + 2 <= 31: kk = rdK(k, t+2, 1)
        ex(8, 13)
        k.e(smfma(A.O, A.V0+4*(t % 2), cur, A.idx))
        if t + 2 <= 31: rdV(k, t+2)
        pump(1)
        if t >= 30: wa = wo_reads(k, A.WOA, A.t+1, (t-30)*8+4, (t-30)*8+8)
        ex(13, 16)
        for f in J.get(t, []):
            stamp(k, f'j{t}{grp}pre')
            f()
            stamp(k, f'j{t}{grp}post')
    assert not dq and not wq
    k.e('s_nop 1')
    k.e(smfma(A.O, A.V1+4*(31 % 3), A.SB+8, A.idx))
    if opts['prio']: k.e('s_setprio 0')
    return js, wo, wa

def fallback(k, grp):
    T = V.tmp; L = lbl('fbl')
    k.e(f'''
s_lshl_b32 s{S.t2}, s{S.tt}, 12
v_subrev_u32 v{A.ks}, s{S.t2}, v{A.ks}
v_mov_b32 v{A.m}, 0xff7fffff
s_mov_b32 s{S.sK}, 0
''')
    for q in range(16): k.e(f'v_mov_b32 v{A.O+q}, 0')
    k.e(f'''{L}:
buffer_load_dwordx4 {vr(A.KF,4)}, v{A.ks}, {srd(S.WS)}, s{S.sK} offen sc1
buffer_load_dwordx4 {vr(A.KF+4,4)}, v{A.ks}, {srd(S.WS)}, s{S.sK} offen offset:1024 sc1
buffer_load_dwordx4 {vr(A.V0,4)}, v{A.ks}, {srd(S.WS)}, s{S.sK} offen offset:2048 sc1
buffer_load_dwordx4 {vr(A.V0+4,4)}, v{A.ks}, {srd(S.WS)}, s{S.sK} offen offset:3072 sc1
s_waitcnt vmcnt(0)''')
    k.e(mfma(A.SA, A.KF, A.Q, '0')); k.e(mfma(A.SA, A.KF+4, A.Q+4, A.SA))
    k.e(f'v_max3_f32 v{T}, v{A.m}, v{A.SA}, v{A.SA+1}')
    for q in range(2, 16, 2): k.e(f'v_max3_f32 v{T}, v{T}, v{A.SA+q}, v{A.SA+q+1}')
    k.e(f'''v_mov_b32 v{T+1}, v{T}
s_nop 1
v_permlane32_swap_b32 v{T}, v{T+1}
v_max_f32 v{T}, v{T}, v{T+1}
v_sub_f32 v{T+1}, v{A.m}, v{T}
v_exp_f32 v{T+1}, v{T+1}
v_mov_b32 v{A.m}, v{T}''')
    for q in range(16): k.e(f'v_sub_f32 v{A.SA+q}, v{A.SA+q}, v{T}\nv_mul_f32 v{A.O+q}, v{A.O+q}, v{T+1}')
    for q in range(16): k.e(f'v_exp_f32 v{A.SA+q}, v{A.SA+q}')
    k.e('s_nop 1')
    k.e(smfma(A.O, A.V0, A.SA, A.idx)); k.e(smfma(A.O, A.V0+4, A.SA+8, A.idx))
    k.e(f'''s_add_u32 s{S.sK}, s{S.sK}, 4096
s_cmp_lt_u32 s{S.sK}, 131072
s_cbranch_scc1 {L}
v_mov_b32 v{A.l}, v{A.O+12}
v_mov_b32 v{T}, v{A.O+12}
s_nop 1
v_permlane32_swap_b32 v{T}, v{A.l}''')

def tail(k, grp, js, wo, wa, opts, fb):
    T = V.tmp
    k.c('---- end of attention: exchange with the partner wave, safety check of the stand-in maximum')
    stamp(k, 'attnend')
    Lfb, Lback = lbl('fb'), lbl('fbback')
    own, oth = (A.O, A.O+8) if grp == 0 else (A.O+8, A.O)
    CXa, CXb, CXl = A.a1, A.f0, A.f1
    k.e(f'''
s_lshl_b32 s{S.t2}, s{S.w}, 12
s_add_u32 s{S.t2}, s{S.t2}, {L_CX}
v_lshl_add_u32 v{CXa}, v{V.lane}, 4, s{S.t2}
v_xor_b32 v{CXb}, 16384, v{CXa}
v_lshl_add_u32 v{CXl}, v{V.lane}, 3, s{S.t2}
v_sub_f32 v{A.kv0}, 1.0, v{V.g}
s_mov_b32 s{S.t3}, {fbits(2.0**60)}
v_mov_b32 v{A.t}, v{A.m}''')
    xw = [f'ds_write_b128 v{CXa}, {vr(oth,4)}', f'ds_write_b128 v{CXa}, {vr(oth+4,4)} offset:1024']
    k.e(f'v_mov_b32 v{A.l}, v{A.O+12}\nv_mov_b32 v{T}, v{A.O+12}')
    for l in xw: k.ds(l)
    k.e(f'''v_permlane32_swap_b32 v{T}, v{A.l}
v_mul_f32 v{T+1}, 0, v{A.O}
v_mul_f32 v{T+2}, 0, v{A.O+1}''')
    k.ds(f'ds_write_b64 v{CXl}, {vr(A.l,2)} offset:2048')
    for q in range(1, 8): k.e(f'v_pk_fma_f32 {vr(T+1,2)}, {vr(A.O+2*q,2)}, 0, {vr(T+1,2)} op_sel_hi:[1,0,1]')
    k.e(f'''v_add_f32 v{T+1}, v{T+1}, v{T+2}
v_add_f32 v{T+1}, v{T+1}, v{A.l}
v_cmp_nge_f32 vcc, s{S.t3}, v{T+1}
s_cbranch_vccnz {Lfb}
{Lback}:''')
    fb.e(f'{Lfb}:'); fallback(fb, grp)
    fb.e(f'v_mov_b32 v{A.t}, v{A.m}')
    for l in xw: fb.e(l)
    fb.e(f'ds_write_b64 v{CXl}, {vr(A.l,2)} offset:2048\ns_branch {Lback}')
    k.vmwait(wo['B'], 'lgkmcnt(0)'); k.dsall(False)
    k.e(f's_barrier\nv_xor_b32 v{CXl}, 16384, v{CXl}')
    k.ds(f'ds_read_b64 {vr(T+1,2)}, v{CXl} offset:2048')
    k.ds(f'ds_read_b128 {vr(A.SA,4)}, v{CXb}')
    a = k.ds(f'ds_read_b128 {vr(A.SA+4,4)}, v{CXb} offset:1024')
    k.e(f'''s_and_b32 s{S.t2}, s{S.cw}, 1
s_mul_i32 s{S.t2}, s{S.t2}, 14336
s_cmp_lt_u32 s{S.cw}, 2
s_cselect_b32 s{S.t3}, 65536, 0
s_add_u32 s{S.t2}, s{S.t2}, s{S.t3}
s_waitcnt lgkmcnt(2)
v_max_f32 v{T}, v{A.m}, v{T+2}
v_sub_f32 v{T+3}, v{A.m}, v{T}
v_sub_f32 v{T+5}, v{T+2}, v{T}
v_exp_f32 v{T+3}, v{T+3}
v_exp_f32 v{T+5}, v{T+5}
v_mul_f32 v{A.l}, v{A.l}, v{T+3}
v_fmac_f32 v{A.l}, v{T+1}, v{T+5}
v_rcp_f32 v{A.l}, v{A.l}
v_mul_f32 v{T+3}, v{T+3}, v{A.kv0}
v_mul_f32 v{T+5}, v{T+5}, v{A.kv0}
v_mul_f32 v{T+3}, v{T+3}, v{A.l}
v_mul_f32 v{T+5}, v{T+5}, v{A.l}''')
    for q in range(4): k.e(f'v_pk_mul_f32 {vr(own+2*q,2)}, {vr(own+2*q,2)}, {vr(T+3,2)} op_sel_hi:[1,0]')
    k.dswait(a)
    for q in range(4): k.e(f'v_pk_fma_f32 {vr(own+2*q,2)}, {vr(A.SA+2*q,2)}, {vr(T+5,2)}, {vr(own+2*q,2)} op_sel_hi:[1,0,1]')
    OB = 112
    for q in range(4): k.e(f'v_cvt_pk_bf16_f32 v{OB+q}, v{own+2*q}, v{own+2*q+1}')
    if grp == 1:
        k.e(f's_mov_b64 exec, s[{S.hi32}:{S.hi32+1}]\nv_mov_b32 v{OB+2}, 0\nv_mov_b32 v{OB+3}, 0\ns_mov_b64 exec, -1')
    ob = both_ways(k, [f'buffer_store_dwordx4 {vr(OB,4)}, v{V.ob}, {srd(S.WS)}, 0 offen'])
    stamp(k, 'obstored')
    Lidle = lbl('idle')
    k.e(f's_and_b32 s{S.t3}, s{S.h}, 7\ns_cmp_eq_u32 s{S.t3}, 7\ns_cbranch_scc1 {Lidle}')
    ACC = AC2 = A.ACC
    wo_bases(k, A.O, S.t2)
    k.vmwait(js['oa7'])
    amf = [mfma(ACC+16*oc, A.WOA+4*(2*n+oc), A.OF+4*n, '0' if n == 0 else ACC+16*oc) for n in range(8) for oc in range(2)]
    mx = maxchain(T, A.OF, 32)
    for n, m in enumerate(amf):
        k.e(m); k.e(mx[n])
        if n < 16: wo_reads(k, A.WOB, A.O, n, n+1)
    sent_check(k, T, A.OF, 32, o_loads(A.OF, A.a0), redo='\n'.join(amf))
    set_srd(k, S.M1, S.pOUT, 1835008)
    k.e(f'''v_add_u32 v{A.a0}, 32768, v{A.a0}''')
    stamp(k, 'Ahalf')
    k.vmwait(ob)
    stamp(k, 'f3seen')
    ol = o_loads(A.OF, A.a0); ids = [k.vmop(l) for l in ol]
    k.e(f'''s_lshl_b32 s{S.t2}, s{S.col}, 5
v_add_u32 v{T}, s{S.t2}, v{V.i32}
v_mul_u32_u24 v{T}, 896, v{T}
v_lshl_add_u32 v{T}, v{V.hh}, 4, v{T}
s_and_b32 s{S.t2}, s{S.h}, 7
s_lshl_b32 s{S.t2}, s{S.t2}, 7
s_lshl_b32 s{S.t3}, s{S.cw}, 5
s_add_u32 s{S.t2}, s{S.t2}, s{S.t3}
v_add_u32 v{A.a2}, s{S.t2}, v{T}
s_and_b32 s{S.t2}, s{S.w}, 1
s_lshl_b32 s{S.t2}, s{S.t2}, 15
s_lshl_b32 s{S.t3}, s{S.cw}, 11
s_add_u32 s{S.t3}, s{S.t3}, s{S.t2}
v_lshl_add_u32 v{A.ks}, v{V.lane}, 4, s{S.t3}
s_lshl_b32 s{S.t3}, s{S.cw}, 13
s_add_u32 s{S.t3}, s{S.t3}, s{S.t2}
v_lshl_add_u32 v{A.vs}, v{V.lane}, 4, s{S.t3}
s_mov_b32 s{S.spin}, {SPIN}''')
    k.dsall()
    k.e('s_barrier')
    for n in range(8):
        L1, L2 = lbl('ob'), lbl('obd'); F = A.OF + 4*n
        chk = f'v_max3_u32 v{T}, v{F}, v{F+1}, v{F+2}\nv_max_u32 v{T}, v{T}, v{F+3}\nv_cmp_eq_u32 vcc, -1, v{T}'
        k.vmwait(ids[n])
        k.e(f'{chk}\ns_cbranch_vccnz {L1}\n{L2}:')
        for oc in range(2): k.e(mfma(ACC+16*oc, A.WOB+4*(2*n+oc), F, ACC+16*oc))
        c = k.cold
        c.e(f'{L1}:\ns_sleep 2')
        for l in ol[n:]: c.e(l)
        c.e(f's_waitcnt vmcnt({7-n})\n{chk}\ns_sub_u32 s{S.spin}, s{S.spin}, 1\ns_cbranch_scc1 {L2}\ns_cbranch_vccnz {L1}\ns_branch {L2}')
    stamp(k, 'Bhalf')
    Ls = [lbl('kq') for _ in range(2)]; Lj = lbl('kqj')
    k.e(f's_bitcmp1_b32 s{S.cw}, 0\ns_cbranch_scc1 {Ls[1]}')
    for par in range(2):
        kq = 2*grp + par
        if par: k.e(f'{Ls[1]}:')
        for p in range(4):
            if p == kq: continue
            k.e(f'ds_write_b128 v{A.ks}, {vr(AC2+8*p,4)} offset:{p*8192}\nds_write_b128 v{A.ks}, {vr(AC2+8*p+4,4)} offset:{p*8192+1024}')
        k.e('s_waitcnt lgkmcnt(0)\ns_barrier')
        srcs = [p for p in range(4) if p != kq]
        for n, p in enumerate(srcs):
            k.e(f'ds_read_b128 {vr(A.OF+8*n,4)}, v{A.vs} offset:{p*2048}\nds_read_b128 {vr(A.OF+8*n+4,4)}, v{A.vs} offset:{p*2048+1024}')
        for n in range(3):
            k.e(f's_waitcnt lgkmcnt({4-2*n})')
            for q in range(4): k.e(f'v_pk_add_f32 {vr(AC2+8*kq+2*q,2)}, {vr(AC2+8*kq+2*q,2)}, {vr(A.OF+8*n+2*q,2)}')
        for q in range(4): k.e(f'v_cvt_pk_bf16_f32 v{A.OF+q}, v{AC2+8*kq+2*q}, v{AC2+8*kq+2*q+1}')
        if par == 0: k.e(f's_branch {Lj}')
    k.e(f'{Lj}:\nbuffer_store_dwordx4 {vr(A.OF,4)}, v{A.a2}, {srd(S.M1)}, 0 offen')
    if grp == 0:
        L = lbl('ep')
        k.e(f'''s_or_b32 s{S.t2}, s{S.h}, s{S.tb}
s_or_b32 s{S.t2}, s{S.t2}, s{S.w}
s_cmp_lg_u32 s{S.t2}, 0
s_cbranch_scc1 {L}''')
        flag_store(k, S.t2, S.tag, sc='')
        k.e(f'{L}:')
    k.e(f'{Lidle}:')
    stamp(k, 'end'); stamp_dump(k)
    k.e('s_endpgm')

DEFAULTS = dict(NH=4, kvsc='sc1', dbg=(), nodma=False, round_p=True, prio=True, npre=2, clr_at=(15, 16), f1_step=12, fx_step=20, f1_check=17, oclr_at=(2, 3, 4, 5), pre_rate=4,
                wsched={0: [4], 1: [5], 2: [6, 7], 3: [8], 4: [9], 5: [10, 14], 6: [11], 7: [12], 8: [13], 11: [15], 12: [16, 17], 13: [18, 19], 14: [20]},
                pump_hi=3, stagger=False, prio1=False, align=True, feat_last=19, ybar=3, ychk_at=21, wo_at=11, red_at=(4, 7), afin_at=(13, 16), oa_at=27, prof=False)

def build(**kw):
    opts = dict(DEFAULTS); opts.update(kw)
    _lbl[0] = 0; PROF[0] = opts['prof']; STAMPS.clear(); DBG.clear(); DBG.update(opts['dbg']); KVSC[0] = opts['kvsc']
    k = Stream(); k.cold = Stream()
    prologue(k, opts['NH'])
    ids = {}
    head = k
    streams = []; checks = []
    for grp in range(2):
        fb = Stream(); idg = dict(ids); st_id = None
        if grp == 0:
            g = head.fork()
            dma_x(g, 0, True); idg[0] = dma_w(g, 0, True)
            rot_offsets(g)
            dma_x(g, 1, True); idg[1] = dma_w(g, 1, True)
            setup2(g)
            dma_x(g, 2, True); idg[2] = dma_w(g, 2, True)
            slice_setup(g); idg[3] = dma_w(g, 3, True); stage0(g, 0, idg, True, opts); pre = g.text()
        else:
            h1 = head.fork(); setup2(h1)
            kk, kv = head.fork(), head.fork()
            for z, kt in ((kv, False), (kk, True)):
                z.e(tr_base0(kt)); stage0(z, 1, dict(ids), kt, opts); st_id = stage0_epilogue(z, kt)
            assert [x[1] for x in kk.vm if not x[1]] == [x[1] for x in kv.vm if not x[1]]
            pre = h1.text() + f'  s_cmp_ge_u32 s{S.j}, 7\n  s_cbranch_scc1 L_vtile\n' + kk.text() + '  s_branch L_mid\nL_vtile:\n' + kv.text() + 'L_mid:\n'
            g = kk
        g = g.fork(); g.cold = Stream(); g.pre = pre
        pend = stages12(g, idg, grp, st_id, opts)
        st = attn_prologue(g, grp, pend, opts)
        js, wo, wa = attention(g, grp, st, opts, pend)
        tail(g, grp, js, wo, wa, opts, fb)
        fb2 = Stream(); fb2.L = fb.L + g.cold.L
        streams.append((g, fb2))
    body = head.text()
    body += f'  s_cmp_lg_u32 s{S.grp}, 0\n  s_cbranch_scc1 L_grp1\n' + streams[0][0].pre + streams[0][0].text() + streams[0][1].text()
    body += 'L_grp1:\n' + streams[1][0].pre + streams[1][0].text() + streams[1][1].text()
    body += 'L_end:\n  s_endpgm\n'
    bl, checks = fix_hazards(body.rstrip('\n').split('\n'));
    if opts['align']: bl, st_ = align_runs(bl); checks.append(f'align: widened {st_[0]}, nops {st_[1]}, left {st_[2]}')
    body = '\n'.join(bl) + '\n'
    ref = open('gated_mix__linear_kernel_hedgehog__softmax_full_mha__prompt.s.ref').read()
    hdr = ref[:ref.index('; @launch')]
    txt = hdr + f'''; @launch grid=(256,1,1) block=(512,1,1) lds=163840
.amdgcn_target "amdgcn-amd-amdhsa--gfx950"
.text
.globl {NAME}
.p2align 8
.type {NAME},@function
{NAME}:
{body}.section .rodata,"a"
.p2align 6
.amdhsa_kernel {NAME}
  .amdhsa_next_free_vgpr 256
  .amdhsa_next_free_sgpr 102
  .amdhsa_accum_offset 256
  .amdhsa_group_segment_fixed_size 0
  .amdhsa_kernarg_size 88
  .amdhsa_user_sgpr_count 2
  .amdhsa_user_sgpr_kernarg_segment_ptr 1
  .amdhsa_system_sgpr_workgroup_id_x 1
.end_amdhsa_kernel
'''
    return txt, checks

if __name__ == '__main__':
    out = sys.argv[1] if len(sys.argv) > 1 else 'gated_mix__linear_kernel_hedgehog__softmax_full_mha__prompt.s'
    kw = {}
    for a in sys.argv[2:]:
        n, v = a.split('='); kw[n] = eval(v)
    txt, msgs = build(**kw)
    for m in msgs: print('  auto', m)
    open(out, 'w').write(txt)
    print('wrote', out, len(txt), 'bytes')
    if STAMPS: open(out + '.stamps', 'w').write('\n'.join(STAMPS))
```

```python
import sys, struct
from asmlib import Stream, fix_hazards, align_runs

NAME = 'gated_mix__linear_kernel_hedgehog__softmax_full_mha__prompt_kernel'
def fbits(x): return '0x%08x' % struct.unpack('<I', struct.pack('<f', x))[0]
LOG2E = 1.4426950408889634
QSCALE = 28 ** -0.5 * LOG2E

WS_FLAG1, WS_FLAGY, WS_FLAG2 = 0x40000, 0xc000, 0x20000
WS_KV, WS_KVP, WS_KVF, WS_OX, WS_DBG = 0x100000, 0x500000, 0x700000, 0x800000, 0x1000000
WS_SIZE = 0x2000000
OOB = 0x40000000
L_WR = 65536
WADDR = [(4+c)*8192 for c in range(7)] + [c*4096 for c in range(7)] + [(7+c)*4096 for c in range(7)] + [c*8192 for c in (7, 8, 9, 10, 0, 1, 2)]
L_PHI, L_QX, L_STG = L_WR + 4*8192, L_WR + 6*8192, L_WR + 7*8192
L_WPHI, L_G, L_SEL = 155648, 159744, 161792
HQ = [4, 6, 2, 3, 0, 5, 1, 7, 8, 14, 10, 15, 12, 13, 9, 11]
L_WOA, L_CX = 98304, 32768
SPINV = [0x8000]

class S:
    X, W, WS, M1, M2, W2 = 4, 8, 12, 16, 20, 68
    pX, pWA, pPHI, pWOA, pWB, pWOB, pGW, pOUT, pWS = 24, 26, 28, 30, 32, 34, 36, 38, 40
    h, tb, w, tt, grp, hA, j, tag, r0, hQ, cw, col = 44, 45, 46, 47, 48, 49, 50, 51, 52, 53, 54, 55
    mX, mW, t0, t1, t2, t3, t4, t5 = 56, 57, 58, 59, 60, 61, 62, 63
    vcm = 64
    rot, sK, mK, spin, rdy, rb = 72, 73, 74, 75, 76, 77
    lo28 = 76
    hi32 = 78
    t6, t7, t8, t9 = 80, 81, 82, 83
    ow, ox = 84, 91
def srd(b): return f's[{b}:{b+3}]'
def vr(b, n): return f'v[{b}:{b+n-1}]' if n > 1 else f'v{b}'

class V:
    lane, i32, hh = 1, 2, 3
    xa0, xa1, w0, ws = 4, 5, 6, 7
    xr = 8
    t0r, t1r, t2r = 12, 6, 14
    g = 15
    t3r = 11
    wsb, ws2, ws2b = 13, 244, 245
    acc0, acc1, P, EP, EM = 16, 32, 48, 64, 80
    wf = 96
    xf = 128
    gw0, gw1, ob = 4, 254, 246
    tmp = 247

def mfma(d, a, b, c): return f'v_mfma_f32_32x32x16_bf16 {vr(d,16)}, {vr(a,4)}, {vr(b,4)}, {c if isinstance(c,str) else vr(c,16)}'
def smfma(d, a, b, idx): return f'v_smfmac_f32_32x32x32_bf16 {vr(d,16)}, {vr(a,4)}, {vr(b,8)}, v{idx}'

PROF = [False, 0]
DBG = set()
KVSC = ['sc1']
PRIO_ST = [True]
STAMPS = []
def stamp(k, name):
    if not PROF[0]: return
    if PROF[0] != True and 'abs:' + name in PROF[0]:
        L = lbl('ab')
        k.e(f'''s_cmp_lg_u32 s{S.w}, 0
s_cbranch_scc1 {L}
s_memrealtime s[98:99]
s_load_dwordx2 s[84:85], s[0:1], 72
s_waitcnt lgkmcnt(0)
s_mov_b32 s86, 256
s_mov_b32 s87, 0x20000
s_not_b32 s99, s101
v_mov_b32 v0, 0
v_writelane_b32 v0, 64, 1
v_mov_b32 v{V.tmp+6}, {'s101' if 'start' in PROF[0] else 's98'}
v_writelane_b32 v{V.tmp+6}, s99, 1
s_mov_b64 exec, 3
buffer_atomic_umax v{V.tmp+6}, v0, s[84:87], 0 offen sc1
s_mov_b64 exec, -1
{L}:''')
        k.dq = []
        return
    if PROF[0] != True and name not in PROF[0]: return
    if name not in STAMPS: STAMPS.append(name)
    n = STAMPS.index(name)
    k.e(f's_memtime s[98:99]\ns_waitcnt lgkmcnt(0)\ns_sub_u32 s98, s98, s100\nv_writelane_b32 v0, s98, {n}')
    if PROF[0] != True and 'rt' in PROF[0]:
        k.e(f's_memrealtime s[98:99]\ns_waitcnt lgkmcnt(0)\ns_sub_u32 s98, s98, s101\nv_writelane_b32 v0, s98, {n+30}')
    k.dq = []
def stamp_dump(k):
    if not PROF[0]: return
    sp = [x for x in PROF[0] if x.startswith('spin')]
    if sp:
        L = lbl('spin'); mode = sp[0][4]
        k.e(f's_or_b32 s90, s2, s{S.w}\ns_cmp_lg_u32 s90, 0\ns_cbranch_scc1 {L}_e')
        if mode == 'A': k.e('s_add_u32 s91, s101, 6000')
        if mode == 'B': k.e('s_memrealtime s[98:99]\ns_waitcnt lgkmcnt(0)\ns_sub_u32 s91, s98, s101\ns_mul_i32 s91, s91, 4\ns_add_u32 s91, s91, s98')
        if mode == 'C': k.e('s_memtime s[98:99]\ns_waitcnt lgkmcnt(0)\ns_add_u32 s91, s98, 100000')
        if mode == 'E':
            k.e(f's_load_dwordx2 s[84:85], s[0:1], 72\ns_waitcnt vmcnt(0) lgkmcnt(0)\ns_mov_b32 s86, 256\ns_mov_b32 s87, 0x20000\nbuffer_load_dword v{V.tmp}, v0, s[84:87], 0 offen sc1\ns_memrealtime s[98:99]\ns_waitcnt vmcnt(0) lgkmcnt(0)\nv_readlane_b32 s90, v{V.tmp}, 0\nv_readlane_b32 s91, v{V.tmp}, 1\ns_nop 3\ns_not_b32 s91, s91\ns_sub_u32 s90, s90, s91\ns_lshl_b32 s90, s90, 2\ns_add_u32 s91, s90, s98')
        if mode == 'D':
            k.e('s_memrealtime s[98:99]\nv_readlane_b32 s90, v0, 0\ns_waitcnt lgkmcnt(0)\ns_mul_i32 s90, s90, 13107\ns_lshr_b32 s90, s90, 16\ns_add_u32 s91, s90, s98')
        k.e(f'{L}:\n{"s_memtime" if mode == "C" else "s_memrealtime"} s[98:99]\ns_waitcnt lgkmcnt(0)\ns_sub_u32 s90, s98, s91\ns_cmp_lt_i32 s90, 0\ns_cbranch_scc1 {L}\n{L}_e:')
        return
    if 'dbg' in PROF[0]:
        T = V.tmp
        k.e(f'''s_memrealtime s[98:99]
s_memtime s[96:97]
s_load_dwordx2 s[92:93], s[0:1], 72
s_getreg_b32 s90, hwreg(HW_REG_XCC_ID, 0, 4)
s_waitcnt lgkmcnt(0)
s_mov_b32 s94, 256
s_mov_b32 s95, 0x20000
s_sub_u32 s96, s96, s100
s_sub_u32 s91, s98, s101
s_not_b32 s89, s101
v_mov_b32 v{T}, 0
v_mov_b32 v{T+1}, s98
v_writelane_b32 v{T}, 4, 1
v_writelane_b32 v{T+1}, s89, 1
v_writelane_b32 v{T}, 8, 2
v_writelane_b32 v{T+1}, s101, 2
v_writelane_b32 v{T}, 12, 3
v_writelane_b32 v{T+1}, s96, 3
v_writelane_b32 v{T}, 16, 4
v_writelane_b32 v{T+1}, s91, 4
s_lshl_b32 s90, s90, 2
s_add_u32 s90, s90, 32
v_writelane_b32 v{T}, s90, 5
v_writelane_b32 v{T+1}, s89, 5
s_mov_b64 exec, 63
buffer_atomic_umax v{T+1}, v{T}, s[92:95], 0 offen''')
        return
    k.e(f'''s_memrealtime s[98:99]
s_waitcnt lgkmcnt(0)
v_writelane_b32 v0, s98, 63
v_writelane_b32 v0, s101, 62
s_lshl_b32 s98, s2, 3
s_add_u32 s98, s98, s{S.w}
s_lshl_b32 s98, s98, 8
s_add_u32 s98, s98, {WS_DBG}
v_lshl_add_u32 v{V.tmp}, v{V.lane}, 2, s98
buffer_store_dword v0, v{V.tmp}, {srd(S.WS)}, 0 offen''')

def set_srd(k, b, ptr, n):
    k.e(f's_mov_b32 s{b}, s{ptr}\ns_mov_b32 s{b+1}, s{ptr+1}\ns_mov_b32 s{b+2}, {n}\ns_mov_b32 s{b+3}, 0x20000')

def prologue(k, NH):
    T = V.tmp
    lg = {2: 1, 4: 2, 8: 3, 16: 4}[NH]; ng = 16 // NH
    k.e(f'''
s_cmp_ge_u32 s2, 256
s_cbranch_scc1 L_end
{'s_memtime s[100:101]' if PROF[0] else ''}
{'s_memrealtime s[98:99]' if PROF[0] else ''}
s_load_dwordx4 s[24:27], s[0:1], 0
s_load_dwordx4 s[32:35], s[0:1], 40
v_lshrrev_b32 v{T}, 6, v0
s_load_dwordx2 s[40:41], s[0:1], 80
v_readfirstlane_b32 s{S.w}, v{T}
s_load_dwordx4 s[28:31], s[0:1], 16
s_load_dwordx4 s[36:39], s[0:1], 56
v_and_b32 v{V.lane}, 63, v0
s_and_b32 s{S.t0}, s2, 7
s_lshr_b32 s{S.t1}, s2, 3
s_and_b32 s{S.h}, s{S.t0}, {ng-1}
s_and_b32 s{S.t2}, s{S.t1}, {NH-1}
s_lshl{lg}_add_u32 s{S.h}, s{S.h}, s{S.t2}
s_lshr_b32 s{S.tb}, s{S.t0}, {4-lg}
s_lshr_b32 s{S.t2}, s{S.t1}, {lg}
s_lshl{5-lg}_add_u32 s{S.tb}, s{S.tb}, s{S.t2}
s_and_b32 s{S.tt}, s{S.w}, 3
s_cmp_ge_u32 s{S.w}, 4
s_cbranch_scc1 L_grp1
''')
ROT0 = lambda: f'''; rotation r0 = (2 h + 3 tb) mod 7
s_mul_i32 s{S.t2}, s{S.tb}, 3
s_lshl1_add_u32 s{S.r0}, s{S.h}, s{S.t2}
s_mul_i32 s{S.t2}, s{S.r0}, 147
s_lshr_b32 s{S.t2}, s{S.t2}, 10
s_mul_i32 s{S.t2}, s{S.t2}, 7
s_sub_u32 s{S.r0}, s{S.r0}, s{S.t2}
s_lshl_b32 s{S.ox}, s{S.r0}, 7'''
TILE = lambda: f'''; tile j = h - (h>5) - (h>10); idle when h is 5 or 10
s_cmp_gt_u32 s{S.h}, 5
s_subb_u32 s{S.j}, s{S.h}, 0
s_cmp_gt_u32 s{S.h}, 10
s_subb_u32 s{S.j}, s{S.j}, 0'''
HEADS = lambda: f'''s_xor_b32 s{S.hA}, s{S.h}, 1
s_mov_b32 s{S.vcm}, {sum(HQ[i] << (4*i) for i in range(8))}
s_mov_b32 s{S.vcm+1}, {sum(HQ[8+i] << (4*i) for i in range(8))}
s_lshl_b32 s{S.t2}, s{S.h}, 2
s_lshr_b64 s[{S.vcm}:{S.vcm+1}], s[{S.vcm}:{S.vcm+1}], s{S.t2}
s_and_b32 s{S.hQ}, s{S.vcm}, 15'''
def prologue0(k, ids):
    T = V.tmp
    k.e(ROT0())
    k.e(f'''
s_lshl_b32 s{S.mX}, s{S.w}, 11
v_lshrrev_b32 v{T}, 3, v{V.lane}
v_and_b32 v{T+1}, 7, v{V.lane}
v_bfe_u32 v{T+2}, v{V.lane}, 4, 2
v_xor_b32 v{T+2}, v{T+1}, v{T+2}
v_mul_u32_u24 v{V.xa0}, 896, v{T}
v_lshl_add_u32 v{V.xa0}, v{T+2}, 4, v{V.xa0}
s_lshl3_add_u32 s{S.t2}, s{S.tb}, s{S.w}
s_mul_i32 s{S.t2}, s{S.t2}, 14336
v_add_u32 v{V.xa0}, s{S.t2}, v{V.xa0}
v_add_u32 v{V.xa1}, 7168, v{V.xa0}
v_xor_b32 v{V.xa1}, 64, v{V.xa1}
s_mov_b32 s{S.X+2}, 1835008
s_mov_b32 s{S.X+3}, 0x20000
s_waitcnt lgkmcnt(0)
{'s_mov_b32 s101, s98' if PROF[0] else ''}
s_mov_b32 s{S.X}, s{S.pX}
s_mov_b32 s{S.X+1}, s{S.pX+1}
''')
    dma_x(k, 0, True)
    k.e(TILE())
    k.e(f'''
s_mul_i32 s{S.ow}, s{S.ox}, 1344
s_lshl_b32 s{S.mW}, s{S.w}, 10
s_add_u32 s{S.mW}, s{S.mW}, {L_WR}
v_bfe_u32 v{T+2}, v{V.lane}, 4, 1
v_lshlrev_b32 v{T+2}, 2, v{T+2}
v_xor_b32 v{T+2}, v{T+1}, v{T+2}
v_mul_u32_u24 v{V.w0}, 2688, v{T}
v_lshl_add_u32 v{V.w0}, v{T+2}, 4, v{V.w0}
s_mul_i32 s{S.t2}, s{S.w}, 21504
s_lshl_b32 s{S.t3}, s{S.j}, 7
s_add_u32 s{S.t2}, s{S.t2}, s{S.t3}
s_add_u32 s{S.t2}, s{S.t2}, 896
v_add_u32 v{V.w0}, s{S.t2}, v{V.w0}
s_cmp_eq_u32 s{S.h}, 5
s_cselect_b32 s{S.t4}, 0, 1204224
s_cmp_eq_u32 s{S.h}, 10
s_cselect_b32 s{S.W+2}, 0, s{S.t4}
s_mov_b32 s{S.W+3}, 0x20000
s_mov_b32 s{S.W}, s{S.pWB}
s_mov_b32 s{S.W+1}, s{S.pWB+1}
''')
    ids[0] = dma_w(k, 0, True)
    k.e(f's_load_dword s{S.tag}, s[{S.pWS}:{S.pWS+1}], 0')
def prologue1(k, opts):
    if opts['codewarm']:
        k.e(f'''s_getpc_b64 s[{S.vcm}:{S.vcm+1}]
L_pc:
s_lshl2_add_u32 s{S.t2}, s{S.t1}, s{S.tt}
s_mul_i32 s{S.t2}, s{S.t2}, {opts['codewarm']*64}
s_min_u32 s{S.t2}, s{S.t2}, L_end-{NAME}-{opts['codewarm']*64}
s_sub_u32 s{S.vcm}, s{S.vcm}, L_pc-{NAME}
s_subb_u32 s{S.vcm+1}, s{S.vcm+1}, 0
s_add_u32 s{S.vcm}, s{S.vcm}, s{S.t2}
s_addc_u32 s{S.vcm+1}, s{S.vcm+1}, 0''')
        for q in range(opts['codewarm']): k.e(f's_load_dword s{S.spin}, s[{S.vcm}:{S.vcm+1}], {q*64}')
    k.e(ROT0()); k.e(TILE()); k.e(HEADS().replace(f's{S.vcm}', f's{S.t6}').replace(f's{S.vcm+1}', f's{S.t6+1}').replace(f's[{S.vcm}:{S.vcm+1}]', f's[{S.t6}:{S.t6+1}]'))
    rot_offsets(k); setup2(k, False)
def prologue1b(k):
    k.e(f'''s_waitcnt lgkmcnt(0)
{'s_mov_b32 s101, s98' if PROF[0] else ''}
s_load_dword s{S.tag}, s[{S.pWS}:{S.pWS+1}], 0''')
    set_srd(k, S.WS, S.pWS, WS_SIZE)

def rot_offsets(k):
    for q in range(1, 7):
        k.e(f's_add_u32 s{S.ox+q}, s{S.ox+q-1}, 128\ns_cmp_eq_u32 s{S.ox+q}, 896\ns_cselect_b32 s{S.ox+q}, 0, s{S.ox+q}\ns_mul_i32 s{S.ow+q}, s{S.ox+q}, 1344')
def dma_x(k, s, both=False):
    for p in range(2 if both else 1):
        so = S.ox + s
        for a, v in ((0, V.xa0), (1, V.xa1)):
            k.e(f's_add_u32 m0, s{S.mX}, {(s%4)*16384 + p*8192 + a*1024}')
            if p and not a: k.e(f's_add_u32 s{S.t0}, s{so}, 57344')
            else: k.e('s_nop 0')
            x = k.vmop(f'buffer_load_dwordx4 v{v}, {srd(S.X)}, s{S.t0 if p else so} offen lds')
    return x
def dma_w(k, s, both=False):
    st = s // 7; so = S.ow + s % 7
    for p in range(2 if st in (0, 3) else 1):
        k.e(f's_add_u32 m0, s{S.mW}, {WADDR[s] + p*4096}')
        if st == 0:
            k.e(f's_add_u32 s{S.t0}, s{so}, 86016' if p else 's_nop 0')
            x = k.vmop(f'buffer_load_dwordx4 v{V.w0}, {srd(S.W)}, s{S.t0 if p else so} offen lds')
        else:
            k.e('s_nop 0')
            x = k.vmop(f'buffer_load_dwordx4 v{[[V.ws], [V.ws2], [V.ws2b, V.wsb]][st-1][p]}, {srd(S.W2 if (st == 3 and p == 0) else S.M2)}, s{so} offen lds')
    return x
def slice_setup(k):
    T = V.tmp
    set_srd(k, S.M2, S.pWA, 1204224); set_srd(k, S.W2, S.pWB, 1204224)
    k.e(f'''s_mul_i32 s{S.t2}, s{S.tt}, 43008
v_lshrrev_b32 v{T}, 2, v{V.lane}
v_mul_u32_u24 v{T}, 2688, v{T}
v_and_b32 v{T+1}, 3, v{V.lane}
v_lshl_add_u32 v{T}, v{T+1}, 4, v{T}
v_lshrrev_b32 v{T+2}, 1, v{T+1}
v_and_b32 v{T+2}, v{T+2}, v{T+1}
v_lshlrev_b32 v{T+2}, 3, v{T+2}
v_sub_u32 v{T}, v{T}, v{T+2}
v_add_u32 v{T}, s{S.t2}, v{T}
s_mul_i32 s{S.t0}, s{S.hA}, 56
s_mul_i32 s{S.t1}, s{S.hQ}, 56
s_mul_i32 s{S.t3}, s{S.h}, 56
s_add_u32 s{S.t0}, s{S.t0}, 896
v_add_u32 v{V.ws}, s{S.t1}, v{T}
v_add_u32 v{V.ws2}, s{S.t0}, v{T}
v_add_u32 v{V.ws2b}, s{S.t3}, v{T}
v_add_u32 v{V.wsb}, 896, v{V.ws2}''')

def setup2(k, ws=True):
    T = V.tmp
    k.e(f'''
v_and_b32 v{V.i32}, 31, v{V.lane}
v_lshrrev_b32 v{V.hh}, 5, v{V.lane}
v_bfe_u32 v{T}, v{V.lane}, 1, 3
v_xor_b32 v{T}, v{T}, v{V.hh}
v_lshlrev_b32 v{T}, 4, v{T}
v_lshl_add_u32 v{T}, v{V.i32}, 7, v{T}
s_lshl_b32 s{S.t2}, s{S.tt}, 12
v_add_u32 v{V.xr}, s{S.t2}, v{T}
v_xor_b32 v{V.xr+1}, 32, v{V.xr}
v_xor_b32 v{V.xr+2}, 64, v{V.xr}
v_xor_b32 v{V.xr+3}, 96, v{V.xr}
s_mov_b32 s{S.hi32}, 0
s_mov_b32 s{S.hi32+1}, -1
''')
    if ws: set_srd(k, S.WS, S.pWS, WS_SIZE)
def colgrp(dst, swap):
    a = f'v_and_b32 v{dst}, 3, v{V.lane}\n' if not swap else f'v_and_b32 v{dst}, 1, v{V.lane}\nv_bfe_u32 v{dst+1}, v{V.lane}, 1, 1\nv_lshl_or_b32 v{dst}, v{dst}, 1, v{dst+1}\n'
    return a + f'''v_bfe_u32 v{dst+1}, v{V.lane}, 4, 1
v_lshl_or_b32 v{dst}, v{dst+1}, 2, v{dst}
v_bfe_u32 v{dst+1}, v{V.lane}, 2, 2
v_lshl_or_b32 v{dst+1}, v{V.hh}, 3, v{dst+1}
'''
def tr_base0(ktype):
    T = V.tmp
    return colgrp(T, ktype) + f'''v_bfe_u32 v{T+2}, v{V.lane}, 3, 1
v_lshlrev_b32 v{T+2}, 6, v{T+2}
v_lshl_add_u32 v{T+2}, v{T}, 3, v{T+2}
v_lshl_add_u32 v{T+2}, v{T+1}, 7, v{T+2}
v_add_u32 v{V.t0r}, {L_WR + WADDR[0]}, v{T+2}
v_xor_b32 v{V.t0r+1}, 64, v{V.t0r}'''
def tr_base(dst, base, swap, parity):
    T = V.tmp
    a = colgrp(T, swap)
    if parity: a += f's_and_b32 s{S.t3}, s{S.h}, 1\nv_subrev_u32 v{T}, s{S.t3}, v{T}\nv_and_b32 v{T}, 7, v{T}\n'
    return a + f'''v_lshrrev_b32 v{T+2}, 1, v{T}
v_lshrrev_b32 v{T+3}, 2, v{T}
v_and_b32 v{T+2}, v{T+2}, v{T+3}
v_and_b32 v{T+2}, 1, v{T+2}
v_xor_b32 v{T}, v{T}, v{T+2}
v_lshlrev_b32 v{T}, 3, v{T}
v_lshl_add_u32 v{T}, v{T+1}, 6, v{T}
v_add_u32 v{dst}, {L_WR + base}, v{T}'''

def wphi_load(k):
    T = V.tmp
    set_srd(k, S.X, S.pPHI, 25088)
    k.e(f'''
s_lshl_b32 s{S.t2}, s{S.tt}, 3
v_lshrrev_b32 v{T+1}, 3, v{V.lane}
v_add_u32 v{T+1}, s{S.t2}, v{T+1}
v_add_u32 v{T+2}, 1, v{V.lane}
v_and_b32 v{T+2}, 7, v{T+2}
v_max_u32 v{T+2}, 1, v{T+2}
v_mul_u32_u24 v{T+3}, 56, v{T+1}
v_lshl_add_u32 v{T+3}, v{T+2}, 3, v{T+3}
v_add_u32 v{T+1}, 4, v{T+1}
v_lshrrev_b32 v{T+1}, 5, v{T+1}
v_subrev_u32 v{T+3}, 8, v{T+3}
v_lshl_or_b32 v{T+3}, v{T+1}, 30, v{T+3}
s_mul_i32 s{S.t2}, s{S.hA}, 1568
s_mul_i32 s{S.t3}, s{S.hQ}, 1568
''')
    k.vmop(f'buffer_load_dwordx2 v[{V.EM}:{V.EM+1}], v{T+3}, {srd(S.X)}, s{S.t2} offen')
    k.wphi_id = k.vmop(f'buffer_load_dwordx2 v[{V.EM+2}:{V.EM+3}], v{T+3}, {srd(S.X)}, s{S.t3} offen')
def gate_load(k):
    T = V.tmp
    set_srd(k, S.X, S.pGW, 896)
    k.e(f'''v_lshrrev_b32 v{T}, 4, v{V.lane}
v_add_u32 v{T}, s{S.r0}, v{T}
v_and_b32 v{T+2}, 15, v{V.lane}
v_lshlrev_b32 v{T+2}, 1, v{T+2}
s_lshl_b32 s{S.t2}, s{S.tt}, 5
v_add_u32 v{T+2}, s{S.t2}, v{T+2}
v_mov_b32 v{V.gw0+1}, 0
v_mov_b32 v{V.gw1+1}, 0''')
    for a, r in ((0, V.gw0), (4, V.gw1)):
        k.e(f'v_add_u32 v{T+1}, {a}, v{T}\nv_subrev_u32 v{T+3}, 7, v{T+1}\nv_min_u32 v{T+1}, v{T+1}, v{T+3}\nv_lshl_add_u32 v{T+1}, v{T+1}, 7, v{T+2}')
        x = k.vmop(f'buffer_load_ushort v{r}, v{T+1}, {srd(S.X)}, 0 offen')
    k.gw_id = x
    return x

def active(s, grp): return grp == [1, 0, 1, 0][s // 7]
def reads(s, grp):
    st = s // 7; buf = V.wf + 16*(s % 2); out = []
    for q in range(4):
        if st == 0:
            out.append(f'ds_read_b128 {vr(V.xf+16*s+4*q,4)}, v{V.xr+q} offset:{(s % 4)*16384}')
            if grp == 1:
                for cs, b in ((0, buf), (1, [V.P, V.EM][s % 2])):
                    for jh in range(2):
                        out.append(f'ds_read_b64_tr_b16 {vr(b+4*q+2*jh,2)}, v{V.t0r+cs} offset:{WADDR[s]-WADDR[0]+q*2048+jh*512}')
        elif active(s, grp):
            if st < 3:
                for jh in range(2):
                    out.append(f'ds_read_b64_tr_b16 {vr(buf+4*q+2*jh,2)}, v{[V.t0r, V.t1r][st-1]} offset:{WADDR[s]+q*1024+jh*256}')
            else:
                if s == 25 and q == 0: out.append(f'v_subrev_u32 v{V.t2r}, {WADDR[21]}, v{V.t2r}\nv_subrev_u32 v{V.t3r}, {WADDR[21]}, v{V.t3r}')
                for b, t in ((buf, V.t2r), ([V.P, V.EM][s % 2], V.t3r)):
                    for jh in range(2):
                        out.append(f'ds_read_b64_tr_b16 {vr(b+4*q+2*jh,2)}, v{t} offset:{WADDR[s]-(WADDR[21] if s < 25 else 0)+q*1024+jh*256}')
    return out
def mfmas(s, grp, ktype=True):
    st = s // 7; c = s % 7; buf = V.wf + 16*(s % 2); out = []
    if not active(s, grp): return []
    b2 = [V.P, V.EM][s % 2]
    tiles = [[(V.acc0, buf, ktype), (V.acc1, b2, ktype)], [(V.acc1, buf, True)], [(V.acc1, buf, True)], [(V.acc0, buf, True), (V.EP, b2, False)]][st]
    for q in range(4):
        for acc, b, wfirst in tiles:
            x = V.xf + 16*c + 4*q; w = b + 4*q
            cin = '0' if (c == 0 and q == 0) else acc
            out.append(mfma(acc, w, x, cin) if wfirst else mfma(acc, x, w, cin))
    return out
def nlines(p): return len([l for l in p.strip().split('\n') if l.strip()]) if isinstance(p, str) else p.n
class Job:
    def __init__(self, f, n): self.f, self.n = f, n
def emit(k, p):
    if isinstance(p, str): k.e(p)
    else: p.f()
def split_pieces(pieces, nslots):
    tot = sum(nlines(p) for p in pieces); out = [[] for _ in range(nslots)]; acc = 0
    for p in pieces:
        out[min(nslots-1, int((acc + nlines(p)/2) * nslots / max(tot, 1)))].append(p); acc += nlines(p)
    return out
def lines(txt): return [l for l in txt.strip().split('\n') if l.strip()]

def cvt16(k, dst, src):
    for q in range(8): k.e(f'v_cvt_pk_bf16_f32 v{dst+q}, v{src+2*q}, v{src+2*q+1}')

def epi0_addr_k():
    T = V.tmp; k = Stream()
    k.e(f'''
s_lshl_b32 s{S.t2}, s{S.j}, 3
v_and_b32 v{T}, 0x13, v{V.i32}
v_bfe_u32 v{T+1}, v{V.i32}, 2, 1
v_lshl_or_b32 v{T}, v{T+1}, 3, v{T}
v_bfe_u32 v{T+1}, v{V.i32}, 3, 1
v_lshl_or_b32 v{T}, v{T+1}, 2, v{T}
v_lshlrev_b32 v{T}, 4, v{T}
s_lshl_b32 s{S.t3}, s{S.tb}, 2
s_add_u32 s{S.t3}, s{S.t3}, s{S.tt}
s_lshl_b32 s{S.t3}, s{S.t3}, 12
s_add_u32 s{S.t3}, s{S.t3}, {WS_KV}
v_add_u32 v{V.EP+8}, s{S.t3}, v{T}
v_add_u32 v{V.EP+9}, s{S.t2}, v{V.hh}
''')
    out = ['\n'.join(k.L)]
    for n in range(4):
        D = V.EP + 4*(n//2) + n % 2
        out.append(f'''v_add_u32 v{T+1}, {2*n}, v{V.EP+9}
v_mul_u32_u24 v{T+2}, 37, v{T+1}
v_lshrrev_b32 v{T+2}, 8, v{T+2}
v_mul_u32_u24 v{T+3}, 7, v{T+2}
v_sub_u32 v{T+3}, v{T+1}, v{T+3}
v_lshrrev_b32 v{T+4}, 2, v{T+3}
v_lshl_add_u32 v{T+5}, v{T+2}, 1, v{T+4}
v_mul_u32_u24 v{T+4}, 3, v{T+4}
v_sub_u32 v{T+4}, v{T+3}, v{T+4}
v_lshl_add_u32 v{D}, v{T+5}, 18, v{V.EP+8}
v_lshl_add_u32 v{D}, v{T+4}, 9, v{D}
v_lshl_add_u32 v{D+2}, v{T+2}, 19, v{V.EP+8}
v_add_u32 v{D+2}, 0x40000, v{D+2}
v_xor_b32 v{T+3}, 3, v{T+3}
v_min_u32 v{T+3}, 1, v{T+3}
v_lshl_or_b32 v{D+2}, v{T+3}, 30, v{D+2}''')
    return out
def epi0_addr_v():
    T = V.tmp; out = []
    for cs in range(2):
        D = V.EP + 4*cs; C = V.EP + 8 + 4*cs
        out.append(f'''s_sub_u32 s{S.t2}, s{S.j}, 7
s_lshl_b32 s{S.t2}, s{S.t2}, 6
s_add_u32 s{S.t2}, s{S.t2}, {32*cs}
v_add_u32 v{T}, s{S.t2}, v{V.i32}
v_mul_u32_u24 v{T+1}, 2341, v{T}
v_lshrrev_b32 v{T+1}, 16, v{T+1}
v_mul_u32_u24 v{T+2}, 28, v{T+1}
v_sub_u32 v{T+2}, v{T}, v{T+2}
s_lshl_b32 s{S.t3}, s{S.tb}, 2
s_add_u32 s{S.t3}, s{S.t3}, s{S.tt}
s_lshl_b32 s{S.t3}, s{S.t3}, 12
s_add_u32 s{S.t3}, s{S.t3}, {WS_KV + 2048}
v_lshlrev_b32 v{T+1}, 18, v{T+1}
v_lshl_add_u32 v{T+1}, v{T+2}, 4, v{T+1}
v_lshlrev_b32 v{T+3}, 9, v{V.hh}
v_add3_u32 v{D}, v{T+1}, v{T+3}, s{S.t3}
v_add_u32 v{D+1}, 1024, v{D}
v_lshrrev_b32 v{T+3}, 2, v{T+2}
v_min_u32 v{T+3}, 1, v{T+3}
v_add_u32 v{D+2}, 448, v{D}
v_lshl_or_b32 v{D+2}, v{T+3}, 30, v{D+2}
v_add_u32 v{D+3}, 1024, v{D+2}
v_min_u32 v{T+2}, 1, v{T+2}
v_subrev_u32 v{T+2}, 1, v{T+2}
v_and_b32 v{C}, 0x3f803f80, v{T+2}
v_mov_b32 v{C+1}, v{C}
v_mov_b32 v{C+2}, v{C}
v_mov_b32 v{C+3}, v{C}''')
    return out

class A:
    ks, vs, kv0, kv1, idx, m = 12, 126, 8, 9, 10, 11
    a0, a1, a2 = 7, 124, 14
    f0, f1 = 4, 5
    Q, KF, V0, V1, O, NM, SA, SB, PHQ = 128, 136, 144, 112, 160, 176, 192, 208, 32
    l = 152; t = 153
    WOA, OF, RED = 16, 80, 48
    WOB, ACC = 176, 128
    wsrc = 13
    wb = 240
    eps = 6
    one = 125
    y0, y1 = 244, 245

def wphi_reads(grp):
    T = V.tmp
    a = lines(colgrp(T, False) + f'v_lshlrev_b32 v{T}, 3, v{T}\nv_lshl_add_u32 v{T}, v{T+1}, 6, v{T}\nv_add_u32 v{T}, {L_WPHI + grp*2048}, v{T}')
    for s in range(2):
        for jh in range(2): a.append(f'ds_read_b64_tr_b16 {vr(V.EM+4*s+2*jh,2)}, v{T} offset:{s*1024+jh*256}')
    a.append(f's_mov_b32 s{S.t6}, {fbits(LOG2E)}')
    return a

def feat_pieces(src, dst, query, round_p=True):
    T = V.tmp; P, EP, EM = V.P, V.EP, V.EM
    sA = S.t6; c = []
    c += [f'v_cvt_pk_bf16_f32 v{EM+8+q}, v{src+2*q}, v{src+2*q+1}' for q in range(8)]
    c += [mfma(P, EM, EM+8, '0') + '\n' + mfma(P, EM+4, EM+12, P), 'WAITP']
    if round_p:
        c += [f'v_cvt_pk_bf16_f32 v{EP+q}, v{P+2*q}, v{P+2*q+1}' for q in range(8)]
        for q in range(8): c += [f'v_lshlrev_b32 v{P+2*q}, 16, v{EP+q}', f'v_and_b32 v{P+2*q+1}, 0xffff0000, v{EP+q}']
    c += [f'v_max3_f32 v{T}, v{P}, v{P+1}, v{P+2}', f'v_max3_f32 v{T+1}, -v{P}, -v{P+1}, -v{P+2}']
    for q in range(3, 15, 2):
        c += [f'v_max3_f32 v{T}, v{T}, v{P+q}, v{P+q+1}', f'v_max3_f32 v{T+1}, v{T+1}, -v{P+q}, -v{P+q+1}']
    c.append(f'''v_max_f32 v{T}, v{T}, v{P+15}
v_max_f32_e64 v{T+1}, v{T+1}, -v{P+15}
v_sub_u32 v{T+2}, 0, v{V.hh}
v_and_b32 v{T+2}, 0x7f800000, v{T+2}
v_permlane32_swap_b32 v{T}, v{T+1}
v_max_f32 v{T}, v{T}, v{T+1}
v_mul_f32 v{T+1}, s{sA}, v{T}
v_mul_f32 v{T+3}, s{sA}, v{T}
s_nop 1
v_permlane32_swap_b32 v{T+1}, v{T+3}''')
    for q in range(8):
        if q == 6: c.append(f'v_add_f32 v{T+1}, v{T+1}, v{T+2}\nv_add_f32 v{T+3}, v{T+3}, v{T+2}')
        c.append(f'v_pk_fma_f32 {vr(EP+2*q,2)}, {vr(P+2*q,2)}, s[{sA}:{sA+1}], {vr(T+1,2)} op_sel_hi:[1,0,0] neg_lo:[0,0,1] neg_hi:[0,0,1]')
        c.append(f'v_pk_fma_f32 {vr(EM+2*q,2)}, {vr(P+2*q,2)}, s[{sA}:{sA+1}], {vr(T+3,2)} op_sel_hi:[1,0,0] neg_lo:[1,0,1] neg_hi:[1,0,1]')
    c += [f'v_exp_f32 v{EP+q}, v{EP+q}\n; x' for q in range(16)]
    c += [f'v_exp_f32 v{EM+q}, v{EM+q}\n; x' for q in range(16)]
    c += [f'v_pk_add_f32 {vr(T+1,2)}, {vr(EP,2)}, {vr(EP+2,2)}', f'v_pk_add_f32 {vr(T+3,2)}, {vr(EM,2)}, {vr(EM+2,2)}']
    for q in range(2, 8):
        c += [f'v_pk_add_f32 {vr(T+1,2)}, {vr(T+1,2)}, {vr(EP+2*q,2)}', f'v_pk_add_f32 {vr(T+3,2)}, {vr(T+3,2)}, {vr(EM+2*q,2)}']
    a = f'''v_add_f32 v{T+1}, v{T+1}, v{T+2}
v_add_f32 v{T+3}, v{T+3}, v{T+4}
s_nop 1
v_permlane32_swap_b32 v{T+1}, v{T+3}
v_add_f32 v{T+1}, v{T+1}, v{T+3}
'''
    if not query:
        a += f'v_rcp_f32 v{T+1}, v{T+1}\ns_nop 0\nv_mov_b32 v{T+3}, v{T+1}\ns_nop 1\nv_permlane32_swap_b32 v{T+1}, v{T+3}'
    else:
        a += f'v_mov_b32 v{T+3}, v{T+1}\ns_nop 1\nv_permlane32_swap_b32 v{T+1}, v{T+3}\nv_rcp_f32 v{T+3}, v{T+3}\nv_mul_f32 v{A.eps}, {fbits(1e-6)}, v{T+1}\nv_mul_f32 v{T+3}, v{T+3}, v{T+1}'
    c.append(a)
    for q in range(8):
        if not query: c.append(f'v_pk_mul_f32 {vr(EP+2*q,2)}, {vr(EP+2*q,2)}, {vr(T+1,2)} op_sel_hi:[1,0]')
        c.append(f'v_pk_mul_f32 {vr(EM+2*q,2)}, {vr(EM+2*q,2)}, {vr(T+3,2)} op_sel_hi:[1,0]')
    for q in range(8):
        c += [f'v_cvt_pk_bf16_f32 v{dst+q}, v{EP+2*q}, v{EP+2*q+1}', f'v_cvt_pk_bf16_f32 v{dst+8+q}, v{EM+2*q}, v{EM+2*q+1}']
    return c

def phi_base():
    T = V.tmp; D = A.m
    return lines(f'''v_and_b32 v{D}, 1, v{V.i32}
v_bfe_u32 v{T}, v{V.i32}, 2, 2
v_lshl_or_b32 v{D}, v{T}, 1, v{D}
v_bfe_u32 v{T}, v{V.i32}, 1, 1
v_lshl_or_b32 v{D}, v{T}, 3, v{D}
v_xor_b32 v{D}, v{D}, v{V.hh}
v_lshlrev_b32 v{D}, 3, v{D}
v_lshl_add_u32 v{D}, v{V.i32}, 7, v{D}
s_lshl_b32 s{S.t2}, s{S.tt}, 12
s_add_u32 s{S.t2}, s{S.t2}, {L_PHI}
v_add_u32 v{D}, s{S.t2}, v{D}''')
def phi_write(src):
    T = V.tmp; out = []
    for s in range(2):
        for g in range(4):
            u = 8*s + 2*g
            out.append((f'v_xor_b32 v{T}, {u*8}, v{A.m}\n' if u else '') + f'ds_write_b64 v{T if u else A.m}, {vr(src+8*s+2*g,2)}')
    return out

def va_stage():
    T = V.tmp; k = Stream()
    k.e(f's_lshl_b32 s{S.t2}, s{S.tt}, 11\ns_add_u32 s{S.t2}, s{S.t2}, {L_STG}\nv_lshl_add_u32 v{T}, v{V.lane}, 4, s{S.t2}')
    cvt16(k, V.P, V.EP)
    k.e(f's_mov_b32 exec_lo, 0x10000000\ns_mov_b32 exec_hi, 0x10000000')
    for q in range(8): k.e(f'v_mov_b32 v{V.P+q}, 0x3f803f80')
    k.e(f'''s_mov_b64 exec, -1
ds_write_b128 v{T}, {vr(V.P,4)}
ds_write_b128 v{T}, {vr(V.P+4,4)} offset:1024''')
    return '\n'.join(k.L)

KVB = 240
def kv_addr_setup(D):
    T = V.tmp
    return lines(f'''s_lshr_b32 s{S.t2}, s{S.w}, 1
s_lshl_b32 s{S.t3}, s{S.t2}, 2
v_and_b32 v{T}, 3, v{V.lane}
v_or_b32 v{T}, s{S.t3}, v{T}
v_bfe_u32 v{T+1}, v{V.lane}, 2, 1
v_bfe_u32 v{D}, v{V.lane}, 4, 1
v_lshl_or_b32 v{T+1}, v{D}, 1, v{T+1}
v_bfe_u32 v{D+1}, v{V.lane}, 3, 1
v_lshl_or_b32 v{T+1}, v{D+1}, 3, v{T+1}
v_xor_b32 v{T}, v{T}, v{T+1}
v_bfe_u32 v{T+1}, v{V.lane}, 2, 2
v_lshl_or_b32 v{T+1}, v{D}, 2, v{T+1}
v_lshl_or_b32 v{T+1}, v{V.hh}, 4, v{T+1}
v_lshlrev_b32 v{T}, 3, v{T}
v_lshl_add_u32 v{T}, v{T+1}, 7, v{T}
v_and_b32 v{T+1}, 15, v{V.lane}
s_and_b32 s{S.t3}, s{S.w}, 1
s_lshl_b32 s{S.t3}, s{S.t3}, 4
v_add_u32 v{T+1}, s{S.t3}, v{T+1}
s_lshl3_add_u32 s{S.t3}, s{S.hA}, s{S.w}
s_lshl4_add_u32 s{S.t3}, s{S.t3}, s{S.tb}
s_lshl_b32 s{S.t3}, s{S.t3}, 9
s_add_u32 s{S.t3}, s{S.t3}, {WS_KVP}
v_and_b32 v{D+3}, 15, v{V.lane}
v_lshl_or_b32 v{D+3}, v{V.hh}, 4, v{D+3}
v_lshl_or_b32 v{D+3}, v{D+3}, 1, v{D}
v_lshl_add_u32 v{D+3}, v{D+3}, 3, s{S.t3}
v_lshlrev_b32 v{T+1}, 4, v{T+1}
v_lshrrev_b32 v{D+2}, 4, v{V.lane}
v_lshl_add_u32 v{D+2}, v{D+2}, 9, v{T+1}
v_add_u32 v{D+2}, {L_STG}, v{D+2}
v_add_u32 v{D}, {L_PHI}, v{T}
v_add_u32 v{D+1}, 1024, v{D}
v_xor_b32 v{D+1}, 32, v{D+1}''')
def kv_partial(k):
    D = KVB; ids = []
    for Tt in range(4):
        k.ds(f'ds_read_b64_tr_b16 {vr(V.EP+4*Tt,2)}, v{D} offset:{Tt*4096}')
        k.ds(f'ds_read_b64_tr_b16 {vr(V.EP+4*Tt+2,2)}, v{D+1} offset:{Tt*4096}')
        ids.append(k.ds(f'ds_read_b128 {vr(V.EM+4*Tt,4)}, v{D+2} offset:{Tt*2048}'))
    return ids
def kv_partial2(k, ids):
    k.dswait(ids[3])
    return [f'v_mfma_f32_16x16x32_bf16 {vr(V.P,4)}, {vr(V.EP+4*Tt,4)}, {vr(V.EM+4*Tt,4)}, {"0" if Tt == 0 else vr(V.P,4)}' for Tt in range(4)]
def kv_partial3(k):
    k.e(f'v_cvt_pk_bf16_f32 v{V.P+4}, v{V.P}, v{V.P+1}\nv_cvt_pk_bf16_f32 v{V.P+5}, v{V.P+2}, v{V.P+3}')
    return k.vmop(f'buffer_store_dwordx2 {vr(V.P+4,2)}, v{KVB+3}, {srd(S.WS)}, 0 offen sc1')

def flag_store(k, addr_s, val_s, sc='sc1', opt=True, T=None):
    T = T or V.tmp
    k.e(f'v_mov_b32 v{T}, s{addr_s}\nv_mov_b32 v{T+1}, s{val_s}\ns_mov_b64 exec, 1')
    a = k.vmop(f'buffer_store_dword v{T+1}, v{T}, {srd(S.WS)}, 0 offen {sc}', opt=opt)
    k.e('s_mov_b64 exec, -1')
    return a

_lbl = [0]
def lbl(p):
    _lbl[0] += 1; return f'L_{p}_{_lbl[0]}'

def flag_check(k, ld_id, vflag, vaddr, mask=False, keep=False):
    L1, L2 = lbl('poll'), lbl('polled')
    k.vmwait(ld_id, keep=keep)
    T = V.tmp
    cmp = f'v_and_b32 v{T}, -16, v{vflag}\nv_cmp_ne_u32 vcc, s{S.tag}, v{T}' if mask else f'v_cmp_ne_u32 vcc, s{S.tag}, v{vflag}'
    k.e(f'{cmp}\ns_cbranch_vccnz {L1}\n{L2}:')
    k.cold.e(f'''{L1}:
s_mov_b32 s{S.spin}, {SPINV[0]}
{L1}_a:
s_sleep 4
buffer_load_dword v{vflag}, v{vaddr}, {srd(S.WS)}, 0 offen sc1
s_waitcnt vmcnt(0)
{cmp}
s_cbranch_vccz {L2}
s_sub_u32 s{S.spin}, s{S.spin}, 1
s_cbranch_scc0 {L1}_a
s_branch {L2}''')

def step(k, s, grp, ids, opts, pieces=(), tailp=(), ktype=True):
    k.c(f'---- step {s}')
    nobar = s in opts['nobar']
    if not nobar:
        last = s
        while last + 1 in opts['nobar']: last += 1
        for w in range(last, s - 1, -1): k.vmwait(ids.get(w))
    if grp == 0 and s in (7, 11):
        if s == 7: k.vmwait(opts['_gw'][0])
        k.e(f'ds_write_b64 v{V.g}, {vr(V.gw0 if s == 7 else V.gw1,2)} offset:{WADDR[s]}')
    stamp(k, f'step{s}')
    mf = mfmas(s-1, grp, ktype) if s not in (0, 7) else []
    if mf or (not nobar and not (grp == 1 and s == 11)): k.e('s_waitcnt lgkmcnt(0)')
    if not nobar: k.e('s_barrier')
    stamp(k, f'bar{s}')
    rd = reads(s, grp)
    n = max(len(mf), 1); nr = max(1, (n+1)//2) if n < 8 else opts['nr8']
    pcs = split_pieces(list(pieces), n)
    for q in range(n):
        if mf: k.e(mf[q])
        if q < nr:
            for r in rd[q*len(rd)//nr:(q+1)*len(rd)//nr]: k.e(r)
        for p in pcs[q]: emit(k, p)
    stamp(k, f'body{s}')
    if grp == 0:
        if s + 3 <= 6: ids[s+3] = dma_x(k, s + 3, True)
        for w in opts['wsched'].get(s, ()):
            x = dma_w(k, w, True)
            if w not in ids or w > 6: ids[w] = x
    for p in tailp: emit(k, p)
    stamp(k, f'done{s}')

def stage0(k, grp, ids, ktype, opts):
    T = V.tmp
    ob = f'''s_lshl_b32 s{S.t2}, s{S.tb}, 2
s_add_u32 s{S.t2}, s{S.t2}, s{S.tt}
s_lshl_b32 s{S.t2}, s{S.t2}, 16
s_lshl_b32 s{S.t3}, s{S.h}, 11
s_add_u32 s{S.t2}, s{S.t2}, s{S.t3}
s_add_u32 s{S.t2}, s{S.t2}, {WS_OX + 32768 + grp*1024}
v_lshl_add_u32 v{V.ob}, v{V.lane}, 4, s{S.t2}
s_add_u32 s{S.tag}, s{S.tag}, 0x9e3779b0'''
    P = {0: [ob, '\n'.join(kv_addr_setup(KVB))]}
    if grp == 1:
        ep = (epi0_addr_k if ktype else epi0_addr_v)()
        P[1] = ep[:len(ep)//2]; P[2] = ep[len(ep)//2:]
        P[3] = [f's_cmp_eq_u32 s{S.h}, 5\ns_cselect_b32 s{S.t4}, 0, {WS_SIZE}\ns_cmp_eq_u32 s{S.h}, 10\ns_cselect_b32 s{S.M1+2}, 0, s{S.t4}\ns_mov_b32 s{S.M1}, s{S.pWS}\ns_mov_b32 s{S.M1+1}, s{S.pWS+1}\ns_mov_b32 s{S.M1+3}, 0x20000']
    else:
        P[1] = [tr_base(V.t0r, 0, True, False)]; P[2] = [tr_base(V.t2r, WADDR[21], True, True)]
        P[4] = [Job(lambda: gate_load(k), 20), f'v_and_b32 v{V.g}, 15, v{V.lane}\nv_lshlrev_b32 v{V.g}, 6, v{V.g}\nv_lshrrev_b32 v{T}, 4, v{V.lane}\nv_lshl_add_u32 v{V.g}, v{T}, 12, v{V.g}\ns_add_u32 s{S.t2}, s{S.mW}, 48\nv_add_u32 v{V.g}, s{S.t2}, v{V.g}']
        P[5] = [Job(lambda: wphi_load(k), 20)]
    for s in range(0, 7): step(k, s, grp, ids, opts, P.get(s, ()), (), ktype)
    if grp == 1:
        k.e('s_waitcnt lgkmcnt(0)')
        for m in mfmas(6, grp, ktype): k.e(m)

def stage0_epilogue(k, ktype):
    def extra(n):
        L = lbl('dup'); a = V.EP + 4*(n//2) + 2 + n % 2
        k.e(f'v_cmp_gt_u32 vcc, {OOB}, v{a}\ns_cbranch_vccz {L}')
        k.vmop(f'buffer_store_dwordx4 {vr(V.P+4*n if ktype else V.EP+8+4*(n//2),4)}, v{a}, {srd(S.M1)}, 0 offen sc1', opt=True)
        k.e(f'{L}:')
    if PRIO_ST[0]: k.e('s_setprio 3')
    if not ktype:
        for n in range(4): extra(n)
    for n in range(4):
        for q in range(4): k.e(f'v_cvt_pk_bf16_f32 v{V.P+4*n+q}, v{V.acc0+8*n+2*q}, v{V.acc0+8*n+2*q+1}')
        if ktype: extra(n)
        a = k.vmop(f'buffer_store_dwordx4 {vr(V.P+4*n,4)}, v{V.EP+4*(n//2)+n%2}, {srd(S.M1)}, 0 offen sc1')
    return a

def attn_addr(grp):
    T = V.tmp
    return [f'''s_lshl_b32 s{S.mK}, s{S.w}, 12
s_lshl_b32 s{S.t2}, s{S.h}, 18
s_lshl_b32 s{S.t3}, s{S.tt}, 12
s_add_u32 s{S.t2}, s{S.t2}, s{S.t3}
s_add_u32 s{S.t2}, s{S.t2}, {WS_KV + grp*131072}
v_lshl_add_u32 v{A.ks}, v{V.lane}, 4, s{S.t2}''', f'''v_lshlrev_b32 v{A.kv0}, 4, v{V.lane}
v_add_u32 v{A.kv0}, {grp*16384}, v{A.kv0}
v_add_u32 v{A.kv1}, 0x10000, v{A.kv0}
v_mov_b32 v{A.idx}, 0xdddddddd''', f'''s_mul_i32 s{S.t2}, s{S.h}, 28
s_add_u32 s{S.t3}, s{S.t2}, 27
s_lshr_b32 s{S.t2}, s{S.t2}, 6
s_lshr_b32 s{S.t3}, s{S.t3}, 6
s_sub_u32 s{S.t3}, s{S.t3}, s{S.t2}
v_bfe_u32 v{T+5}, v{V.lane}, 3, 1
v_mul_u32_u24 v{T+5}, s{S.t3}, v{T+5}
v_bfe_u32 v{T+6}, v{V.lane}, 4, 1
v_mul_u32_u24 v{T+6}, 7, v{T+6}
v_add3_u32 v{T+5}, v{T+5}, v{T+6}, s{S.t2}
s_lshr_b32 s{S.t2}, s{S.tb}, 1
s_and_b32 s{S.t3}, s{S.tb}, 1
s_lshl2_add_u32 s{S.rb}, s{S.t3}, s{S.t2}
v_add_u32 v{T+6}, s{S.rb}, v{V.lane}
v_and_b32 v{T+6}, 7, v{T+6}
v_lshl_add_u32 v{T+5}, v{T+5}, 4, v{T+6}
s_lshl_b32 s{S.t2}, s{S.tt}, 6
s_add_u32 s{S.t2}, s{S.t2}, {WS_FLAG1 + grp*2048}
v_lshl_add_u32 v{A.f1}, v{T+5}, 8, s{S.t2}
s_and_b32 s{S.sK}, s{S.rb}, 7
s_lshl_b32 s{S.sK}, s{S.sK}, 14''']
def ready_mask():
    return f'''v_cmp_eq_u32 vcc, s{S.tag}, v{A.f0}
s_nop 0
s_lshr_b32 s{S.rdy}, vcc_lo, 16
s_and_b32 s{S.rdy}, s{S.rdy}, vcc_lo
s_lshr_b32 s{S.t0}, s{S.rdy}, 8
s_and_b32 s{S.rdy}, s{S.rdy}, s{S.t0}
s_and_b32 s{S.rdy}, s{S.rdy}, 0xff'''

def kv_dma_jobs(k, stage, out):
    slot = stage % 3
    def j(q):
        if q == 0:
            L1, L2 = lbl('kp'), lbl('kpd')
            k.e(f's_bitcmp1_b32 s{S.rdy}, {stage}\ns_cbranch_scc0 {L1}\n{L2}:')
            k.cold.e(f'''{L1}:
s_mov_b32 s{S.spin}, {SPINV[0]}
{L1}_a:
buffer_load_dword v{A.f0}, v{A.f1}, {srd(S.WS)}, 0 offen sc1
s_waitcnt vmcnt(0)
{ready_mask()}
s_bitcmp1_b32 s{S.rdy}, {stage}
s_cbranch_scc1 {L2}
s_sleep 2
s_sub_u32 s{S.spin}, s{S.spin}, 1
s_cbranch_scc0 {L1}_a
s_branch {L2}''')
        k.e(f's_add_u32 m0, s{S.mK}, {slot*32768}\ns_nop 0')
        out[stage] = k.vmop(f'buffer_load_dwordx4 v{A.ks}, {srd(S.WS)}, s{S.sK} offen offset:{q*1024} {KVSC[0]} lds')
        if q == 3: k.e(f's_add_u32 s{S.sK}, s{S.sK}, 16384\ns_and_b32 s{S.sK}, s{S.sK}, 0x1ffff')
    return [Job(lambda q=q: j(q), 4) for q in range(4)]

def only(k, w, f):
    def g():
        L = lbl('w'); k.e(f's_cmp_eq_u32 s{S.w}, {w}\ns_cbranch_scc1 {L}\n{L}_b:')
        main = k.L; k.L = [f'{L}:']; f(); k.e(f's_branch {L}_b'); body = k.L; k.L = main
        k.cold.L += body
    g.__name__ = f.__name__
    return g

def warm_lines():
    a = f'''s_lshl2_add_u32 s{S.t2}, s2, s{S.tt}
s_cmp_lt_u32 s{S.t2}, 448
s_cselect_b32 s{S.vcm}, s{S.pWOA}, s{S.pWOB}
s_cselect_b32 s{S.vcm+1}, s{S.pWOA+1}, s{S.pWOB+1}
s_cselect_b32 s{S.t3}, 0, 448
s_sub_u32 s{S.t2}, s{S.t2}, s{S.t3}
s_min_u32 s{S.t2}, s{S.t2}, 447
s_mul_i32 s{S.t2}, s{S.t2}, 896
s_add_u32 s{S.vcm}, s{S.vcm}, s{S.t2}
s_addc_u32 s{S.vcm+1}, s{S.vcm+1}, 0
'''
    for q in range(7): a += f's_load_dword s{S.spin}, s[{S.vcm}:{S.vcm+1}], {q*128}\n'
    a += f'''s_lshl3_add_u32 s{S.t2}, s{S.hA}, s{S.tt}
s_lshl4_add_u32 s{S.t2}, s{S.t2}, s{S.tb}
s_lshl_b32 s{S.t2}, s{S.t2}, 6
s_add_u32 s{S.t2}, s{S.t2}, {WS_FLAG2}
s_load_dword s{S.spin}, s[{S.pWS}:{S.pWS+1}], s{S.t2}
s_add_u32 s{S.t2}, s{S.t2}, 4096
s_load_dword s{S.spin}, s[{S.pWS}:{S.pWS+1}], s{S.t2}
s_lshl4_add_u32 s{S.t2}, s{S.tb}, s{S.h}
s_lshl_b32 s{S.t2}, s{S.t2}, 6
s_add_u32 s{S.t2}, s{S.t2}, {WS_FLAGY}
s_load_dword s{S.spin}, s[{S.pWS}:{S.pWS+1}], s{S.t2}'''
    return a

def stages12(k, ids, grp, st_id, opts):
    T = V.tmp; out = {'st': st_id}; st = {}
    P = {s: [] for s in range(7, 28)}; TP = {s: [] for s in range(7, 28)}
    npre = opts['npre']; pub = opts['f1_step']; c = opts['f1_check']
    assert {8, 9, 10, 12, 13} <= set(opts['nobar']) and not {7, 11, 14, 21} & set(opts['nobar'])
    def f1pub():
        k.vmwait(out['st'])
        k.e(f'''s_lshl4_add_u32 s{S.t2}, s{S.j}, s{S.tb}
s_lshl2_add_u32 s{S.t2}, s{S.t2}, s{S.tt}
s_lshl_b32 s{S.t2}, s{S.t2}, 6
s_add_u32 s{S.t2}, s{S.t2}, {WS_FLAG1}
s_cmp_eq_u32 s{S.M1+2}, 0
s_cselect_b32 s{S.t2}, {OOB}, s{S.t2}''')
        flag_store(k, S.t2, S.tag, opt=False, T=V.tmp+5)
        k.e(f's_setprio {opts["prio_g1"]}')
    qx = f's_lshl_b32 s{S.t2}, s{S.tt}, 11\ns_add_u32 s{S.t2}, s{S.t2}, {L_QX}\nv_lshl_add_u32 v{A.a0}, v{V.lane}, 4, s{S.t2}'
    ozero = [f'v_mov_b32 v{A.O+q}, 0' for q in range(16)]
    if grp == 0:
        P[9] += [Job(lambda: k.vmwait(opts['_gw'][1]), 1),
                 f's_lshl_b32 s{S.t2}, s{S.tt}, 9\ns_add_u32 s{S.t2}, s{S.t2}, {L_WPHI}\nv_lshl_add_u32 v{T}, v{V.lane}, 3, s{S.t2}\nds_write_b64 v{T}, {vr(V.EM,2)}\nds_write_b64 v{T}, {vr(V.EM+2,2)} offset:2048']
        P[12] += [tr_base(V.t3r, WADDR[21] + 4096, False, False)]
        P[13] += ['\n'.join(wphi_reads(1))]
        fp = feat_pieces(V.acc1, V.acc1, True, opts['round_p']); i = fp.index('WAITP')
        TP[14] += fp[:8] + [f'v_mov_b32 v{T+5}, v{V.acc1+12}\nv_mov_b32 v{V.g}, v{V.acc1+12}'] + fp[8:i]
        TP[14].append(f'v_permlane32_swap_b32 v{T+5}, v{V.g}\nv_mul_f32 v{V.g}, {fbits(-LOG2E)}, v{V.g}\nv_exp_f32 v{V.g}, v{V.g}\ns_nop 0\nv_add_f32 v{V.g}, 1.0, v{V.g}\nv_rcp_f32 v{V.g}, v{V.g}')
        for n, grpp in enumerate(split_pieces(fp[i+1:], 6)): P[15+n] += grpp
        P[14] += attn_addr(grp)
        assert max(s_ for s_, w in opts['wsched'].items() if max(w) > 20) <= 24
        P[25] += [f'''s_lshr_b32 s{S.t2}, s{S.h}, 3
s_lshl_b32 s{S.t2}, s{S.t2}, 1
s_and_b32 s{S.t3}, s{S.w}, 1
s_add_u32 s{S.t2}, s{S.t2}, s{S.t3}
s_lshl2_add_u32 s{S.col}, s{S.tb}, s{S.t2}
s_lshr_b32 s{S.cw}, s{S.w}, 1
s_and_b32 s{S.t2}, s{S.h}, 7
s_cmp_eq_u32 s{S.t2}, 7
s_cselect_b32 s{S.W+2}, 0, 401408
s_cselect_b32 s{S.X+2}, 0, 401408
s_mov_b32 s{S.W}, s{S.pWOA}
s_mov_b32 s{S.W+1}, s{S.pWOA+1}
s_mov_b32 s{S.X}, s{S.pWOB}
s_mov_b32 s{S.X+1}, s{S.pWOB+1}
s_mov_b32 s{S.W+3}, 0x20000
s_mov_b32 s{S.X+3}, 0x20000
s_lshl_b32 s{S.t2}, s{S.t2}, 7
v_lshrrev_b32 v{T}, 3, v{V.lane}
v_and_b32 v{T+1}, 7, v{V.lane}
v_bfe_u32 v{T+2}, v{V.lane}, 4, 1
v_lshlrev_b32 v{T+2}, 2, v{T+2}
v_xor_b32 v{T+1}, v{T+1}, v{T+2}
v_mul_u32_u24 v{T}, 896, v{T}
v_lshl_add_u32 v{T}, v{T+1}, 4, v{T}
v_add_u32 v{A.wsrc}, s{S.t2}, v{T}
s_mov_b32 s{S.r0}, 4096''']
        P[23] += [qx]; P[26] += ozero
    else:
        sel = f'''v_bfe_u32 v{T}, v{V.lane}, 3, 1
v_bfe_u32 v{T+1}, v{V.lane}, 4, 1
v_xor_b32 v{T}, v{T}, v{T+1}
v_bfe_u32 v{T+1}, v{V.lane}, 1, 2
v_lshl_or_b32 v{T}, v{T}, 2, v{T+1}
v_and_b32 v{T+1}, 1, v{V.lane}
v_lshlrev_b32 v{T+1}, 4, v{T+1}
v_mov_b32 v{T+2}, 0x3f80
v_lshlrev_b32 v{T+1}, v{T+1}, v{T+2}
'''
        for q in range(4): sel += f'v_cmp_eq_u32 s[{S.vcm}:{S.vcm+1}], {q}, v{T}\ns_nop 1\nv_cndmask_b32 v{16+q}, 0, v{T+1}, s[{S.vcm}:{S.vcm+1}]\n'
        sel += f'v_lshlrev_b32 v{T}, 4, v{V.lane}\nv_add_u32 v{T}, {L_SEL}, v{T}\nds_write_b128 v{T}, {vr(16,4)}'
        P[7] += [tr_base(V.t1r, 0, True, False), sel]
        if opts['warm']: P[7].insert(0, warm_lines())
        P[11] += [f'v_mov_b32 v{A.y1}, {OOB}'] + attn_addr(grp) + ['\n'.join(phi_base()), f'''s_lshr_b32 s{S.t2}, s{S.h}, 3
s_lshl_b32 s{S.t2}, s{S.t2}, 1
s_and_b32 s{S.t3}, s{S.w}, 1
s_add_u32 s{S.t2}, s{S.t2}, s{S.t3}
s_lshl2_add_u32 s{S.col}, s{S.tb}, s{S.t2}
s_lshr_b32 s{S.cw}, s{S.w}, 1
s_and_b32 s{S.t2}, s{S.h}, 7
s_cmp_eq_u32 s{S.t2}, 7
s_cselect_b32 s{S.W+2}, 0, 401408
s_cselect_b32 s{S.X+2}, 0, 401408
s_mov_b32 s{S.W}, s{S.pWOA}
s_mov_b32 s{S.W+1}, s{S.pWOA+1}
s_mov_b32 s{S.X}, s{S.pWOB}
s_mov_b32 s{S.X+1}, s{S.pWOB+1}
s_mov_b32 s{S.W+3}, 0x20000
s_mov_b32 s{S.X+3}, 0x20000
s_lshl_b32 s{S.t2}, s{S.t2}, 7
v_lshrrev_b32 v{T}, 3, v{V.lane}
v_and_b32 v{T+1}, 7, v{V.lane}
v_bfe_u32 v{T+2}, v{V.lane}, 4, 1
v_lshlrev_b32 v{T+2}, 2, v{T+2}
v_xor_b32 v{T+1}, v{T+1}, v{T+2}
v_mul_u32_u24 v{T}, 896, v{T}
v_lshl_add_u32 v{T}, v{T+1}, 4, v{T}
v_add_u32 v{A.wsrc}, s{S.t2}, v{T}
s_mov_b32 s{S.r0}, 4096''', qx]
        P[18] += ozero
        P[20] += ['\n'.join(wphi_reads(0))]
        TP[pub].append(Job(f1pub, 8))
        fp = feat_pieces(V.acc1, V.acc1, False, opts['round_p']); i = fp.index('WAITP')
        fp.pop(i)
        for n, grpp in enumerate(split_pieces(fp + phi_write(V.acc1), 7)): TP[21+n] += grpp
    def f1ld(): out['f1'] = k.vmop(f'buffer_load_dword v{A.f0}, v{A.f1}, {srd(S.WS)}, 0 offen sc1')
    TP[c-2].append(Job(f1ld, 1))
    TP[c].append(Job(lambda: (k.vmwait(out['f1']), k.e(ready_mask())), 8))
    dj = []
    for s_ in range(npre): dj += kv_dma_jobs(k, s_, st)
    for s_ in range(c, 28):
        n = min(len(dj), opts['pre_rate']); TP[s_] += dj[:n]; dj = dj[n:]
    out['left'] = dj
    for s in range(7, 28):
        step(k, s, grp, ids, opts, P[s], TP[s])
    if grp == 0:
        k.e('s_waitcnt lgkmcnt(0)')
        m27 = mfmas(27, grp)
        for m in m27[1::2] + m27[0:4:2]: k.e(m)
        va = va_stage().split('\n')
        for l in va[:7]: k.e(l)
        k.e(m27[4])
        for l in va[7:11]: k.e(l)
        k.e(m27[6])
        for l in va[11:]: k.e(l)
    out['kvst'] = st
    return out

def attn_prologue(k, grp, pend, opts):
    T = V.tmp
    k.c('---- attention prologue')
    stamp(k, 'p1done')
    st = pend['kvst']
    for j in pend['left']: j.f()
    if grp == 0:
        a0 = V.acc0
        k.e(f's_mov_b32 s{S.t6}, {fbits(QSCALE)}\ns_bitcmp1_b32 s{S.h}, 0')
        for q in range(8): k.e(f'v_pk_mul_f32 {vr(a0+2*q,2)}, {vr(a0+2*q,2)}, s[{S.t6}:{S.t6+1}] op_sel_hi:[1,0]')
        cvt16(k, A.Q, a0)
        k.e(f'''s_cselect_b32 exec_lo, -1, 0
s_mov_b32 exec_hi, 0
v_mov_b32 v{A.Q}, 0
v_mov_b32 v{A.Q+1}, 0
s_mov_b32 exec_lo, 0
s_cselect_b32 exec_hi, 0, -1
v_mov_b32 v{A.Q+6}, 0
v_mov_b32 v{A.Q+7}, 0
s_mov_b64 exec, -1
v_lshrrev_b32 v{T}, 2, v{A.a0}
ds_write_b128 v{A.a0}, {vr(A.Q,4)}
ds_write_b128 v{A.a0}, {vr(A.Q+4,4)} offset:1024
v_and_b32 v{T}, 0x7fc, v{T}
v_add_u32 v{T}, {L_G}, v{T}
ds_write_b32 v{T}, v{V.g}''')
    else:
        k.e(f'v_lshrrev_b32 v{T}, 2, v{A.a0}\nv_and_b32 v{T}, 0x7fc, v{T}\nv_add_u32 v{T}, {L_G}, v{T}')
    stamp(k, 'preB0')
    k.vmwait(st.get(0), 'lgkmcnt(0)')
    stamp(k, 'B0wait')
    k.e('s_barrier')
    if grp == 1:
        k.ds(f'ds_read_b128 {vr(A.Q,4)}, v{A.a0}')
        k.ds(f'ds_read_b128 {vr(A.Q+4,4)}, v{A.a0} offset:1024')
        k.ds(f'ds_read_b32 v{V.g}, v{T}')
    return st

def kv_addr(t):
    s, T = t // 4, t % 4; slot = s % 3
    base = A.kv0 if slot < 2 else A.kv1
    return base, (slot % 2)*32768 + T*4096
def rdK(k, t, q):
    b, o = kv_addr(t); return k.ds(f'ds_read_b128 {vr(A.KF+4*q,4)}, v{b} offset:{o+q*1024}')
def rdV(k, t):
    b, o = kv_addr(t)
    k.ds(f'ds_read_b128 {vr(A.V0+4*(t%2),4)}, v{b} offset:{o+2048}')
    return k.ds(f'ds_read_b128 {vr(A.V1+4*(t%3),4)}, v{b} offset:{o+3072}')

def both_ways(k, txts):
    for t in txts: a = k.vmop(t + ' sc1')
    return a
def maxchain(dst, src, n):
    out = [f'v_max3_u32 v{dst}, v{src}, v{src+1}, v{src+2}']; q = 3
    while q < n:
        out.append(f'v_max3_u32 v{dst}, v{dst}, v{src+q}, v{src+q+1}' if q+1 < n else f'v_max_u32 v{dst}, v{dst}, v{src+q}'); q += 2
    return out
def sent_check(k, dst, src, n, loads, redo=''):
    L1, L2 = lbl('sp'), lbl('spd')
    k.e(f'v_cmp_eq_u32 vcc, -1, v{dst}\ns_cbranch_vccnz {L1}\n{L2}:')
    k.cold.e(f'{L1}:\ns_mov_b32 s{S.spin}, {SPINV[0]}\n{L1}_a:\ns_sleep 4')
    for l in loads: k.cold.e(l)
    k.cold.e('s_waitcnt vmcnt(0)')
    for l in maxchain(dst, src, n): k.cold.e(l)
    k.cold.e(f'v_cmp_eq_u32 vcc, -1, v{dst}\ns_cbranch_vccz {L1}_b\ns_sub_u32 s{S.spin}, s{S.spin}, 1\ns_cbranch_scc0 {L1}_a\n{L1}_b:')
    if redo: k.cold.e(redo)
    k.cold.e(f's_branch {L2}')

def wo_jobs(k, br, first, n, ldsbase, row0, out, key, rot=False):
    J = []
    for q in range(n):
        def j(q=q):
            if q == 0: k.e(f's_mul_i32 s{S.t8}, s{S.tt}, {first[0]*1024}\ns_mul_i32 s{S.t7}, s{S.tt}, {first[0]*7168}')
            if n == 7 and rot:
                if q == 0: k.e(f's_add_u32 s{S.t8}, s{S.t8}, {ldsbase + first[1]*1024}\ns_add_u32 s{S.t7}, s{S.t7}, {first[1]*7168}')
                k.e(f's_mul_i32 s{S.t9}, s{S.ox+q}, 56\ns_lshl3_add_u32 m0, s{S.ox+q}, s{S.t8}\ns_add_u32 s{S.t9}, s{S.t9}, s{S.t7}')
            else:
                k.e(f's_add_u32 m0, s{S.t8}, {ldsbase + (first[1]+q)*1024}\ns_add_u32 s{S.t9}, s{S.t7}, {row0*896 + (first[1]+q)*7168}')
            out[key] = k.vmop(f'buffer_load_dwordx4 v{A.wsrc}, {srd(S.W if br == 0 else S.X)}, s{S.t9} offen lds')
        J.append(Job(j, 3))
    return J

def o_loads(dst, addr):
    return [f'buffer_load_dwordx4 {vr(dst+4*q,4)}, v{addr}, {srd(S.WS)}, {"0" if q < 4 else "s%d" % S.r0} offen offset:{(q%4)*1024} sc1' for q in range(8)]

def side_jobs(k, grp, opts, pend):
    T = V.tmp; J = {}; st = {}
    def at(t, f): J.setdefault(t, []).append(f)
    def kvA(): st['kvi'] = kv_partial(k)
    def kvB(): pend['spr'] += kv_partial2(k, st['kvi'])
    def kvC(): st['kvp'] = kv_partial3(k)
    def f2pub():
        k.vmwait(st['kvp'])
        k.e(f's_lshl3_add_u32 s{S.t2}, s{S.hA}, s{S.w}\ns_lshl4_add_u32 s{S.t2}, s{S.t2}, s{S.tb}\ns_lshl_b32 s{S.t2}, s{S.t2}, 6\ns_add_u32 s{S.t2}, s{S.t2}, {WS_FLAG2}')
        flag_store(k, S.t2, S.tag, opt=False)
    R = A.RED; I4 = 16; D4 = 20
    def s1():
        k.e(f's_lshl3_add_u32 s{S.t2}, s{S.hQ}, s{S.w}\ns_lshl_b32 s{S.t3}, s{S.t2}, 10\ns_add_u32 s{S.t3}, s{S.t3}, {WS_FLAG2}\nv_and_b32 v{A.a2}, 15, v{V.lane}\nv_lshl_add_u32 v{A.a2}, v{A.a2}, 6, s{S.t3}')
        st['f2'] = k.vmop(f'buffer_load_dword v{A.a1}, v{A.a2}, {srd(S.WS)}, 0 offen sc1')
        k.e(f's_lshl_b32 s{S.t2}, s{S.t2}, 13\ns_add_u32 s{S.t2}, s{S.t2}, {WS_KVP}\nv_lshl_add_u32 v{A.a0}, v{V.lane}, 4, s{S.t2}')
    def s2():
        if grp == 0:
            k.e(f'v_lshlrev_b32 v{T}, 4, v{V.lane}\nv_add_u32 v{T}, {L_SEL}, v{T}'); k.ds(f'ds_read_b128 {vr(I4,4)}, v{T}')
        flag_check(k, st['f2'], A.a1, A.a2)
        def ld(q, l): st[f'kp{q}'] = k.vmop(l)
        pend['wq'][0:0] = [Job(lambda q=q, l=l: ld(q, l), 1) for q, l in enumerate(o_loads(R, A.a0))]
    def s3():
        assert 'kp7' in st or opts['skip']; k.vmwait(st.get('kp7'))
        pend['spr'] += [f'v_mfma_f32_16x16x32_bf16 {vr(D4,4)}, {vr(I4,4)}, {vr(R+4*q,4)}, {"0" if q == 0 else vr(D4,4)}' for q in range(8)]
    def s4():
        k.e(f'''v_subrev_u32 v{T+2}, {L_STG}, v{KVB+2}
v_and_b32 v{T+2}, 0x3ff, v{T+2}
s_lshr_b32 s{S.t2}, s{S.w}, 1
s_lshl_b32 s{S.t2}, s{S.t2}, 10
s_add_u32 s{S.t2}, s{S.t2}, {L_WPHI}
v_lshl_add_u32 v{T+2}, v{V.hh}, 3, v{T+2}
v_add_u32 v{T+2}, s{S.t2}, v{T+2}
v_cvt_pk_bf16_f32 v{D4}, v{D4}, v{D4+1}
v_cvt_pk_bf16_f32 v{D4+1}, v{D4+2}, v{D4+3}''')
        k.ds(f'ds_write_b64 v{T+2}, {vr(D4,2)}')
    for n, f in enumerate((kvA, kvB, kvC, f2pub, s1, s2, s3, s4)): at(opts['kv_at'][grp][n], f)
    def oclear():
        for q in range(4): k.e(f'v_mov_b32 v{24+q}, -1')
        k.e(f's_sub_u32 s{S.t2}, s{S.hQ}, s{S.h}\ns_lshl_b32 s{S.t2}, s{S.t2}, 11\ns_sub_u32 s{S.t2}, s{S.t2}, 32768\nv_add_u32 v{T}, s{S.t2}, v{V.ob}')
        x = k.vmop(f'buffer_store_dwordx4 {vr(24,4)}, v{T}, {srd(S.WS)}, 0 offen sc1', opt=True)
        x = k.vmop(f'buffer_store_dwordx4 {vr(24,4)}, v{V.ob}, {srd(S.WS)}, 0 offen sc1', opt=True)
        pend['barwait'] = {opts['ybar']: x}
    for n in range(4): at(opts['oclr_at'][4*grp + n], only(k, 4*grp + n, oclear))
    def wowarm():
        U = T + 5
        k.e(f'''s_and_b32 s{S.t2}, s2, 127
s_mul_i32 s{S.t2}, s{S.t2}, 3136
s_cmp_lt_u32 s2, 128
s_cselect_b32 s{S.M1}, s{S.pWOA}, s{S.pWOB}
s_cselect_b32 s{S.M1+1}, s{S.pWOA+1}, s{S.pWOB+1}
s_mov_b32 s{S.M1+2}, 401408
s_mov_b32 s{S.M1+3}, 0x20000
v_min_u32 v{U}, 48, v{V.lane}
v_lshl_add_u32 v{U}, v{U}, 6, s{S.t2}''')
        k.vmop(f'buffer_load_dword v{A.l}, v{U}, {srd(S.M1)}, 0 offen', opt=True)
    if grp == 1 and opts['wowarm'] is not None: at(opts['wowarm'], only(k, 7, wowarm))
    def f1r(): st['f1r'] = k.vmop(f'buffer_load_dword v{A.f0}, v{A.f1}, {srd(S.WS)}, 0 offen sc1')
    def f1r2(): k.vmwait(st['f1r']); k.e(ready_mask())
    at(opts['f1r_at'][0], f1r); at(opts['f1r_at'][1], f1r2)
    yt = opts['ybar']*4 - 2
    def ypub():
        k.e(f'''s_lshl_b32 s{S.t2}, s{S.tb}, 10
s_add_u32 s{S.t2}, s{S.t2}, {WS_FLAGY}
v_and_b32 v{A.y1}, 15, v{V.lane}
v_lshl_add_u32 v{A.y1}, v{A.y1}, 6, s{S.t2}
s_lshl_b32 s{S.t3}, s{S.h}, 6
s_add_u32 s{S.t2}, s{S.t2}, s{S.t3}''')
        flag_store(k, S.t2, S.tag)
    def yld(): st['fy'] = k.vmop(f'buffer_load_dword v{A.y0}, v{A.y1}, {srd(S.WS)}, 0 offen sc1', opt=True)
    def ycheck(): flag_check(k, st['fy'], A.y0, A.y1, keep=True)
    if grp == 1:
        yc = opts['ychk_at']
        at(yt, only(k, 4, ypub)); at(yc - 4, only(k, 4, yld)); at(yc, only(k, 4, ycheck))
        assert (opts['oa_at'] + 2) // 4 > (yc + 2) // 4
    else:
        KF_, NUM = 80, 96
        def a2():
            k.e(f'v_lshlrev_b32 v{T}, 4, v{V.lane}\nv_add_u32 v{T}, {L_WPHI}, v{T}')
            for q in range(4): st['kvl'] = k.ds(f'ds_read_b128 {vr(KF_+4*q,4)}, v{T} offset:{q*1024}')
        def a3():
            k.dswait(st['kvl'])
            pend['spr'] += [mfma(NUM, KF_+4*q, A.PHQ+4*q, '0' if q == 0 else NUM) for q in range(4)]
        def a4():
            k.e(f'''v_mov_b32 v{T+1}, v{NUM+12}
v_mov_b32 v{T+3}, v{NUM+12}
s_sub_u32 s{S.t2}, s{S.hQ}, s{S.h}
s_lshl_b32 s{S.t2}, s{S.t2}, 11
v_permlane32_swap_b32 v{T+1}, v{T+3}
v_add_f32 v{T+3}, v{A.eps}, v{T+3}
v_rcp_f32 v{T+3}, v{T+3}
s_sub_u32 s{S.t2}, s{S.t2}, 32768
v_mul_f32 v{T+3}, v{V.g}, v{T+3}
v_add_u32 v{A.a2}, s{S.t2}, v{V.ob}''')
            for q in range(8): k.e(f'v_pk_mul_f32 {vr(NUM+2*q,2)}, {vr(NUM+2*q,2)}, {vr(T+3,2)} op_sel_hi:[1,0]')
            cvt16(k, KF_, NUM)
            k.e(f's_mov_b64 exec, s[{S.hi32}:{S.hi32+1}]\nv_mov_b32 v{KF_+6}, 0\nv_mov_b32 v{KF_+7}, 0\ns_mov_b64 exec, -1')
            both_ways(k, [f'buffer_store_dwordx4 {vr(KF_,4)}, v{A.a2}, {srd(S.WS)}, 0 offen',
                          f'buffer_store_dwordx4 {vr(KF_+4,4)}, v{A.a2}, {srd(S.WS)}, 0 offen offset:1024'])
        p = opts['afin_at']
        at(p, a2); at(p+1, a3); at(p+2, a4)
        assert p % 4 == 2 and p > max(opts['kv_at'][0][7], opts['kv_at'][1][7])
    def oa():
        k.e(f'''s_lshl_b32 s{S.t2}, s{S.col}, 16
s_lshl_b32 s{S.t3}, s{S.cw}, 13
s_add_u32 s{S.t2}, s{S.t2}, s{S.t3}
s_add_u32 s{S.t2}, s{S.t2}, {WS_OX}
s_and_b32 s{S.t3}, s{S.h}, 7
s_cmp_eq_u32 s{S.t3}, 7
s_cselect_b32 s{S.t2}, {OOB}, s{S.t2}
v_lshl_add_u32 v{A.a0}, v{V.lane}, 4, s{S.t2}''')
        def ld(q, l): st[f'oa{q}'] = k.vmop(l)
        pend['wq'] += [Job(lambda q=q, l=l: ld(q, l), 1) for q, l in enumerate(o_loads(A.OF, A.a0))]
    at(opts['oa_at'], oa)
    return J, st

def wo_bases(k, b0, base_s):
    T = V.tmp
    k.e(f'''
v_and_b32 v{T}, 1, v{V.lane}
v_bfe_u32 v{T+1}, v{V.lane}, 1, 1
v_lshl_or_b32 v{T}, v{T}, 1, v{T+1}
v_bfe_u32 v{T+1}, v{V.lane}, 4, 1
v_lshl_or_b32 v{T}, v{T+1}, 2, v{T}
v_bfe_u32 v{T+1}, v{V.lane}, 3, 1
v_lshl_or_b32 v{T}, v{T+1}, 3, v{T}
v_bfe_u32 v{T+1}, v{V.lane}, 2, 2
v_lshlrev_b32 v{T}, 3, v{T}
v_lshl_add_u32 v{T}, v{T+1}, 7, v{T}
v_add_u32 v{b0+2}, s{base_s}, v{T}
v_xor_b32 v{b0+3}, 64, v{b0+2}
v_lshl_add_u32 v{b0}, v{V.hh}, 9, v{b0+2}
v_xor_b32 v{b0+1}, 64, v{b0}
''')
def wo_reads(k, dst, b0, lo, hi):
    a = None
    for n in range(lo, hi):
        hd, t, oc = n // 4, (n // 2) % 2, n % 2
        k.ds(f'ds_read_b64_tr_b16 {vr(dst+4*n,2)}, v{b0+oc} offset:{hd*3584+t*2048}')
        a = k.ds(f'ds_read_b64_tr_b16 {vr(dst+4*n+2,2)}, v{b0+oc+(2 if t else 0)} offset:{hd*3584+t*2048+1024}')
    return a

def attention(k, grp, st, opts, pend):
    T = V.tmp
    wo = {'A': None, 'B': None}
    rdK(k, 0, 0); k0 = rdK(k, 0, 1)
    rdV(k, 0); rdV(k, 1)
    k.dswait(k0)
    k.e(mfma(A.SA, A.KF, A.Q, '0')); rdK(k, 1, 0)
    k.e(mfma(A.SA, A.KF+4, A.Q+4, A.SA)); kk = rdK(k, 1, 1)
    dq = []; wq = pend['wq'] = []
    for s_ in range(opts['npre'], 3): dq += kv_dma_jobs(k, s_, st)
    for j in dq[:2]: j.f()
    del dq[:2]
    k.e(f'v_max3_f32 v{A.m}, v{A.SA}, v{A.SA+1}, v{A.SA+2}')
    for q in range(3, 15, 2): k.e(f'v_max3_f32 v{A.m}, v{A.m}, v{A.SA+q}, v{A.SA+q+1}')
    k.e(f'v_max_f32 v{A.m}, v{A.m}, v{A.SA+15}\nv_mov_b32 v{T}, v{A.m}')
    k.e(f'''s_nop 1
v_permlane32_swap_b32 v{A.m}, v{T}
v_max_f32 v{A.m}, v{A.m}, v{T}
v_sub_f32 v{A.NM}, 0, v{A.m}''')
    for q in range(1, 16): k.e(f'v_mov_b32 v{A.NM+q}, v{A.NM}')
    for q in range(8): k.e(f'v_pk_add_f32 {vr(A.SA+2*q,2)}, {vr(A.SA+2*q,2)}, {vr(A.NM,2)}')
    pend['spr'] = []
    J, js = side_jobs(k, grp, opts, pend)
    def pump(n):
        for _ in range(n):
            if dq or wq:
                j = (dq or wq).pop(0)
                if not opts['nodma']: j.f()
    for t in range(32):
        cur, oth = (A.SA, A.SB) if t % 2 == 0 else (A.SB, A.SA)
        spr = pend['spr']; pts = {8: (0, 1, 3, 5, 6, 8, 10, 11), 4: (0, 3, 6, 9), 0: ()}[len(spr)]
        def ex(a, b):
            for q in range(a, b):
                k.e(f'v_exp_f32 v{cur+q}, v{cur+q}')
                if q in pts: k.e(spr.pop(0))
        k.c(f'---- tile {t}')
        ex(0, 2)
        if t >= 1: k.e(smfma(A.O, A.V1+4*((t-1) % 3), oth+8, A.idx))
        ex(2, 5)
        if t % 4 == 2:
            b = t//4 + 1
            stamp(k, f'preB{b}')
            k.vmwait(pend.get('barwait', {}).get(b))
            k.vmwait(st.get(b), 'lgkmcnt(0)'); k.dsall(False)
            stamp(k, f'B{b}wait')
            k.e('s_barrier')
            if b + 2 <= 7: dq += kv_dma_jobs(k, b + 2, st)
            if b in (6, 7) and 'woB' not in opts['skip']:
                wq[0:0] = wo_jobs(k, 1, (3, 16) if grp else (4, 0), 3 if grp else 4, 65536*(7-b), 224*(b-6), wo, 'B')
        elif t + 1 <= 31:
            k.dswait(kk)
        if opts['prio']: k.e(f's_setprio {3 - (t + 2) % 4}')
        if t == opts['wo_at'] and 'woA' not in opts['skip']: wq += wo_jobs(k, 0, (7, 28*grp), 7, L_WOA, 0, wo, 'A', opts['wo_rot'])
        if t + 1 <= 31:
            k.e(mfma(oth, A.KF, A.Q, A.NM))
            if t + 2 <= 31: rdK(k, t+2, 0)
        pump(1 if len(dq) + len(wq) > opts['pump_hi'] else 0)
        ex(5, 8)
        if t + 1 <= 31:
            k.e(mfma(oth, A.KF+4, A.Q+4, oth))
            if t + 2 <= 31: kk = rdK(k, t+2, 1)
        pump(1 if len(dq) + len(wq) > opts['pump_hi2'] else 0)
        ex(8, 13)
        k.e(smfma(A.O, A.V0+4*(t % 2), cur, A.idx))
        if t + 2 <= 31: rdV(k, t+2)
        pump(1)
        wa = None
        ex(13, 16)
        for f in J.get(t, []):
            stamp(k, f'j{t}{grp}pre')
            if f.__name__ not in opts['skip']: f()
            stamp(k, f'j{t}{grp}post')
    assert not dq and not wq
    k.e('s_nop 1')
    k.e(smfma(A.O, A.V1+4*(31 % 3), A.SB+8, A.idx))
    if opts['prio']: k.e('s_setprio 0')
    return js, wo, wa

def fallback(k, grp):
    T = V.tmp; L = lbl('fbl')
    k.e(f'''
s_lshl_b32 s{S.t2}, s{S.tt}, 12
v_subrev_u32 v{A.ks}, s{S.t2}, v{A.ks}
v_mov_b32 v{A.m}, 0xff7fffff
s_mov_b32 s{S.sK}, 0
''')
    for q in range(16): k.e(f'v_mov_b32 v{A.O+q}, 0')
    k.e(f'''{L}:
buffer_load_dwordx4 {vr(A.KF,4)}, v{A.ks}, {srd(S.WS)}, s{S.sK} offen sc1
buffer_load_dwordx4 {vr(A.KF+4,4)}, v{A.ks}, {srd(S.WS)}, s{S.sK} offen offset:1024 sc1
buffer_load_dwordx4 {vr(A.V0,4)}, v{A.ks}, {srd(S.WS)}, s{S.sK} offen offset:2048 sc1
buffer_load_dwordx4 {vr(A.V0+4,4)}, v{A.ks}, {srd(S.WS)}, s{S.sK} offen offset:3072 sc1
s_waitcnt vmcnt(0)''')
    k.e(mfma(A.SA, A.KF, A.Q, '0')); k.e(mfma(A.SA, A.KF+4, A.Q+4, A.SA))
    k.e(f'v_max3_f32 v{T}, v{A.m}, v{A.SA}, v{A.SA+1}')
    for q in range(2, 16, 2): k.e(f'v_max3_f32 v{T}, v{T}, v{A.SA+q}, v{A.SA+q+1}')
    k.e(f'''v_mov_b32 v{T+1}, v{T}
s_nop 1
v_permlane32_swap_b32 v{T}, v{T+1}
v_max_f32 v{T}, v{T}, v{T+1}
v_sub_f32 v{T+1}, v{A.m}, v{T}
v_exp_f32 v{T+1}, v{T+1}
v_mov_b32 v{A.m}, v{T}''')
    for q in range(16): k.e(f'v_sub_f32 v{A.SA+q}, v{A.SA+q}, v{T}\nv_mul_f32 v{A.O+q}, v{A.O+q}, v{T+1}')
    for q in range(16): k.e(f'v_exp_f32 v{A.SA+q}, v{A.SA+q}')
    k.e('s_nop 1')
    k.e(smfma(A.O, A.V0, A.SA, A.idx)); k.e(smfma(A.O, A.V0+4, A.SA+8, A.idx))
    k.e(f'''s_add_u32 s{S.sK}, s{S.sK}, 4096
s_cmp_lt_u32 s{S.sK}, 131072
s_cbranch_scc1 {L}
v_mov_b32 v{A.l}, v{A.O+12}
v_mov_b32 v{T}, v{A.O+12}
s_nop 1
v_permlane32_swap_b32 v{T}, v{A.l}''')

def tail(k, grp, js, wo, wa, opts, fb):
    T = V.tmp
    k.c('---- end of attention: exchange with the partner wave, safety check of the stand-in maximum')
    stamp(k, 'attnend')
    Lfb, Lback = lbl('fb'), lbl('fbback')
    own, oth = (A.O, A.O+8) if grp == 0 else (A.O+8, A.O)
    CXa, CXb, CXl = A.a1, A.f0, A.f1
    k.e(f'''
s_lshl_b32 s{S.t2}, s{S.w}, 12
s_add_u32 s{S.t2}, s{S.t2}, {L_CX}
v_lshl_add_u32 v{CXa}, v{V.lane}, 4, s{S.t2}
v_xor_b32 v{CXb}, 16384, v{CXa}
v_lshl_add_u32 v{CXl}, v{V.lane}, 3, s{S.t2}
v_sub_f32 v{A.kv0}, 1.0, v{V.g}
s_mov_b32 s{S.t3}, {fbits(2.0**60)}
v_mov_b32 v{A.t}, v{A.m}''')
    xw = [f'ds_write_b128 v{CXa}, {vr(oth,4)}', f'ds_write_b128 v{CXa}, {vr(oth+4,4)} offset:1024']
    k.e(f'v_mov_b32 v{A.l}, v{A.O+12}\nv_mov_b32 v{T}, v{A.O+12}')
    for l in xw: k.ds(l)
    k.e(f'''v_permlane32_swap_b32 v{T}, v{A.l}
v_mul_f32 v{T+1}, 0, v{A.O}
v_mul_f32 v{T+2}, 0, v{A.O+1}''')
    k.ds(f'ds_write_b64 v{CXl}, {vr(A.l,2)} offset:2048')
    for q in range(1, 8): k.e(f'v_pk_fma_f32 {vr(T+1,2)}, {vr(A.O+2*q,2)}, 0, {vr(T+1,2)} op_sel_hi:[1,0,1]')
    k.e(f'''v_add_f32 v{T+1}, v{T+1}, v{T+2}
v_add_f32 v{T+1}, v{T+1}, v{A.l}
v_cmp_nge_f32 vcc, s{S.t3}, v{T+1}
s_cbranch_vccnz {Lfb}
{Lback}:''')
    fb.e(f'{Lfb}:'); fallback(fb, grp)
    fb.e(f'v_mov_b32 v{A.t}, v{A.m}')
    for l in xw: fb.e(l)
    fb.e(f'ds_write_b64 v{CXl}, {vr(A.l,2)} offset:2048\ns_branch {Lback}')
    k.e(f's_mul_i32 s{S.t2}, s{S.cw}, 14336\ns_add_u32 s{S.t2}, s{S.t2}, {L_WOA}')
    wo_bases(k, A.wb, S.t2)
    k.e(f'''s_and_b32 s{S.t3}, s{S.cw}, 1
s_mul_i32 s{S.t3}, s{S.t3}, 14336
s_cmp_lt_u32 s{S.cw}, 2
s_cselect_b32 s{S.t4}, 65536, 0
s_add_u32 s{S.t3}, s{S.t3}, s{S.t4}
s_sub_u32 s{S.t3}, s{S.t3}, s{S.t2}''')
    WB2 = A.Q
    for q in range(4): k.e(f'v_add_u32 v{116+q}, s{S.t3}, v{A.wb+q}')
    k.vmwait(wo['B'], 'lgkmcnt(0)'); k.dsall(False)
    k.e(f's_barrier\nv_xor_b32 v{CXl}, 16384, v{CXl}')
    lm = k.ds(f'ds_read_b64 {vr(T+1,2)}, v{CXl} offset:2048')
    k.ds(f'ds_read_b128 {vr(A.SA,4)}, v{CXb}')
    a = k.ds(f'ds_read_b128 {vr(A.SA+4,4)}, v{CXb} offset:1024')
    wr = [wo_reads(k, A.WOA, A.wb, n, n+1) for n in range(5)]
    k.dswait(lm)
    k.e(f'''v_max_f32 v{T}, v{A.m}, v{T+2}
v_sub_f32 v{T+3}, v{A.m}, v{T}
v_sub_f32 v{T+5}, v{T+2}, v{T}
v_exp_f32 v{T+3}, v{T+3}
v_exp_f32 v{T+5}, v{T+5}
v_mul_f32 v{A.l}, v{A.l}, v{T+3}
v_fmac_f32 v{A.l}, v{T+1}, v{T+5}
v_rcp_f32 v{A.l}, v{A.l}
v_mul_f32 v{T+3}, v{T+3}, v{A.kv0}
v_mul_f32 v{T+5}, v{T+5}, v{A.kv0}
v_mul_f32 v{T+3}, v{T+3}, v{A.l}
v_mul_f32 v{T+5}, v{T+5}, v{A.l}''')
    for q in range(4): k.e(f'v_pk_mul_f32 {vr(own+2*q,2)}, {vr(own+2*q,2)}, {vr(T+3,2)} op_sel_hi:[1,0]')
    k.dswait(a)
    wr += [wo_reads(k, A.WOA, A.wb, n, n+1) for n in range(5, 8)]
    for q in range(4): k.e(f'v_pk_fma_f32 {vr(own+2*q,2)}, {vr(A.SA+2*q,2)}, {vr(T+5,2)}, {vr(own+2*q,2)} op_sel_hi:[1,0,1]')
    OB = 112
    for q in range(4): k.e(f'v_cvt_pk_bf16_f32 v{OB+q}, v{own+2*q}, v{own+2*q+1}')
    if grp == 1:
        k.e(f's_mov_b64 exec, s[{S.hi32}:{S.hi32+1}]\nv_mov_b32 v{OB+2}, 0\nv_mov_b32 v{OB+3}, 0\ns_mov_b64 exec, -1')
    ob = both_ways(k, [f'buffer_store_dwordx4 {vr(OB,4)}, v{V.ob}, {srd(S.WS)}, 0 offen'])
    stamp(k, 'obstored')
    Lidle = lbl('idle')
    k.e(f's_and_b32 s{S.t3}, s{S.h}, 7\ns_cmp_eq_u32 s{S.t3}, 7\ns_cbranch_scc1 {Lidle}')
    ACC = AC2 = A.ACC
    k.vmwait(js.get('oa7'))
    amf = [mfma(ACC+16*oc, A.WOA+4*(2*n+oc), A.OF+4*n, '0' if n == 0 else ACC+16*oc) for n in range(8) for oc in range(2)]
    mx = maxchain(T, A.OF, 32)
    for n, m in enumerate(amf):
        k.dswait(wr[n]); k.e(m); k.e(mx[n])
        if n < 8: wr.append(wo_reads(k, A.WOA, A.wb, n+8, n+9))
        else: wo_reads(k, A.WOB, 116, 2*(n-8), 2*(n-8)+2)
    sent_check(k, T, A.OF, 32, o_loads(A.OF, A.a0), redo='\n'.join(amf))
    set_srd(k, S.M1, S.pOUT, 1835008)
    k.e(f'''v_add_u32 v{A.a0}, 32768, v{A.a0}''')
    stamp(k, 'Ahalf')
    k.vmwait(ob)
    stamp(k, 'f3seen')
    ol = o_loads(A.OF, A.a0); ids = [k.vmop(l) for l in ol]
    k.e(f'''s_lshl_b32 s{S.t2}, s{S.col}, 5
v_add_u32 v{T}, s{S.t2}, v{V.i32}
v_mul_u32_u24 v{T}, 896, v{T}
v_lshl_add_u32 v{T}, v{V.hh}, 4, v{T}
s_and_b32 s{S.t2}, s{S.h}, 7
s_lshl_b32 s{S.t2}, s{S.t2}, 7
s_lshl_b32 s{S.t3}, s{S.cw}, 5
s_add_u32 s{S.t2}, s{S.t2}, s{S.t3}
v_add_u32 v{A.a2}, s{S.t2}, v{T}
s_and_b32 s{S.t2}, s{S.w}, 1
s_lshl_b32 s{S.t2}, s{S.t2}, 15
s_lshl_b32 s{S.t3}, s{S.cw}, 11
s_add_u32 s{S.t3}, s{S.t3}, s{S.t2}
v_lshl_add_u32 v{A.ks}, v{V.lane}, 4, s{S.t3}
s_lshl_b32 s{S.t3}, s{S.cw}, 13
s_add_u32 s{S.t3}, s{S.t3}, s{S.t2}
v_lshl_add_u32 v{A.vs}, v{V.lane}, 4, s{S.t3}
s_mov_b32 s{S.spin}, {SPINV[0]}''')
    k.dsall()
    k.e('s_barrier')
    for n in range(8):
        L1, L2 = lbl('ob'), lbl('obd'); F = A.OF + 4*n
        chk = f'v_max3_u32 v{T}, v{F}, v{F+1}, v{F+2}\nv_max_u32 v{T}, v{T}, v{F+3}\nv_cmp_eq_u32 vcc, -1, v{T}'
        k.vmwait(ids[n])
        k.e(f'{chk}\ns_cbranch_vccnz {L1}\n{L2}:')
        for oc in range(2): k.e(mfma(ACC+16*oc, A.WOB+4*(2*n+oc), F, ACC+16*oc))
        c = k.cold
        c.e(f'{L1}:\ns_sleep 2')
        for l in ol[n:]: c.e(l)
        c.e(f's_waitcnt vmcnt({7-n})\n{chk}\ns_sub_u32 s{S.spin}, s{S.spin}, 1\ns_cbranch_scc1 {L2}\ns_cbranch_vccnz {L1}\ns_branch {L2}')
    stamp(k, 'Bhalf')
    Ls = [lbl('kq') for _ in range(2)]; Lj = lbl('kqj')
    k.e(f's_bitcmp1_b32 s{S.cw}, 0\ns_cbranch_scc1 {Ls[1]}')
    for par in range(2):
        kq = 2*grp + par
        if par: k.e(f'{Ls[1]}:')
        for p in range(4):
            if p == kq: continue
            k.e(f'ds_write_b128 v{A.ks}, {vr(AC2+8*p,4)} offset:{p*8192}\nds_write_b128 v{A.ks}, {vr(AC2+8*p+4,4)} offset:{p*8192+1024}')
        k.e('s_waitcnt lgkmcnt(0)\ns_barrier')
        srcs = [p for p in range(4) if p != kq]
        for n, p in enumerate(srcs):
            k.e(f'ds_read_b128 {vr(A.OF+8*n,4)}, v{A.vs} offset:{p*2048}\nds_read_b128 {vr(A.OF+8*n+4,4)}, v{A.vs} offset:{p*2048+1024}')
        for n in range(3):
            k.e(f's_waitcnt lgkmcnt({4-2*n})')
            for q in range(4): k.e(f'v_pk_add_f32 {vr(AC2+8*kq+2*q,2)}, {vr(AC2+8*kq+2*q,2)}, {vr(A.OF+8*n+2*q,2)}')
        for q in range(4): k.e(f'v_cvt_pk_bf16_f32 v{A.OF+q}, v{AC2+8*kq+2*q}, v{AC2+8*kq+2*q+1}')
        if par == 0: k.e(f's_branch {Lj}')
    k.e(f'{Lj}:\nbuffer_store_dwordx4 {vr(A.OF,4)}, v{A.a2}, {srd(S.M1)}, 0 offen')
    if grp == 0:
        L = lbl('ep')
        k.e(f'''s_or_b32 s{S.t2}, s{S.h}, s{S.tb}
s_or_b32 s{S.t2}, s{S.t2}, s{S.w}
s_cmp_lg_u32 s{S.t2}, 0
s_cbranch_scc1 {L}''')
        flag_store(k, S.t2, S.tag, sc='')
        k.e(f'{L}:')
    k.e(f'{Lidle}:')
    stamp(k, 'end'); stamp_dump(k)
    k.e('s_endpgm')

DEFAULTS = dict(NH=8, codewarm=5, wowarm=5, warm=False, wo_rot=True, nr8=6, prio_st=False, prio_g1=0, skip=(), spin=0x8000, kvsc='sc1', dbg=(), nodma=False, round_p=True, prio=True, align=True, prof=False,
                nobar=(8, 9, 10, 12, 13, 15, 16, 18, 19, 20, 22, 24, 26), npre=1, f1_step=11, f1_check=24, pre_rate=2, f1r_at=(1, 3),
                wsched={0: [4], 1: [5], 2: [6], 3: [7, 14], 4: [21, 8, 9], 5: [10, 11], 6: [12, 13], 7: [15, 16], 9: [17, 18], 11: [19, 20],
                        13: [22], 14: [23], 16: [24], 17: [25], 19: [26], 21: [27]},
                pump_hi=2, pump_hi2=5, oclr_at=(6, 6, 7, 7, 8, 8, 9, 9), ybar=4, ychk_at=22, wo_at=15,
                kv_at=((0, 1, 2, 5, 8, 10, 16, 17), (0, 1, 2, 5, 9, 11, 16, 17)), afin_at=18, oa_at=26)

def build(**kw):
    opts = dict(DEFAULTS); opts.update(kw)
    issue = {w: s_ for s_, ws_ in opts['wsched'].items() for w in ws_}
    for w in range(4, 28):
        size = lambda x: 8192 if x // 7 in (0, 3) else 4096
        for p in range(w):
            if WADDR[p] < WADDR[w] + size(w) and WADDR[w] < WADDR[p] + size(p):
                b = p + 1
                while b in opts['nobar']: b += 1
                assert issue[w] >= b, (w, p, b)
        b = w
        while b in opts['nobar']: b -= 1
        assert issue[w] < b, (w, b)
    _lbl[0] = 0; PROF[0] = opts['prof']; STAMPS.clear(); DBG.clear(); DBG.update(opts['dbg']); KVSC[0] = opts['kvsc']; PRIO_ST[0] = opts['prio_st']; SPINV[0] = opts['spin']
    k = Stream(); k.cold = Stream()
    prologue(k, opts['NH'])
    ids = {}
    head = k
    streams = []; checks = []
    for grp in range(2):
        fb = Stream(); idg = dict(ids); st_id = None
        if grp == 0:
            g = head.fork()
            prologue0(g, idg)
            rot_offsets(g)
            dma_x(g, 1, True); idg[1] = dma_w(g, 1, True)
            setup2(g)
            dma_x(g, 2, True); idg[2] = dma_w(g, 2, True)
            g.e(HEADS()); slice_setup(g); idg[3] = dma_w(g, 3, True); stage0(g, 0, idg, True, opts); pre = g.text(); opts['_gw'] = [g.gw_id, g.wphi_id]
        else:
            h1 = head.fork(); prologue1(h1, opts)
            kk, kv = head.fork(), head.fork()
            for z, kt in ((kv, False), (kk, True)):
                z.e(tr_base0(kt)); prologue1b(z); stage0(z, 1, dict(ids), kt, opts); st_id = stage0_epilogue(z, kt)
            assert [x[1] for x in kk.vm if not x[1]] == [x[1] for x in kv.vm if not x[1]]
            pre = h1.text() + f'  s_cmp_ge_u32 s{S.j}, 7\n  s_cbranch_scc1 L_vtile\n' + kk.text() + '  s_branch L_mid\nL_vtile:\n' + kv.text() + 'L_mid:\n'
            g = kk
        g = g.fork(); g.cold = Stream(); g.pre = pre
        pend = stages12(g, idg, grp, st_id, opts)
        st = attn_prologue(g, grp, pend, opts)
        js, wo, wa = attention(g, grp, st, opts, pend)
        tail(g, grp, js, wo, wa, opts, fb)
        fb2 = Stream(); fb2.L = fb.L + g.cold.L
        streams.append((g, fb2))
    body = head.text()
    body += streams[0][0].pre + streams[0][0].text() + streams[0][1].text()
    body += 'L_grp1:\n' + streams[1][0].pre + streams[1][0].text() + streams[1][1].text()
    body += 'L_end:\n  s_endpgm\n'
    bl, checks = fix_hazards(body.rstrip('\n').split('\n'));
    if opts['align']: bl, st_ = align_runs([NAME + ':'] + bl); bl = bl[1:]; checks.append(f'align: widened {st_[0]}, nops {st_[1]}, left {st_[2]}')
    body = '\n'.join(bl) + '\n'
    ref = open('gated_mix__linear_kernel_hedgehog__softmax_full_mha__prompt.s.ref').read()
    hdr = ref[:ref.index('; @launch')]
    txt = hdr + f'''; @launch grid=(256,1,1) block=(512,1,1) lds=163840
.amdgcn_target "amdgcn-amd-amdhsa--gfx950"
.text
.globl {NAME}
.p2align 8
.type {NAME},@function
{NAME}:
{body}.section .rodata,"a"
.p2align 6
.amdhsa_kernel {NAME}
  .amdhsa_next_free_vgpr 256
  .amdhsa_next_free_sgpr 102
  .amdhsa_accum_offset 256
  .amdhsa_group_segment_fixed_size 0
  .amdhsa_kernarg_size 88
  .amdhsa_user_sgpr_count 2
  .amdhsa_user_sgpr_kernarg_segment_ptr 1
  .amdhsa_system_sgpr_workgroup_id_x 1
.end_amdhsa_kernel
'''
    return txt, checks

if __name__ == '__main__':
    out = sys.argv[1] if len(sys.argv) > 1 else 'gated_mix__linear_kernel_hedgehog__softmax_full_mha__prompt.s'
    kw = {}
    for a in sys.argv[2:]:
        n, v = a.split('='); kw[n] = eval(v)
    txt, msgs = build(**kw)
    for m in msgs: print('  auto', m)
    open(out, 'w').write(txt)
    print('wrote', out, len(txt), 'bytes')
    if STAMPS: open(out + '.stamps', 'w').write('\n'.join(STAMPS))
```

```python
import re

class Stream:
    def __init__(self):
        self.L = []
        self.vm = []
        self._id = [0]
        self.dq = []
    def fork(self):
        s = Stream(); s.vm = [list(x) for x in self.vm]; s._id = self._id; s.dq = list(self.dq); return s
    def ds(self, txt):
        if len(self.dq) >= 14:
            self.e('s_waitcnt lgkmcnt(8)'); self.dq = self.dq[-8:]
        self._id[0] += 1; self.dq.append(self._id[0]); self.e(txt); return self._id[0]
    def dswait(self, id):
        if id not in self.dq: return
        i = self.dq.index(id); n = min(14, len(self.dq) - i - 1)
        self.e(f's_waitcnt lgkmcnt({n})'); self.dq = self.dq[len(self.dq)-n:] if n else []
    def dsall(self, emit=True):
        if emit: self.e('s_waitcnt lgkmcnt(0)')
        self.dq = []
    def e(self, txt):
        for ln in txt.strip('\n').split('\n'):
            if ln.strip(): self.L.append(ln.strip())
    def c(self, txt): self.L.append('; ' + txt)
    def vmop(self, txt, opt=False):
        self._id[0] += 1
        self.vm.append([self._id[0], opt]); self.e(txt); return self._id[0]
    def vmcount(self, id, count_opt=False):
        idx = [k for k, x in enumerate(self.vm) if x[0] == id]
        if not idx: return None
        return sum(1 for x in self.vm[idx[0]+1:] if count_opt or not x[1])
    def vmwait(self, id, extra='', count_opt=False, keep=False):
        n = self.vmcount(id, count_opt) if id is not None else None
        if n is None:
            if extra: self.e('s_waitcnt ' + extra)
            return
        assert n <= 63
        self.e(f's_waitcnt vmcnt({n}) {extra}'.strip())
        if not keep:
            idx = [k for k, x in enumerate(self.vm) if x[0] == id][0]
            self.vm = self.vm[idx+1:]
    def vmall(self, extra=''):
        self.e(f's_waitcnt vmcnt(0) {extra}'.strip()); self.vm = []
    def text(self):
        out = []
        for ln in self.L:
            out.append(ln if (ln.endswith(':') or ln.startswith('.')) else '  ' + ln)
        return '\n'.join(out) + '\n'

def regs_of(tok):
    tok = tok.strip()
    m = re.fullmatch(r'-?\|?(?:abs\()?([vsa])(\d+)\)?\|?', tok)
    if m: return [(m.group(1), int(m.group(2)))]
    m = re.fullmatch(r'-?\|?([vsa])\[(\d+):(\d+)\]\|?', tok)
    if m: return [(m.group(1), k) for k in range(int(m.group(2)), int(m.group(3))+1)]
    if tok == 'vcc': return [('s', 'vcc')]
    if tok in ('exec', 'exec_lo', 'exec_hi'): return [('s', 'exec')]
    if tok == 'm0': return [('s', 'm0')]
    return []
TRANS = ('v_exp_', 'v_log_', 'v_rcp_', 'v_rsq_', 'v_sqrt_', 'v_sin_', 'v_cos_')
def parse(ln):
    ln = ln.split(';')[0].strip()
    if not ln or ln.endswith(':') or ln.startswith('.'): return None
    parts = ln.split(None, 1)
    op = parts[0]
    rest = parts[1] if len(parts) > 1 else ''
    ops = [t.strip() for t in rest.split(',')]
    if ops:
        last = ops[-1].split()
        if last: ops[-1] = last[0]
    mods = rest
    d = dict(op=op, ops=ops, mods=mods, W=[], R=[], kind='other')
    R = lambda toks: [x for t in toks for x in regs_of(t)]
    if op.startswith('v_mfma'):
        d.update(kind='mfma', W=R(ops[:1]), A=R(ops[1:3]), C=R(ops[3:4])); d['R'] = d['A'] + d['C']
        d['passes'] = 8 if '32x32' in op else 4
    elif op.startswith('v_smfmac'):
        d.update(kind='mfma', W=R(ops[:1]), A=R(ops[1:4]), C=R(ops[:1])); d['R'] = d['A'] + d['C']
        d['passes'] = 8 if '32x32' in op else 4
    elif op.startswith('v_cmp'):
        d.update(kind='valu', W=R(ops[:1]), R=R(ops[1:]))
    elif op.startswith('v_permlane'):
        d.update(kind='valu', W=R(ops[:2]), R=R(ops[:2]), perm=True)
    elif op.startswith('v_readfirstlane') or op.startswith('v_readlane'):
        d.update(kind='valu', W=R(ops[:1]), R=R(ops[1:]), rdlane=True)
    elif op.startswith('v_'):
        d.update(kind='valu', W=R(ops[:1]), R=R(ops[1:]))
        if op.startswith('v_fmac') or op.startswith('v_dot2c') or 'UNUSED_PRESERVE' in mods: d['R'] += d['W']
        if op.startswith('v_cndmask') and len(ops) == 3: d['R'] += [('s', 'vcc')]
        if '_co_' in op: d['W'] = R(ops[:2]); d['R'] = R(ops[2:])
        d['trans'] = op.startswith(TRANS)
        d['dpp'] = '_dpp' in op or 'row_' in mods or 'quad_perm' in mods
        d['sdwa'] = '_sdwa' in op
    elif op.startswith('buffer_load') or op.startswith('global_load'):
        if ' lds' in (' ' + mods) or '_lds_' in op: d.update(kind='vmem', R=R(ops) + [('s', 'm0')], dma=True)
        else: d.update(kind='vmem', W=R(ops[:1]), R=R(ops[1:]), load=True)
    elif op.startswith('buffer_store') or op.startswith('buffer_atomic'):
        d.update(kind='vmem', R=R(ops), data=R(ops[:1]), wide=('x3' in op or 'x4' in op))
    elif op.startswith('buffer_') or op.startswith('global_'):
        d.update(kind='vmem', R=R(ops))
    elif op.startswith('ds_read') or op.startswith('ds_bpermute') or op.startswith('ds_swizzle'):
        d.update(kind='ds', W=R(ops[:1]), R=R(ops[1:]), load=True)
    elif op.startswith('ds_'):
        d.update(kind='ds', R=R(ops))
    elif op == 's_nop':
        d.update(kind='nop', n=int(ops[0], 0) + 1)
    elif op.startswith('s_'):
        nodst = op.startswith(('s_cmp', 's_cbranch', 's_branch', 's_waitcnt', 's_barrier', 's_endpgm', 's_sleep', 's_setprio', 's_bitcmp'))
        d.update(kind='salu', W=[] if nodst else R(ops[:1]), R=R(ops if nodst else ops[1:]))
        if 'saveexec' in op: d['W'] += [('s', 'exec')]
    return d

def need_between(p, c):
    need = 0; why = ''
    pw = set(p['W']); cr = set(c['R']); cw = set(c['W'])
    vw = {x for x in pw if x[0] in 'va'}; sw = {x for x in pw if x[0] == 's'}
    def up(n, w):
        nonlocal need, why
        if n > need: need, why = n, w
    if p['kind'] == 'valu':
        if c['kind'] == 'mfma' and vw & cr: up(2, 'valu->mfma')
        if c['kind'] == 'valu':
            if p.get('trans') and vw & cr: up(1, 'trans->valu')
            if c.get('perm') and vw & cr: up(2, 'valu->permlane')
            if c.get('dpp') and vw & cr: up(2, 'valu->dpp')
            if c.get('rdlane') and vw & cr: up(1, 'valu->readlane')
            if p.get('sdwa') and vw & (cr | cw): up(1, 'sdwa->valu')
            if sw & cr: up(2, 'valu sgpr->valu')
        if c['kind'] == 'vmem' and sw & cr: up(5, 'valu sgpr->vmem')
        if c['kind'] == 'salu' and sw & cr: up(1, 'valu sgpr->salu')
        if p.get('trans') and c['kind'] in ('vmem', 'ds') and vw & cr: up(1, 'trans->mem')
    if p['kind'] == 'mfma':
        n = {8: 12, 4: 8}[p['passes']]
        if c['kind'] == 'mfma':
            if vw & set(c['A']): up(n, 'mfma D->mfma AB')
            elif vw & set(c['C']):
                if not (p['W'] == c['C'] and p['passes'] == c['passes']): up(n-2, 'mfma D->mfma C overlap')
            elif vw & cw and not (p['W'] == c['W']): up(n-2, 'mfma WAW overlap')
        elif c['kind'] in ('valu', 'vmem', 'ds'):
            if vw & (cr | cw): up(n, 'mfma D->valu/mem')
        if c['kind'] == 'valu' and set(p['C']) & cw: up({8: 7, 4: 3}[p['passes']], 'mfma C WAR valu')
    if p['kind'] == 'vmem' and p.get('wide') and set(p['data']) & cw:
        up(2 if c['kind'] == 'valu' else 1, 'store data WAR')
    if p['kind'] == 'salu' and ('s', 'm0') in pw and c.get('dma'): up(1, 'm0->dma')
    return need, why

def fix_hazards(lines):
    log = []
    while True:
        ins = []; lab = {}
        for k, ln in enumerate(lines):
            t = ln.strip()
            if t.endswith(':'): lab[t[:-1]] = len(ins); continue
            p = parse(t)
            if p: p['k'] = k; p['ln'] = t; ins.append(p)
        br = {}
        for i, p in enumerate(ins):
            if p['op'].startswith(('s_cbranch', 's_branch')): br.setdefault(lab[p['ops'][0]], []).append(i)
        def preds(i):
            r = list(br.get(i, []))
            if i > 0 and ins[i-1]['op'] not in ('s_branch', 's_endpgm'): r.append(i-1)
            return r
        fixes = []
        for i, c in enumerate(ins):
            if c['kind'] in ('nop', 'other'): continue
            worst = 0; info = None
            best = {}; stack = [(j, 0) for j in preds(i)]
            while stack:
                j, d = stack.pop()
                if best.get(j, 99) <= d: continue
                best[j] = d
                n, why = need_between(ins[j], c)
                if n - d > worst: worst, info = n - d, (why, ins[j]['ln'])
                d2 = d + ins[j].get('n', 1)
                if d2 < 12: stack += [(q, d2) for q in preds(j)]
            if worst > 0:
                fixes.append((c['k'], worst)); log.append(f'nop {worst} before [{c["ln"]}] ({info[0]}: {info[1]})')
                break
        if not fixes: return lines, log
        k, w = fixes[0]
        lines = lines[:k] + [f'  s_nop {w-1}'] + lines[k:]


import subprocess, os, tempfile
WIDEN = ('v_mov_b32', 'v_add_f32', 'v_mul_f32', 'v_sub_f32', 'v_max_f32', 'v_exp_f32', 'v_rcp_f32', 'v_lshlrev_b32', 'v_lshrrev_b32',
         'v_and_b32', 'v_xor_b32', 'v_or_b32', 'v_add_u32', 'v_sub_u32', 'v_subrev_u32', 'v_max_u32', 'v_min_u32', 'v_mul_u32_u24')
def sizes(lines):
    src = '.amdgcn_target "amdgcn-amd-amdhsa--gfx950"\n.text\n' + '\n'.join(lines) + '\n'
    with tempfile.TemporaryDirectory() as d:
        open(d + '/a.s', 'w').write(src)
        subprocess.run(['clang', '-x', 'assembler', '-target', 'amdgcn-amd-amdhsa', '-mcpu=gfx950', '-c', d + '/a.s', '-o', d + '/a.o'], check=True)
        out = subprocess.run(['llvm-objdump', '-d', '--mcpu=gfx950', d + '/a.o'], capture_output=True, text=True).stdout
    sz = [4*len(m.group(1).split()) for m in re.finditer(r'// [0-9A-F]{12}: ([0-9A-F ]+)', out)]
    idx = [k for k, ln in enumerate(lines) if parse(ln.strip())]
    assert len(sz) == len(idx), (len(sz), len(idx))
    return idx, sz
def align_runs(lines, minrun=4):
    idx, sz = sizes(lines); lines = list(lines); ins = []; shift = 0; addr = 0; n = len(idx); stats = [0, 0, 0]
    i = 0
    while i < n:
        if sz[i] == 8:
            j = i
            while j < n and sz[j] == 8: j += 1
            slow = sum(lines[idx[q]].strip().startswith(('v_mfma', 'v_smfmac', 'buffer_')) for q in range(i, j))
            if (addr + shift) % 8 == 4 and (j - i) - slow >= minrun:
                p = lines[idx[i-1]].strip(); op = p.split()[0]
                contiguous = all(not lines[q].strip().endswith(':') for q in range(idx[i-1], idx[i]))
                if op in WIDEN and sz[i-1] == 4 and contiguous:
                    lines[idx[i-1]] = lines[idx[i-1]].replace(op, op + '_e64', 1); shift += 4; stats[0] += 1
                elif (j - i) - slow >= 6:
                    ins.append(idx[i]); shift += 4; stats[1] += 1
                else: stats[2] += 1
            addr += 8*(j - i); i = j
        else:
            addr += sz[i]; i += 1
    for k in reversed(ins): lines.insert(k, '  s_nop 0')
    return lines, stats


def check_waits(lines, choose):
    lab = {ln.strip()[:-1]: k for k, ln in enumerate(lines) if ln.strip().endswith(':')}
    vm = []; lg = []; msgs = []; i = 0; steps = 0
    while i < len(lines) and steps < 200000:
        steps += 1
        t = lines[i].strip(); p = parse(t); i += 1
        if not p: continue
        op = p['op']
        if op == 's_endpgm': break
        if op == 's_branch': i = lab[p['ops'][0]]; continue
        if op.startswith('s_cbranch'):
            if choose(p['ops'][0]): i = lab[p['ops'][0]]
            continue
        if op == 's_waitcnt':
            m = re.search(r'vmcnt\((\d+)\)', t)
            if m: vm = vm[len(vm)-int(m.group(1)):] if int(m.group(1)) < len(vm) and int(m.group(1)) else ([] if not int(m.group(1)) else vm)
            m = re.search(r'lgkmcnt\((\d+)\)', t)
            if m:
                n = int(m.group(1))
                if n == 0: lg = []
                elif any(x[0] == 'smem' for x in lg): msgs.append(f'counted lgkm wait with a scalar load in flight: line {i}: {t}')
                elif n < len(lg): lg = lg[len(lg)-n:]
            continue
        used = set(p['R']) | set(p['W'])
        for q, name in ((vm, 'vm'), (lg, 'lgkm')):
            for kind, regs, src in q:
                if regs & used and not (p.get('load') and regs & set(p['W']) and not regs & set(p['R'])):
                    msgs.append(f'{name} load still in flight: line {i}: {t}   <- {src}')
        if p['kind'] == 'vmem': vm.append(('v', set(p['W']), t))
        elif p['kind'] == 'ds': lg.append(('ds', set(p['W']), t))
        elif op.startswith(('s_load', 's_memtime', 's_memrealtime')): lg.append(('smem', set(p['W']) - {('s', 75)}, t))
    return msgs
```

```python
import sys, struct
from asmlib import Stream, fix_hazards, align_runs, check_waits

NAME = 'gated_mix__linear_kernel_hedgehog__softmax_full_mha__prompt_kernel'
def fbits(x): return '0x%08x' % struct.unpack('<I', struct.pack('<f', x))[0]
LOG2E = 1.4426950408889634
QSCALE = 28 ** -0.5 * LOG2E

WS_FLAG1, WS_FLAG2, WS_FLAG3A, WS_FLAG3B = 0x40000, 0x20000, 0x60000, 0x80000
WS_KV, WS_KVP, WS_KVF, WS_OX, WS_DBG = 0x100000, 0x500000, 0x700000, 0x800000, 0x1000000
WS_SIZE = 0x2000000
OOB = 0x40000000
L_WR = 65536
WADDR = [(4+c)*8192 for c in range(7)] + [c*4096 for c in range(7)] + [(7+c)*4096 for c in range(7)] + [c*8192 for c in (7, 8, 9, 10, 0, 1, 2)]
L_PHI, L_QX, L_STG = L_WR + 4*8192, L_WR + 6*8192, L_WR + 7*8192
L_WPHI, L_G, L_SEL = 155648, 159744, 161792
HQ = [4, 6, 2, 3, 0, 5, 1, 7, 8, 14, 10, 15, 12, 13, 9, 11]
L_WOA, L_CX = 98304, 32768
SPINV = [0x8000]

class S:
    X, W, WS, M1, M2, W2 = 4, 8, 12, 16, 20, 68
    pX, pWA, pPHI, pWOA, pWB, pWOB, pGW, pOUT, pWS = 24, 26, 28, 30, 32, 34, 36, 38, 40
    h, tb, w, tt, grp, hA, j, tag, r0, hQ, cw, col = 44, 45, 46, 47, 48, 49, 50, 51, 52, 53, 54, 55
    mX, mW, t0, t1, t2, t3, t4, t5 = 56, 57, 58, 59, 60, 61, 62, 63
    vcm = 64
    rot, sK, mK, spin, rdy, rb = 72, 73, 74, 75, 76, 77
    lo28 = 76
    hi32 = 78
    t6, t7, t8, t9 = 80, 81, 82, 83
    ow, ox = 84, 91
def srd(b): return f's[{b}:{b+3}]'
def vr(b, n): return f'v[{b}:{b+n-1}]' if n > 1 else f'v{b}'

class V:
    lane, i32, hh = 1, 2, 3
    xa0, xa1, w0, ws = 4, 5, 6, 7
    xr = 8
    t0r, t1r, t2r = 12, 6, 14
    g = 15
    t3r = 11
    wsb, ws2, ws2b = 13, 244, 245
    acc0, acc1, P, EP, EM = 16, 32, 48, 64, 80
    wf = 96
    xf = 128
    gw0, gw1, ob = 4, 254, 246
    tmp = 247

def mfma(d, a, b, c): return f'v_mfma_f32_32x32x16_bf16 {vr(d,16)}, {vr(a,4)}, {vr(b,4)}, {c if isinstance(c,str) else vr(c,16)}'
def smfma(d, a, b, idx): return f'v_smfmac_f32_32x32x32_bf16 {vr(d,16)}, {vr(a,4)}, {vr(b,8)}, v{idx}'

PROF = [False, 0]
DBG = set()
KVSC = ['sc1']
PRIO_ST = [True]
STAMPS = []
def stamp(k, name):
    if not PROF[0]: return
    if PROF[0] != True and 'abs:' + name in PROF[0]:
        L = lbl('ab')
        k.e(f'''s_cmp_lg_u32 s{S.w}, 0
s_cbranch_scc1 {L}
s_memrealtime s[98:99]
s_load_dwordx2 s[84:85], s[0:1], 72
s_waitcnt lgkmcnt(0)
s_mov_b32 s86, 256
s_mov_b32 s87, 0x20000
s_not_b32 s99, s101
v_mov_b32 v0, 0
v_writelane_b32 v0, 64, 1
v_mov_b32 v{V.tmp+6}, {'s101' if 'start' in PROF[0] else 's98'}
v_writelane_b32 v{V.tmp+6}, s99, 1
s_mov_b64 exec, 3
buffer_atomic_umax v{V.tmp+6}, v0, s[84:87], 0 offen sc1
s_mov_b64 exec, -1
{L}:''')
        k.dq = []
        return
    if PROF[0] != True and name not in PROF[0]: return
    if name not in STAMPS: STAMPS.append(name)
    n = STAMPS.index(name)
    k.e(f's_memtime s[98:99]\ns_waitcnt lgkmcnt(0)\ns_sub_u32 s98, s98, s100\nv_writelane_b32 v0, s98, {n}')
    if PROF[0] != True and 'rt' in PROF[0]:
        k.e(f's_memrealtime s[98:99]\ns_waitcnt lgkmcnt(0)\ns_sub_u32 s98, s98, s101\nv_writelane_b32 v0, s98, {n+30}')
    k.dq = []
def stamp_dump(k):
    if not PROF[0]: return
    sp = [x for x in PROF[0] if x.startswith('spin')]
    if sp:
        L = lbl('spin'); mode = sp[0][4]
        k.e(f's_or_b32 s90, s2, s{S.w}\ns_cmp_lg_u32 s90, 0\ns_cbranch_scc1 {L}_e')
        if mode == 'A': k.e('s_add_u32 s91, s101, 6000')
        if mode == 'B': k.e('s_memrealtime s[98:99]\ns_waitcnt lgkmcnt(0)\ns_sub_u32 s91, s98, s101\ns_mul_i32 s91, s91, 4\ns_add_u32 s91, s91, s98')
        if mode == 'C': k.e('s_memtime s[98:99]\ns_waitcnt lgkmcnt(0)\ns_add_u32 s91, s98, 100000')
        if mode == 'E':
            k.e(f's_load_dwordx2 s[84:85], s[0:1], 72\ns_waitcnt vmcnt(0) lgkmcnt(0)\ns_mov_b32 s86, 256\ns_mov_b32 s87, 0x20000\nbuffer_load_dword v{V.tmp}, v0, s[84:87], 0 offen sc1\ns_memrealtime s[98:99]\ns_waitcnt vmcnt(0) lgkmcnt(0)\nv_readlane_b32 s90, v{V.tmp}, 0\nv_readlane_b32 s91, v{V.tmp}, 1\ns_nop 3\ns_not_b32 s91, s91\ns_sub_u32 s90, s90, s91\ns_lshl_b32 s90, s90, 2\ns_add_u32 s91, s90, s98')
        if mode == 'F':
            k.e('s_memrealtime s[98:99]\nv_readlane_b32 s90, v0, 30\ns_waitcnt lgkmcnt(0)\ns_lshl_b32 s90, s90, 2\ns_add_u32 s91, s90, s98')
        if mode == 'D':
            k.e('s_memrealtime s[98:99]\nv_readlane_b32 s90, v0, 0\ns_waitcnt lgkmcnt(0)\ns_mul_i32 s90, s90, 13107\ns_lshr_b32 s90, s90, 16\ns_add_u32 s91, s90, s98')
        k.e(f'{L}:\n{"s_memtime" if mode == "C" else "s_memrealtime"} s[98:99]\ns_waitcnt lgkmcnt(0)\ns_sub_u32 s90, s98, s91\ns_cmp_lt_i32 s90, 0\ns_cbranch_scc1 {L}\n{L}_e:')
        return
    if 'dbg' in PROF[0]:
        T = V.tmp
        k.e(f'''s_memrealtime s[98:99]
s_memtime s[96:97]
s_load_dwordx2 s[92:93], s[0:1], 72
s_getreg_b32 s90, hwreg(HW_REG_XCC_ID, 0, 4)
s_waitcnt lgkmcnt(0)
s_mov_b32 s94, 256
s_mov_b32 s95, 0x20000
s_sub_u32 s96, s96, s100
s_sub_u32 s91, s98, s101
s_not_b32 s89, s101
v_mov_b32 v{T}, 0
v_mov_b32 v{T+1}, s98
v_writelane_b32 v{T}, 4, 1
v_writelane_b32 v{T+1}, s89, 1
v_writelane_b32 v{T}, 8, 2
v_writelane_b32 v{T+1}, s101, 2
v_writelane_b32 v{T}, 12, 3
v_writelane_b32 v{T+1}, s96, 3
v_writelane_b32 v{T}, 16, 4
v_writelane_b32 v{T+1}, s91, 4
s_lshl_b32 s90, s90, 2
s_add_u32 s90, s90, 32
v_writelane_b32 v{T}, s90, 5
v_writelane_b32 v{T+1}, s89, 5
s_mov_b64 exec, 63
buffer_atomic_umax v{T+1}, v{T}, s[92:95], 0 offen''')
        return
    k.e(f'''s_memrealtime s[98:99]
s_waitcnt lgkmcnt(0)
v_writelane_b32 v0, s98, 63
v_writelane_b32 v0, s101, 62
s_lshl_b32 s98, s2, 3
s_add_u32 s98, s98, s{S.w}
s_lshl_b32 s98, s98, 8
s_add_u32 s98, s98, {WS_DBG}
v_lshl_add_u32 v{V.tmp}, v{V.lane}, 2, s98
buffer_store_dword v0, v{V.tmp}, {srd(S.WS)}, 0 offen''')

def set_srd(k, b, ptr, n):
    k.e(f's_mov_b32 s{b}, s{ptr}\ns_mov_b32 s{b+1}, s{ptr+1}\ns_mov_b32 s{b+2}, {n}\ns_mov_b32 s{b+3}, 0x20000')

def prologue(k, NH):
    T = V.tmp
    lg = {2: 1, 4: 2, 8: 3, 16: 4}[NH]; ng = 16 // NH
    k.e(f'''
s_cmp_ge_u32 s2, 256
s_cbranch_scc1 L_end
{'s_memtime s[100:101]' if PROF[0] else ''}
{'s_memrealtime s[98:99]' if PROF[0] else ''}
s_load_dwordx4 s[24:27], s[0:1], 0
s_load_dwordx4 s[32:35], s[0:1], 40
v_lshrrev_b32 v{T}, 6, v0
s_load_dwordx2 s[40:41], s[0:1], 80
v_readfirstlane_b32 s{S.w}, v{T}
s_load_dwordx4 s[28:31], s[0:1], 16
s_load_dwordx4 s[36:39], s[0:1], 56
v_and_b32 v{V.lane}, 63, v0
s_and_b32 s{S.t0}, s2, 7
s_lshr_b32 s{S.t1}, s2, 3
s_and_b32 s{S.h}, s{S.t0}, {ng-1}
s_and_b32 s{S.t2}, s{S.t1}, {NH-1}
s_lshl{lg}_add_u32 s{S.h}, s{S.h}, s{S.t2}
s_lshr_b32 s{S.tb}, s{S.t0}, {4-lg}
s_lshr_b32 s{S.t2}, s{S.t1}, {lg}
s_lshl{5-lg}_add_u32 s{S.tb}, s{S.tb}, s{S.t2}
s_and_b32 s{S.tt}, s{S.w}, 3
s_cmp_ge_u32 s{S.w}, 4
s_cbranch_scc1 L_grp1
''')
ROT0 = lambda: f'''; rotation r0 = (2 h + 3 tb) mod 7
s_mul_i32 s{S.t2}, s{S.tb}, 3
s_lshl1_add_u32 s{S.r0}, s{S.h}, s{S.t2}
s_mul_i32 s{S.t2}, s{S.r0}, 147
s_lshr_b32 s{S.t2}, s{S.t2}, 10
s_mul_i32 s{S.t2}, s{S.t2}, 7
s_sub_u32 s{S.r0}, s{S.r0}, s{S.t2}
s_lshl_b32 s{S.ox}, s{S.r0}, 7'''
TILE = lambda: f'''; tile j = h - (h>5) - (h>10); idle when h is 5 or 10
s_cmp_gt_u32 s{S.h}, 5
s_subb_u32 s{S.j}, s{S.h}, 0
s_cmp_gt_u32 s{S.h}, 10
s_subb_u32 s{S.j}, s{S.j}, 0'''
HEADS = lambda: f'''s_xor_b32 s{S.hA}, s{S.h}, 1
s_mov_b32 s{S.vcm}, {sum(HQ[i] << (4*i) for i in range(8))}
s_mov_b32 s{S.vcm+1}, {sum(HQ[8+i] << (4*i) for i in range(8))}
s_lshl_b32 s{S.t2}, s{S.h}, 2
s_lshr_b64 s[{S.vcm}:{S.vcm+1}], s[{S.vcm}:{S.vcm+1}], s{S.t2}
s_and_b32 s{S.hQ}, s{S.vcm}, 15'''
def prologue0(k, ids):
    T = V.tmp
    k.e(ROT0())
    k.e(f'''
s_lshl_b32 s{S.mX}, s{S.w}, 11
v_lshrrev_b32 v{T}, 3, v{V.lane}
v_and_b32 v{T+1}, 7, v{V.lane}
v_bfe_u32 v{T+2}, v{V.lane}, 4, 2
v_xor_b32 v{T+2}, v{T+1}, v{T+2}
v_mul_u32_u24 v{V.xa0}, 896, v{T}
v_lshl_add_u32 v{V.xa0}, v{T+2}, 4, v{V.xa0}
s_lshl3_add_u32 s{S.t2}, s{S.tb}, s{S.w}
s_mul_i32 s{S.t2}, s{S.t2}, 14336
v_add_u32 v{V.xa0}, s{S.t2}, v{V.xa0}
v_add_u32 v{V.xa1}, 7168, v{V.xa0}
v_xor_b32 v{V.xa1}, 64, v{V.xa1}
s_mov_b32 s{S.X+2}, 1835008
s_mov_b32 s{S.X+3}, 0x20000
s_waitcnt lgkmcnt(0)
{'s_mov_b32 s101, s98' if PROF[0] else ''}
s_mov_b32 s{S.X}, s{S.pX}
s_mov_b32 s{S.X+1}, s{S.pX+1}
''')
    dma_x(k, 0, True)
    k.e(TILE())
    k.e(f'''
s_mul_i32 s{S.ow}, s{S.ox}, 1344
s_lshl_b32 s{S.mW}, s{S.w}, 10
s_add_u32 s{S.mW}, s{S.mW}, {L_WR}
v_bfe_u32 v{T+2}, v{V.lane}, 4, 1
v_lshlrev_b32 v{T+2}, 2, v{T+2}
v_xor_b32 v{T+2}, v{T+1}, v{T+2}
v_mul_u32_u24 v{V.w0}, 2688, v{T}
v_lshl_add_u32 v{V.w0}, v{T+2}, 4, v{V.w0}
s_mul_i32 s{S.t2}, s{S.w}, 21504
s_lshl_b32 s{S.t3}, s{S.j}, 7
s_add_u32 s{S.t2}, s{S.t2}, s{S.t3}
s_add_u32 s{S.t2}, s{S.t2}, 896
v_add_u32 v{V.w0}, s{S.t2}, v{V.w0}
s_cmp_eq_u32 s{S.h}, 5
s_cselect_b32 s{S.t4}, 0, 1204224
s_cmp_eq_u32 s{S.h}, 10
s_cselect_b32 s{S.W+2}, 0, s{S.t4}
s_mov_b32 s{S.W+3}, 0x20000
s_mov_b32 s{S.W}, s{S.pWB}
s_mov_b32 s{S.W+1}, s{S.pWB+1}
''')
    ids[0] = dma_w(k, 0, True)
    k.e(f's_load_dword s{S.tag}, s[{S.pWS}:{S.pWS+1}], 0')
def prologue1(k, opts):
    k.e(TILE()); k.e(HEADS())
    if opts['codewarm']:
        k.e(f'''s_getpc_b64 s[{S.vcm}:{S.vcm+1}]
L_pc:
s_lshl2_add_u32 s{S.t2}, s{S.t1}, s{S.tt}
s_mul_i32 s{S.t2}, s{S.t2}, {opts['codewarm']*64}
s_min_u32 s{S.t2}, s{S.t2}, L_end-{NAME}-{opts['codewarm']*64}
s_sub_u32 s{S.vcm}, s{S.vcm}, L_pc-{NAME}
s_subb_u32 s{S.vcm+1}, s{S.vcm+1}, 0
s_add_u32 s{S.vcm}, s{S.vcm}, s{S.t2}
s_addc_u32 s{S.vcm+1}, s{S.vcm+1}, 0''')
    k.e(f'''s_waitcnt lgkmcnt(0)
{'s_mov_b32 s101, s98' if PROF[0] else ''}
s_load_dword s{S.tag}, s[{S.pWS}:{S.pWS+1}], 0''')
    for q in range(opts['codewarm']): k.e(f's_load_dword s{S.spin}, s[{S.vcm}:{S.vcm+1}], {q*64}')
    if opts['flagwarm']:
        ld = f's_load_dword s{S.spin}, s[{S.pWS}:{S.pWS+1}], s{S.t3}'
        k.e(f'''s_lshl4_add_u32 s{S.t2}, s{S.j}, s{S.tb}
s_lshl2_add_u32 s{S.t2}, s{S.t2}, s{S.tt}
s_lshl_b32 s{S.t2}, s{S.t2}, 6
s_add_u32 s{S.t3}, s{S.t2}, {WS_FLAG1}
{ld}
s_lshl3_add_u32 s{S.t2}, s{S.hA}, s{S.tt}
s_lshl4_add_u32 s{S.t2}, s{S.t2}, s{S.tb}
s_lshl_b32 s{S.t2}, s{S.t2}, 6
s_add_u32 s{S.t3}, s{S.t2}, {WS_FLAG2}
{ld}
s_add_u32 s{S.t3}, s{S.t2}, {WS_FLAG2 + 4096}
{ld}
s_lshl2_add_u32 s{S.t4}, s{S.tb}, s{S.tt}
s_lshl4_add_u32 s{S.t2}, s{S.t4}, s{S.hQ}
s_lshl_b32 s{S.t2}, s{S.t2}, 6
s_add_u32 s{S.t3}, s{S.t2}, {WS_FLAG3A}
{ld}
s_lshl4_add_u32 s{S.t2}, s{S.t4}, s{S.h}
s_lshl_b32 s{S.t2}, s{S.t2}, 7
s_add_u32 s{S.t3}, s{S.t2}, {WS_FLAG3B}
{ld}
s_add_u32 s{S.t3}, s{S.t2}, {WS_FLAG3B + 64}
{ld}''')
    k.e(ROT0()); rot_offsets(k); setup2(k)

def rot_offsets(k):
    for q in range(1, 7):
        k.e(f's_add_u32 s{S.ox+q}, s{S.ox+q-1}, 128\ns_cmp_eq_u32 s{S.ox+q}, 896\ns_cselect_b32 s{S.ox+q}, 0, s{S.ox+q}\ns_mul_i32 s{S.ow+q}, s{S.ox+q}, 1344')
def dma_x(k, s, both=False):
    for p in range(2 if both else 1):
        so = S.ox + s
        for a, v in ((0, V.xa0), (1, V.xa1)):
            k.e(f's_add_u32 m0, s{S.mX}, {(s%4)*16384 + p*8192 + a*1024}')
            if p and not a: k.e(f's_add_u32 s{S.t0}, s{so}, 57344')
            else: k.e('s_nop 0')
            x = k.vmop(f'buffer_load_dwordx4 v{v}, {srd(S.X)}, s{S.t0 if p else so} offen lds')
    return x
def dma_w(k, s, both=False):
    st = s // 7; so = S.ow + s % 7
    for p in range(2 if st in (0, 3) else 1):
        k.e(f's_add_u32 m0, s{S.mW}, {WADDR[s] + p*4096}')
        if st == 0:
            k.e(f's_add_u32 s{S.t0}, s{so}, 86016' if p else 's_nop 0')
            x = k.vmop(f'buffer_load_dwordx4 v{V.w0}, {srd(S.W)}, s{S.t0 if p else so} offen lds')
        else:
            k.e('s_nop 0')
            x = k.vmop(f'buffer_load_dwordx4 v{[[V.ws], [V.ws2], [V.ws2b, V.wsb]][st-1][p]}, {srd(S.W2 if (st == 3 and p == 0) else S.M2)}, s{so} offen lds')
    return x
def slice_setup(k):
    T = V.tmp
    set_srd(k, S.M2, S.pWA, 1204224); set_srd(k, S.W2, S.pWB, 1204224)
    k.e(f'''s_mul_i32 s{S.t2}, s{S.tt}, 43008
v_lshrrev_b32 v{T}, 2, v{V.lane}
v_mul_u32_u24 v{T}, 2688, v{T}
v_and_b32 v{T+1}, 3, v{V.lane}
v_lshl_add_u32 v{T}, v{T+1}, 4, v{T}
v_lshrrev_b32 v{T+2}, 1, v{T+1}
v_and_b32 v{T+2}, v{T+2}, v{T+1}
v_lshlrev_b32 v{T+2}, 3, v{T+2}
v_sub_u32 v{T}, v{T}, v{T+2}
v_add_u32 v{T}, s{S.t2}, v{T}
s_mul_i32 s{S.t0}, s{S.hA}, 56
s_mul_i32 s{S.t1}, s{S.hQ}, 56
s_mul_i32 s{S.t3}, s{S.h}, 56
s_add_u32 s{S.t0}, s{S.t0}, 896
v_add_u32 v{V.ws}, s{S.t1}, v{T}
v_add_u32 v{V.ws2}, s{S.t0}, v{T}
v_add_u32 v{V.ws2b}, s{S.t3}, v{T}
v_add_u32 v{V.wsb}, 896, v{V.ws2}''')

def setup2(k, ws=True):
    T = V.tmp
    k.e(f'''
v_and_b32 v{V.i32}, 31, v{V.lane}
v_lshrrev_b32 v{V.hh}, 5, v{V.lane}
v_bfe_u32 v{T}, v{V.lane}, 1, 3
v_xor_b32 v{T}, v{T}, v{V.hh}
v_lshlrev_b32 v{T}, 4, v{T}
v_lshl_add_u32 v{T}, v{V.i32}, 7, v{T}
s_lshl_b32 s{S.t2}, s{S.tt}, 12
v_add_u32 v{V.xr}, s{S.t2}, v{T}
v_xor_b32 v{V.xr+1}, 32, v{V.xr}
v_xor_b32 v{V.xr+2}, 64, v{V.xr}
v_xor_b32 v{V.xr+3}, 96, v{V.xr}
s_mov_b32 s{S.hi32}, 0
s_mov_b32 s{S.hi32+1}, -1
''')
    if ws: set_srd(k, S.WS, S.pWS, WS_SIZE)
def colgrp(dst, swap):
    a = f'v_and_b32 v{dst}, 3, v{V.lane}\n' if not swap else f'v_and_b32 v{dst}, 1, v{V.lane}\nv_bfe_u32 v{dst+1}, v{V.lane}, 1, 1\nv_lshl_or_b32 v{dst}, v{dst}, 1, v{dst+1}\n'
    return a + f'''v_bfe_u32 v{dst+1}, v{V.lane}, 4, 1
v_lshl_or_b32 v{dst}, v{dst+1}, 2, v{dst}
v_bfe_u32 v{dst+1}, v{V.lane}, 2, 2
v_lshl_or_b32 v{dst+1}, v{V.hh}, 3, v{dst+1}
'''
def tr_base0(ktype):
    T = V.tmp
    return colgrp(T, ktype) + f'''v_bfe_u32 v{T+2}, v{V.lane}, 3, 1
v_lshlrev_b32 v{T+2}, 6, v{T+2}
v_lshl_add_u32 v{T+2}, v{T}, 3, v{T+2}
v_lshl_add_u32 v{T+2}, v{T+1}, 7, v{T+2}
v_add_u32 v{V.t0r}, {L_WR + WADDR[0]}, v{T+2}
v_xor_b32 v{V.t0r+1}, 64, v{V.t0r}'''
def tr_base(dst, base, swap, parity):
    T = V.tmp
    a = colgrp(T, swap)
    if parity: a += f's_and_b32 s{S.t3}, s{S.h}, 1\nv_subrev_u32 v{T}, s{S.t3}, v{T}\nv_and_b32 v{T}, 7, v{T}\n'
    return a + f'''v_lshrrev_b32 v{T+2}, 1, v{T}
v_lshrrev_b32 v{T+3}, 2, v{T}
v_and_b32 v{T+2}, v{T+2}, v{T+3}
v_and_b32 v{T+2}, 1, v{T+2}
v_xor_b32 v{T}, v{T}, v{T+2}
v_lshlrev_b32 v{T}, 3, v{T}
v_lshl_add_u32 v{T}, v{T+1}, 6, v{T}
v_add_u32 v{dst}, {L_WR + base}, v{T}'''

def wphi_load(k):
    T = V.tmp
    set_srd(k, S.X, S.pPHI, 25088)
    k.e(f'''
s_lshl_b32 s{S.t2}, s{S.tt}, 3
v_lshrrev_b32 v{T+1}, 3, v{V.lane}
v_add_u32 v{T+1}, s{S.t2}, v{T+1}
v_add_u32 v{T+2}, 1, v{V.lane}
v_and_b32 v{T+2}, 7, v{T+2}
v_max_u32 v{T+2}, 1, v{T+2}
v_mul_u32_u24 v{T+3}, 56, v{T+1}
v_lshl_add_u32 v{T+3}, v{T+2}, 3, v{T+3}
v_add_u32 v{T+1}, 4, v{T+1}
v_lshrrev_b32 v{T+1}, 5, v{T+1}
v_subrev_u32 v{T+3}, 8, v{T+3}
v_lshl_or_b32 v{T+3}, v{T+1}, 30, v{T+3}
s_mul_i32 s{S.t2}, s{S.hA}, 1568
s_mul_i32 s{S.t3}, s{S.hQ}, 1568
''')
    k.vmop(f'buffer_load_dwordx2 v[{V.EM}:{V.EM+1}], v{T+3}, {srd(S.X)}, s{S.t2} offen')
    k.wphi_id = k.vmop(f'buffer_load_dwordx2 v[{V.EM+2}:{V.EM+3}], v{T+3}, {srd(S.X)}, s{S.t3} offen')
def gate_load(k):
    T = V.tmp
    set_srd(k, S.X, S.pGW, 896)
    k.e(f'''v_lshrrev_b32 v{T}, 4, v{V.lane}
v_add_u32 v{T}, s{S.r0}, v{T}
v_and_b32 v{T+2}, 15, v{V.lane}
v_lshlrev_b32 v{T+2}, 1, v{T+2}
s_lshl_b32 s{S.t2}, s{S.tt}, 5
v_add_u32 v{T+2}, s{S.t2}, v{T+2}
v_mov_b32 v{V.gw0+1}, 0
v_mov_b32 v{V.gw1+1}, 0''')
    for a, r in ((0, V.gw0), (4, V.gw1)):
        k.e(f'v_add_u32 v{T+1}, {a}, v{T}\nv_subrev_u32 v{T+3}, 7, v{T+1}\nv_min_u32 v{T+1}, v{T+1}, v{T+3}\nv_lshl_add_u32 v{T+1}, v{T+1}, 7, v{T+2}')
        x = k.vmop(f'buffer_load_ushort v{r}, v{T+1}, {srd(S.X)}, 0 offen')
    k.gw_id = x
    return x

def active(s, grp): return grp == [1, 0, 1, 0][s // 7]
def reads(s, grp):
    st = s // 7; buf = V.wf + 16*(s % 2); out = []
    for q in range(4):
        if st == 0:
            out.append(f'ds_read_b128 {vr(V.xf+16*s+4*q,4)}, v{V.xr+q} offset:{(s % 4)*16384}')
            if grp == 1:
                for cs, b in ((0, buf), (1, [V.P, V.EM][s % 2])):
                    for jh in range(2):
                        out.append(f'ds_read_b64_tr_b16 {vr(b+4*q+2*jh,2)}, v{V.t0r+cs} offset:{WADDR[s]-WADDR[0]+q*2048+jh*512}')
        elif active(s, grp):
            if st < 3:
                for jh in range(2):
                    out.append(f'ds_read_b64_tr_b16 {vr(buf+4*q+2*jh,2)}, v{[V.t0r, V.t1r][st-1]} offset:{WADDR[s]+q*1024+jh*256}')
            else:
                if s == 25 and q == 0: out.append(f'v_subrev_u32 v{V.t2r}, {WADDR[21]}, v{V.t2r}\nv_subrev_u32 v{V.t3r}, {WADDR[21]}, v{V.t3r}')
                for b, t in ((buf, V.t2r), ([V.P, V.EM][s % 2], V.t3r)):
                    for jh in range(2):
                        out.append(f'ds_read_b64_tr_b16 {vr(b+4*q+2*jh,2)}, v{t} offset:{WADDR[s]-(WADDR[21] if s < 25 else 0)+q*1024+jh*256}')
    return out
def mfmas(s, grp, ktype=True):
    st = s // 7; c = s % 7; buf = V.wf + 16*(s % 2); out = []
    if not active(s, grp): return []
    b2 = [V.P, V.EM][s % 2]
    tiles = [[(V.acc0, buf, ktype), (V.acc1, b2, ktype)], [(V.acc1, buf, True)], [(V.acc1, buf, True)], [(V.acc0, buf, True), (V.EP, b2, False)]][st]
    for q in range(4):
        for acc, b, wfirst in tiles:
            x = V.xf + 16*c + 4*q; w = b + 4*q
            cin = '0' if (c == 0 and q == 0) else acc
            out.append(mfma(acc, w, x, cin) if wfirst else mfma(acc, x, w, cin))
    return out
def nlines(p): return len([l for l in p.strip().split('\n') if l.strip()]) if isinstance(p, str) else p.n
class Job:
    def __init__(self, f, n): self.f, self.n = f, n
def emit(k, p):
    if isinstance(p, str): k.e(p)
    else: p.f()
def split_pieces(pieces, nslots):
    tot = sum(nlines(p) for p in pieces); out = [[] for _ in range(nslots)]; acc = 0
    for p in pieces:
        out[min(nslots-1, int((acc + nlines(p)/2) * nslots / max(tot, 1)))].append(p); acc += nlines(p)
    return out
def lines(txt): return [l for l in txt.strip().split('\n') if l.strip()]

def cvt16(k, dst, src):
    for q in range(8): k.e(f'v_cvt_pk_bf16_f32 v{dst+q}, v{src+2*q}, v{src+2*q+1}')

def epi0_addr_k():
    T = V.tmp; k = Stream()
    k.e(f'''
s_lshl_b32 s{S.t2}, s{S.j}, 3
v_and_b32 v{T}, 0x13, v{V.i32}
v_bfe_u32 v{T+1}, v{V.i32}, 2, 1
v_lshl_or_b32 v{T}, v{T+1}, 3, v{T}
v_bfe_u32 v{T+1}, v{V.i32}, 3, 1
v_lshl_or_b32 v{T}, v{T+1}, 2, v{T}
v_lshlrev_b32 v{T}, 4, v{T}
s_lshl_b32 s{S.t3}, s{S.tb}, 2
s_add_u32 s{S.t3}, s{S.t3}, s{S.tt}
s_lshl_b32 s{S.t3}, s{S.t3}, 12
s_add_u32 s{S.t3}, s{S.t3}, {WS_KV}
v_add_u32 v{V.EP+8}, s{S.t3}, v{T}
v_add_u32 v{V.EP+9}, s{S.t2}, v{V.hh}
''')
    out = ['\n'.join(k.L)]
    for n in range(4):
        D = V.EP + 4*(n//2) + n % 2
        out.append(f'''v_add_u32 v{T+1}, {2*n}, v{V.EP+9}
v_mul_u32_u24 v{T+2}, 37, v{T+1}
v_lshrrev_b32 v{T+2}, 8, v{T+2}
v_mul_u32_u24 v{T+3}, 7, v{T+2}
v_sub_u32 v{T+3}, v{T+1}, v{T+3}
v_lshrrev_b32 v{T+4}, 2, v{T+3}
v_lshl_add_u32 v{T+5}, v{T+2}, 1, v{T+4}
v_mul_u32_u24 v{T+4}, 3, v{T+4}
v_sub_u32 v{T+4}, v{T+3}, v{T+4}
v_lshl_add_u32 v{D}, v{T+5}, 18, v{V.EP+8}
v_lshl_add_u32 v{D}, v{T+4}, 9, v{D}
v_lshl_add_u32 v{D+2}, v{T+2}, 19, v{V.EP+8}
v_add_u32 v{D+2}, 0x40000, v{D+2}
v_xor_b32 v{T+3}, 3, v{T+3}
v_min_u32 v{T+3}, 1, v{T+3}
v_lshl_or_b32 v{D+2}, v{T+3}, 30, v{D+2}''')
    return out
def epi0_addr_v():
    T = V.tmp; out = []
    for cs in range(2):
        D = V.EP + 4*cs; C = V.EP + 8 + 4*cs
        out.append(f'''s_sub_u32 s{S.t2}, s{S.j}, 7
s_lshl_b32 s{S.t2}, s{S.t2}, 6
s_add_u32 s{S.t2}, s{S.t2}, {32*cs}
v_add_u32 v{T}, s{S.t2}, v{V.i32}
v_mul_u32_u24 v{T+1}, 2341, v{T}
v_lshrrev_b32 v{T+1}, 16, v{T+1}
v_mul_u32_u24 v{T+2}, 28, v{T+1}
v_sub_u32 v{T+2}, v{T}, v{T+2}
s_lshl_b32 s{S.t3}, s{S.tb}, 2
s_add_u32 s{S.t3}, s{S.t3}, s{S.tt}
s_lshl_b32 s{S.t3}, s{S.t3}, 12
s_add_u32 s{S.t3}, s{S.t3}, {WS_KV + 2048}
v_lshlrev_b32 v{T+1}, 18, v{T+1}
v_lshl_add_u32 v{T+1}, v{T+2}, 4, v{T+1}
v_lshlrev_b32 v{T+3}, 9, v{V.hh}
v_add3_u32 v{D}, v{T+1}, v{T+3}, s{S.t3}
v_add_u32 v{D+1}, 1024, v{D}
v_lshrrev_b32 v{T+3}, 2, v{T+2}
v_min_u32 v{T+3}, 1, v{T+3}
v_add_u32 v{D+2}, 448, v{D}
v_lshl_or_b32 v{D+2}, v{T+3}, 30, v{D+2}
v_add_u32 v{D+3}, 1024, v{D+2}
v_min_u32 v{T+2}, 1, v{T+2}
v_subrev_u32 v{T+2}, 1, v{T+2}
v_and_b32 v{C}, 0x3f803f80, v{T+2}
v_mov_b32 v{C+1}, v{C}
v_mov_b32 v{C+2}, v{C}
v_mov_b32 v{C+3}, v{C}''')
    return out

class A:
    ks, vs, kv0, kv1, idx, m = 12, 126, 8, 9, 10, 11
    a0, a1, a2 = 7, 124, 14
    f0, f1 = 4, 5
    Q, KF, V0, V1, O, NM, SA, SB, PHQ = 128, 136, 144, 112, 160, 176, 192, 208, 32
    l = 152; t = 153
    WOA, OF, RED = 16, 80, 48
    WOB, ACC = 176, 128
    wsrc = 13
    wb = 240
    eps = 6
    one = 125
    y0, y1 = 244, 245

def wphi_reads(grp):
    T = V.tmp
    a = lines(colgrp(T, False) + f'v_lshlrev_b32 v{T}, 3, v{T}\nv_lshl_add_u32 v{T}, v{T+1}, 6, v{T}\nv_add_u32 v{T}, {L_WPHI + grp*2048}, v{T}')
    for s in range(2):
        for jh in range(2): a.append(f'ds_read_b64_tr_b16 {vr(V.EM+4*s+2*jh,2)}, v{T} offset:{s*1024+jh*256}')
    a.append(f's_mov_b32 s{S.t6}, {fbits(LOG2E)}')
    return a

def feat_pieces(src, dst, query, round_p=True):
    T = V.tmp; P, EP, EM = V.P, V.EP, V.EM
    sA = S.t6; c = []
    c += [f'v_cvt_pk_bf16_f32 v{EM+8+q}, v{src+2*q}, v{src+2*q+1}' for q in range(8)]
    c += [mfma(P, EM, EM+8, '0') + '\n' + mfma(P, EM+4, EM+12, P), 'WAITP']
    if round_p:
        c += [f'v_cvt_pk_bf16_f32 v{EP+q}, v{P+2*q}, v{P+2*q+1}' for q in range(8)]
        for q in range(8): c += [f'v_lshlrev_b32 v{P+2*q}, 16, v{EP+q}', f'v_and_b32 v{P+2*q+1}, 0xffff0000, v{EP+q}']
    c += [f'v_max3_f32 v{T}, v{P}, v{P+1}, v{P+2}', f'v_max3_f32 v{T+1}, -v{P}, -v{P+1}, -v{P+2}']
    for q in range(3, 15, 2):
        c += [f'v_max3_f32 v{T}, v{T}, v{P+q}, v{P+q+1}', f'v_max3_f32 v{T+1}, v{T+1}, -v{P+q}, -v{P+q+1}']
    c.append(f'''v_max_f32 v{T}, v{T}, v{P+15}
v_max_f32_e64 v{T+1}, v{T+1}, -v{P+15}
v_sub_u32 v{T+2}, 0, v{V.hh}
v_and_b32 v{T+2}, 0x7f800000, v{T+2}
v_permlane32_swap_b32 v{T}, v{T+1}
v_max_f32 v{T}, v{T}, v{T+1}
v_mul_f32 v{T+1}, s{sA}, v{T}
v_mul_f32 v{T+3}, s{sA}, v{T}
s_nop 1
v_permlane32_swap_b32 v{T+1}, v{T+3}''')
    for q in range(8):
        if q == 6: c.append(f'v_add_f32 v{T+1}, v{T+1}, v{T+2}\nv_add_f32 v{T+3}, v{T+3}, v{T+2}')
        c.append(f'v_pk_fma_f32 {vr(EP+2*q,2)}, {vr(P+2*q,2)}, s[{sA}:{sA+1}], {vr(T+1,2)} op_sel_hi:[1,0,0] neg_lo:[0,0,1] neg_hi:[0,0,1]')
        c.append(f'v_pk_fma_f32 {vr(EM+2*q,2)}, {vr(P+2*q,2)}, s[{sA}:{sA+1}], {vr(T+3,2)} op_sel_hi:[1,0,0] neg_lo:[1,0,1] neg_hi:[1,0,1]')
    c += [f'v_exp_f32 v{EP+q}, v{EP+q}\n; x' for q in range(16)]
    c += [f'v_exp_f32 v{EM+q}, v{EM+q}\n; x' for q in range(16)]
    c += [f'v_pk_add_f32 {vr(T+1,2)}, {vr(EP,2)}, {vr(EP+2,2)}', f'v_pk_add_f32 {vr(T+3,2)}, {vr(EM,2)}, {vr(EM+2,2)}']
    for q in range(2, 8):
        c += [f'v_pk_add_f32 {vr(T+1,2)}, {vr(T+1,2)}, {vr(EP+2*q,2)}', f'v_pk_add_f32 {vr(T+3,2)}, {vr(T+3,2)}, {vr(EM+2*q,2)}']
    a = f'''v_add_f32 v{T+1}, v{T+1}, v{T+2}
v_add_f32 v{T+3}, v{T+3}, v{T+4}
s_nop 1
v_permlane32_swap_b32 v{T+1}, v{T+3}
v_add_f32 v{T+1}, v{T+1}, v{T+3}
'''
    if not query:
        a += f'v_rcp_f32 v{T+1}, v{T+1}\ns_nop 0\nv_mov_b32 v{T+3}, v{T+1}\ns_nop 1\nv_permlane32_swap_b32 v{T+1}, v{T+3}'
    else:
        a += f'v_mov_b32 v{T+3}, v{T+1}\ns_nop 1\nv_permlane32_swap_b32 v{T+1}, v{T+3}\nv_rcp_f32 v{T+3}, v{T+3}\nv_mul_f32 v{A.eps}, {fbits(1e-6)}, v{T+1}\nv_mul_f32 v{T+3}, v{T+3}, v{T+1}'
    c.append(a)
    for q in range(8):
        if not query: c.append(f'v_pk_mul_f32 {vr(EP+2*q,2)}, {vr(EP+2*q,2)}, {vr(T+1,2)} op_sel_hi:[1,0]')
        c.append(f'v_pk_mul_f32 {vr(EM+2*q,2)}, {vr(EM+2*q,2)}, {vr(T+3,2)} op_sel_hi:[1,0]')
    for q in range(8):
        c += [f'v_cvt_pk_bf16_f32 v{dst+q}, v{EP+2*q}, v{EP+2*q+1}', f'v_cvt_pk_bf16_f32 v{dst+8+q}, v{EM+2*q}, v{EM+2*q+1}']
    return c

def phi_base():
    T = V.tmp; D = A.m
    return lines(f'''v_and_b32 v{D}, 1, v{V.i32}
v_bfe_u32 v{T}, v{V.i32}, 2, 2
v_lshl_or_b32 v{D}, v{T}, 1, v{D}
v_bfe_u32 v{T}, v{V.i32}, 1, 1
v_lshl_or_b32 v{D}, v{T}, 3, v{D}
v_xor_b32 v{D}, v{D}, v{V.hh}
v_lshlrev_b32 v{D}, 3, v{D}
v_lshl_add_u32 v{D}, v{V.i32}, 7, v{D}
s_lshl_b32 s{S.t2}, s{S.tt}, 12
s_add_u32 s{S.t2}, s{S.t2}, {L_PHI}
v_add_u32 v{D}, s{S.t2}, v{D}''')
def phi_write(src):
    T = V.tmp; out = []
    for s in range(2):
        for g in range(4):
            u = 8*s + 2*g
            out.append((f'v_xor_b32 v{T}, {u*8}, v{A.m}\n' if u else '') + f'ds_write_b64 v{T if u else A.m}, {vr(src+8*s+2*g,2)}')
    return out

def va_stage():
    T = V.tmp; k = Stream()
    k.e(f's_lshl_b32 s{S.t2}, s{S.tt}, 11\ns_add_u32 s{S.t2}, s{S.t2}, {L_STG}\nv_lshl_add_u32 v{T}, v{V.lane}, 4, s{S.t2}')
    cvt16(k, V.P, V.EP)
    k.e(f's_mov_b32 exec_lo, 0x10000000\ns_mov_b32 exec_hi, 0x10000000')
    for q in range(8): k.e(f'v_mov_b32 v{V.P+q}, 0x3f803f80')
    k.e(f'''s_mov_b64 exec, -1
ds_write_b128 v{T}, {vr(V.P,4)}
ds_write_b128 v{T}, {vr(V.P+4,4)} offset:1024''')
    return '\n'.join(k.L)

KVB = 240
def kv_addr_setup(D):
    T = V.tmp
    return lines(f'''s_lshr_b32 s{S.t2}, s{S.w}, 1
s_lshl_b32 s{S.t3}, s{S.t2}, 2
v_and_b32 v{T}, 3, v{V.lane}
v_or_b32 v{T}, s{S.t3}, v{T}
v_bfe_u32 v{T+1}, v{V.lane}, 2, 1
v_bfe_u32 v{D}, v{V.lane}, 4, 1
v_lshl_or_b32 v{T+1}, v{D}, 1, v{T+1}
v_bfe_u32 v{D+1}, v{V.lane}, 3, 1
v_lshl_or_b32 v{T+1}, v{D+1}, 3, v{T+1}
v_xor_b32 v{T}, v{T}, v{T+1}
v_bfe_u32 v{T+1}, v{V.lane}, 2, 2
v_lshl_or_b32 v{T+1}, v{D}, 2, v{T+1}
v_lshl_or_b32 v{T+1}, v{V.hh}, 4, v{T+1}
v_lshlrev_b32 v{T}, 3, v{T}
v_lshl_add_u32 v{T}, v{T+1}, 7, v{T}
v_and_b32 v{T+1}, 15, v{V.lane}
s_and_b32 s{S.t3}, s{S.w}, 1
s_lshl_b32 s{S.t3}, s{S.t3}, 4
v_add_u32 v{T+1}, s{S.t3}, v{T+1}
s_lshl3_add_u32 s{S.t3}, s{S.hA}, s{S.w}
s_lshl4_add_u32 s{S.t3}, s{S.t3}, s{S.tb}
s_lshl_b32 s{S.t3}, s{S.t3}, 9
s_add_u32 s{S.t3}, s{S.t3}, {WS_KVP}
v_and_b32 v{D+3}, 15, v{V.lane}
v_lshl_or_b32 v{D+3}, v{V.hh}, 4, v{D+3}
v_lshl_or_b32 v{D+3}, v{D+3}, 1, v{D}
v_lshl_add_u32 v{D+3}, v{D+3}, 3, s{S.t3}
v_lshlrev_b32 v{T+1}, 4, v{T+1}
v_lshrrev_b32 v{D+2}, 4, v{V.lane}
v_lshl_add_u32 v{D+2}, v{D+2}, 9, v{T+1}
v_add_u32 v{D+2}, {L_STG}, v{D+2}
v_add_u32 v{D}, {L_PHI}, v{T}
v_add_u32 v{D+1}, 1024, v{D}
v_xor_b32 v{D+1}, 32, v{D+1}''')
def kv_partial(k):
    D = KVB; ids = []
    for Tt in range(4):
        k.ds(f'ds_read_b64_tr_b16 {vr(V.EP+4*Tt,2)}, v{D} offset:{Tt*4096}')
        k.ds(f'ds_read_b64_tr_b16 {vr(V.EP+4*Tt+2,2)}, v{D+1} offset:{Tt*4096}')
        ids.append(k.ds(f'ds_read_b128 {vr(V.EM+4*Tt,4)}, v{D+2} offset:{Tt*2048}'))
    return ids
def kv_partial2(k, ids):
    k.dswait(ids[3])
    return [f'v_mfma_f32_16x16x32_bf16 {vr(V.P,4)}, {vr(V.EP+4*Tt,4)}, {vr(V.EM+4*Tt,4)}, {"0" if Tt == 0 else vr(V.P,4)}' for Tt in range(4)]
def kv_partial3(k):
    k.e(f'v_cvt_pk_bf16_f32 v{V.P+4}, v{V.P}, v{V.P+1}\nv_cvt_pk_bf16_f32 v{V.P+5}, v{V.P+2}, v{V.P+3}')
    return k.vmop(f'buffer_store_dwordx2 {vr(V.P+4,2)}, v{KVB+3}, {srd(S.WS)}, 0 offen sc1')

def flag_store(k, addr_s, val_s, sc='sc1', opt=True, T=None):
    T = T or V.tmp
    k.e(f'v_mov_b32 v{T}, s{addr_s}\nv_mov_b32 v{T+1}, s{val_s}\ns_mov_b64 exec, 1')
    a = k.vmop(f'buffer_store_dword v{T+1}, v{T}, {srd(S.WS)}, 0 offen {sc}', opt=opt)
    k.e('s_mov_b64 exec, -1')
    return a

_lbl = [0]
def lbl(p):
    _lbl[0] += 1; return f'L_{p}_{_lbl[0]}'

def flag_check(k, ld_id, vflag, vaddr, mask=False, keep=False):
    L1, L2 = lbl('poll'), lbl('polled')
    k.vmwait(ld_id, keep=keep)
    T = V.tmp
    cmp = f'v_and_b32 v{T}, -16, v{vflag}\nv_cmp_ne_u32 vcc, s{S.tag}, v{T}' if mask else f'v_cmp_ne_u32 vcc, s{S.tag}, v{vflag}'
    k.e(f'{cmp}\ns_cbranch_vccnz {L1}\n{L2}:')
    k.cold.e(f'''{L1}:
s_mov_b32 s{S.spin}, {SPINV[0]}
{L1}_a:
s_sleep 4
buffer_load_dword v{vflag}, v{vaddr}, {srd(S.WS)}, 0 offen sc1
s_waitcnt vmcnt(0)
{cmp}
s_cbranch_vccz {L2}
s_sub_u32 s{S.spin}, s{S.spin}, 1
s_cbranch_scc0 {L1}_a
s_branch {L2}''')

def step(k, s, grp, ids, opts, pieces=(), tailp=(), ktype=True):
    k.c(f'---- step {s}')
    nobar = s in opts['nobar']
    if not nobar:
        last = s
        while last + 1 in opts['nobar']: last += 1
        for w in range(last, s - 1, -1): k.vmwait(ids.get(w))
    if grp == 0 and s in (7, 11):
        if s == 7: k.vmwait(opts['_gw'][0])
        k.e(f'ds_write_b64 v{V.g}, {vr(V.gw0 if s == 7 else V.gw1,2)} offset:{WADDR[s]}')
    stamp(k, f'step{s}')
    mf = mfmas(s-1, grp, ktype) if s not in (0, 7) else []
    if mf or (not nobar and not (grp == 1 and s == 11)): k.e('s_waitcnt lgkmcnt(0)')
    if not nobar: k.e('s_barrier')
    stamp(k, f'bar{s}')
    rd = reads(s, grp)
    n = max(len(mf), 1); nr = max(1, (n+1)//2) if n < 8 else opts['nr8']
    pcs = split_pieces(list(pieces), n)
    for q in range(n):
        if mf: k.e(mf[q])
        if q < nr:
            for r in rd[q*len(rd)//nr:(q+1)*len(rd)//nr]: k.e(r)
        for p in pcs[q]: emit(k, p)
    stamp(k, f'body{s}')
    if grp == 0:
        if s + 3 <= 6: ids[s+3] = dma_x(k, s + 3, True)
        for w in opts['wsched'].get(s, ()):
            x = dma_w(k, w, True)
            if w not in ids or w > 6: ids[w] = x
    for p in tailp: emit(k, p)
    stamp(k, f'done{s}')

def stage0(k, grp, ids, ktype, opts):
    T = V.tmp
    ob = f'''s_lshl_b32 s{S.t2}, s{S.tb}, 2
s_add_u32 s{S.t2}, s{S.t2}, s{S.tt}
s_lshl_b32 s{S.t2}, s{S.t2}, 16
s_lshl_b32 s{S.t3}, s{S.h}, 11
s_add_u32 s{S.t2}, s{S.t2}, s{S.t3}
s_add_u32 s{S.t2}, s{S.t2}, {WS_OX + 32768 + grp*1024}
v_lshl_add_u32 v{V.ob}, v{V.lane}, 4, s{S.t2}
s_add_u32 s{S.tag}, s{S.tag}, 0x9e3779b0'''
    P = {0: [ob, '\n'.join(kv_addr_setup(KVB))]}
    if grp == 1:
        ep = (epi0_addr_k if ktype else epi0_addr_v)()
        P[1] = ep[:len(ep)//2]; P[2] = ep[len(ep)//2:]
        P[3] = [f's_cmp_eq_u32 s{S.h}, 5\ns_cselect_b32 s{S.t4}, 0, {WS_SIZE}\ns_cmp_eq_u32 s{S.h}, 10\ns_cselect_b32 s{S.M1+2}, 0, s{S.t4}\ns_mov_b32 s{S.M1}, s{S.pWS}\ns_mov_b32 s{S.M1+1}, s{S.pWS+1}\ns_mov_b32 s{S.M1+3}, 0x20000']
    else:
        P[1] = [tr_base(V.t0r, 0, True, False)]; P[2] = [tr_base(V.t2r, WADDR[21], True, True)]
        P[4] = [Job(lambda: gate_load(k), 20), f'v_and_b32 v{V.g}, 15, v{V.lane}\nv_lshlrev_b32 v{V.g}, 6, v{V.g}\nv_lshrrev_b32 v{T}, 4, v{V.lane}\nv_lshl_add_u32 v{V.g}, v{T}, 12, v{V.g}\ns_add_u32 s{S.t2}, s{S.mW}, 48\nv_add_u32 v{V.g}, s{S.t2}, v{V.g}']
        P[5] = [Job(lambda: wphi_load(k), 20)]
    for s in range(0, 7): step(k, s, grp, ids, opts, P.get(s, ()), (), ktype)
    if grp == 1:
        k.e('s_waitcnt lgkmcnt(0)')
        for m in mfmas(6, grp, ktype): k.e(m)

def stage0_epilogue(k, ktype):
    def extra(n):
        L = lbl('dup'); a = V.EP + 4*(n//2) + 2 + n % 2
        k.e(f'v_cmp_gt_u32 vcc, {OOB}, v{a}\ns_cbranch_vccz {L}')
        k.vmop(f'buffer_store_dwordx4 {vr(V.P+4*n if ktype else V.EP+8+4*(n//2),4)}, v{a}, {srd(S.M1)}, 0 offen sc1', opt=True)
        k.e(f'{L}:')
    if PRIO_ST[0]: k.e('s_setprio 3')
    if not ktype:
        for n in range(4): extra(n)
    for n in range(4):
        for q in range(4): k.e(f'v_cvt_pk_bf16_f32 v{V.P+4*n+q}, v{V.acc0+8*n+2*q}, v{V.acc0+8*n+2*q+1}')
        if ktype: extra(n)
        a = k.vmop(f'buffer_store_dwordx4 {vr(V.P+4*n,4)}, v{V.EP+4*(n//2)+n%2}, {srd(S.M1)}, 0 offen sc1')
    return a

def attn_addr(grp):
    T = V.tmp
    return [f'''s_lshl_b32 s{S.mK}, s{S.w}, 12
s_lshl_b32 s{S.t2}, s{S.h}, 18
s_lshl_b32 s{S.t3}, s{S.tt}, 12
s_add_u32 s{S.t2}, s{S.t2}, s{S.t3}
s_add_u32 s{S.t2}, s{S.t2}, {WS_KV + grp*131072}
v_lshl_add_u32 v{A.ks}, v{V.lane}, 4, s{S.t2}''', f'''v_lshlrev_b32 v{A.kv0}, 4, v{V.lane}
v_add_u32 v{A.kv0}, {grp*16384}, v{A.kv0}
v_add_u32 v{A.kv1}, 0x10000, v{A.kv0}
v_mov_b32 v{A.idx}, 0xdddddddd''', f'''s_mul_i32 s{S.t2}, s{S.h}, 28
s_add_u32 s{S.t3}, s{S.t2}, 27
s_lshr_b32 s{S.t2}, s{S.t2}, 6
s_lshr_b32 s{S.t3}, s{S.t3}, 6
s_sub_u32 s{S.t3}, s{S.t3}, s{S.t2}
v_bfe_u32 v{T+5}, v{V.lane}, 3, 1
v_mul_u32_u24 v{T+5}, s{S.t3}, v{T+5}
v_bfe_u32 v{T+6}, v{V.lane}, 4, 1
v_mul_u32_u24 v{T+6}, 7, v{T+6}
v_add3_u32 v{T+5}, v{T+5}, v{T+6}, s{S.t2}
s_lshr_b32 s{S.t2}, s{S.tb}, 1
s_and_b32 s{S.t3}, s{S.tb}, 1
s_lshl2_add_u32 s{S.rb}, s{S.t3}, s{S.t2}
v_add_u32 v{T+6}, s{S.rb}, v{V.lane}
v_and_b32 v{T+6}, 7, v{T+6}
v_lshl_add_u32 v{T+5}, v{T+5}, 4, v{T+6}
s_lshl_b32 s{S.t2}, s{S.tt}, 6
s_add_u32 s{S.t2}, s{S.t2}, {WS_FLAG1 + grp*2048}
v_lshl_add_u32 v{A.f1}, v{T+5}, 8, s{S.t2}
s_and_b32 s{S.sK}, s{S.rb}, 7
s_lshl_b32 s{S.sK}, s{S.sK}, 14''']
def ready_mask():
    return f'''v_cmp_eq_u32 vcc, s{S.tag}, v{A.f0}
s_nop 0
s_lshr_b32 s{S.rdy}, vcc_lo, 16
s_and_b32 s{S.rdy}, s{S.rdy}, vcc_lo
s_lshr_b32 s{S.t0}, s{S.rdy}, 8
s_and_b32 s{S.rdy}, s{S.rdy}, s{S.t0}
s_and_b32 s{S.rdy}, s{S.rdy}, 0xff'''

def kv_dma_jobs(k, stage, out):
    slot = stage % 3
    def j(q):
        if q == 0:
            L1, L2 = lbl('kp'), lbl('kpd')
            k.e(f's_bitcmp1_b32 s{S.rdy}, {stage}\ns_cbranch_scc0 {L1}\n{L2}:')
            k.cold.e(f'''{L1}:
s_mov_b32 s{S.spin}, {SPINV[0]}
{L1}_a:
buffer_load_dword v{A.f0}, v{A.f1}, {srd(S.WS)}, 0 offen sc1
s_waitcnt vmcnt(0)
{ready_mask()}
s_bitcmp1_b32 s{S.rdy}, {stage}
s_cbranch_scc1 {L2}
s_sleep 2
s_sub_u32 s{S.spin}, s{S.spin}, 1
s_cbranch_scc0 {L1}_a
s_branch {L2}''')
        k.e(f's_add_u32 m0, s{S.mK}, {slot*32768}\ns_nop 0')
        out[(stage, 'n')] = q + 1
        out[stage] = k.vmop(f'buffer_load_dwordx4 v{A.ks}, {srd(S.WS)}, s{S.sK} offen offset:{q*1024} {KVSC[0]} lds')
        if q == 3: k.e(f's_add_u32 s{S.sK}, s{S.sK}, 16384\ns_and_b32 s{S.sK}, s{S.sK}, 0x1ffff')
    return [Job(lambda q=q: j(q), 4) for q in range(4)]

def only(k, w, f):
    def g():
        L = lbl('w'); k.e(f's_cmp_eq_u32 s{S.w}, {w}\ns_cbranch_scc1 {L}\n{L}_b:')
        main = k.L; k.L = [f'{L}:']; f(); k.e(f's_branch {L}_b'); body = k.L; k.L = main
        k.cold.L += body
    g.__name__ = f.__name__
    return g

def warm_lines():
    a = f'''s_lshl2_add_u32 s{S.t2}, s2, s{S.tt}
s_cmp_lt_u32 s{S.t2}, 448
s_cselect_b32 s{S.vcm}, s{S.pWOA}, s{S.pWOB}
s_cselect_b32 s{S.vcm+1}, s{S.pWOA+1}, s{S.pWOB+1}
s_cselect_b32 s{S.t3}, 0, 448
s_sub_u32 s{S.t2}, s{S.t2}, s{S.t3}
s_min_u32 s{S.t2}, s{S.t2}, 447
s_mul_i32 s{S.t2}, s{S.t2}, 896
s_add_u32 s{S.vcm}, s{S.vcm}, s{S.t2}
s_addc_u32 s{S.vcm+1}, s{S.vcm+1}, 0
'''
    for q in range(7): a += f's_load_dword s{S.spin}, s[{S.vcm}:{S.vcm+1}], {q*128}\n'
    a += f'''s_lshl3_add_u32 s{S.t2}, s{S.hA}, s{S.tt}
s_lshl4_add_u32 s{S.t2}, s{S.t2}, s{S.tb}
s_lshl_b32 s{S.t2}, s{S.t2}, 6
s_add_u32 s{S.t2}, s{S.t2}, {WS_FLAG2}
s_load_dword s{S.spin}, s[{S.pWS}:{S.pWS+1}], s{S.t2}
s_add_u32 s{S.t2}, s{S.t2}, 4096
s_load_dword s{S.spin}, s[{S.pWS}:{S.pWS+1}], s{S.t2}
s_lshl4_add_u32 s{S.t2}, s{S.tb}, s{S.h}
s_lshl_b32 s{S.t2}, s{S.t2}, 6
s_add_u32 s{S.t2}, s{S.t2}, {WS_FLAGY}
s_load_dword s{S.spin}, s[{S.pWS}:{S.pWS+1}], s{S.t2}'''
    return a

def stages12(k, ids, grp, st_id, opts):
    T = V.tmp; out = {'st': st_id}; st = {}
    P = {s: [] for s in range(7, 28)}; TP = {s: [] for s in range(7, 28)}
    npre = opts['npre']; pub = opts['f1_step']; c = opts['f1_check']
    assert {8, 9, 10, 12, 13} <= set(opts['nobar']) and not {7, 11, 14, 21} & set(opts['nobar'])
    def f1pub():
        k.vmwait(out['st'])
        k.e(f'''s_lshl4_add_u32 s{S.t2}, s{S.j}, s{S.tb}
s_lshl2_add_u32 s{S.t2}, s{S.t2}, s{S.tt}
s_lshl_b32 s{S.t2}, s{S.t2}, 6
s_add_u32 s{S.t2}, s{S.t2}, {WS_FLAG1}
s_cmp_eq_u32 s{S.M1+2}, 0
s_cselect_b32 s{S.t2}, {OOB}, s{S.t2}''')
        flag_store(k, S.t2, S.tag, opt=False, T=V.tmp+5)
        k.e(f's_setprio {opts["prio_g1"]}')
    qx = f's_lshl_b32 s{S.t2}, s{S.tt}, 11\ns_add_u32 s{S.t2}, s{S.t2}, {L_QX}\nv_lshl_add_u32 v{A.a0}, v{V.lane}, 4, s{S.t2}'
    ozero = [f'v_mov_b32 v{A.O+q}, 0' for q in range(16)]
    if grp == 0:
        P[9] += [Job(lambda: k.vmwait(opts['_gw'][1]), 1),
                 f's_lshl_b32 s{S.t2}, s{S.tt}, 9\ns_add_u32 s{S.t2}, s{S.t2}, {L_WPHI}\nv_lshl_add_u32 v{T}, v{V.lane}, 3, s{S.t2}\nds_write_b64 v{T}, {vr(V.EM,2)}\nds_write_b64 v{T}, {vr(V.EM+2,2)} offset:2048']
        P[12] += [tr_base(V.t3r, WADDR[21] + 4096, False, False)]
        P[13] += ['\n'.join(wphi_reads(1))]
        fp = feat_pieces(V.acc1, V.acc1, True, opts['round_p']); i = fp.index('WAITP')
        TP[14] += fp[:8] + [f'v_mov_b32 v{T+5}, v{V.acc1+12}\nv_mov_b32 v{V.g}, v{V.acc1+12}'] + fp[8:i]
        TP[14].append(f'v_permlane32_swap_b32 v{T+5}, v{V.g}\nv_mul_f32 v{V.g}, {fbits(-LOG2E)}, v{V.g}\nv_exp_f32 v{V.g}, v{V.g}\ns_nop 0\nv_add_f32 v{V.g}, 1.0, v{V.g}\nv_rcp_f32 v{V.g}, v{V.g}')
        for n, grpp in enumerate(split_pieces(fp[i+1:], 6)): P[15+n] += grpp
        P[14] += attn_addr(grp)
        assert max(s_ for s_, w in opts['wsched'].items() if max(w) > 20) <= 24
        P[25] += [f'''s_lshr_b32 s{S.t2}, s{S.h}, 3
s_lshl_b32 s{S.t2}, s{S.t2}, 1
s_and_b32 s{S.t3}, s{S.w}, 1
s_add_u32 s{S.t2}, s{S.t2}, s{S.t3}
s_lshl2_add_u32 s{S.col}, s{S.tb}, s{S.t2}
s_lshr_b32 s{S.cw}, s{S.w}, 1
s_and_b32 s{S.t2}, s{S.h}, 7
s_cmp_eq_u32 s{S.t2}, 7
s_cselect_b32 s{S.W+2}, 0, 401408
s_cselect_b32 s{S.X+2}, 0, 401408
s_mov_b32 s{S.W}, s{S.pWOA}
s_mov_b32 s{S.W+1}, s{S.pWOA+1}
s_mov_b32 s{S.X}, s{S.pWOB}
s_mov_b32 s{S.X+1}, s{S.pWOB+1}
s_mov_b32 s{S.W+3}, 0x20000
s_mov_b32 s{S.X+3}, 0x20000
s_lshl_b32 s{S.t2}, s{S.t2}, 7
v_lshrrev_b32 v{T}, 3, v{V.lane}
v_and_b32 v{T+1}, 7, v{V.lane}
v_bfe_u32 v{T+2}, v{V.lane}, 4, 1
v_lshlrev_b32 v{T+2}, 2, v{T+2}
v_xor_b32 v{T+1}, v{T+1}, v{T+2}
v_mul_u32_u24 v{T}, 896, v{T}
v_lshl_add_u32 v{T}, v{T+1}, 4, v{T}
v_add_u32 v{A.wsrc}, s{S.t2}, v{T}
s_mov_b32 s{S.r0}, 4096''']
        P[23] += [qx]; P[26] += ozero
    else:
        sel = f'''v_bfe_u32 v{T}, v{V.lane}, 3, 1
v_bfe_u32 v{T+1}, v{V.lane}, 4, 1
v_xor_b32 v{T}, v{T}, v{T+1}
v_bfe_u32 v{T+1}, v{V.lane}, 1, 2
v_lshl_or_b32 v{T}, v{T}, 2, v{T+1}
v_and_b32 v{T+1}, 1, v{V.lane}
v_lshlrev_b32 v{T+1}, 4, v{T+1}
v_mov_b32 v{T+2}, 0x3f80
v_lshlrev_b32 v{T+1}, v{T+1}, v{T+2}
'''
        for q in range(4): sel += f'v_cmp_eq_u32 s[{S.vcm}:{S.vcm+1}], {q}, v{T}\ns_nop 1\nv_cndmask_b32 v{16+q}, 0, v{T+1}, s[{S.vcm}:{S.vcm+1}]\n'
        sel += f'v_lshlrev_b32 v{T}, 4, v{V.lane}\nv_add_u32 v{T}, {L_SEL}, v{T}\nds_write_b128 v{T}, {vr(16,4)}'
        P[7] += [tr_base(V.t1r, 0, True, False), sel]
        if opts['warm']: P[7].insert(0, warm_lines())
        P[11] += attn_addr(grp) + ['\n'.join(phi_base()), f'''s_lshr_b32 s{S.t2}, s{S.h}, 3
s_lshl_b32 s{S.t2}, s{S.t2}, 1
s_and_b32 s{S.t3}, s{S.w}, 1
s_add_u32 s{S.t2}, s{S.t2}, s{S.t3}
s_lshl2_add_u32 s{S.col}, s{S.tb}, s{S.t2}
s_lshr_b32 s{S.cw}, s{S.w}, 1
s_and_b32 s{S.t2}, s{S.h}, 7
s_cmp_eq_u32 s{S.t2}, 7
s_cselect_b32 s{S.W+2}, 0, 401408
s_cselect_b32 s{S.X+2}, 0, 401408
s_mov_b32 s{S.W}, s{S.pWOA}
s_mov_b32 s{S.W+1}, s{S.pWOA+1}
s_mov_b32 s{S.X}, s{S.pWOB}
s_mov_b32 s{S.X+1}, s{S.pWOB+1}
s_mov_b32 s{S.W+3}, 0x20000
s_mov_b32 s{S.X+3}, 0x20000
s_lshl_b32 s{S.t2}, s{S.t2}, 7
v_lshrrev_b32 v{T}, 3, v{V.lane}
v_and_b32 v{T+1}, 7, v{V.lane}
v_bfe_u32 v{T+2}, v{V.lane}, 4, 1
v_lshlrev_b32 v{T+2}, 2, v{T+2}
v_xor_b32 v{T+1}, v{T+1}, v{T+2}
v_mul_u32_u24 v{T}, 896, v{T}
v_lshl_add_u32 v{T}, v{T+1}, 4, v{T}
v_add_u32 v{A.wsrc}, s{S.t2}, v{T}
s_mov_b32 s{S.r0}, 4096''', qx]
        P[18] += ozero
        P[20] += ['\n'.join(wphi_reads(0))]
        TP[pub].append(Job(f1pub, 8))
        fp = feat_pieces(V.acc1, V.acc1, False, opts['round_p']); i = fp.index('WAITP')
        fp.pop(i)
        for n, grpp in enumerate(split_pieces(fp + phi_write(V.acc1), 7)): TP[21+n] += grpp
    def f1ld(): out['f1'] = k.vmop(f'buffer_load_dword v{A.f0}, v{A.f1}, {srd(S.WS)}, 0 offen sc1')
    TP[c-2].append(Job(f1ld, 1))
    TP[c].append(Job(lambda: (k.vmwait(out['f1']), k.e(ready_mask())), 8))
    dj = []
    for s_ in range(npre): dj += kv_dma_jobs(k, s_, st)
    for s_ in range(c, 28):
        n = min(len(dj), opts['pre_rate']); TP[s_] += dj[:n]; dj = dj[n:]
    out['left'] = dj
    for s in range(7, 28):
        step(k, s, grp, ids, opts, P[s], TP[s])
    if grp == 0:
        k.e('s_waitcnt lgkmcnt(0)')
        m27 = mfmas(27, grp)
        for m in m27[1::2] + m27[0:4:2]: k.e(m)
        va = va_stage().split('\n')
        for l in va[:7]: k.e(l)
        k.e(m27[4])
        for l in va[7:11]: k.e(l)
        k.e(m27[6])
        for l in va[11:]: k.e(l)
    out['kvst'] = st
    return out

def attn_prologue(k, grp, pend, opts):
    T = V.tmp
    k.c('---- attention prologue')
    stamp(k, 'p1done')
    st = pend['kvst']
    for j in pend['left']: j.f()
    if grp == 0:
        a0 = V.acc0
        k.e(f's_mov_b32 s{S.t6}, {fbits(QSCALE)}\ns_bitcmp1_b32 s{S.h}, 0')
        for q in range(8): k.e(f'v_pk_mul_f32 {vr(a0+2*q,2)}, {vr(a0+2*q,2)}, s[{S.t6}:{S.t6+1}] op_sel_hi:[1,0]')
        cvt16(k, A.Q, a0)
        k.e(f'''s_cselect_b32 exec_lo, -1, 0
s_mov_b32 exec_hi, 0
v_mov_b32 v{A.Q}, 0
v_mov_b32 v{A.Q+1}, 0
s_mov_b32 exec_lo, 0
s_cselect_b32 exec_hi, 0, -1
v_mov_b32 v{A.Q+6}, 0
v_mov_b32 v{A.Q+7}, 0
s_mov_b64 exec, -1
v_lshrrev_b32 v{T}, 2, v{A.a0}
ds_write_b128 v{A.a0}, {vr(A.Q,4)}
ds_write_b128 v{A.a0}, {vr(A.Q+4,4)} offset:1024
v_and_b32 v{T}, 0x7fc, v{T}
v_add_u32 v{T}, {L_G}, v{T}
ds_write_b32 v{T}, v{V.g}''')
    else:
        k.e(f'v_lshrrev_b32 v{T}, 2, v{A.a0}\nv_and_b32 v{T}, 0x7fc, v{T}\nv_add_u32 v{T}, {L_G}, v{T}')
    stamp(k, 'preB0')
    assert st[(0, 'n')] == 4
    k.vmwait(st.get(0), 'lgkmcnt(0)')
    stamp(k, 'B0wait')
    k.e('s_barrier')
    if grp == 1:
        k.ds(f'ds_read_b128 {vr(A.Q,4)}, v{A.a0}')
        k.ds(f'ds_read_b128 {vr(A.Q+4,4)}, v{A.a0} offset:1024')
        k.ds(f'ds_read_b32 v{V.g}, v{T}')
    return st

def kv_addr(t):
    s, T = t // 4, t % 4; slot = s % 3
    base = A.kv0 if slot < 2 else A.kv1
    return base, (slot % 2)*32768 + T*4096
def rdK(k, t, q):
    b, o = kv_addr(t); return k.ds(f'ds_read_b128 {vr(A.KF+4*q,4)}, v{b} offset:{o+q*1024}')
def rdV(k, t):
    b, o = kv_addr(t)
    k.ds(f'ds_read_b128 {vr(A.V0+4*(t%2),4)}, v{b} offset:{o+2048}')
    return k.ds(f'ds_read_b128 {vr(A.V1+4*(t%3),4)}, v{b} offset:{o+3072}')

def both_ways(k, txts):
    for t in txts: a = k.vmop(t + ' sc1')
    return a
def maxchain(dst, src, n):
    out = [f'v_max3_u32 v{dst}, v{src}, v{src+1}, v{src+2}']; q = 3
    while q < n:
        out.append(f'v_max3_u32 v{dst}, v{dst}, v{src+q}, v{src+q+1}' if q+1 < n else f'v_max_u32 v{dst}, v{dst}, v{src+q}'); q += 2
    return out
def sent_check(k, dst, src, n, loads, redo=''):
    L1, L2 = lbl('sp'), lbl('spd')
    k.e(f'v_cmp_eq_u32 vcc, -1, v{dst}\ns_cbranch_vccnz {L1}\n{L2}:')
    k.cold.e(f'{L1}:\ns_mov_b32 s{S.spin}, {SPINV[0]}\n{L1}_a:\ns_sleep 4')
    for l in loads: k.cold.e(l)
    k.cold.e('s_waitcnt vmcnt(0)')
    for l in maxchain(dst, src, n): k.cold.e(l)
    k.cold.e(f'v_cmp_eq_u32 vcc, -1, v{dst}\ns_cbranch_vccz {L1}_b\ns_sub_u32 s{S.spin}, s{S.spin}, 1\ns_cbranch_scc0 {L1}_a\n{L1}_b:')
    if redo: k.cold.e(redo)
    k.cold.e(f's_branch {L2}')

def wo_jobs(k, br, first, n, ldsbase, row0, out, key, rot=False):
    J = []
    for q in range(n):
        def j(q=q):
            if q == 0: k.e(f's_mul_i32 s{S.t8}, s{S.tt}, {first[0]*1024}\ns_mul_i32 s{S.t7}, s{S.tt}, {first[0]*7168}')
            if n == 7 and rot:
                if q == 0: k.e(f's_add_u32 s{S.t8}, s{S.t8}, {ldsbase + first[1]*1024}\ns_add_u32 s{S.t7}, s{S.t7}, {first[1]*7168}')
                k.e(f's_mul_i32 s{S.t9}, s{S.ox+q}, 56\ns_lshl3_add_u32 m0, s{S.ox+q}, s{S.t8}\ns_add_u32 s{S.t9}, s{S.t9}, s{S.t7}')
            else:
                k.e(f's_add_u32 m0, s{S.t8}, {ldsbase + (first[1]+q)*1024}\ns_add_u32 s{S.t9}, s{S.t7}, {row0*896 + (first[1]+q)*7168}')
            out[key] = k.vmop(f'buffer_load_dwordx4 v{A.wsrc}, {srd(S.W if br == 0 else S.X)}, s{S.t9} offen lds')
        J.append(Job(j, 3))
    return J

def o_loads(dst, addr):
    return [f'buffer_load_dwordx4 {vr(dst+4*q,4)}, v{addr}, {srd(S.WS)}, {"0" if q < 4 else "s%d" % S.r0} offen offset:{(q%4)*1024} sc1' for q in range(8)]

def side_jobs(k, grp, opts, pend):
    T = V.tmp; J = {}; st = {}
    def at(t, f): J.setdefault(t, []).append(f)
    def kvA(): st['kvi'] = kv_partial(k)
    def kvB(): pend['spr'] += kv_partial2(k, st['kvi'])
    def kvC(): st['kvp'] = kv_partial3(k)
    def f2pub():
        k.vmwait(st['kvp'])
        k.e(f's_lshl3_add_u32 s{S.t2}, s{S.hA}, s{S.w}\ns_lshl4_add_u32 s{S.t2}, s{S.t2}, s{S.tb}\ns_lshl_b32 s{S.t2}, s{S.t2}, 6\ns_add_u32 s{S.t2}, s{S.t2}, {WS_FLAG2}')
        flag_store(k, S.t2, S.tag, opt=False)
    R = A.RED; I4 = 16; D4 = 20
    def s1():
        k.e(f's_lshl3_add_u32 s{S.t2}, s{S.hQ}, s{S.w}\ns_lshl_b32 s{S.t3}, s{S.t2}, 10\ns_add_u32 s{S.t3}, s{S.t3}, {WS_FLAG2}\nv_and_b32 v{A.a2}, 15, v{V.lane}\nv_lshl_add_u32 v{A.a2}, v{A.a2}, 6, s{S.t3}')
        st['f2'] = k.vmop(f'buffer_load_dword v{A.a1}, v{A.a2}, {srd(S.WS)}, 0 offen sc1')
        k.e(f's_lshl_b32 s{S.t2}, s{S.t2}, 13\ns_add_u32 s{S.t2}, s{S.t2}, {WS_KVP}\nv_lshl_add_u32 v{A.a0}, v{V.lane}, 4, s{S.t2}')
    def s2():
        if grp == 0:
            k.e(f'v_lshlrev_b32 v{T}, 4, v{V.lane}\nv_add_u32 v{T}, {L_SEL}, v{T}'); k.ds(f'ds_read_b128 {vr(I4,4)}, v{T}')
        flag_check(k, st['f2'], A.a1, A.a2)
        def ld(q, l): st[f'kp{q}'] = k.vmop(l)
        pend['wq'][0:0] = [Job(lambda q=q, l=l: ld(q, l), 1) for q, l in enumerate(o_loads(R, A.a0))]
    def s3():
        assert 'kp7' in st or opts['skip']; k.vmwait(st.get('kp7'))
        pend['spr'] += [f'v_mfma_f32_16x16x32_bf16 {vr(D4,4)}, {vr(I4,4)}, {vr(R+4*q,4)}, {"0" if q == 0 else vr(D4,4)}' for q in range(8)]
    def s4():
        k.e(f'''v_subrev_u32 v{T+2}, {L_STG}, v{KVB+2}
v_and_b32 v{T+2}, 0x3ff, v{T+2}
s_lshr_b32 s{S.t2}, s{S.w}, 1
s_lshl_b32 s{S.t2}, s{S.t2}, 10
s_add_u32 s{S.t2}, s{S.t2}, {L_WPHI}
v_lshl_add_u32 v{T+2}, v{V.hh}, 3, v{T+2}
v_add_u32 v{T+2}, s{S.t2}, v{T+2}
v_cvt_pk_bf16_f32 v{D4}, v{D4}, v{D4+1}
v_cvt_pk_bf16_f32 v{D4+1}, v{D4+2}, v{D4+3}''')
        k.ds(f'ds_write_b64 v{T+2}, {vr(D4,2)}')
    for n, f in enumerate((kvA, kvB, kvC, f2pub, s1, s2, s3, s4)): at(opts['kv_at'][grp][n], f)
    def oclear():
        for q in range(4): k.e(f'v_mov_b32 v{24+q}, -1')
        pend['barwait'] = {opts['ybar']: k.vmop(f'buffer_store_dwordx4 {vr(24,4)}, v{V.ob}, {srd(S.WS)}, 0 offen sc1')}
    at(opts['oclr_at'][grp], oclear)
    assert opts['a5_at'] >= 4*opts['ybar'] - 2
    def wowarm():
        U = T + 5
        k.e(f'''s_and_b32 s{S.t2}, s2, 127
s_mul_i32 s{S.t2}, s{S.t2}, 3136
s_cmp_lt_u32 s2, 128
s_cselect_b32 s{S.M1}, s{S.pWOA}, s{S.pWOB}
s_cselect_b32 s{S.M1+1}, s{S.pWOA+1}, s{S.pWOB+1}
s_mov_b32 s{S.M1+2}, 401408
s_mov_b32 s{S.M1+3}, 0x20000
v_min_u32 v{U}, 48, v{V.lane}
v_lshl_add_u32 v{U}, v{U}, 6, s{S.t2}''')
        k.vmop(f'buffer_load_dword v{A.l}, v{U}, {srd(S.M1)}, 0 offen', opt=True)
    if grp == 1 and opts['wowarm'] is not None: at(opts['wowarm'], only(k, 7, wowarm))
    def f1r(): st['f1r'] = k.vmop(f'buffer_load_dword v{A.f0}, v{A.f1}, {srd(S.WS)}, 0 offen sc1')
    def f1r2(): k.vmwait(st['f1r']); k.e(ready_mask())
    at(opts['f1r_at'][0], f1r); at(opts['f1r_at'][1], f1r2)
    if grp == 0:
        KF_, NUM = 80, 96
        def a2():
            k.e(f'v_lshlrev_b32 v{T}, 4, v{V.lane}\nv_add_u32 v{T}, {L_WPHI}, v{T}')
            for q in range(4): st['kvl'] = k.ds(f'ds_read_b128 {vr(KF_+4*q,4)}, v{T} offset:{q*1024}')
        def a3():
            k.dswait(st['kvl'])
            pend['spr'] += [mfma(NUM, KF_+4*q, A.PHQ+4*q, '0' if q == 0 else NUM) for q in range(4)]
        def a4():
            k.e(f'''v_mov_b32 v{T+1}, v{NUM+12}
v_mov_b32 v{T+3}, v{NUM+12}
s_sub_u32 s{S.t2}, s{S.hQ}, s{S.h}
s_lshl_b32 s{S.t2}, s{S.t2}, 11
v_permlane32_swap_b32 v{T+1}, v{T+3}
v_add_f32 v{T+3}, v{A.eps}, v{T+3}
v_rcp_f32 v{T+3}, v{T+3}
s_sub_u32 s{S.t2}, s{S.t2}, 32768
v_mul_f32 v{T+3}, v{V.g}, v{T+3}
v_add_u32 v{A.a2}, s{S.t2}, v{V.ob}''')
            for q in range(8): k.e(f'v_pk_mul_f32 {vr(NUM+2*q,2)}, {vr(NUM+2*q,2)}, {vr(T+3,2)} op_sel_hi:[1,0]')
            cvt16(k, KF_, NUM)
            k.e(f's_mov_b64 exec, s[{S.hi32}:{S.hi32+1}]\nv_mov_b32 v{KF_+6}, 0\nv_mov_b32 v{KF_+7}, 0\ns_mov_b64 exec, -1')
            st['oast'] = both_ways(k, [f'buffer_store_dwordx4 {vr(KF_,4)}, v{A.a2}, {srd(S.WS)}, 0 offen',
                          f'buffer_store_dwordx4 {vr(KF_+4,4)}, v{A.a2}, {srd(S.WS)}, 0 offen offset:1024'])
        p = opts['afin_at']
        def a5():
            k.vmwait(st['oast'])
            k.e(f's_lshl2_add_u32 s{S.t2}, s{S.tb}, s{S.tt}\ns_lshl4_add_u32 s{S.t2}, s{S.t2}, s{S.hQ}\ns_lshl_b32 s{S.t2}, s{S.t2}, 6\ns_add_u32 s{S.t2}, s{S.t2}, {WS_FLAG3A}')
            flag_store(k, S.t2, S.tag, opt=False)
        at(p, a2); at(p+1, a3); at(p+2, a4); at(opts['a5_at'], a5)
        assert p % 4 == 2 and p > max(opts['kv_at'][0][7], opts['kv_at'][1][7])
    def oa0():
        k.e(f's_lshl_b32 s{S.t2}, s{S.col}, 10\ns_add_u32 s{S.t2}, s{S.t2}, {WS_FLAG3A}\nv_and_b32 v{A.y1}, 15, v{V.lane}\nv_lshl_add_u32 v{A.y1}, v{A.y1}, 6, s{S.t2}')
        st['fa'] = k.vmop(f'buffer_load_dword v{A.y0}, v{A.y1}, {srd(S.WS)}, 0 offen sc1')
    at(opts['oa_at'] - 2, oa0)
    def oa():
        flag_check(k, st['fa'], A.y0, A.y1)
        k.e(f'''s_lshl_b32 s{S.t2}, s{S.col}, 16
s_lshl_b32 s{S.t3}, s{S.cw}, 13
s_add_u32 s{S.t2}, s{S.t2}, s{S.t3}
s_add_u32 s{S.t2}, s{S.t2}, {WS_OX}
s_and_b32 s{S.t3}, s{S.h}, 7
s_cmp_eq_u32 s{S.t3}, 7
s_cselect_b32 s{S.t2}, {OOB}, s{S.t2}
v_lshl_add_u32 v{A.a0}, v{V.lane}, 4, s{S.t2}''')
        def ld(q, l): st[f'oa{q}'] = k.vmop(l)
        pend['wq'] += [Job(lambda q=q, l=l: ld(q, l), 1) for q, l in enumerate(o_loads(A.OF, A.a0))]
    at(opts['oa_at'], oa)
    return J, st

def wo_bases(k, b0, base_s):
    T = V.tmp
    k.e(f'''
v_and_b32 v{T}, 1, v{V.lane}
v_bfe_u32 v{T+1}, v{V.lane}, 1, 1
v_lshl_or_b32 v{T}, v{T}, 1, v{T+1}
v_bfe_u32 v{T+1}, v{V.lane}, 4, 1
v_lshl_or_b32 v{T}, v{T+1}, 2, v{T}
v_bfe_u32 v{T+1}, v{V.lane}, 3, 1
v_lshl_or_b32 v{T}, v{T+1}, 3, v{T}
v_bfe_u32 v{T+1}, v{V.lane}, 2, 2
v_lshlrev_b32 v{T}, 3, v{T}
v_lshl_add_u32 v{T}, v{T+1}, 7, v{T}
v_add_u32 v{b0+2}, s{base_s}, v{T}
v_xor_b32 v{b0+3}, 64, v{b0+2}
v_lshl_add_u32 v{b0}, v{V.hh}, 9, v{b0+2}
v_xor_b32 v{b0+1}, 64, v{b0}
''')
def wo_reads(k, dst, b0, lo, hi):
    a = None
    for n in range(lo, hi):
        hd, t, oc = n // 4, (n // 2) % 2, n % 2
        k.ds(f'ds_read_b64_tr_b16 {vr(dst+4*n,2)}, v{b0+oc} offset:{hd*3584+t*2048}')
        a = k.ds(f'ds_read_b64_tr_b16 {vr(dst+4*n+2,2)}, v{b0+oc+(2 if t else 0)} offset:{hd*3584+t*2048+1024}')
    return a

def attention(k, grp, st, opts, pend):
    T = V.tmp
    wo = {'A': None, 'B': None}
    rdK(k, 0, 0); k0 = rdK(k, 0, 1)
    rdV(k, 0); rdV(k, 1)
    k.dswait(k0)
    k.e(mfma(A.SA, A.KF, A.Q, '0')); rdK(k, 1, 0)
    k.e(mfma(A.SA, A.KF+4, A.Q+4, A.SA)); kk = rdK(k, 1, 1)
    dq = []; wq = pend['wq'] = []
    for s_ in range(opts['npre'], 3): dq += kv_dma_jobs(k, s_, st)
    for j in dq[:2]: j.f()
    del dq[:2]
    k.e(f'v_max3_f32 v{A.m}, v{A.SA}, v{A.SA+1}, v{A.SA+2}')
    for q in range(3, 15, 2): k.e(f'v_max3_f32 v{A.m}, v{A.m}, v{A.SA+q}, v{A.SA+q+1}')
    k.e(f'v_max_f32 v{A.m}, v{A.m}, v{A.SA+15}\nv_mov_b32 v{T}, v{A.m}')
    k.e(f'''s_nop 1
v_permlane32_swap_b32 v{A.m}, v{T}
v_max_f32 v{A.m}, v{A.m}, v{T}
v_sub_f32 v{A.NM}, 0, v{A.m}''')
    for q in range(1, 16): k.e(f'v_mov_b32 v{A.NM+q}, v{A.NM}')
    for q in range(8): k.e(f'v_pk_add_f32 {vr(A.SA+2*q,2)}, {vr(A.SA+2*q,2)}, {vr(A.NM,2)}')
    pend['spr'] = []
    J, js = side_jobs(k, grp, opts, pend)
    def pump(n):
        for _ in range(n):
            if dq or wq:
                j = (dq or wq).pop(0)
                if not opts['nodma']: j.f()
    for t in range(32):
        cur, oth = (A.SA, A.SB) if t % 2 == 0 else (A.SB, A.SA)
        spr = pend['spr']; pts = {8: (0, 1, 3, 5, 6, 8, 10, 11), 4: (0, 3, 6, 9), 0: ()}[len(spr)]
        def ex(a, b):
            for q in range(a, b):
                k.e(f'v_exp_f32 v{cur+q}, v{cur+q}')
                if q in pts: k.e(spr.pop(0))
        k.c(f'---- tile {t}')
        ex(0, 2)
        if t >= 1: k.e(smfma(A.O, A.V1+4*((t-1) % 3), oth+8, A.idx))
        ex(2, 5)
        if t % 4 == 2:
            b = t//4 + 1
            stamp(k, f'preB{b}')
            assert b == 8 or st[(b, 'n')] == 4
            k.vmwait(pend.get('barwait', {}).get(b))
            k.vmwait(st.get(b), 'lgkmcnt(0)'); k.dsall(False)
            stamp(k, f'B{b}wait')
            k.e('s_barrier')
            if b + 2 <= 7: dq += kv_dma_jobs(k, b + 2, st)
            if b in (6, 7) and 'woB' not in opts['skip']:
                wq[0:0] = wo_jobs(k, 1, (3, 16) if grp else (4, 0), 3 if grp else 4, 65536*(7-b), 224*(b-6), wo, 'B')
        elif t + 1 <= 31:
            k.dswait(kk)
        if opts['prio']: k.e(f's_setprio {3 - (t + 2) % 4}')
        if t == opts['wo_at'] and 'woA' not in opts['skip']: wq += wo_jobs(k, 0, (7, 28*grp), 7, L_WOA, 0, wo, 'A', opts['wo_rot'])
        if t + 1 <= 31:
            k.e(mfma(oth, A.KF, A.Q, A.NM))
            if t + 2 <= 31: rdK(k, t+2, 0)
        pump(1 if len(dq) + len(wq) > opts['pump_hi'] else 0)
        ex(5, 8)
        if t + 1 <= 31:
            k.e(mfma(oth, A.KF+4, A.Q+4, oth))
            if t + 2 <= 31: kk = rdK(k, t+2, 1)
        pump(1 if len(dq) + len(wq) > opts['pump_hi2'] else 0)
        ex(8, 13)
        k.e(smfma(A.O, A.V0+4*(t % 2), cur, A.idx))
        if t + 2 <= 31: rdV(k, t+2)
        pump(1)
        wa = None
        ex(13, 16)
        for f in J.get(t, []):
            stamp(k, f'j{t}{grp}pre')
            if f.__name__ not in opts['skip']: f()
            stamp(k, f'j{t}{grp}post')
    assert not dq and len(wq) <= 3; pump(3)
    k.e('s_nop 1')
    k.e(smfma(A.O, A.V1+4*(31 % 3), A.SB+8, A.idx))
    if opts['prio']: k.e('s_setprio 0')
    return js, wo, wa

def fallback(k, grp):
    T = V.tmp; L = lbl('fbl')
    k.e(f'''
s_lshl_b32 s{S.t2}, s{S.tt}, 12
v_subrev_u32 v{A.ks}, s{S.t2}, v{A.ks}
v_mov_b32 v{A.m}, 0xff7fffff
s_mov_b32 s{S.sK}, 0
''')
    for q in range(16): k.e(f'v_mov_b32 v{A.O+q}, 0')
    k.e(f'''{L}:
buffer_load_dwordx4 {vr(A.KF,4)}, v{A.ks}, {srd(S.WS)}, s{S.sK} offen sc1
buffer_load_dwordx4 {vr(A.KF+4,4)}, v{A.ks}, {srd(S.WS)}, s{S.sK} offen offset:1024 sc1
buffer_load_dwordx4 {vr(A.V0,4)}, v{A.ks}, {srd(S.WS)}, s{S.sK} offen offset:2048 sc1
buffer_load_dwordx4 {vr(A.V0+4,4)}, v{A.ks}, {srd(S.WS)}, s{S.sK} offen offset:3072 sc1
s_waitcnt vmcnt(0)''')
    k.e(mfma(A.SA, A.KF, A.Q, '0')); k.e(mfma(A.SA, A.KF+4, A.Q+4, A.SA))
    k.e(f'v_max3_f32 v{T}, v{A.m}, v{A.SA}, v{A.SA+1}')
    for q in range(2, 16, 2): k.e(f'v_max3_f32 v{T}, v{T}, v{A.SA+q}, v{A.SA+q+1}')
    k.e(f'''v_mov_b32 v{T+1}, v{T}
s_nop 1
v_permlane32_swap_b32 v{T}, v{T+1}
v_max_f32 v{T}, v{T}, v{T+1}
v_sub_f32 v{T+1}, v{A.m}, v{T}
v_exp_f32 v{T+1}, v{T+1}
v_mov_b32 v{A.m}, v{T}''')
    for q in range(16): k.e(f'v_sub_f32 v{A.SA+q}, v{A.SA+q}, v{T}\nv_mul_f32 v{A.O+q}, v{A.O+q}, v{T+1}')
    for q in range(16): k.e(f'v_exp_f32 v{A.SA+q}, v{A.SA+q}')
    k.e('s_nop 1')
    k.e(smfma(A.O, A.V0, A.SA, A.idx)); k.e(smfma(A.O, A.V0+4, A.SA+8, A.idx))
    k.e(f'''s_add_u32 s{S.sK}, s{S.sK}, 4096
s_cmp_lt_u32 s{S.sK}, 131072
s_cbranch_scc1 {L}
v_mov_b32 v{A.l}, v{A.O+12}
v_mov_b32 v{T}, v{A.O+12}
s_nop 1
v_permlane32_swap_b32 v{T}, v{A.l}''')

def tail(k, grp, js, wo, wa, opts, fb):
    T = V.tmp
    k.c('---- end of attention: exchange with the partner wave, safety check of the stand-in maximum')
    stamp(k, 'attnend')
    Lfb, Lback = lbl('fb'), lbl('fbback')
    own, oth = (A.O, A.O+8) if grp == 0 else (A.O+8, A.O)
    CXa, CXb, CXl = A.a1, A.f0, A.f1
    k.e(f'''
s_lshl_b32 s{S.t2}, s{S.w}, 12
s_add_u32 s{S.t2}, s{S.t2}, {L_CX}
v_lshl_add_u32 v{CXa}, v{V.lane}, 4, s{S.t2}
v_xor_b32 v{CXb}, 16384, v{CXa}
v_lshl_add_u32 v{CXl}, v{V.lane}, 3, s{S.t2}
v_sub_f32 v{A.kv0}, 1.0, v{V.g}
s_mov_b32 s{S.t3}, {fbits(2.0**60)}
v_mov_b32 v{A.t}, v{A.m}''')
    xw = [f'ds_write_b128 v{CXa}, {vr(oth,4)}', f'ds_write_b128 v{CXa}, {vr(oth+4,4)} offset:1024']
    k.e(f'v_mov_b32 v{A.l}, v{A.O+12}\nv_mov_b32 v{T}, v{A.O+12}')
    for l in xw: k.ds(l)
    k.e(f'''v_permlane32_swap_b32 v{T}, v{A.l}
v_mul_f32 v{T+1}, 0, v{A.O}
v_mul_f32 v{T+2}, 0, v{A.O+1}''')
    k.ds(f'ds_write_b64 v{CXl}, {vr(A.l,2)} offset:2048')
    for q in range(1, 8): k.e(f'v_pk_fma_f32 {vr(T+1,2)}, {vr(A.O+2*q,2)}, 0, {vr(T+1,2)} op_sel_hi:[1,0,1]')
    k.e(f'''v_add_f32 v{T+1}, v{T+1}, v{T+2}
v_add_f32 v{T+1}, v{T+1}, v{A.l}
v_cmp_nge_f32 vcc, s{S.t3}, v{T+1}
s_cbranch_vccnz {Lfb}
{Lback}:''')
    fb.e(f'{Lfb}:'); fallback(fb, grp)
    fb.e(f'v_mov_b32 v{A.t}, v{A.m}')
    for l in xw: fb.e(l)
    fb.e(f'ds_write_b64 v{CXl}, {vr(A.l,2)} offset:2048\ns_branch {Lback}')
    k.e(f's_mul_i32 s{S.t2}, s{S.cw}, 14336\ns_add_u32 s{S.t2}, s{S.t2}, {L_WOA}')
    wo_bases(k, A.wb, S.t2)
    k.e(f'''s_and_b32 s{S.t3}, s{S.cw}, 1
s_mul_i32 s{S.t3}, s{S.t3}, 14336
s_cmp_lt_u32 s{S.cw}, 2
s_cselect_b32 s{S.t4}, 65536, 0
s_add_u32 s{S.t3}, s{S.t3}, s{S.t4}
s_sub_u32 s{S.t3}, s{S.t3}, s{S.t2}''')
    WB2 = A.Q
    for q in range(4): k.e(f'v_add_u32 v{116+q}, s{S.t3}, v{A.wb+q}')
    k.vmwait(wo['A'])
    k.vmwait(wo['B'], 'lgkmcnt(0)'); k.dsall(False)
    k.e(f's_barrier\nv_xor_b32 v{CXl}, 16384, v{CXl}')
    lm = k.ds(f'ds_read_b64 {vr(T+1,2)}, v{CXl} offset:2048')
    k.ds(f'ds_read_b128 {vr(A.SA,4)}, v{CXb}')
    a = k.ds(f'ds_read_b128 {vr(A.SA+4,4)}, v{CXb} offset:1024')
    wr = [wo_reads(k, A.WOA, A.wb, n, n+1) for n in range(5)]
    k.dswait(lm)
    k.e(f'''v_max_f32 v{T}, v{A.m}, v{T+2}
v_sub_f32 v{T+3}, v{A.m}, v{T}
v_sub_f32 v{T+5}, v{T+2}, v{T}
v_exp_f32 v{T+3}, v{T+3}
v_exp_f32 v{T+5}, v{T+5}
v_mul_f32 v{A.l}, v{A.l}, v{T+3}
v_fmac_f32 v{A.l}, v{T+1}, v{T+5}
v_rcp_f32 v{A.l}, v{A.l}
v_mul_f32 v{T+3}, v{T+3}, v{A.kv0}
v_mul_f32 v{T+5}, v{T+5}, v{A.kv0}
v_mul_f32 v{T+3}, v{T+3}, v{A.l}
v_mul_f32 v{T+5}, v{T+5}, v{A.l}''')
    for q in range(4): k.e(f'v_pk_mul_f32 {vr(own+2*q,2)}, {vr(own+2*q,2)}, {vr(T+3,2)} op_sel_hi:[1,0]')
    k.dswait(a)
    wr += [wo_reads(k, A.WOA, A.wb, n, n+1) for n in range(5, 8)]
    for q in range(4): k.e(f'v_pk_fma_f32 {vr(own+2*q,2)}, {vr(A.SA+2*q,2)}, {vr(T+5,2)}, {vr(own+2*q,2)} op_sel_hi:[1,0,1]')
    OB = 112
    for q in range(4): k.e(f'v_cvt_pk_bf16_f32 v{OB+q}, v{own+2*q}, v{own+2*q+1}')
    if grp == 1:
        k.e(f's_mov_b64 exec, s[{S.hi32}:{S.hi32+1}]\nv_mov_b32 v{OB+2}, 0\nv_mov_b32 v{OB+3}, 0\ns_mov_b64 exec, -1')
    ob = both_ways(k, [f'buffer_store_dwordx4 {vr(OB,4)}, v{V.ob}, {srd(S.WS)}, 0 offen'])
    stamp(k, 'obstored')
    Lidle = lbl('idle')
    k.e(f's_and_b32 s{S.t3}, s{S.h}, 7\ns_cmp_eq_u32 s{S.t3}, 7\ns_cbranch_scc1 {Lidle}')
    ACC = AC2 = A.ACC; OF2 = A.OF
    k.e(f'v_add_u32 v{A.kv1}, 32768, v{A.a0}')
    k.vmwait(js.get('oa7'))
    amf = [mfma(ACC+16*oc, A.WOA+4*(2*n+oc), A.OF+4*n, '0' if n == 0 else ACC+16*oc) for n in range(8) for oc in range(2)]
    ol = o_loads(OF2, A.kv1)
    for n, m in enumerate(amf):
        k.dswait(wr[n]); k.e(m)
        if n < 8: wr.append(wo_reads(k, A.WOA, A.wb, n+8, n+9))
        else: wo_reads(k, A.WOB, 116, 2*(n-8), 2*(n-8)+2)
    stamp(k, 'Ahalf')
    k.vmwait(ob); ids = [k.vmop(l) for l in ol]
    set_srd(k, S.M1, S.pOUT, 1835008)
    k.e(f'''s_lshl_b32 s{S.t2}, s{S.col}, 5
v_add_u32 v{T}, s{S.t2}, v{V.i32}
v_mul_u32_u24 v{T}, 896, v{T}
v_lshl_add_u32 v{T}, v{V.hh}, 4, v{T}
s_and_b32 s{S.t2}, s{S.h}, 7
s_lshl_b32 s{S.t2}, s{S.t2}, 7
s_lshl_b32 s{S.t3}, s{S.cw}, 5
s_add_u32 s{S.t2}, s{S.t2}, s{S.t3}
v_add_u32 v{A.a2}, s{S.t2}, v{T}
s_and_b32 s{S.t2}, s{S.w}, 1
s_lshl_b32 s{S.t2}, s{S.t2}, 15
s_lshl_b32 s{S.t3}, s{S.cw}, 11
s_add_u32 s{S.t3}, s{S.t3}, s{S.t2}
v_lshl_add_u32 v{A.ks}, v{V.lane}, 4, s{S.t3}
s_lshl_b32 s{S.t3}, s{S.cw}, 13
s_add_u32 s{S.t3}, s{S.t3}, s{S.t2}
v_lshl_add_u32 v{A.vs}, v{V.lane}, 4, s{S.t3}
s_mov_b32 s{S.spin}, {SPINV[0]}''')
    k.dsall()
    k.e('s_barrier')
    for n in range(8):
        L1, L2 = lbl('ob'), lbl('obd'); F = OF2 + 4*n
        chk = f'v_max3_u32 v{T}, v{F}, v{F+1}, v{F+2}\nv_max_u32 v{T}, v{T}, v{F+3}\nv_cmp_eq_u32 vcc, -1, v{T}'
        k.vmwait(ids[n])
        if n in (0, 7): stamp(k, f'ld{n}')
        k.e(f'{chk}\ns_cbranch_vccnz {L1}\n{L2}:')
        for oc in range(2): k.e(mfma(ACC+16*oc, A.WOB+4*(2*n+oc), F, ACC+16*oc))
        c = k.cold
        c.e(f'{L1}:\ns_sleep {opts["rsleep"]}')
        for l in ol[n:]: c.e(l)
        c.e(f's_waitcnt vmcnt({7-n})\n{chk}\ns_sub_u32 s{S.spin}, s{S.spin}, 1\ns_cbranch_scc1 {L2}\ns_cbranch_vccnz {L1}\ns_branch {L2}')
    stamp(k, 'Bhalf')
    Ls = [lbl('kq') for _ in range(2)]; Lj = lbl('kqj')
    k.e(f's_bitcmp1_b32 s{S.cw}, 0\ns_cbranch_scc1 {Ls[1]}')
    for par in range(2):
        kq = 2*grp + par
        if par: k.e(f'{Ls[1]}:')
        srcs = [p for p in range(4) if p != kq]
        if opts['pack']:
            for n, p in enumerate(srcs):
                for q in range(4): k.e(f'v_cvt_pk_bf16_f32 v{A.OF+4*n+q}, v{AC2+8*p+2*q}, v{AC2+8*p+2*q+1}')
                k.e(f'ds_write_b128 v{A.ks}, {vr(A.OF+4*n,4)} offset:{p*8192}')
            k.e(f's_mov_b32 s{S.t2}, 0x3f80\ns_mov_b32 s{S.t3}, 0x3f800000\ns_waitcnt lgkmcnt(0)\ns_barrier')
            for n, p in enumerate(srcs): k.e(f'ds_read_b128 {vr(A.OF+16+4*n,4)}, v{A.vs} offset:{p*2048}')
            for n in range(3):
                k.e(f's_waitcnt lgkmcnt({2-n})')
                for q in range(8): k.e(f'v_dot2_f32_bf16 v{AC2+8*kq+q}, v{A.OF+16+4*n+q//2}, s{S.t2 + q % 2}, v{AC2+8*kq+q}')
        else:
            for p in srcs:
                k.e(f'ds_write_b128 v{A.ks}, {vr(AC2+8*p,4)} offset:{p*8192}\nds_write_b128 v{A.ks}, {vr(AC2+8*p+4,4)} offset:{p*8192+1024}')
            k.e('s_waitcnt lgkmcnt(0)\ns_barrier')
            for n, p in enumerate(srcs):
                k.e(f'ds_read_b128 {vr(A.OF+8*n,4)}, v{A.vs} offset:{p*2048}\nds_read_b128 {vr(A.OF+8*n+4,4)}, v{A.vs} offset:{p*2048+1024}')
            for n in range(3):
                k.e(f's_waitcnt lgkmcnt({4-2*n})')
                for q in range(4): k.e(f'v_pk_add_f32 {vr(AC2+8*kq+2*q,2)}, {vr(AC2+8*kq+2*q,2)}, {vr(A.OF+8*n+2*q,2)}')
        if opts['pack']: k.e('s_nop 2')
        for q in range(4): k.e(f'v_cvt_pk_bf16_f32 v{A.OF+q}, v{AC2+8*kq+2*q}, v{AC2+8*kq+2*q+1}')
        if par == 0: k.e(f's_branch {Lj}')
    k.e(f'{Lj}:\nbuffer_store_dwordx4 {vr(A.OF,4)}, v{A.a2}, {srd(S.M1)}, 0 offen {opts["outsc"]}')
    if grp == 0:
        L = lbl('ep')
        k.e(f'''s_or_b32 s{S.t2}, s{S.h}, s{S.tb}
s_or_b32 s{S.t2}, s{S.t2}, s{S.w}
s_cmp_lg_u32 s{S.t2}, 0
s_cbranch_scc1 {L}''')
        flag_store(k, S.t2, S.tag)
        k.e(f'{L}:')
    k.e(f'{Lidle}:')
    stamp(k, 'end'); stamp_dump(k)
    k.e('s_endpgm')

DEFAULTS = dict(NH=8, flagwarm=False, oclr_at=(6, 7), ybar=4, rsleep=6, outsc='sc1', a5_at=22, pack=False, codewarm=5, wowarm=5, warm=False, wo_rot=True, nr8=6, prio_st=False, prio_g1=0, skip=(), spin=0x40000, kvsc='sc1', dbg=(), nodma=False, round_p=True, prio=True, align=True, prof=False,
                nobar=(8, 9, 10, 12, 13, 15, 16, 18, 19, 20, 22, 24, 26), npre=1, f1_step=11, f1_check=24, pre_rate=2, f1r_at=(1, 3),
                wsched={0: [4], 1: [5], 2: [6], 3: [7, 14], 4: [21, 8, 9], 5: [10, 11], 6: [12, 13], 7: [15, 16], 9: [17, 18], 11: [19, 20],
                        13: [22], 14: [23], 16: [24], 17: [25], 19: [26], 21: [27]},
                pump_hi=2, pump_hi2=5,  wo_at=15,
                kv_at=((0, 1, 2, 5, 8, 10, 16, 17), (0, 1, 2, 5, 9, 11, 16, 17)), afin_at=18, oa_at=27)

def build(**kw):
    opts = dict(DEFAULTS); opts.update(kw)
    issue = {w: s_ for s_, ws_ in opts['wsched'].items() for w in ws_}
    for w in range(4, 28):
        size = lambda x: 8192 if x // 7 in (0, 3) else 4096
        for p in range(w):
            if WADDR[p] < WADDR[w] + size(w) and WADDR[w] < WADDR[p] + size(p):
                b = p + 1
                while b in opts['nobar']: b += 1
                assert issue[w] >= b, (w, p, b)
        b = w
        while b in opts['nobar']: b -= 1
        assert issue[w] < b, (w, b)
    _lbl[0] = 0; PROF[0] = opts['prof']; STAMPS.clear(); DBG.clear(); DBG.update(opts['dbg']); KVSC[0] = opts['kvsc']; PRIO_ST[0] = opts['prio_st']; SPINV[0] = opts['spin']
    k = Stream(); k.cold = Stream()
    prologue(k, opts['NH'])
    ids = {}
    head = k
    streams = []; checks = []
    for grp in range(2):
        fb = Stream(); idg = dict(ids); st_id = None
        if grp == 0:
            g = head.fork()
            prologue0(g, idg)
            rot_offsets(g)
            dma_x(g, 1, True); idg[1] = dma_w(g, 1, True)
            setup2(g)
            dma_x(g, 2, True); idg[2] = dma_w(g, 2, True)
            g.e(HEADS()); slice_setup(g); idg[3] = dma_w(g, 3, True); stage0(g, 0, idg, True, opts); pre = g.text(); opts['_gw'] = [g.gw_id, g.wphi_id]
        else:
            h1 = head.fork(); prologue1(h1, opts)
            kk, kv = head.fork(), head.fork()
            for z, kt in ((kv, False), (kk, True)):
                z.e(tr_base0(kt)); stage0(z, 1, dict(ids), kt, opts); st_id = stage0_epilogue(z, kt)
            assert [x[1] for x in kk.vm if not x[1]] == [x[1] for x in kv.vm if not x[1]]
            pre = h1.text() + f'  s_cmp_ge_u32 s{S.j}, 7\n  s_cbranch_scc1 L_vtile\n' + kk.text() + '  s_branch L_mid\nL_vtile:\n' + kv.text() + 'L_mid:\n'
            g = kk
        g = g.fork(); g.cold = Stream(); g.pre = pre
        pend = stages12(g, idg, grp, st_id, opts)
        st = attn_prologue(g, grp, pend, opts)
        js, wo, wa = attention(g, grp, st, opts, pend)
        tail(g, grp, js, wo, wa, opts, fb)
        fb2 = Stream(); fb2.L = fb.L + g.cold.L
        streams.append((g, fb2))
    body = head.text()
    body += streams[0][0].pre + streams[0][0].text() + streams[0][1].text()
    body += 'L_grp1:\n' + streams[1][0].pre + streams[1][0].text() + streams[1][1].text()
    body += 'L_end:\n  s_endpgm\n'
    bl, checks = fix_hazards(body.rstrip('\n').split('\n'));
    if opts['align']: bl, st_ = align_runs([NAME + ':'] + bl); bl = bl[1:]; checks.append(f'align: widened {st_[0]}, nops {st_[1]}, left {st_[2]}')
    for g1 in (0, 1):
        for vt in (0, 1):
            for opt in (0, 1):
                ch = lambda L: (L == 'L_grp1' and g1) or (L == 'L_vtile' and vt) or (L.startswith('L_w_') and opt) or (L.startswith(('L_dup', 'L_ep')) and not opt) or (L.startswith('L_kq') and opt)
                w_ = check_waits(bl, ch)
                assert not w_ or opts['skip'], w_[:5]
    body = '\n'.join(bl) + '\n'
    ref = open('gated_mix__linear_kernel_hedgehog__softmax_full_mha__prompt.s.ref').read()
    hdr = ref[:ref.index('; @launch')]
    txt = hdr + f'''; @launch grid=(256,1,1) block=(512,1,1) lds=163840
.amdgcn_target "amdgcn-amd-amdhsa--gfx950"
.text
.globl {NAME}
.p2align 8
.type {NAME},@function
{NAME}:
{body}.section .rodata,"a"
.p2align 6
.amdhsa_kernel {NAME}
  .amdhsa_next_free_vgpr 256
  .amdhsa_next_free_sgpr 102
  .amdhsa_accum_offset 256
  .amdhsa_group_segment_fixed_size 0
  .amdhsa_kernarg_size 88
  .amdhsa_user_sgpr_count 2
  .amdhsa_user_sgpr_kernarg_segment_ptr 1
  .amdhsa_system_sgpr_workgroup_id_x 1
.end_amdhsa_kernel
'''
    return txt, checks

if __name__ == '__main__':
    out = sys.argv[1] if len(sys.argv) > 1 else 'gated_mix__linear_kernel_hedgehog__softmax_full_mha__prompt.s'
    kw = {}
    for a in sys.argv[2:]:
        n, v = a.split('='); kw[n] = eval(v)
    txt, msgs = build(**kw)
    for m in msgs: print('  auto', m)
    open(out, 'w').write(txt)
    print('wrote', out, len(txt), 'bytes')
    if STAMPS: open(out + '.stamps', 'w').write('\n'.join(STAMPS))
```

```python
import sys, struct
from asmlib import Stream, fix_hazards, align_runs, check_waits

NAME = 'gated_mix__linear_kernel_hedgehog__softmax_full_mha__prompt_kernel'
def fbits(x): return '0x%08x' % struct.unpack('<I', struct.pack('<f', x))[0]
LOG2E = 1.4426950408889634
QSCALE = 28 ** -0.5 * LOG2E

WS_FLAG1, WS_FLAG2, WS_FLAG3A, WS_FLAG3B = 0x40000, 0x20000, 0x60000, 0x80000
WS_KV, WS_KVP, WS_KVF, WS_OX, WS_DBG = 0x100000, 0x500000, 0x700000, 0x800000, 0x1000000
WS_SIZE = 0x2000000
OOB = 0x40000000
L_WR = 65536
WADDR = [(4+c)*8192 for c in range(7)] + [c*4096 for c in range(7)] + [(7+c)*4096 for c in range(7)] + [c*8192 for c in (7, 8, 9, 10, 0, 1, 2)]
L_PHI, L_QX, L_STG = L_WR + 4*8192, L_WR + 6*8192, L_WR + 7*8192
L_WPHI, L_G, L_SEL = 155648, 159744, 161792
HQ = [4, 6, 2, 3, 0, 5, 1, 7, 8, 14, 10, 15, 12, 13, 9, 11]
L_WOA, L_CX = 98304, 32768
SPINV = [0x8000]

class S:
    X, W, WS, M1, M2, W2 = 4, 8, 12, 16, 20, 68
    pX, pWA, pPHI, pWOA, pWB, pWOB, pGW, pOUT, pWS = 24, 26, 28, 30, 32, 34, 36, 38, 40
    h, tb, w, tt, grp, hA, j, tag, r0, hQ, cw, col = 44, 45, 46, 47, 48, 49, 50, 51, 52, 53, 54, 55
    mX, mW, t0, t1, t2, t3, t4, t5 = 56, 57, 58, 59, 60, 61, 62, 63
    vcm = 64
    rot, sK, mK, spin, rdy, rb = 72, 73, 74, 75, 76, 77
    lo28 = 76
    hi32 = 78
    t6, t7, t8, t9 = 80, 81, 82, 83
    ow, ox = 84, 91
def srd(b): return f's[{b}:{b+3}]'
def vr(b, n): return f'v[{b}:{b+n-1}]' if n > 1 else f'v{b}'

class V:
    lane, i32, hh = 1, 2, 3
    xa0, xa1, w0, ws = 4, 5, 6, 7
    xr = 8
    t0r, t1r, t2r = 12, 6, 14
    g = 15
    t3r = 11
    wsb, ws2, ws2b = 13, 244, 245
    acc0, acc1, P, EP, EM = 16, 32, 48, 64, 80
    wf = 96
    xf = 128
    gw0, gw1, ob = 4, 254, 246
    tmp = 247

def mfma(d, a, b, c): return f'v_mfma_f32_32x32x16_bf16 {vr(d,16)}, {vr(a,4)}, {vr(b,4)}, {c if isinstance(c,str) else vr(c,16)}'
def smfma(d, a, b, idx): return f'v_smfmac_f32_32x32x32_bf16 {vr(d,16)}, {vr(a,4)}, {vr(b,8)}, v{idx}'

PROF = [False, 0]
DBG = set()
KVSC = ['sc1']
PRIO_ST = [True]
STAMPS = []
def stamp(k, name):
    if not PROF[0]: return
    if PROF[0] != True and 'abs:' + name in PROF[0]:
        L = lbl('ab')
        k.e(f'''s_cmp_lg_u32 s{S.w}, 0
s_cbranch_scc1 {L}
s_memrealtime s[98:99]
s_load_dwordx2 s[84:85], s[0:1], 72
s_waitcnt lgkmcnt(0)
s_mov_b32 s86, 256
s_mov_b32 s87, 0x20000
s_not_b32 s99, s101
v_mov_b32 v0, 0
v_writelane_b32 v0, 64, 1
v_mov_b32 v{V.tmp+6}, {'s101' if 'start' in PROF[0] else 's98'}
v_writelane_b32 v{V.tmp+6}, s99, 1
s_mov_b64 exec, 3
buffer_atomic_umax v{V.tmp+6}, v0, s[84:87], 0 offen sc1
s_mov_b64 exec, -1
{L}:''')
        k.dq = []
        return
    if PROF[0] != True and name not in PROF[0]: return
    if name not in STAMPS: STAMPS.append(name)
    n = STAMPS.index(name)
    k.e(f's_memtime s[98:99]\ns_waitcnt lgkmcnt(0)\ns_sub_u32 s98, s98, s100\nv_writelane_b32 v0, s98, {n}')
    if PROF[0] != True and 'rt' in PROF[0]:
        k.e(f's_memrealtime s[98:99]\ns_waitcnt lgkmcnt(0)\ns_sub_u32 s98, s98, s101\nv_writelane_b32 v0, s98, {n+30}')
    k.dq = []
def stamp_dump(k):
    if not PROF[0]: return
    sp = [x for x in PROF[0] if x.startswith('spin')]
    if sp:
        L = lbl('spin'); mode = sp[0][4]
        k.e(f's_or_b32 s90, s2, s{S.w}\ns_cmp_lg_u32 s90, 0\ns_cbranch_scc1 {L}_e')
        if mode == 'A': k.e('s_add_u32 s91, s101, 6000')
        if mode == 'B': k.e('s_memrealtime s[98:99]\ns_waitcnt lgkmcnt(0)\ns_sub_u32 s91, s98, s101\ns_mul_i32 s91, s91, 4\ns_add_u32 s91, s91, s98')
        if mode == 'C': k.e('s_memtime s[98:99]\ns_waitcnt lgkmcnt(0)\ns_add_u32 s91, s98, 100000')
        if mode == 'E':
            k.e(f's_load_dwordx2 s[84:85], s[0:1], 72\ns_waitcnt vmcnt(0) lgkmcnt(0)\ns_mov_b32 s86, 256\ns_mov_b32 s87, 0x20000\nbuffer_load_dword v{V.tmp}, v0, s[84:87], 0 offen sc1\ns_memrealtime s[98:99]\ns_waitcnt vmcnt(0) lgkmcnt(0)\nv_readlane_b32 s90, v{V.tmp}, 0\nv_readlane_b32 s91, v{V.tmp}, 1\ns_nop 3\ns_not_b32 s91, s91\ns_sub_u32 s90, s90, s91\ns_lshl_b32 s90, s90, 2\ns_add_u32 s91, s90, s98')
        if mode == 'F':
            k.e('s_memrealtime s[98:99]\nv_readlane_b32 s90, v0, 30\ns_waitcnt lgkmcnt(0)\ns_lshl_b32 s90, s90, 2\ns_add_u32 s91, s90, s98')
        if mode == 'D':
            k.e('s_memrealtime s[98:99]\nv_readlane_b32 s90, v0, 0\ns_waitcnt lgkmcnt(0)\ns_mul_i32 s90, s90, 13107\ns_lshr_b32 s90, s90, 16\ns_add_u32 s91, s90, s98')
        k.e(f'{L}:\n{"s_memtime" if mode == "C" else "s_memrealtime"} s[98:99]\ns_waitcnt lgkmcnt(0)\ns_sub_u32 s90, s98, s91\ns_cmp_lt_i32 s90, 0\ns_cbranch_scc1 {L}\n{L}_e:')
        return
    if 'dbg' in PROF[0]:
        T = V.tmp
        k.e(f'''s_memrealtime s[98:99]
s_memtime s[96:97]
s_load_dwordx2 s[92:93], s[0:1], 72
s_getreg_b32 s90, hwreg(HW_REG_XCC_ID, 0, 4)
s_waitcnt lgkmcnt(0)
s_mov_b32 s94, 256
s_mov_b32 s95, 0x20000
s_sub_u32 s96, s96, s100
s_sub_u32 s91, s98, s101
s_not_b32 s89, s101
v_mov_b32 v{T}, 0
v_mov_b32 v{T+1}, s98
v_writelane_b32 v{T}, 4, 1
v_writelane_b32 v{T+1}, s89, 1
v_writelane_b32 v{T}, 8, 2
v_writelane_b32 v{T+1}, s101, 2
v_writelane_b32 v{T}, 12, 3
v_writelane_b32 v{T+1}, s96, 3
v_writelane_b32 v{T}, 16, 4
v_writelane_b32 v{T+1}, s91, 4
s_lshl_b32 s90, s90, 2
s_add_u32 s90, s90, 32
v_writelane_b32 v{T}, s90, 5
v_writelane_b32 v{T+1}, s89, 5
s_mov_b64 exec, 63
buffer_atomic_umax v{T+1}, v{T}, s[92:95], 0 offen''')
        return
    k.e(f'''s_memrealtime s[98:99]
s_waitcnt lgkmcnt(0)
v_writelane_b32 v0, s98, 63
v_writelane_b32 v0, s101, 62
s_lshl_b32 s98, s2, 3
s_add_u32 s98, s98, s{S.w}
s_lshl_b32 s98, s98, 8
s_add_u32 s98, s98, {WS_DBG}
v_lshl_add_u32 v{V.tmp}, v{V.lane}, 2, s98
buffer_store_dword v0, v{V.tmp}, {srd(S.WS)}, 0 offen''')

def set_srd(k, b, ptr, n):
    k.e(f's_mov_b32 s{b}, s{ptr}\ns_mov_b32 s{b+1}, s{ptr+1}\ns_mov_b32 s{b+2}, {n}\ns_mov_b32 s{b+3}, 0x20000')

def prologue(k, NH):
    T = V.tmp
    lg = {2: 1, 4: 2, 8: 3, 16: 4}[NH]; ng = 16 // NH
    k.e(f'''
s_cmp_ge_u32 s2, 256
s_cbranch_scc1 L_end
{'s_memtime s[100:101]' if PROF[0] else ''}
{'s_memrealtime s[98:99]' if PROF[0] else ''}
s_load_dwordx4 s[24:27], s[0:1], 0
s_load_dwordx4 s[32:35], s[0:1], 40
v_lshrrev_b32 v{T}, 6, v0
s_load_dwordx2 s[40:41], s[0:1], 80
v_readfirstlane_b32 s{S.w}, v{T}
s_load_dwordx4 s[28:31], s[0:1], 16
s_load_dwordx4 s[36:39], s[0:1], 56
v_and_b32 v{V.lane}, 63, v0
s_and_b32 s{S.t0}, s2, 7
s_lshr_b32 s{S.t1}, s2, 3
s_and_b32 s{S.h}, s{S.t0}, {ng-1}
s_and_b32 s{S.t2}, s{S.t1}, {NH-1}
s_lshl{lg}_add_u32 s{S.h}, s{S.h}, s{S.t2}
s_lshr_b32 s{S.tb}, s{S.t0}, {4-lg}
s_lshr_b32 s{S.t2}, s{S.t1}, {lg}
s_lshl{5-lg}_add_u32 s{S.tb}, s{S.tb}, s{S.t2}
s_and_b32 s{S.tt}, s{S.w}, 3
s_cmp_ge_u32 s{S.w}, 4
s_cbranch_scc1 L_grp1
''')
ROT0 = lambda: f'''; rotation r0 = (2 h + 3 tb) mod 7
s_mul_i32 s{S.t2}, s{S.tb}, 3
s_lshl1_add_u32 s{S.r0}, s{S.h}, s{S.t2}
s_mul_i32 s{S.t2}, s{S.r0}, 147
s_lshr_b32 s{S.t2}, s{S.t2}, 10
s_mul_i32 s{S.t2}, s{S.t2}, 7
s_sub_u32 s{S.r0}, s{S.r0}, s{S.t2}
s_lshl_b32 s{S.ox}, s{S.r0}, 7'''
TILE = lambda: f'''; tile j = h - (h>5) - (h>10); idle when h is 5 or 10
s_cmp_gt_u32 s{S.h}, 5
s_subb_u32 s{S.j}, s{S.h}, 0
s_cmp_gt_u32 s{S.h}, 10
s_subb_u32 s{S.j}, s{S.j}, 0'''
HEADS = lambda: f'''s_xor_b32 s{S.hA}, s{S.h}, 1
s_mov_b32 s{S.vcm}, {sum(HQ[i] << (4*i) for i in range(8))}
s_mov_b32 s{S.vcm+1}, {sum(HQ[8+i] << (4*i) for i in range(8))}
s_lshl_b32 s{S.t2}, s{S.h}, 2
s_lshr_b64 s[{S.vcm}:{S.vcm+1}], s[{S.vcm}:{S.vcm+1}], s{S.t2}
s_and_b32 s{S.hQ}, s{S.vcm}, 15'''
def prologue0(k, ids):
    T = V.tmp
    k.e(ROT0())
    k.e(f'''
s_lshl_b32 s{S.mX}, s{S.w}, 11
v_lshrrev_b32 v{T}, 3, v{V.lane}
v_and_b32 v{T+1}, 7, v{V.lane}
v_bfe_u32 v{T+2}, v{V.lane}, 4, 2
v_xor_b32 v{T+2}, v{T+1}, v{T+2}
v_mul_u32_u24 v{V.xa0}, 896, v{T}
v_lshl_add_u32 v{V.xa0}, v{T+2}, 4, v{V.xa0}
s_lshl3_add_u32 s{S.t2}, s{S.tb}, s{S.w}
s_mul_i32 s{S.t2}, s{S.t2}, 14336
v_add_u32 v{V.xa0}, s{S.t2}, v{V.xa0}
v_add_u32 v{V.xa1}, 7168, v{V.xa0}
v_xor_b32 v{V.xa1}, 64, v{V.xa1}
s_mov_b32 s{S.X+2}, 1835008
s_mov_b32 s{S.X+3}, 0x20000
s_waitcnt lgkmcnt(0)
{'s_mov_b32 s101, s98' if PROF[0] else ''}
s_mov_b32 s{S.X}, s{S.pX}
s_mov_b32 s{S.X+1}, s{S.pX+1}
''')
    dma_x(k, 0, True)
    k.e(TILE())
    k.e(f'''
s_mul_i32 s{S.ow}, s{S.ox}, 1344
s_lshl_b32 s{S.mW}, s{S.w}, 10
s_add_u32 s{S.mW}, s{S.mW}, {L_WR}
v_bfe_u32 v{T+2}, v{V.lane}, 4, 1
v_lshlrev_b32 v{T+2}, 2, v{T+2}
v_xor_b32 v{T+2}, v{T+1}, v{T+2}
v_mul_u32_u24 v{V.w0}, 2688, v{T}
v_lshl_add_u32 v{V.w0}, v{T+2}, 4, v{V.w0}
s_mul_i32 s{S.t2}, s{S.w}, 21504
s_lshl_b32 s{S.t3}, s{S.j}, 7
s_add_u32 s{S.t2}, s{S.t2}, s{S.t3}
s_add_u32 s{S.t2}, s{S.t2}, 896
v_add_u32 v{V.w0}, s{S.t2}, v{V.w0}
s_cmp_eq_u32 s{S.h}, 5
s_cselect_b32 s{S.t4}, 0, 1204224
s_cmp_eq_u32 s{S.h}, 10
s_cselect_b32 s{S.W+2}, 0, s{S.t4}
s_mov_b32 s{S.W+3}, 0x20000
s_mov_b32 s{S.W}, s{S.pWB}
s_mov_b32 s{S.W+1}, s{S.pWB+1}
''')
    ids[0] = dma_w(k, 0, True)
    k.e(f's_load_dword s{S.tag}, s[{S.pWS}:{S.pWS+1}], 0')
def prologue1(k, opts):
    k.e(TILE()); k.e(HEADS())
    if opts['codewarm']:
        k.e(f'''s_getpc_b64 s[{S.vcm}:{S.vcm+1}]
L_pc:
s_lshl2_add_u32 s{S.t2}, s{S.t1}, s{S.tt}
s_mul_i32 s{S.t2}, s{S.t2}, {opts['codewarm']*64}
s_min_u32 s{S.t2}, s{S.t2}, L_end-{NAME}-{opts['codewarm']*64}
s_sub_u32 s{S.vcm}, s{S.vcm}, L_pc-{NAME}
s_subb_u32 s{S.vcm+1}, s{S.vcm+1}, 0
s_add_u32 s{S.vcm}, s{S.vcm}, s{S.t2}
s_addc_u32 s{S.vcm+1}, s{S.vcm+1}, 0''')
    k.e(f'''s_waitcnt lgkmcnt(0)
{'s_mov_b32 s101, s98' if PROF[0] else ''}
s_load_dword s{S.tag}, s[{S.pWS}:{S.pWS+1}], 0''')
    for q in range(opts['codewarm']): k.e(f's_load_dword s{S.spin}, s[{S.vcm}:{S.vcm+1}], {q*64}')
    if opts['flagwarm']:
        ld = f's_load_dword s{S.spin}, s[{S.pWS}:{S.pWS+1}], s{S.t3}'
        k.e(f'''s_lshl4_add_u32 s{S.t2}, s{S.j}, s{S.tb}
s_lshl2_add_u32 s{S.t2}, s{S.t2}, s{S.tt}
s_lshl_b32 s{S.t2}, s{S.t2}, 6
s_add_u32 s{S.t3}, s{S.t2}, {WS_FLAG1}
{ld}
s_lshl3_add_u32 s{S.t2}, s{S.hA}, s{S.tt}
s_lshl4_add_u32 s{S.t2}, s{S.t2}, s{S.tb}
s_lshl_b32 s{S.t2}, s{S.t2}, 6
s_add_u32 s{S.t3}, s{S.t2}, {WS_FLAG2}
{ld}
s_add_u32 s{S.t3}, s{S.t2}, {WS_FLAG2 + 4096}
{ld}
s_lshl2_add_u32 s{S.t4}, s{S.tb}, s{S.tt}
s_lshl4_add_u32 s{S.t2}, s{S.t4}, s{S.hQ}
s_lshl_b32 s{S.t2}, s{S.t2}, 6
s_add_u32 s{S.t3}, s{S.t2}, {WS_FLAG3A}
{ld}
s_lshl4_add_u32 s{S.t2}, s{S.t4}, s{S.h}
s_lshl_b32 s{S.t2}, s{S.t2}, 7
s_add_u32 s{S.t3}, s{S.t2}, {WS_FLAG3B}
{ld}
s_add_u32 s{S.t3}, s{S.t2}, {WS_FLAG3B + 64}
{ld}''')
    if opts['tlbwarm']:
        k.e(f'''s_lshl2_add_u32 s{S.t2}, s{S.t1}, s{S.tt}
s_lshl_b32 s{S.t3}, s{S.t2}, 17
s_load_dword s{S.spin}, s[{S.pWS}:{S.pWS+1}], s{S.t3}
s_add_u32 s{S.t3}, s{S.t3}, 0x10000
s_load_dword s{S.spin}, s[{S.pWS}:{S.pWS+1}], s{S.t3}
s_and_b32 s{S.t3}, s{S.t2}, 31
s_lshl_b32 s{S.t3}, s{S.t3}, 16
s_lshr_b32 s{S.t2}, s{S.t2}, 5
s_mov_b32 s{S.t6}, s{S.pOUT}
s_mov_b32 s{S.t6+1}, s{S.pOUT+1}
s_mov_b32 s{S.t4}, 1835004
s_cmp_eq_u32 s{S.t2}, 1
s_cselect_b32 s{S.t6}, s{S.pWA}, s{S.t6}
s_cselect_b32 s{S.t6+1}, s{S.pWA+1}, s{S.t6+1}
s_cselect_b32 s{S.t4}, 1204220, s{S.t4}
s_cmp_eq_u32 s{S.t2}, 2
s_cselect_b32 s{S.t6}, s{S.pWOA}, s{S.t6}
s_cselect_b32 s{S.t6+1}, s{S.pWOA+1}, s{S.t6+1}
s_cselect_b32 s{S.t4}, 401404, s{S.t4}
s_cmp_eq_u32 s{S.t2}, 3
s_cselect_b32 s{S.t6}, s{S.pWOB}, s{S.t6}
s_cselect_b32 s{S.t6+1}, s{S.pWOB+1}, s{S.t6+1}
s_cselect_b32 s{S.t4}, 401404, s{S.t4}
s_min_u32 s{S.t3}, s{S.t3}, s{S.t4}
s_load_dword s{S.spin}, s[{S.t6}:{S.t6+1}], s{S.t3}''')
    k.e(ROT0()); rot_offsets(k); setup2(k)

def rot_offsets(k):
    for q in range(1, 7):
        k.e(f's_add_u32 s{S.ox+q}, s{S.ox+q-1}, 128\ns_cmp_eq_u32 s{S.ox+q}, 896\ns_cselect_b32 s{S.ox+q}, 0, s{S.ox+q}\ns_mul_i32 s{S.ow+q}, s{S.ox+q}, 1344')
def dma_x(k, s, both=False):
    for p in range(2 if both else 1):
        so = S.ox + s
        for a, v in ((0, V.xa0), (1, V.xa1)):
            k.e(f's_add_u32 m0, s{S.mX}, {(s%4)*16384 + p*8192 + a*1024}')
            if p and not a: k.e(f's_add_u32 s{S.t0}, s{so}, 57344')
            else: k.e('s_nop 0')
            x = k.vmop(f'buffer_load_dwordx4 v{v}, {srd(S.X)}, s{S.t0 if p else so} offen lds')
    return x
def dma_w(k, s, both=False):
    st = s // 7; so = S.ow + s % 7
    for p in range(2 if st in (0, 3) else 1):
        k.e(f's_add_u32 m0, s{S.mW}, {WADDR[s] + p*4096}')
        if st == 0:
            k.e(f's_add_u32 s{S.t0}, s{so}, 86016' if p else 's_nop 0')
            x = k.vmop(f'buffer_load_dwordx4 v{V.w0}, {srd(S.W)}, s{S.t0 if p else so} offen lds')
        else:
            k.e('s_nop 0')
            x = k.vmop(f'buffer_load_dwordx4 v{[[V.ws], [V.ws2], [V.ws2b, V.wsb]][st-1][p]}, {srd(S.W2 if (st == 3 and p == 0) else S.M2)}, s{so} offen lds')
    return x
def slice_setup(k):
    T = V.tmp
    set_srd(k, S.M2, S.pWA, 1204224); set_srd(k, S.W2, S.pWB, 1204224)
    k.e(f'''s_mul_i32 s{S.t2}, s{S.tt}, 43008
v_lshrrev_b32 v{T}, 2, v{V.lane}
v_mul_u32_u24 v{T}, 2688, v{T}
v_and_b32 v{T+1}, 3, v{V.lane}
v_lshl_add_u32 v{T}, v{T+1}, 4, v{T}
v_lshrrev_b32 v{T+2}, 1, v{T+1}
v_and_b32 v{T+2}, v{T+2}, v{T+1}
v_lshlrev_b32 v{T+2}, 3, v{T+2}
v_sub_u32 v{T}, v{T}, v{T+2}
v_add_u32 v{T}, s{S.t2}, v{T}
s_mul_i32 s{S.t0}, s{S.hA}, 56
s_mul_i32 s{S.t1}, s{S.hQ}, 56
s_mul_i32 s{S.t3}, s{S.h}, 56
s_add_u32 s{S.t0}, s{S.t0}, 896
v_add_u32 v{V.ws}, s{S.t1}, v{T}
v_add_u32 v{V.ws2}, s{S.t0}, v{T}
v_add_u32 v{V.ws2b}, s{S.t3}, v{T}
v_add_u32 v{V.wsb}, 896, v{V.ws2}''')

def setup2(k, ws=True):
    T = V.tmp
    k.e(f'''
v_and_b32 v{V.i32}, 31, v{V.lane}
v_lshrrev_b32 v{V.hh}, 5, v{V.lane}
v_bfe_u32 v{T}, v{V.lane}, 1, 3
v_xor_b32 v{T}, v{T}, v{V.hh}
v_lshlrev_b32 v{T}, 4, v{T}
v_lshl_add_u32 v{T}, v{V.i32}, 7, v{T}
s_lshl_b32 s{S.t2}, s{S.tt}, 12
v_add_u32 v{V.xr}, s{S.t2}, v{T}
v_xor_b32 v{V.xr+1}, 32, v{V.xr}
v_xor_b32 v{V.xr+2}, 64, v{V.xr}
v_xor_b32 v{V.xr+3}, 96, v{V.xr}
s_mov_b32 s{S.hi32}, 0
s_mov_b32 s{S.hi32+1}, -1
''')
    if ws: set_srd(k, S.WS, S.pWS, WS_SIZE)
def colgrp(dst, swap):
    a = f'v_and_b32 v{dst}, 3, v{V.lane}\n' if not swap else f'v_and_b32 v{dst}, 1, v{V.lane}\nv_bfe_u32 v{dst+1}, v{V.lane}, 1, 1\nv_lshl_or_b32 v{dst}, v{dst}, 1, v{dst+1}\n'
    return a + f'''v_bfe_u32 v{dst+1}, v{V.lane}, 4, 1
v_lshl_or_b32 v{dst}, v{dst+1}, 2, v{dst}
v_bfe_u32 v{dst+1}, v{V.lane}, 2, 2
v_lshl_or_b32 v{dst+1}, v{V.hh}, 3, v{dst+1}
'''
def tr_base0(ktype):
    T = V.tmp
    return colgrp(T, ktype) + f'''v_bfe_u32 v{T+2}, v{V.lane}, 3, 1
v_lshlrev_b32 v{T+2}, 6, v{T+2}
v_lshl_add_u32 v{T+2}, v{T}, 3, v{T+2}
v_lshl_add_u32 v{T+2}, v{T+1}, 7, v{T+2}
v_add_u32 v{V.t0r}, {L_WR + WADDR[0]}, v{T+2}
v_xor_b32 v{V.t0r+1}, 64, v{V.t0r}'''
def tr_base(dst, base, swap, parity):
    T = V.tmp
    a = colgrp(T, swap)
    if parity: a += f's_and_b32 s{S.t3}, s{S.h}, 1\nv_subrev_u32 v{T}, s{S.t3}, v{T}\nv_and_b32 v{T}, 7, v{T}\n'
    return a + f'''v_lshrrev_b32 v{T+2}, 1, v{T}
v_lshrrev_b32 v{T+3}, 2, v{T}
v_and_b32 v{T+2}, v{T+2}, v{T+3}
v_and_b32 v{T+2}, 1, v{T+2}
v_xor_b32 v{T}, v{T}, v{T+2}
v_lshlrev_b32 v{T}, 3, v{T}
v_lshl_add_u32 v{T}, v{T+1}, 6, v{T}
v_add_u32 v{dst}, {L_WR + base}, v{T}'''

def wphi_load(k):
    T = V.tmp
    set_srd(k, S.X, S.pPHI, 25088)
    k.e(f'''
s_lshl_b32 s{S.t2}, s{S.tt}, 3
v_lshrrev_b32 v{T+1}, 3, v{V.lane}
v_add_u32 v{T+1}, s{S.t2}, v{T+1}
v_add_u32 v{T+2}, 1, v{V.lane}
v_and_b32 v{T+2}, 7, v{T+2}
v_max_u32 v{T+2}, 1, v{T+2}
v_mul_u32_u24 v{T+3}, 56, v{T+1}
v_lshl_add_u32 v{T+3}, v{T+2}, 3, v{T+3}
v_add_u32 v{T+1}, 4, v{T+1}
v_lshrrev_b32 v{T+1}, 5, v{T+1}
v_subrev_u32 v{T+3}, 8, v{T+3}
v_lshl_or_b32 v{T+3}, v{T+1}, 30, v{T+3}
s_mul_i32 s{S.t2}, s{S.hA}, 1568
s_mul_i32 s{S.t3}, s{S.hQ}, 1568
''')
    k.vmop(f'buffer_load_dwordx2 v[{V.EM}:{V.EM+1}], v{T+3}, {srd(S.X)}, s{S.t2} offen')
    k.wphi_id = k.vmop(f'buffer_load_dwordx2 v[{V.EM+2}:{V.EM+3}], v{T+3}, {srd(S.X)}, s{S.t3} offen')
def gate_load(k):
    T = V.tmp
    set_srd(k, S.X, S.pGW, 896)
    k.e(f'''v_lshrrev_b32 v{T}, 4, v{V.lane}
v_add_u32 v{T}, s{S.r0}, v{T}
v_and_b32 v{T+2}, 15, v{V.lane}
v_lshlrev_b32 v{T+2}, 1, v{T+2}
s_lshl_b32 s{S.t2}, s{S.tt}, 5
v_add_u32 v{T+2}, s{S.t2}, v{T+2}
v_mov_b32 v{V.gw0+1}, 0
v_mov_b32 v{V.gw1+1}, 0''')
    for a, r in ((0, V.gw0), (4, V.gw1)):
        k.e(f'v_add_u32 v{T+1}, {a}, v{T}\nv_subrev_u32 v{T+3}, 7, v{T+1}\nv_min_u32 v{T+1}, v{T+1}, v{T+3}\nv_lshl_add_u32 v{T+1}, v{T+1}, 7, v{T+2}')
        x = k.vmop(f'buffer_load_ushort v{r}, v{T+1}, {srd(S.X)}, 0 offen')
    k.gw_id = x
    return x

def active(s, grp): return grp == [1, 0, 1, 0][s // 7]
def reads(s, grp):
    st = s // 7; buf = V.wf + 16*(s % 2); out = []
    for q in range(4):
        if st == 0:
            out.append(f'ds_read_b128 {vr(V.xf+16*s+4*q,4)}, v{V.xr+q} offset:{(s % 4)*16384}')
            if grp == 1:
                for cs, b in ((0, buf), (1, [V.P, V.EM][s % 2])):
                    for jh in range(2):
                        out.append(f'ds_read_b64_tr_b16 {vr(b+4*q+2*jh,2)}, v{V.t0r+cs} offset:{WADDR[s]-WADDR[0]+q*2048+jh*512}')
        elif active(s, grp):
            if st < 3:
                for jh in range(2):
                    out.append(f'ds_read_b64_tr_b16 {vr(buf+4*q+2*jh,2)}, v{[V.t0r, V.t1r][st-1]} offset:{WADDR[s]+q*1024+jh*256}')
            else:
                if s == 25 and q == 0: out.append(f'v_subrev_u32 v{V.t2r}, {WADDR[21]}, v{V.t2r}\nv_subrev_u32 v{V.t3r}, {WADDR[21]}, v{V.t3r}')
                for b, t in ((buf, V.t2r), ([V.P, V.EM][s % 2], V.t3r)):
                    for jh in range(2):
                        out.append(f'ds_read_b64_tr_b16 {vr(b+4*q+2*jh,2)}, v{t} offset:{WADDR[s]-(WADDR[21] if s < 25 else 0)+q*1024+jh*256}')
    return out
def mfmas(s, grp, ktype=True):
    st = s // 7; c = s % 7; buf = V.wf + 16*(s % 2); out = []
    if not active(s, grp): return []
    b2 = [V.P, V.EM][s % 2]
    tiles = [[(V.acc0, buf, ktype), (V.acc1, b2, ktype)], [(V.acc1, buf, True)], [(V.acc1, buf, True)], [(V.acc0, buf, True), (V.EP, b2, False)]][st]
    for q in range(4):
        for acc, b, wfirst in tiles:
            x = V.xf + 16*c + 4*q; w = b + 4*q
            cin = '0' if (c == 0 and q == 0) else acc
            out.append(mfma(acc, w, x, cin) if wfirst else mfma(acc, x, w, cin))
    return out
def nlines(p): return len([l for l in p.strip().split('\n') if l.strip()]) if isinstance(p, str) else p.n
class Job:
    def __init__(self, f, n): self.f, self.n = f, n
def emit(k, p):
    if isinstance(p, str): k.e(p)
    else: p.f()
def split_pieces(pieces, nslots):
    tot = sum(nlines(p) for p in pieces); out = [[] for _ in range(nslots)]; acc = 0
    for p in pieces:
        out[min(nslots-1, int((acc + nlines(p)/2) * nslots / max(tot, 1)))].append(p); acc += nlines(p)
    return out
def lines(txt): return [l for l in txt.strip().split('\n') if l.strip()]

def cvt16(k, dst, src):
    for q in range(8): k.e(f'v_cvt_pk_bf16_f32 v{dst+q}, v{src+2*q}, v{src+2*q+1}')

def epi0_addr_k():
    T = V.tmp; k = Stream()
    k.e(f'''
s_lshl_b32 s{S.t2}, s{S.j}, 3
v_and_b32 v{T}, 0x13, v{V.i32}
v_bfe_u32 v{T+1}, v{V.i32}, 2, 1
v_lshl_or_b32 v{T}, v{T+1}, 3, v{T}
v_bfe_u32 v{T+1}, v{V.i32}, 3, 1
v_lshl_or_b32 v{T}, v{T+1}, 2, v{T}
v_lshlrev_b32 v{T}, 4, v{T}
s_lshl_b32 s{S.t3}, s{S.tb}, 2
s_add_u32 s{S.t3}, s{S.t3}, s{S.tt}
s_lshl_b32 s{S.t3}, s{S.t3}, 12
s_add_u32 s{S.t3}, s{S.t3}, {WS_KV}
v_add_u32 v{V.EP+8}, s{S.t3}, v{T}
v_add_u32 v{V.EP+9}, s{S.t2}, v{V.hh}
''')
    out = ['\n'.join(k.L)]
    for n in range(4):
        D = V.EP + 4*(n//2) + n % 2
        out.append(f'''v_add_u32 v{T+1}, {2*n}, v{V.EP+9}
v_mul_u32_u24 v{T+2}, 37, v{T+1}
v_lshrrev_b32 v{T+2}, 8, v{T+2}
v_mul_u32_u24 v{T+3}, 7, v{T+2}
v_sub_u32 v{T+3}, v{T+1}, v{T+3}
v_lshrrev_b32 v{T+4}, 2, v{T+3}
v_lshl_add_u32 v{T+5}, v{T+2}, 1, v{T+4}
v_mul_u32_u24 v{T+4}, 3, v{T+4}
v_sub_u32 v{T+4}, v{T+3}, v{T+4}
v_lshl_add_u32 v{D}, v{T+5}, 18, v{V.EP+8}
v_lshl_add_u32 v{D}, v{T+4}, 9, v{D}
v_lshl_add_u32 v{D+2}, v{T+2}, 19, v{V.EP+8}
v_add_u32 v{D+2}, 0x40000, v{D+2}
v_xor_b32 v{T+3}, 3, v{T+3}
v_min_u32 v{T+3}, 1, v{T+3}
v_lshl_or_b32 v{D+2}, v{T+3}, 30, v{D+2}''')
    return out
def epi0_addr_v():
    T = V.tmp; out = []
    for cs in range(2):
        D = V.EP + 4*cs; C = V.EP + 8 + 4*cs
        out.append(f'''s_sub_u32 s{S.t2}, s{S.j}, 7
s_lshl_b32 s{S.t2}, s{S.t2}, 6
s_add_u32 s{S.t2}, s{S.t2}, {32*cs}
v_add_u32 v{T}, s{S.t2}, v{V.i32}
v_mul_u32_u24 v{T+1}, 2341, v{T}
v_lshrrev_b32 v{T+1}, 16, v{T+1}
v_mul_u32_u24 v{T+2}, 28, v{T+1}
v_sub_u32 v{T+2}, v{T}, v{T+2}
s_lshl_b32 s{S.t3}, s{S.tb}, 2
s_add_u32 s{S.t3}, s{S.t3}, s{S.tt}
s_lshl_b32 s{S.t3}, s{S.t3}, 12
s_add_u32 s{S.t3}, s{S.t3}, {WS_KV + 2048}
v_lshlrev_b32 v{T+1}, 18, v{T+1}
v_lshl_add_u32 v{T+1}, v{T+2}, 4, v{T+1}
v_lshlrev_b32 v{T+3}, 9, v{V.hh}
v_add3_u32 v{D}, v{T+1}, v{T+3}, s{S.t3}
v_add_u32 v{D+1}, 1024, v{D}
v_lshrrev_b32 v{T+3}, 2, v{T+2}
v_min_u32 v{T+3}, 1, v{T+3}
v_add_u32 v{D+2}, 448, v{D}
v_lshl_or_b32 v{D+2}, v{T+3}, 30, v{D+2}
v_add_u32 v{D+3}, 1024, v{D+2}
v_min_u32 v{T+2}, 1, v{T+2}
v_subrev_u32 v{T+2}, 1, v{T+2}
v_and_b32 v{C}, 0x3f803f80, v{T+2}
v_mov_b32 v{C+1}, v{C}
v_mov_b32 v{C+2}, v{C}
v_mov_b32 v{C+3}, v{C}''')
    return out

class A:
    ks, vs, kv0, kv1, idx, m = 12, 126, 8, 9, 10, 11
    a0, a1, a2 = 7, 124, 14
    f0, f1 = 4, 5
    Q, KF, V0, V1, O, NM, SA, SB, PHQ = 128, 136, 144, 112, 160, 176, 192, 208, 32
    l = 152; t = 153
    WOA, OF, RED = 16, 80, 48
    WOB, ACC = 176, 128
    wsrc = 13
    wb = 240
    eps = 6
    one = 125
    y0, y1 = 244, 245

def wphi_reads(grp):
    T = V.tmp
    a = lines(colgrp(T, False) + f'v_lshlrev_b32 v{T}, 3, v{T}\nv_lshl_add_u32 v{T}, v{T+1}, 6, v{T}\nv_add_u32 v{T}, {L_WPHI + grp*2048}, v{T}')
    for s in range(2):
        for jh in range(2): a.append(f'ds_read_b64_tr_b16 {vr(V.EM+4*s+2*jh,2)}, v{T} offset:{s*1024+jh*256}')
    a.append(f's_mov_b32 s{S.t6}, {fbits(LOG2E)}')
    return a

def feat_pieces(src, dst, query, round_p=True):
    T = V.tmp; P, EP, EM = V.P, V.EP, V.EM
    sA = S.t6; c = []
    c += [f'v_cvt_pk_bf16_f32 v{EM+8+q}, v{src+2*q}, v{src+2*q+1}' for q in range(8)]
    c += [mfma(P, EM, EM+8, '0') + '\n' + mfma(P, EM+4, EM+12, P), 'WAITP']
    if round_p:
        c += [f'v_cvt_pk_bf16_f32 v{EP+q}, v{P+2*q}, v{P+2*q+1}' for q in range(8)]
        for q in range(8): c += [f'v_lshlrev_b32 v{P+2*q}, 16, v{EP+q}', f'v_and_b32 v{P+2*q+1}, 0xffff0000, v{EP+q}']
    c += [f'v_max3_f32 v{T}, v{P}, v{P+1}, v{P+2}', f'v_max3_f32 v{T+1}, -v{P}, -v{P+1}, -v{P+2}']
    for q in range(3, 15, 2):
        c += [f'v_max3_f32 v{T}, v{T}, v{P+q}, v{P+q+1}', f'v_max3_f32 v{T+1}, v{T+1}, -v{P+q}, -v{P+q+1}']
    c.append(f'''v_max_f32 v{T}, v{T}, v{P+15}
v_max_f32_e64 v{T+1}, v{T+1}, -v{P+15}
v_sub_u32 v{T+2}, 0, v{V.hh}
v_and_b32 v{T+2}, 0x7f800000, v{T+2}
v_permlane32_swap_b32 v{T}, v{T+1}
v_max_f32 v{T}, v{T}, v{T+1}
v_mul_f32 v{T+1}, s{sA}, v{T}
v_mul_f32 v{T+3}, s{sA}, v{T}
s_nop 1
v_permlane32_swap_b32 v{T+1}, v{T+3}''')
    for q in range(8):
        if q == 6: c.append(f'v_add_f32 v{T+1}, v{T+1}, v{T+2}\nv_add_f32 v{T+3}, v{T+3}, v{T+2}')
        c.append(f'v_pk_fma_f32 {vr(EP+2*q,2)}, {vr(P+2*q,2)}, s[{sA}:{sA+1}], {vr(T+1,2)} op_sel_hi:[1,0,0] neg_lo:[0,0,1] neg_hi:[0,0,1]')
        c.append(f'v_pk_fma_f32 {vr(EM+2*q,2)}, {vr(P+2*q,2)}, s[{sA}:{sA+1}], {vr(T+3,2)} op_sel_hi:[1,0,0] neg_lo:[1,0,1] neg_hi:[1,0,1]')
    c += [f'v_exp_f32 v{EP+q}, v{EP+q}\n; x' for q in range(16)]
    c += [f'v_exp_f32 v{EM+q}, v{EM+q}\n; x' for q in range(16)]
    c += [f'v_pk_add_f32 {vr(T+1,2)}, {vr(EP,2)}, {vr(EP+2,2)}', f'v_pk_add_f32 {vr(T+3,2)}, {vr(EM,2)}, {vr(EM+2,2)}']
    for q in range(2, 8):
        c += [f'v_pk_add_f32 {vr(T+1,2)}, {vr(T+1,2)}, {vr(EP+2*q,2)}', f'v_pk_add_f32 {vr(T+3,2)}, {vr(T+3,2)}, {vr(EM+2*q,2)}']
    a = f'''v_add_f32 v{T+1}, v{T+1}, v{T+2}
v_add_f32 v{T+3}, v{T+3}, v{T+4}
s_nop 1
v_permlane32_swap_b32 v{T+1}, v{T+3}
v_add_f32 v{T+1}, v{T+1}, v{T+3}
'''
    if not query:
        a += f'v_rcp_f32 v{T+1}, v{T+1}\ns_nop 0\nv_mov_b32 v{T+3}, v{T+1}\ns_nop 1\nv_permlane32_swap_b32 v{T+1}, v{T+3}'
    else:
        a += f'v_mov_b32 v{T+3}, v{T+1}\ns_nop 1\nv_permlane32_swap_b32 v{T+1}, v{T+3}\nv_rcp_f32 v{T+3}, v{T+3}\nv_mul_f32 v{A.eps}, {fbits(1e-6)}, v{T+1}\nv_mul_f32 v{T+3}, v{T+3}, v{T+1}'
    c.append(a)
    for q in range(8):
        if not query: c.append(f'v_pk_mul_f32 {vr(EP+2*q,2)}, {vr(EP+2*q,2)}, {vr(T+1,2)} op_sel_hi:[1,0]')
        c.append(f'v_pk_mul_f32 {vr(EM+2*q,2)}, {vr(EM+2*q,2)}, {vr(T+3,2)} op_sel_hi:[1,0]')
    for q in range(8):
        c += [f'v_cvt_pk_bf16_f32 v{dst+q}, v{EP+2*q}, v{EP+2*q+1}', f'v_cvt_pk_bf16_f32 v{dst+8+q}, v{EM+2*q}, v{EM+2*q+1}']
    return c

def phi_base():
    T = V.tmp; D = A.m
    return lines(f'''v_and_b32 v{D}, 1, v{V.i32}
v_bfe_u32 v{T}, v{V.i32}, 2, 2
v_lshl_or_b32 v{D}, v{T}, 1, v{D}
v_bfe_u32 v{T}, v{V.i32}, 1, 1
v_lshl_or_b32 v{D}, v{T}, 3, v{D}
v_xor_b32 v{D}, v{D}, v{V.hh}
v_lshlrev_b32 v{D}, 3, v{D}
v_lshl_add_u32 v{D}, v{V.i32}, 7, v{D}
s_lshl_b32 s{S.t2}, s{S.tt}, 12
s_add_u32 s{S.t2}, s{S.t2}, {L_PHI}
v_add_u32 v{D}, s{S.t2}, v{D}''')
def phi_write(src):
    T = V.tmp; out = []
    for s in range(2):
        for g in range(4):
            u = 8*s + 2*g
            out.append((f'v_xor_b32 v{T}, {u*8}, v{A.m}\n' if u else '') + f'ds_write_b64 v{T if u else A.m}, {vr(src+8*s+2*g,2)}')
    return out

def va_stage():
    T = V.tmp; k = Stream()
    k.e(f's_lshl_b32 s{S.t2}, s{S.tt}, 11\ns_add_u32 s{S.t2}, s{S.t2}, {L_STG}\nv_lshl_add_u32 v{T}, v{V.lane}, 4, s{S.t2}')
    cvt16(k, V.P, V.EP)
    k.e(f's_mov_b32 exec_lo, 0x10000000\ns_mov_b32 exec_hi, 0x10000000')
    for q in range(8): k.e(f'v_mov_b32 v{V.P+q}, 0x3f803f80')
    k.e(f'''s_mov_b64 exec, -1
ds_write_b128 v{T}, {vr(V.P,4)}
ds_write_b128 v{T}, {vr(V.P+4,4)} offset:1024''')
    return '\n'.join(k.L)

KVB = 240
def kv_addr_setup(D):
    T = V.tmp
    return lines(f'''s_lshr_b32 s{S.t2}, s{S.w}, 1
s_lshl_b32 s{S.t3}, s{S.t2}, 2
v_and_b32 v{T}, 3, v{V.lane}
v_or_b32 v{T}, s{S.t3}, v{T}
v_bfe_u32 v{T+1}, v{V.lane}, 2, 1
v_bfe_u32 v{D}, v{V.lane}, 4, 1
v_lshl_or_b32 v{T+1}, v{D}, 1, v{T+1}
v_bfe_u32 v{D+1}, v{V.lane}, 3, 1
v_lshl_or_b32 v{T+1}, v{D+1}, 3, v{T+1}
v_xor_b32 v{T}, v{T}, v{T+1}
v_bfe_u32 v{T+1}, v{V.lane}, 2, 2
v_lshl_or_b32 v{T+1}, v{D}, 2, v{T+1}
v_lshl_or_b32 v{T+1}, v{V.hh}, 4, v{T+1}
v_lshlrev_b32 v{T}, 3, v{T}
v_lshl_add_u32 v{T}, v{T+1}, 7, v{T}
v_and_b32 v{T+1}, 15, v{V.lane}
s_and_b32 s{S.t3}, s{S.w}, 1
s_lshl_b32 s{S.t3}, s{S.t3}, 4
v_add_u32 v{T+1}, s{S.t3}, v{T+1}
s_lshl3_add_u32 s{S.t3}, s{S.hA}, s{S.w}
s_lshl4_add_u32 s{S.t3}, s{S.t3}, s{S.tb}
s_lshl_b32 s{S.t3}, s{S.t3}, 9
s_add_u32 s{S.t3}, s{S.t3}, {WS_KVP}
v_and_b32 v{D+3}, 15, v{V.lane}
v_lshl_or_b32 v{D+3}, v{V.hh}, 4, v{D+3}
v_lshl_or_b32 v{D+3}, v{D+3}, 1, v{D}
v_lshl_add_u32 v{D+3}, v{D+3}, 3, s{S.t3}
v_lshlrev_b32 v{T+1}, 4, v{T+1}
v_lshrrev_b32 v{D+2}, 4, v{V.lane}
v_lshl_add_u32 v{D+2}, v{D+2}, 9, v{T+1}
v_add_u32 v{D+2}, {L_STG}, v{D+2}
v_add_u32 v{D}, {L_PHI}, v{T}
v_add_u32 v{D+1}, 1024, v{D}
v_xor_b32 v{D+1}, 32, v{D+1}''')
def kv_partial(k):
    D = KVB; ids = []
    for Tt in range(4):
        k.ds(f'ds_read_b64_tr_b16 {vr(V.EP+4*Tt,2)}, v{D} offset:{Tt*4096}')
        k.ds(f'ds_read_b64_tr_b16 {vr(V.EP+4*Tt+2,2)}, v{D+1} offset:{Tt*4096}')
        ids.append(k.ds(f'ds_read_b128 {vr(V.EM+4*Tt,4)}, v{D+2} offset:{Tt*2048}'))
    return ids
def kv_partial2(k, ids):
    k.dswait(ids[3])
    return [f'v_mfma_f32_16x16x32_bf16 {vr(V.P,4)}, {vr(V.EP+4*Tt,4)}, {vr(V.EM+4*Tt,4)}, {"0" if Tt == 0 else vr(V.P,4)}' for Tt in range(4)]
def kv_partial3(k):
    k.e(f'v_cvt_pk_bf16_f32 v{V.P+4}, v{V.P}, v{V.P+1}\nv_cvt_pk_bf16_f32 v{V.P+5}, v{V.P+2}, v{V.P+3}')
    return k.vmop(f'buffer_store_dwordx2 {vr(V.P+4,2)}, v{KVB+3}, {srd(S.WS)}, 0 offen sc1')

def flag_store(k, addr_s, val_s, sc='sc1', opt=True, T=None):
    T = T or V.tmp
    k.e(f'v_mov_b32 v{T}, s{addr_s}\nv_mov_b32 v{T+1}, s{val_s}\ns_mov_b64 exec, 1')
    a = k.vmop(f'buffer_store_dword v{T+1}, v{T}, {srd(S.WS)}, 0 offen {sc}', opt=opt)
    k.e('s_mov_b64 exec, -1')
    return a

_lbl = [0]
def lbl(p):
    _lbl[0] += 1; return f'L_{p}_{_lbl[0]}'

def flag_check(k, ld_id, vflag, vaddr, mask=False, keep=False):
    L1, L2 = lbl('poll'), lbl('polled')
    k.vmwait(ld_id, keep=keep)
    T = V.tmp
    cmp = f'v_and_b32 v{T}, -16, v{vflag}\nv_cmp_ne_u32 vcc, s{S.tag}, v{T}' if mask else f'v_cmp_ne_u32 vcc, s{S.tag}, v{vflag}'
    k.e(f'{cmp}\ns_cbranch_vccnz {L1}\n{L2}:')
    k.cold.e(f'''{L1}:
s_mov_b32 s{S.spin}, {SPINV[0]}
{L1}_a:
s_sleep 4
buffer_load_dword v{vflag}, v{vaddr}, {srd(S.WS)}, 0 offen sc1
s_waitcnt vmcnt(0)
{cmp}
s_cbranch_vccz {L2}
s_sub_u32 s{S.spin}, s{S.spin}, 1
s_cbranch_scc0 {L1}_a
s_branch {L2}''')

def step(k, s, grp, ids, opts, pieces=(), tailp=(), ktype=True):
    k.c(f'---- step {s}')
    nobar = s in opts['nobar']
    if not nobar:
        last = s
        while last + 1 in opts['nobar']: last += 1
        for w in range(last, s - 1, -1): k.vmwait(ids.get(w))
    if grp == 0 and s in (7, 11):
        if s == 7: k.vmwait(opts['_gw'][0])
        k.e(f'ds_write_b64 v{V.g}, {vr(V.gw0 if s == 7 else V.gw1,2)} offset:{WADDR[s]}')
    stamp(k, f'step{s}')
    mf = mfmas(s-1, grp, ktype) if s not in (0, 7) else []
    if mf or (not nobar and not (grp == 1 and s == 11)): k.e('s_waitcnt lgkmcnt(0)')
    if not nobar: k.e('s_barrier')
    stamp(k, f'bar{s}')
    rd = reads(s, grp)
    n = max(len(mf), 1); nr = max(1, (n+1)//2) if n < 8 else opts['nr8']
    pcs = split_pieces(list(pieces), n)
    for q in range(n):
        if mf: k.e(mf[q])
        if q < nr:
            for r in rd[q*len(rd)//nr:(q+1)*len(rd)//nr]: k.e(r)
        for p in pcs[q]: emit(k, p)
    stamp(k, f'body{s}')
    if grp == 0:
        if s + 3 <= 6: ids[s+3] = dma_x(k, s + 3, True)
        for w in opts['wsched'].get(s, ()):
            x = dma_w(k, w, True)
            if w not in ids or w > 6: ids[w] = x
    for p in tailp: emit(k, p)
    stamp(k, f'done{s}')

def stage0(k, grp, ids, ktype, opts):
    T = V.tmp
    ob = f'''s_lshl_b32 s{S.t2}, s{S.tb}, 2
s_add_u32 s{S.t2}, s{S.t2}, s{S.tt}
s_lshl_b32 s{S.t2}, s{S.t2}, 16
s_lshl_b32 s{S.t3}, s{S.h}, 11
s_add_u32 s{S.t2}, s{S.t2}, s{S.t3}
s_add_u32 s{S.t2}, s{S.t2}, {WS_OX + 32768 + grp*1024}
v_lshl_add_u32 v{V.ob}, v{V.lane}, 4, s{S.t2}
s_add_u32 s{S.tag}, s{S.tag}, 0x9e3779b0'''
    P = {0: [ob, '\n'.join(kv_addr_setup(KVB))]}
    if grp == 1:
        ep = (epi0_addr_k if ktype else epi0_addr_v)()
        P[1] = ep[:len(ep)//2]; P[2] = ep[len(ep)//2:]
        P[3] = [f's_cmp_eq_u32 s{S.h}, 5\ns_cselect_b32 s{S.t4}, 0, {WS_SIZE}\ns_cmp_eq_u32 s{S.h}, 10\ns_cselect_b32 s{S.M1+2}, 0, s{S.t4}\ns_mov_b32 s{S.M1}, s{S.pWS}\ns_mov_b32 s{S.M1+1}, s{S.pWS+1}\ns_mov_b32 s{S.M1+3}, 0x20000']
    else:
        P[1] = [tr_base(V.t0r, 0, True, False)]; P[2] = [tr_base(V.t2r, WADDR[21], True, True)]
        P[4] = [Job(lambda: gate_load(k), 20), f'v_and_b32 v{V.g}, 15, v{V.lane}\nv_lshlrev_b32 v{V.g}, 6, v{V.g}\nv_lshrrev_b32 v{T}, 4, v{V.lane}\nv_lshl_add_u32 v{V.g}, v{T}, 12, v{V.g}\ns_add_u32 s{S.t2}, s{S.mW}, 48\nv_add_u32 v{V.g}, s{S.t2}, v{V.g}']
        P[5] = [Job(lambda: wphi_load(k), 20)]
    for s in range(0, 7): step(k, s, grp, ids, opts, P.get(s, ()), (), ktype)
    if grp == 1:
        k.e('s_waitcnt lgkmcnt(0)')
        for m in mfmas(6, grp, ktype): k.e(m)

def stage0_epilogue(k, ktype):
    def extra(n):
        L = lbl('dup'); a = V.EP + 4*(n//2) + 2 + n % 2
        k.e(f'v_cmp_gt_u32 vcc, {OOB}, v{a}\ns_cbranch_vccz {L}')
        k.vmop(f'buffer_store_dwordx4 {vr(V.P+4*n if ktype else V.EP+8+4*(n//2),4)}, v{a}, {srd(S.M1)}, 0 offen sc1', opt=True)
        k.e(f'{L}:')
    if PRIO_ST[0]: k.e('s_setprio 3')
    if not ktype:
        for n in range(4): extra(n)
    for n in range(4):
        for q in range(4): k.e(f'v_cvt_pk_bf16_f32 v{V.P+4*n+q}, v{V.acc0+8*n+2*q}, v{V.acc0+8*n+2*q+1}')
        if ktype: extra(n)
        a = k.vmop(f'buffer_store_dwordx4 {vr(V.P+4*n,4)}, v{V.EP+4*(n//2)+n%2}, {srd(S.M1)}, 0 offen sc1')
    return a

def attn_addr(grp):
    T = V.tmp
    return [f'''s_lshl_b32 s{S.mK}, s{S.w}, 12
s_lshl_b32 s{S.t2}, s{S.h}, 18
s_lshl_b32 s{S.t3}, s{S.tt}, 12
s_add_u32 s{S.t2}, s{S.t2}, s{S.t3}
s_add_u32 s{S.t2}, s{S.t2}, {WS_KV + grp*131072}
v_lshl_add_u32 v{A.ks}, v{V.lane}, 4, s{S.t2}''', f'''v_lshlrev_b32 v{A.kv0}, 4, v{V.lane}
v_add_u32 v{A.kv0}, {grp*16384}, v{A.kv0}
v_add_u32 v{A.kv1}, 0x10000, v{A.kv0}
v_mov_b32 v{A.idx}, 0xdddddddd''', f'''s_mul_i32 s{S.t2}, s{S.h}, 28
s_add_u32 s{S.t3}, s{S.t2}, 27
s_lshr_b32 s{S.t2}, s{S.t2}, 6
s_lshr_b32 s{S.t3}, s{S.t3}, 6
s_sub_u32 s{S.t3}, s{S.t3}, s{S.t2}
v_bfe_u32 v{T+5}, v{V.lane}, 3, 1
v_mul_u32_u24 v{T+5}, s{S.t3}, v{T+5}
v_bfe_u32 v{T+6}, v{V.lane}, 4, 1
v_mul_u32_u24 v{T+6}, 7, v{T+6}
v_add3_u32 v{T+5}, v{T+5}, v{T+6}, s{S.t2}
s_lshr_b32 s{S.t2}, s{S.tb}, 1
s_and_b32 s{S.t3}, s{S.tb}, 1
s_lshl2_add_u32 s{S.rb}, s{S.t3}, s{S.t2}
v_add_u32 v{T+6}, s{S.rb}, v{V.lane}
v_and_b32 v{T+6}, 7, v{T+6}
v_lshl_add_u32 v{T+5}, v{T+5}, 4, v{T+6}
s_lshl_b32 s{S.t2}, s{S.tt}, 6
s_add_u32 s{S.t2}, s{S.t2}, {WS_FLAG1 + grp*2048}
v_lshl_add_u32 v{A.f1}, v{T+5}, 8, s{S.t2}
s_and_b32 s{S.sK}, s{S.rb}, 7
s_lshl_b32 s{S.sK}, s{S.sK}, 14''']
def ready_mask():
    return f'''v_cmp_eq_u32 vcc, s{S.tag}, v{A.f0}
s_nop 0
s_lshr_b32 s{S.rdy}, vcc_lo, 16
s_and_b32 s{S.rdy}, s{S.rdy}, vcc_lo
s_lshr_b32 s{S.t0}, s{S.rdy}, 8
s_and_b32 s{S.rdy}, s{S.rdy}, s{S.t0}
s_and_b32 s{S.rdy}, s{S.rdy}, 0xff'''

def kv_dma_jobs(k, stage, out):
    slot = stage % 3
    def j(q):
        if q == 0:
            L1, L2 = lbl('kp'), lbl('kpd')
            k.e(f's_bitcmp1_b32 s{S.rdy}, {stage}\ns_cbranch_scc0 {L1}\n{L2}:')
            k.cold.e(f'''{L1}:
s_mov_b32 s{S.spin}, {SPINV[0]}
{L1}_a:
buffer_load_dword v{A.f0}, v{A.f1}, {srd(S.WS)}, 0 offen sc1
s_waitcnt vmcnt(0)
{ready_mask()}
s_bitcmp1_b32 s{S.rdy}, {stage}
s_cbranch_scc1 {L2}
s_sleep 2
s_sub_u32 s{S.spin}, s{S.spin}, 1
s_cbranch_scc0 {L1}_a
s_branch {L2}''')
        k.e(f's_add_u32 m0, s{S.mK}, {slot*32768}\ns_nop 0')
        out[(stage, 'n')] = q + 1
        out[stage] = k.vmop(f'buffer_load_dwordx4 v{A.ks}, {srd(S.WS)}, s{S.sK} offen offset:{q*1024} {KVSC[0]} lds')
        if q == 3: k.e(f's_add_u32 s{S.sK}, s{S.sK}, 16384\ns_and_b32 s{S.sK}, s{S.sK}, 0x1ffff')
    return [Job(lambda q=q: j(q), 4) for q in range(4)]

def only(k, w, f):
    def g():
        L = lbl('w'); k.e(f's_cmp_eq_u32 s{S.w}, {w}\ns_cbranch_scc1 {L}\n{L}_b:')
        main = k.L; k.L = [f'{L}:']; f(); k.e(f's_branch {L}_b'); body = k.L; k.L = main
        k.cold.L += body
    g.__name__ = f.__name__
    return g

def warm_lines():
    a = f'''s_lshl2_add_u32 s{S.t2}, s2, s{S.tt}
s_cmp_lt_u32 s{S.t2}, 448
s_cselect_b32 s{S.vcm}, s{S.pWOA}, s{S.pWOB}
s_cselect_b32 s{S.vcm+1}, s{S.pWOA+1}, s{S.pWOB+1}
s_cselect_b32 s{S.t3}, 0, 448
s_sub_u32 s{S.t2}, s{S.t2}, s{S.t3}
s_min_u32 s{S.t2}, s{S.t2}, 447
s_mul_i32 s{S.t2}, s{S.t2}, 896
s_add_u32 s{S.vcm}, s{S.vcm}, s{S.t2}
s_addc_u32 s{S.vcm+1}, s{S.vcm+1}, 0
'''
    for q in range(7): a += f's_load_dword s{S.spin}, s[{S.vcm}:{S.vcm+1}], {q*128}\n'
    a += f'''s_lshl3_add_u32 s{S.t2}, s{S.hA}, s{S.tt}
s_lshl4_add_u32 s{S.t2}, s{S.t2}, s{S.tb}
s_lshl_b32 s{S.t2}, s{S.t2}, 6
s_add_u32 s{S.t2}, s{S.t2}, {WS_FLAG2}
s_load_dword s{S.spin}, s[{S.pWS}:{S.pWS+1}], s{S.t2}
s_add_u32 s{S.t2}, s{S.t2}, 4096
s_load_dword s{S.spin}, s[{S.pWS}:{S.pWS+1}], s{S.t2}
s_lshl4_add_u32 s{S.t2}, s{S.tb}, s{S.h}
s_lshl_b32 s{S.t2}, s{S.t2}, 6
s_add_u32 s{S.t2}, s{S.t2}, {WS_FLAGY}
s_load_dword s{S.spin}, s[{S.pWS}:{S.pWS+1}], s{S.t2}'''
    return a

def stages12(k, ids, grp, st_id, opts):
    T = V.tmp; out = {'st': st_id}; st = {}
    P = {s: [] for s in range(7, 28)}; TP = {s: [] for s in range(7, 28)}
    npre = opts['npre']; pub = opts['f1_step']; c = opts['f1_check']
    assert {8, 9, 10, 12, 13} <= set(opts['nobar']) and not {7, 11, 14, 21} & set(opts['nobar'])
    def f1pub():
        k.vmwait(out['st'])
        k.e(f'''s_lshl4_add_u32 s{S.t2}, s{S.j}, s{S.tb}
s_lshl2_add_u32 s{S.t2}, s{S.t2}, s{S.tt}
s_lshl_b32 s{S.t2}, s{S.t2}, 6
s_add_u32 s{S.t2}, s{S.t2}, {WS_FLAG1}
s_cmp_eq_u32 s{S.M1+2}, 0
s_cselect_b32 s{S.t2}, {OOB}, s{S.t2}''')
        flag_store(k, S.t2, S.tag, opt=False, T=V.tmp+5)
        k.e(f's_setprio {opts["prio_g1"]}')
    qx = f's_lshl_b32 s{S.t2}, s{S.tt}, 11\ns_add_u32 s{S.t2}, s{S.t2}, {L_QX}\nv_lshl_add_u32 v{A.a0}, v{V.lane}, 4, s{S.t2}'
    ozero = [f'v_mov_b32 v{A.O+q}, 0' for q in range(16)]
    if grp == 0:
        P[9] += [Job(lambda: k.vmwait(opts['_gw'][1]), 1),
                 f's_lshl_b32 s{S.t2}, s{S.tt}, 9\ns_add_u32 s{S.t2}, s{S.t2}, {L_WPHI}\nv_lshl_add_u32 v{T}, v{V.lane}, 3, s{S.t2}\nds_write_b64 v{T}, {vr(V.EM,2)}\nds_write_b64 v{T}, {vr(V.EM+2,2)} offset:2048']
        P[12] += [tr_base(V.t3r, WADDR[21] + 4096, False, False)]
        P[13] += ['\n'.join(wphi_reads(1))]
        fp = feat_pieces(V.acc1, V.acc1, True, opts['round_p']); i = fp.index('WAITP')
        TP[14] += fp[:8] + [f'v_mov_b32 v{T+5}, v{V.acc1+12}\nv_mov_b32 v{V.g}, v{V.acc1+12}'] + fp[8:i]
        TP[14].append(f'v_permlane32_swap_b32 v{T+5}, v{V.g}\nv_mul_f32 v{V.g}, {fbits(-LOG2E)}, v{V.g}\nv_exp_f32 v{V.g}, v{V.g}\ns_nop 0\nv_add_f32 v{V.g}, 1.0, v{V.g}\nv_rcp_f32 v{V.g}, v{V.g}')
        for n, grpp in enumerate(split_pieces(fp[i+1:], 6)): P[15+n] += grpp
        P[14] += attn_addr(grp)
        assert max(s_ for s_, w in opts['wsched'].items() if max(w) > 20) <= 24
        P[25] += [f'''s_lshr_b32 s{S.t2}, s{S.h}, 3
s_lshl_b32 s{S.t2}, s{S.t2}, 1
s_and_b32 s{S.t3}, s{S.w}, 1
s_add_u32 s{S.t2}, s{S.t2}, s{S.t3}
s_lshl2_add_u32 s{S.col}, s{S.tb}, s{S.t2}
s_lshr_b32 s{S.cw}, s{S.w}, 1
s_and_b32 s{S.t2}, s{S.h}, 7
s_cmp_eq_u32 s{S.t2}, 7
s_cselect_b32 s{S.W+2}, 0, 401408
s_cselect_b32 s{S.X+2}, 0, 401408
s_mov_b32 s{S.W}, s{S.pWOA}
s_mov_b32 s{S.W+1}, s{S.pWOA+1}
s_mov_b32 s{S.X}, s{S.pWOB}
s_mov_b32 s{S.X+1}, s{S.pWOB+1}
s_mov_b32 s{S.W+3}, 0x20000
s_mov_b32 s{S.X+3}, 0x20000
s_lshl_b32 s{S.t2}, s{S.t2}, 7
v_lshrrev_b32 v{T}, 3, v{V.lane}
v_and_b32 v{T+1}, 7, v{V.lane}
v_bfe_u32 v{T+2}, v{V.lane}, 4, 1
v_lshlrev_b32 v{T+2}, 2, v{T+2}
v_xor_b32 v{T+1}, v{T+1}, v{T+2}
v_mul_u32_u24 v{T}, 896, v{T}
v_lshl_add_u32 v{T}, v{T+1}, 4, v{T}
v_add_u32 v{A.wsrc}, s{S.t2}, v{T}
s_mov_b32 s{S.r0}, 4096''']
        P[23] += [qx]; P[26] += ozero
    else:
        sel = f'''v_bfe_u32 v{T}, v{V.lane}, 3, 1
v_bfe_u32 v{T+1}, v{V.lane}, 4, 1
v_xor_b32 v{T}, v{T}, v{T+1}
v_bfe_u32 v{T+1}, v{V.lane}, 1, 2
v_lshl_or_b32 v{T}, v{T}, 2, v{T+1}
v_and_b32 v{T+1}, 1, v{V.lane}
v_lshlrev_b32 v{T+1}, 4, v{T+1}
v_mov_b32 v{T+2}, 0x3f80
v_lshlrev_b32 v{T+1}, v{T+1}, v{T+2}
'''
        for q in range(4): sel += f'v_cmp_eq_u32 s[{S.vcm}:{S.vcm+1}], {q}, v{T}\ns_nop 1\nv_cndmask_b32 v{16+q}, 0, v{T+1}, s[{S.vcm}:{S.vcm+1}]\n'
        sel += f'v_lshlrev_b32 v{T}, 4, v{V.lane}\nv_add_u32 v{T}, {L_SEL}, v{T}\nds_write_b128 v{T}, {vr(16,4)}'
        P[7] += [tr_base(V.t1r, 0, True, False), sel]
        if opts['warm']: P[7].insert(0, warm_lines())
        P[11] += attn_addr(grp) + ['\n'.join(phi_base()), f'''s_lshr_b32 s{S.t2}, s{S.h}, 3
s_lshl_b32 s{S.t2}, s{S.t2}, 1
s_and_b32 s{S.t3}, s{S.w}, 1
s_add_u32 s{S.t2}, s{S.t2}, s{S.t3}
s_lshl2_add_u32 s{S.col}, s{S.tb}, s{S.t2}
s_lshr_b32 s{S.cw}, s{S.w}, 1
s_and_b32 s{S.t2}, s{S.h}, 7
s_cmp_eq_u32 s{S.t2}, 7
s_cselect_b32 s{S.W+2}, 0, 401408
s_cselect_b32 s{S.X+2}, 0, 401408
s_mov_b32 s{S.W}, s{S.pWOA}
s_mov_b32 s{S.W+1}, s{S.pWOA+1}
s_mov_b32 s{S.X}, s{S.pWOB}
s_mov_b32 s{S.X+1}, s{S.pWOB+1}
s_mov_b32 s{S.W+3}, 0x20000
s_mov_b32 s{S.X+3}, 0x20000
s_lshl_b32 s{S.t2}, s{S.t2}, 7
v_lshrrev_b32 v{T}, 3, v{V.lane}
v_and_b32 v{T+1}, 7, v{V.lane}
v_bfe_u32 v{T+2}, v{V.lane}, 4, 1
v_lshlrev_b32 v{T+2}, 2, v{T+2}
v_xor_b32 v{T+1}, v{T+1}, v{T+2}
v_mul_u32_u24 v{T}, 896, v{T}
v_lshl_add_u32 v{T}, v{T+1}, 4, v{T}
v_add_u32 v{A.wsrc}, s{S.t2}, v{T}
s_mov_b32 s{S.r0}, 4096''', qx]
        P[18] += ozero
        P[20] += ['\n'.join(wphi_reads(0))]
        TP[pub].append(Job(f1pub, 8))
        fp = feat_pieces(V.acc1, V.acc1, False, opts['round_p']); i = fp.index('WAITP')
        fp.pop(i)
        for n, grpp in enumerate(split_pieces(fp + phi_write(V.acc1), 7)): TP[21+n] += grpp
    def f1ld(): out['f1'] = k.vmop(f'buffer_load_dword v{A.f0}, v{A.f1}, {srd(S.WS)}, 0 offen sc1')
    TP[c-2].append(Job(f1ld, 1))
    TP[c].append(Job(lambda: (k.vmwait(out['f1']), k.e(ready_mask())), 8))
    dj = []
    for s_ in range(npre): dj += kv_dma_jobs(k, s_, st)
    for s_ in range(c, 28):
        n = min(len(dj), opts['pre_rate']); TP[s_] += dj[:n]; dj = dj[n:]
    out['left'] = dj
    for s in range(7, 28):
        step(k, s, grp, ids, opts, P[s], TP[s])
    if grp == 0:
        k.e('s_waitcnt lgkmcnt(0)')
        m27 = mfmas(27, grp)
        for m in m27[1::2] + m27[0:4:2]: k.e(m)
        va = va_stage().split('\n')
        for l in va[:7]: k.e(l)
        k.e(m27[4])
        for l in va[7:11]: k.e(l)
        k.e(m27[6])
        for l in va[11:]: k.e(l)
    out['kvst'] = st
    return out

def attn_prologue(k, grp, pend, opts):
    T = V.tmp
    k.c('---- attention prologue')
    stamp(k, 'p1done')
    st = pend['kvst']
    for j in pend['left']: j.f()
    if grp == 0:
        a0 = V.acc0
        k.e(f's_mov_b32 s{S.t6}, {fbits(QSCALE)}\ns_bitcmp1_b32 s{S.h}, 0')
        for q in range(8): k.e(f'v_pk_mul_f32 {vr(a0+2*q,2)}, {vr(a0+2*q,2)}, s[{S.t6}:{S.t6+1}] op_sel_hi:[1,0]')
        cvt16(k, A.Q, a0)
        k.e(f'''s_cselect_b32 exec_lo, -1, 0
s_mov_b32 exec_hi, 0
v_mov_b32 v{A.Q}, 0
v_mov_b32 v{A.Q+1}, 0
s_mov_b32 exec_lo, 0
s_cselect_b32 exec_hi, 0, -1
v_mov_b32 v{A.Q+6}, 0
v_mov_b32 v{A.Q+7}, 0
s_mov_b64 exec, -1
v_lshrrev_b32 v{T}, 2, v{A.a0}
ds_write_b128 v{A.a0}, {vr(A.Q,4)}
ds_write_b128 v{A.a0}, {vr(A.Q+4,4)} offset:1024
v_and_b32 v{T}, 0x7fc, v{T}
v_add_u32 v{T}, {L_G}, v{T}
ds_write_b32 v{T}, v{V.g}''')
    else:
        k.e(f'v_lshrrev_b32 v{T}, 2, v{A.a0}\nv_and_b32 v{T}, 0x7fc, v{T}\nv_add_u32 v{T}, {L_G}, v{T}')
    stamp(k, 'preB0')
    assert st[(0, 'n')] == 4
    k.vmwait(st.get(0), 'lgkmcnt(0)')
    stamp(k, 'B0wait')
    k.e('s_barrier')
    if grp == 1:
        k.ds(f'ds_read_b128 {vr(A.Q,4)}, v{A.a0}')
        k.ds(f'ds_read_b128 {vr(A.Q+4,4)}, v{A.a0} offset:1024')
        k.ds(f'ds_read_b32 v{V.g}, v{T}')
    return st

def kv_addr(t):
    s, T = t // 4, t % 4; slot = s % 3
    base = A.kv0 if slot < 2 else A.kv1
    return base, (slot % 2)*32768 + T*4096
def rdK(k, t, q):
    b, o = kv_addr(t); return k.ds(f'ds_read_b128 {vr(A.KF+4*q,4)}, v{b} offset:{o+q*1024}')
def rdV(k, t):
    b, o = kv_addr(t)
    k.ds(f'ds_read_b128 {vr(A.V0+4*(t%2),4)}, v{b} offset:{o+2048}')
    return k.ds(f'ds_read_b128 {vr(A.V1+4*(t%3),4)}, v{b} offset:{o+3072}')

def both_ways(k, txts):
    for t in txts: a = k.vmop(t + ' sc1')
    return a
def maxchain(dst, src, n):
    out = [f'v_max3_u32 v{dst}, v{src}, v{src+1}, v{src+2}']; q = 3
    while q < n:
        out.append(f'v_max3_u32 v{dst}, v{dst}, v{src+q}, v{src+q+1}' if q+1 < n else f'v_max_u32 v{dst}, v{dst}, v{src+q}'); q += 2
    return out
def sent_check(k, dst, src, n, loads, redo=''):
    L1, L2 = lbl('sp'), lbl('spd')
    k.e(f'v_cmp_eq_u32 vcc, -1, v{dst}\ns_cbranch_vccnz {L1}\n{L2}:')
    k.cold.e(f'{L1}:\ns_mov_b32 s{S.spin}, {SPINV[0]}\n{L1}_a:\ns_sleep 4')
    for l in loads: k.cold.e(l)
    k.cold.e('s_waitcnt vmcnt(0)')
    for l in maxchain(dst, src, n): k.cold.e(l)
    k.cold.e(f'v_cmp_eq_u32 vcc, -1, v{dst}\ns_cbranch_vccz {L1}_b\ns_sub_u32 s{S.spin}, s{S.spin}, 1\ns_cbranch_scc0 {L1}_a\n{L1}_b:')
    if redo: k.cold.e(redo)
    k.cold.e(f's_branch {L2}')

def wo_jobs(k, br, first, n, ldsbase, row0, out, key, rot=False):
    J = []
    for q in range(n):
        def j(q=q):
            if q == 0: k.e(f's_mul_i32 s{S.t8}, s{S.tt}, {first[0]*1024}\ns_mul_i32 s{S.t7}, s{S.tt}, {first[0]*7168}')
            if n == 7 and rot:
                if q == 0: k.e(f's_add_u32 s{S.t8}, s{S.t8}, {ldsbase + first[1]*1024}\ns_add_u32 s{S.t7}, s{S.t7}, {first[1]*7168}')
                k.e(f's_mul_i32 s{S.t9}, s{S.ox+q}, 56\ns_lshl3_add_u32 m0, s{S.ox+q}, s{S.t8}\ns_add_u32 s{S.t9}, s{S.t9}, s{S.t7}')
            else:
                k.e(f's_add_u32 m0, s{S.t8}, {ldsbase + (first[1]+q)*1024}\ns_add_u32 s{S.t9}, s{S.t7}, {row0*896 + (first[1]+q)*7168}')
            out[key] = k.vmop(f'buffer_load_dwordx4 v{A.wsrc}, {srd(S.W if br == 0 else S.X)}, s{S.t9} offen lds')
        J.append(Job(j, 3))
    return J

def o_loads(dst, addr):
    return [f'buffer_load_dwordx4 {vr(dst+4*q,4)}, v{addr}, {srd(S.WS)}, {"0" if q < 4 else "s%d" % S.r0} offen offset:{(q%4)*1024} sc1' for q in range(8)]

def side_jobs(k, grp, opts, pend):
    T = V.tmp; J = {}; st = {}
    def at(t, f): J.setdefault(t, []).append(f)
    def kvA(): st['kvi'] = kv_partial(k)
    def kvB(): pend['spr'] += kv_partial2(k, st['kvi'])
    def kvC(): st['kvp'] = kv_partial3(k)
    def f2pub():
        k.vmwait(st['kvp'])
        k.e(f's_lshl3_add_u32 s{S.t2}, s{S.hA}, s{S.w}\ns_lshl4_add_u32 s{S.t2}, s{S.t2}, s{S.tb}\ns_lshl_b32 s{S.t2}, s{S.t2}, 6\ns_add_u32 s{S.t2}, s{S.t2}, {WS_FLAG2}')
        flag_store(k, S.t2, S.tag, opt=False)
    R = A.RED; I4 = 16; D4 = 20
    def s1():
        k.e(f's_lshl3_add_u32 s{S.t2}, s{S.hQ}, s{S.w}\ns_lshl_b32 s{S.t3}, s{S.t2}, 10\ns_add_u32 s{S.t3}, s{S.t3}, {WS_FLAG2}\nv_and_b32 v{A.a2}, 15, v{V.lane}\nv_lshl_add_u32 v{A.a2}, v{A.a2}, 6, s{S.t3}')
        st['f2'] = k.vmop(f'buffer_load_dword v{A.a1}, v{A.a2}, {srd(S.WS)}, 0 offen sc1')
        k.e(f's_lshl_b32 s{S.t2}, s{S.t2}, 13\ns_add_u32 s{S.t2}, s{S.t2}, {WS_KVP}\nv_lshl_add_u32 v{A.a0}, v{V.lane}, 4, s{S.t2}')
    def s2():
        if grp == 0:
            k.e(f'v_lshlrev_b32 v{T}, 4, v{V.lane}\nv_add_u32 v{T}, {L_SEL}, v{T}'); k.ds(f'ds_read_b128 {vr(I4,4)}, v{T}')
        flag_check(k, st['f2'], A.a1, A.a2)
        def ld(q, l): st[f'kp{q}'] = k.vmop(l)
        pend['wq'][0:0] = [Job(lambda q=q, l=l: ld(q, l), 1) for q, l in enumerate(o_loads(R, A.a0))]
    def s3():
        assert 'kp7' in st or opts['skip']; k.vmwait(st.get('kp7'))
        pend['spr'] += [f'v_mfma_f32_16x16x32_bf16 {vr(D4,4)}, {vr(I4,4)}, {vr(R+4*q,4)}, {"0" if q == 0 else vr(D4,4)}' for q in range(8)]
    def s4():
        k.e(f'''v_subrev_u32 v{T+2}, {L_STG}, v{KVB+2}
v_and_b32 v{T+2}, 0x3ff, v{T+2}
s_lshr_b32 s{S.t2}, s{S.w}, 1
s_lshl_b32 s{S.t2}, s{S.t2}, 10
s_add_u32 s{S.t2}, s{S.t2}, {L_WPHI}
v_lshl_add_u32 v{T+2}, v{V.hh}, 3, v{T+2}
v_add_u32 v{T+2}, s{S.t2}, v{T+2}
v_cvt_pk_bf16_f32 v{D4}, v{D4}, v{D4+1}
v_cvt_pk_bf16_f32 v{D4+1}, v{D4+2}, v{D4+3}''')
        k.ds(f'ds_write_b64 v{T+2}, {vr(D4,2)}')
    for n, f in enumerate((kvA, kvB, kvC, f2pub, s1, s2, s3, s4)): at(opts['kv_at'][grp][n], f)
    def oclear():
        for q in range(4): k.e(f'v_mov_b32 v{24+q}, -1')
        pend['barwait'] = {opts['ybar']: k.vmop(f'buffer_store_dwordx4 {vr(24,4)}, v{V.ob}, {srd(S.WS)}, 0 offen sc1')}
    at(opts['oclr_at'][grp], oclear)
    assert opts['a5_at'] >= 4*opts['ybar'] - 2
    def wowarm():
        U = T + 5
        k.e(f'''s_and_b32 s{S.t2}, s2, 127
s_mul_i32 s{S.t2}, s{S.t2}, 3136
s_cmp_lt_u32 s2, 128
s_cselect_b32 s{S.M1}, s{S.pWOA}, s{S.pWOB}
s_cselect_b32 s{S.M1+1}, s{S.pWOA+1}, s{S.pWOB+1}
s_mov_b32 s{S.M1+2}, 401408
s_mov_b32 s{S.M1+3}, 0x20000
v_min_u32 v{U}, 48, v{V.lane}
v_lshl_add_u32 v{U}, v{U}, 6, s{S.t2}''')
        k.vmop(f'buffer_load_dword v{A.l}, v{U}, {srd(S.M1)}, 0 offen', opt=True)
    if grp == 1 and opts['wowarm'] is not None: at(opts['wowarm'], only(k, 7, wowarm))
    def f1r(): st['f1r'] = k.vmop(f'buffer_load_dword v{A.f0}, v{A.f1}, {srd(S.WS)}, 0 offen sc1')
    def f1r2(): k.vmwait(st['f1r']); k.e(ready_mask())
    at(opts['f1r_at'][0], f1r); at(opts['f1r_at'][1], f1r2)
    if grp == 0:
        KF_, NUM = 80, 96
        def a2():
            k.e(f'v_lshlrev_b32 v{T}, 4, v{V.lane}\nv_add_u32 v{T}, {L_WPHI}, v{T}')
            for q in range(4): st['kvl'] = k.ds(f'ds_read_b128 {vr(KF_+4*q,4)}, v{T} offset:{q*1024}')
        def a3():
            k.dswait(st['kvl'])
            pend['spr'] += [mfma(NUM, KF_+4*q, A.PHQ+4*q, '0' if q == 0 else NUM) for q in range(4)]
        def a4():
            k.e(f'''v_mov_b32 v{T+1}, v{NUM+12}
v_mov_b32 v{T+3}, v{NUM+12}
s_sub_u32 s{S.t2}, s{S.hQ}, s{S.h}
s_lshl_b32 s{S.t2}, s{S.t2}, 11
v_permlane32_swap_b32 v{T+1}, v{T+3}
v_add_f32 v{T+3}, v{A.eps}, v{T+3}
v_rcp_f32 v{T+3}, v{T+3}
s_sub_u32 s{S.t2}, s{S.t2}, 32768
v_mul_f32 v{T+3}, v{V.g}, v{T+3}
v_add_u32 v{A.a2}, s{S.t2}, v{V.ob}''')
            for q in range(8): k.e(f'v_pk_mul_f32 {vr(NUM+2*q,2)}, {vr(NUM+2*q,2)}, {vr(T+3,2)} op_sel_hi:[1,0]')
            cvt16(k, KF_, NUM)
            k.e(f's_mov_b64 exec, s[{S.hi32}:{S.hi32+1}]\nv_mov_b32 v{KF_+6}, 0\nv_mov_b32 v{KF_+7}, 0\ns_mov_b64 exec, -1')
            st['oast'] = both_ways(k, [f'buffer_store_dwordx4 {vr(KF_,4)}, v{A.a2}, {srd(S.WS)}, 0 offen',
                          f'buffer_store_dwordx4 {vr(KF_+4,4)}, v{A.a2}, {srd(S.WS)}, 0 offen offset:1024'])
        p = opts['afin_at']
        def a5():
            k.vmwait(st['oast'])
            k.e(f's_lshl2_add_u32 s{S.t2}, s{S.tb}, s{S.tt}\ns_lshl4_add_u32 s{S.t2}, s{S.t2}, s{S.hQ}\ns_lshl_b32 s{S.t2}, s{S.t2}, 6\ns_add_u32 s{S.t2}, s{S.t2}, {WS_FLAG3A}')
            flag_store(k, S.t2, S.tag, opt=False)
        at(p, a2); at(p+1, a3); at(p+2, a4); at(opts['a5_at'], a5)
        assert p % 4 == 2 and p > max(opts['kv_at'][0][7], opts['kv_at'][1][7])
    def oa0():
        k.e(f's_lshl_b32 s{S.t2}, s{S.col}, 10\ns_add_u32 s{S.t2}, s{S.t2}, {WS_FLAG3A}\nv_and_b32 v{A.y1}, 15, v{V.lane}\nv_lshl_add_u32 v{A.y1}, v{A.y1}, 6, s{S.t2}')
        st['fa'] = k.vmop(f'buffer_load_dword v{A.y0}, v{A.y1}, {srd(S.WS)}, 0 offen sc1')
    at(opts['oa_at'] - 2, oa0)
    def oa():
        flag_check(k, st['fa'], A.y0, A.y1)
        k.e(f'''s_lshl_b32 s{S.t2}, s{S.col}, 16
s_lshl_b32 s{S.t3}, s{S.cw}, 13
s_add_u32 s{S.t2}, s{S.t2}, s{S.t3}
s_add_u32 s{S.t2}, s{S.t2}, {WS_OX}
s_and_b32 s{S.t3}, s{S.h}, 7
s_cmp_eq_u32 s{S.t3}, 7
s_cselect_b32 s{S.t2}, {OOB}, s{S.t2}
v_lshl_add_u32 v{A.a0}, v{V.lane}, 4, s{S.t2}''')
        def ld(q, l): st[f'oa{q}'] = k.vmop(l)
        pend['wq'] += [Job(lambda q=q, l=l: ld(q, l), 1) for q, l in enumerate(o_loads(A.OF, A.a0))]
    at(opts['oa_at'], oa)
    return J, st

def wo_bases(k, b0, base_s):
    T = V.tmp
    k.e(f'''
v_and_b32 v{T}, 1, v{V.lane}
v_bfe_u32 v{T+1}, v{V.lane}, 1, 1
v_lshl_or_b32 v{T}, v{T}, 1, v{T+1}
v_bfe_u32 v{T+1}, v{V.lane}, 4, 1
v_lshl_or_b32 v{T}, v{T+1}, 2, v{T}
v_bfe_u32 v{T+1}, v{V.lane}, 3, 1
v_lshl_or_b32 v{T}, v{T+1}, 3, v{T}
v_bfe_u32 v{T+1}, v{V.lane}, 2, 2
v_lshlrev_b32 v{T}, 3, v{T}
v_lshl_add_u32 v{T}, v{T+1}, 7, v{T}
v_add_u32 v{b0+2}, s{base_s}, v{T}
v_xor_b32 v{b0+3}, 64, v{b0+2}
v_lshl_add_u32 v{b0}, v{V.hh}, 9, v{b0+2}
v_xor_b32 v{b0+1}, 64, v{b0}
''')
def wo_reads(k, dst, b0, lo, hi):
    a = None
    for n in range(lo, hi):
        hd, t, oc = n // 4, (n // 2) % 2, n % 2
        k.ds(f'ds_read_b64_tr_b16 {vr(dst+4*n,2)}, v{b0+oc} offset:{hd*3584+t*2048}')
        a = k.ds(f'ds_read_b64_tr_b16 {vr(dst+4*n+2,2)}, v{b0+oc+(2 if t else 0)} offset:{hd*3584+t*2048+1024}')
    return a

def attention(k, grp, st, opts, pend):
    T = V.tmp
    wo = {'A': None, 'B': None}
    rdK(k, 0, 0); k0 = rdK(k, 0, 1)
    rdV(k, 0); rdV(k, 1)
    k.dswait(k0)
    k.e(mfma(A.SA, A.KF, A.Q, '0')); rdK(k, 1, 0)
    k.e(mfma(A.SA, A.KF+4, A.Q+4, A.SA)); kk = rdK(k, 1, 1)
    dq = []; wq = pend['wq'] = []
    for s_ in range(opts['npre'], 3): dq += kv_dma_jobs(k, s_, st)
    for j in dq[:2]: j.f()
    del dq[:2]
    k.e(f'v_max3_f32 v{A.m}, v{A.SA}, v{A.SA+1}, v{A.SA+2}')
    for q in range(3, 15, 2): k.e(f'v_max3_f32 v{A.m}, v{A.m}, v{A.SA+q}, v{A.SA+q+1}')
    k.e(f'v_max_f32 v{A.m}, v{A.m}, v{A.SA+15}\nv_mov_b32 v{T}, v{A.m}')
    k.e(f'''s_nop 1
v_permlane32_swap_b32 v{A.m}, v{T}
v_max_f32 v{A.m}, v{A.m}, v{T}
v_sub_f32 v{A.NM}, 0, v{A.m}''')
    for q in range(1, 16): k.e(f'v_mov_b32 v{A.NM+q}, v{A.NM}')
    for q in range(8): k.e(f'v_pk_add_f32 {vr(A.SA+2*q,2)}, {vr(A.SA+2*q,2)}, {vr(A.NM,2)}')
    pend['spr'] = []
    J, js = side_jobs(k, grp, opts, pend)
    def pump(n):
        for _ in range(n):
            if dq or wq:
                j = (dq or wq).pop(0)
                if not opts['nodma']: j.f()
    for t in range(32):
        cur, oth = (A.SA, A.SB) if t % 2 == 0 else (A.SB, A.SA)
        spr = pend['spr']; pts = {8: (0, 1, 3, 5, 6, 8, 10, 11), 4: (0, 3, 6, 9), 0: ()}[len(spr)]
        def ex(a, b):
            for q in range(a, b):
                k.e(f'v_exp_f32 v{cur+q}, v{cur+q}')
                if q in pts: k.e(spr.pop(0))
        k.c(f'---- tile {t}')
        ex(0, 2)
        if t >= 1: k.e(smfma(A.O, A.V1+4*((t-1) % 3), oth+8, A.idx))
        ex(2, 5)
        if t % 4 == 2:
            b = t//4 + 1
            stamp(k, f'preB{b}')
            assert b == 8 or st[(b, 'n')] == 4
            k.vmwait(pend.get('barwait', {}).get(b))
            k.vmwait(st.get(b), 'lgkmcnt(0)'); k.dsall(False)
            stamp(k, f'B{b}wait')
            k.e('s_barrier')
            if b + 2 <= 7: dq += kv_dma_jobs(k, b + 2, st)
            if b in (6, 7) and 'woB' not in opts['skip']:
                wq[0:0] = wo_jobs(k, 1, (3, 16) if grp else (4, 0), 3 if grp else 4, 65536*(7-b), 224*(b-6), wo, 'B')
        elif t + 1 <= 31:
            k.dswait(kk)
        if opts['prio']: k.e(f's_setprio {3 - (t + 2) % 4}')
        if t == opts['wo_at'] and 'woA' not in opts['skip']: wq += wo_jobs(k, 0, (7, 28*grp), 7, L_WOA, 0, wo, 'A', opts['wo_rot'])
        if t + 1 <= 31:
            k.e(mfma(oth, A.KF, A.Q, A.NM))
            if t + 2 <= 31: rdK(k, t+2, 0)
        pump(1 if len(dq) + len(wq) > opts['pump_hi'] else 0)
        ex(5, 8)
        if t + 1 <= 31:
            k.e(mfma(oth, A.KF+4, A.Q+4, oth))
            if t + 2 <= 31: kk = rdK(k, t+2, 1)
        pump(1 if len(dq) + len(wq) > opts['pump_hi2'] else 0)
        ex(8, 13)
        k.e(smfma(A.O, A.V0+4*(t % 2), cur, A.idx))
        if t + 2 <= 31: rdV(k, t+2)
        pump(1)
        wa = None
        ex(13, 16)
        for f in J.get(t, []):
            stamp(k, f'j{t}{grp}pre')
            if f.__name__ not in opts['skip']: f()
            stamp(k, f'j{t}{grp}post')
    assert not dq and len(wq) <= 3; pump(3)
    k.e('s_nop 1')
    k.e(smfma(A.O, A.V1+4*(31 % 3), A.SB+8, A.idx))
    if opts['prio']: k.e('s_setprio 0')
    return js, wo, wa

def fallback(k, grp):
    T = V.tmp; L = lbl('fbl')
    k.e(f'''
s_lshl_b32 s{S.t2}, s{S.tt}, 12
v_subrev_u32 v{A.ks}, s{S.t2}, v{A.ks}
v_mov_b32 v{A.m}, 0xff7fffff
s_mov_b32 s{S.sK}, 0
''')
    for q in range(16): k.e(f'v_mov_b32 v{A.O+q}, 0')
    k.e(f'''{L}:
buffer_load_dwordx4 {vr(A.KF,4)}, v{A.ks}, {srd(S.WS)}, s{S.sK} offen sc1
buffer_load_dwordx4 {vr(A.KF+4,4)}, v{A.ks}, {srd(S.WS)}, s{S.sK} offen offset:1024 sc1
buffer_load_dwordx4 {vr(A.V0,4)}, v{A.ks}, {srd(S.WS)}, s{S.sK} offen offset:2048 sc1
buffer_load_dwordx4 {vr(A.V0+4,4)}, v{A.ks}, {srd(S.WS)}, s{S.sK} offen offset:3072 sc1
s_waitcnt vmcnt(0)''')
    k.e(mfma(A.SA, A.KF, A.Q, '0')); k.e(mfma(A.SA, A.KF+4, A.Q+4, A.SA))
    k.e(f'v_max3_f32 v{T}, v{A.m}, v{A.SA}, v{A.SA+1}')
    for q in range(2, 16, 2): k.e(f'v_max3_f32 v{T}, v{T}, v{A.SA+q}, v{A.SA+q+1}')
    k.e(f'''v_mov_b32 v{T+1}, v{T}
s_nop 1
v_permlane32_swap_b32 v{T}, v{T+1}
v_max_f32 v{T}, v{T}, v{T+1}
v_sub_f32 v{T+1}, v{A.m}, v{T}
v_exp_f32 v{T+1}, v{T+1}
v_mov_b32 v{A.m}, v{T}''')
    for q in range(16): k.e(f'v_sub_f32 v{A.SA+q}, v{A.SA+q}, v{T}\nv_mul_f32 v{A.O+q}, v{A.O+q}, v{T+1}')
    for q in range(16): k.e(f'v_exp_f32 v{A.SA+q}, v{A.SA+q}')
    k.e('s_nop 1')
    k.e(smfma(A.O, A.V0, A.SA, A.idx)); k.e(smfma(A.O, A.V0+4, A.SA+8, A.idx))
    k.e(f'''s_add_u32 s{S.sK}, s{S.sK}, 4096
s_cmp_lt_u32 s{S.sK}, 131072
s_cbranch_scc1 {L}
v_mov_b32 v{A.l}, v{A.O+12}
v_mov_b32 v{T}, v{A.O+12}
s_nop 1
v_permlane32_swap_b32 v{T}, v{A.l}''')

def tail(k, grp, js, wo, wa, opts, fb):
    T = V.tmp
    k.c('---- end of attention: exchange with the partner wave, safety check of the stand-in maximum')
    stamp(k, 'attnend')
    Lfb, Lback = lbl('fb'), lbl('fbback')
    own, oth = (A.O, A.O+8) if grp == 0 else (A.O+8, A.O)
    CXa, CXb, CXl = A.a1, A.f0, A.f1
    k.e(f'''
s_lshl_b32 s{S.t2}, s{S.w}, 12
s_add_u32 s{S.t2}, s{S.t2}, {L_CX}
v_lshl_add_u32 v{CXa}, v{V.lane}, 4, s{S.t2}
v_xor_b32 v{CXb}, 16384, v{CXa}
v_lshl_add_u32 v{CXl}, v{V.lane}, 3, s{S.t2}
v_sub_f32 v{A.kv0}, 1.0, v{V.g}
s_mov_b32 s{S.t3}, {fbits(2.0**60)}
v_mov_b32 v{A.t}, v{A.m}''')
    xw = [f'ds_write_b128 v{CXa}, {vr(oth,4)}', f'ds_write_b128 v{CXa}, {vr(oth+4,4)} offset:1024']
    k.e(f'v_mov_b32 v{A.l}, v{A.O+12}\nv_mov_b32 v{T}, v{A.O+12}')
    for l in xw: k.ds(l)
    k.e(f'''v_permlane32_swap_b32 v{T}, v{A.l}
v_mul_f32 v{T+1}, 0, v{A.O}
v_mul_f32 v{T+2}, 0, v{A.O+1}''')
    k.ds(f'ds_write_b64 v{CXl}, {vr(A.l,2)} offset:2048')
    for q in range(1, 8): k.e(f'v_pk_fma_f32 {vr(T+1,2)}, {vr(A.O+2*q,2)}, 0, {vr(T+1,2)} op_sel_hi:[1,0,1]')
    k.e(f'''v_add_f32 v{T+1}, v{T+1}, v{T+2}
v_add_f32 v{T+1}, v{T+1}, v{A.l}
v_cmp_nge_f32 vcc, s{S.t3}, v{T+1}
s_cbranch_vccnz {Lfb}
{Lback}:''')
    fb.e(f'{Lfb}:'); fallback(fb, grp)
    fb.e(f'v_mov_b32 v{A.t}, v{A.m}')
    for l in xw: fb.e(l)
    fb.e(f'ds_write_b64 v{CXl}, {vr(A.l,2)} offset:2048\ns_branch {Lback}')
    k.e(f's_mul_i32 s{S.t2}, s{S.cw}, 14336\ns_add_u32 s{S.t2}, s{S.t2}, {L_WOA}')
    wo_bases(k, A.wb, S.t2)
    k.e(f'''s_and_b32 s{S.t3}, s{S.cw}, 1
s_mul_i32 s{S.t3}, s{S.t3}, 14336
s_cmp_lt_u32 s{S.cw}, 2
s_cselect_b32 s{S.t4}, 65536, 0
s_add_u32 s{S.t3}, s{S.t3}, s{S.t4}
s_sub_u32 s{S.t3}, s{S.t3}, s{S.t2}''')
    WB2 = A.Q
    for q in range(4): k.e(f'v_add_u32 v{116+q}, s{S.t3}, v{A.wb+q}')
    k.vmwait(wo['A'])
    k.vmwait(wo['B'], 'lgkmcnt(0)'); k.dsall(False)
    k.e(f's_barrier\nv_xor_b32 v{CXl}, 16384, v{CXl}')
    lm = k.ds(f'ds_read_b64 {vr(T+1,2)}, v{CXl} offset:2048')
    k.ds(f'ds_read_b128 {vr(A.SA,4)}, v{CXb}')
    a = k.ds(f'ds_read_b128 {vr(A.SA+4,4)}, v{CXb} offset:1024')
    wr = [wo_reads(k, A.WOA, A.wb, n, n+1) for n in range(5)]
    k.dswait(lm)
    k.e(f'''v_max_f32 v{T}, v{A.m}, v{T+2}
v_sub_f32 v{T+3}, v{A.m}, v{T}
v_sub_f32 v{T+5}, v{T+2}, v{T}
v_exp_f32 v{T+3}, v{T+3}
v_exp_f32 v{T+5}, v{T+5}
v_mul_f32 v{A.l}, v{A.l}, v{T+3}
v_fmac_f32 v{A.l}, v{T+1}, v{T+5}
v_rcp_f32 v{A.l}, v{A.l}
v_mul_f32 v{T+3}, v{T+3}, v{A.kv0}
v_mul_f32 v{T+5}, v{T+5}, v{A.kv0}
v_mul_f32 v{T+3}, v{T+3}, v{A.l}
v_mul_f32 v{T+5}, v{T+5}, v{A.l}''')
    for q in range(4): k.e(f'v_pk_mul_f32 {vr(own+2*q,2)}, {vr(own+2*q,2)}, {vr(T+3,2)} op_sel_hi:[1,0]')
    k.dswait(a)
    wr += [wo_reads(k, A.WOA, A.wb, n, n+1) for n in range(5, 8)]
    for q in range(4): k.e(f'v_pk_fma_f32 {vr(own+2*q,2)}, {vr(A.SA+2*q,2)}, {vr(T+5,2)}, {vr(own+2*q,2)} op_sel_hi:[1,0,1]')
    OB = 112
    for q in range(4): k.e(f'v_cvt_pk_bf16_f32 v{OB+q}, v{own+2*q}, v{own+2*q+1}')
    if grp == 1:
        k.e(f's_mov_b64 exec, s[{S.hi32}:{S.hi32+1}]\nv_mov_b32 v{OB+2}, 0\nv_mov_b32 v{OB+3}, 0\ns_mov_b64 exec, -1')
    ob = both_ways(k, [f'buffer_store_dwordx4 {vr(OB,4)}, v{V.ob}, {srd(S.WS)}, 0 offen'])
    stamp(k, 'obstored')
    Lidle = lbl('idle')
    k.e(f's_and_b32 s{S.t3}, s{S.h}, 7\ns_cmp_eq_u32 s{S.t3}, 7\ns_cbranch_scc1 {Lidle}')
    ACC = AC2 = A.ACC; OF2 = A.OF
    k.e(f'v_add_u32 v{A.kv1}, 32768, v{A.a0}')
    k.vmwait(js.get('oa7'))
    amf = [mfma(ACC+16*oc, A.WOA+4*(2*n+oc), A.OF+4*n, '0' if n == 0 else ACC+16*oc) for n in range(8) for oc in range(2)]
    ol = o_loads(OF2, A.kv1)
    for n, m in enumerate(amf):
        k.dswait(wr[n]); k.e(m)
        if n < 8: wr.append(wo_reads(k, A.WOA, A.wb, n+8, n+9))
        else: wo_reads(k, A.WOB, 116, 2*(n-8), 2*(n-8)+2)
    stamp(k, 'Ahalf')
    k.vmwait(ob); ids = [k.vmop(l) for l in ol]
    set_srd(k, S.M1, S.pOUT, 1835008)
    k.e(f'''s_lshl_b32 s{S.t2}, s{S.col}, 5
v_add_u32 v{T}, s{S.t2}, v{V.i32}
v_mul_u32_u24 v{T}, 896, v{T}
v_lshl_add_u32 v{T}, v{V.hh}, 4, v{T}
s_and_b32 s{S.t2}, s{S.h}, 7
s_lshl_b32 s{S.t2}, s{S.t2}, 7
s_lshl_b32 s{S.t3}, s{S.cw}, 5
s_add_u32 s{S.t2}, s{S.t2}, s{S.t3}
v_add_u32 v{A.a2}, s{S.t2}, v{T}
s_and_b32 s{S.t2}, s{S.w}, 1
s_lshl_b32 s{S.t2}, s{S.t2}, 15
s_lshl_b32 s{S.t3}, s{S.cw}, 11
s_add_u32 s{S.t3}, s{S.t3}, s{S.t2}
v_lshl_add_u32 v{A.ks}, v{V.lane}, 4, s{S.t3}
s_lshl_b32 s{S.t3}, s{S.cw}, 13
s_add_u32 s{S.t3}, s{S.t3}, s{S.t2}
v_lshl_add_u32 v{A.vs}, v{V.lane}, 4, s{S.t3}
s_mov_b32 s{S.spin}, {SPINV[0]}''')
    k.dsall()
    k.e('s_barrier')
    for n in range(8):
        L1, L2 = lbl('ob'), lbl('obd'); F = OF2 + 4*n
        chk = f'v_max3_u32 v{T}, v{F}, v{F+1}, v{F+2}\nv_max_u32 v{T}, v{T}, v{F+3}\nv_cmp_eq_u32 vcc, -1, v{T}'
        k.vmwait(ids[n])
        if n in (0, 7): stamp(k, f'ld{n}')
        k.e(f'{chk}\ns_cbranch_vccnz {L1}\n{L2}:')
        for oc in range(2): k.e(mfma(ACC+16*oc, A.WOB+4*(2*n+oc), F, ACC+16*oc))
        c = k.cold
        c.e(f'{L1}:\ns_sleep {opts["rsleep"]}')
        for l in ol[n:]: c.e(l)
        c.e(f's_waitcnt vmcnt({7-n})\n{chk}\ns_sub_u32 s{S.spin}, s{S.spin}, 1\ns_cbranch_scc1 {L2}\ns_cbranch_vccnz {L1}\ns_branch {L2}')
    stamp(k, 'Bhalf')
    Ls = [lbl('kq') for _ in range(2)]; Lj = lbl('kqj')
    k.e(f's_bitcmp1_b32 s{S.cw}, 0\ns_cbranch_scc1 {Ls[1]}')
    for par in range(2):
        kq = 2*grp + par
        if par: k.e(f'{Ls[1]}:')
        srcs = [p for p in range(4) if p != kq]
        if opts['pack']:
            for n, p in enumerate(srcs):
                for q in range(4): k.e(f'v_cvt_pk_bf16_f32 v{A.OF+4*n+q}, v{AC2+8*p+2*q}, v{AC2+8*p+2*q+1}')
                k.e(f'ds_write_b128 v{A.ks}, {vr(A.OF+4*n,4)} offset:{p*8192}')
            k.e(f's_mov_b32 s{S.t2}, 0x3f80\ns_mov_b32 s{S.t3}, 0x3f800000\ns_waitcnt lgkmcnt(0)\ns_barrier')
            for n, p in enumerate(srcs): k.e(f'ds_read_b128 {vr(A.OF+16+4*n,4)}, v{A.vs} offset:{p*2048}')
            for n in range(3):
                k.e(f's_waitcnt lgkmcnt({2-n})')
                for q in range(8): k.e(f'v_dot2_f32_bf16 v{AC2+8*kq+q}, v{A.OF+16+4*n+q//2}, s{S.t2 + q % 2}, v{AC2+8*kq+q}')
        else:
            for p in srcs:
                k.e(f'ds_write_b128 v{A.ks}, {vr(AC2+8*p,4)} offset:{p*8192}\nds_write_b128 v{A.ks}, {vr(AC2+8*p+4,4)} offset:{p*8192+1024}')
            k.e('s_waitcnt lgkmcnt(0)\ns_barrier')
            for n, p in enumerate(srcs):
                k.e(f'ds_read_b128 {vr(A.OF+8*n,4)}, v{A.vs} offset:{p*2048}\nds_read_b128 {vr(A.OF+8*n+4,4)}, v{A.vs} offset:{p*2048+1024}')
            for n in range(3):
                k.e(f's_waitcnt lgkmcnt({4-2*n})')
                for q in range(4): k.e(f'v_pk_add_f32 {vr(AC2+8*kq+2*q,2)}, {vr(AC2+8*kq+2*q,2)}, {vr(A.OF+8*n+2*q,2)}')
        if opts['pack']: k.e('s_nop 2')
        for q in range(4): k.e(f'v_cvt_pk_bf16_f32 v{A.OF+q}, v{AC2+8*kq+2*q}, v{AC2+8*kq+2*q+1}')
        if par == 0: k.e(f's_branch {Lj}')
    k.e(f'{Lj}:\nbuffer_store_dwordx4 {vr(A.OF,4)}, v{A.a2}, {srd(S.M1)}, 0 offen {opts["outsc"]}')
    if grp == 0:
        L = lbl('ep')
        k.e(f'''s_or_b32 s{S.t2}, s{S.h}, s{S.tb}
s_or_b32 s{S.t2}, s{S.t2}, s{S.w}
s_cmp_lg_u32 s{S.t2}, 0
s_cbranch_scc1 {L}''')
        flag_store(k, S.t2, S.tag)
        k.e(f'{L}:')
    k.e(f'{Lidle}:')
    stamp(k, 'end'); stamp_dump(k)
    k.e('s_endpgm')

DEFAULTS = dict(NH=8, tlbwarm=False, flagwarm=False, oclr_at=(6, 7), ybar=4, rsleep=6, outsc='sc1', a5_at=22, pack=False, codewarm=5, wowarm=5, warm=False, wo_rot=True, nr8=6, prio_st=False, prio_g1=0, skip=(), spin=0x40000, kvsc='sc1', dbg=(), nodma=False, round_p=True, prio=True, align=True, prof=False,
                nobar=(8, 9, 10, 12, 13, 15, 16, 18, 19, 20, 22, 24, 26), npre=1, f1_step=11, f1_check=24, pre_rate=2, f1r_at=(1, 3),
                wsched={0: [4], 1: [5], 2: [6], 3: [7, 14], 4: [21, 8, 9], 5: [10, 11], 6: [12, 13], 7: [15, 16], 9: [17, 18], 11: [19, 20],
                        13: [22], 14: [23], 16: [24], 17: [25], 19: [26], 21: [27]},
                pump_hi=2, pump_hi2=5,  wo_at=15,
                kv_at=((0, 1, 2, 5, 8, 10, 16, 17), (0, 1, 2, 5, 9, 11, 16, 17)), afin_at=18, oa_at=27)

def build(**kw):
    opts = dict(DEFAULTS); opts.update(kw)
    issue = {w: s_ for s_, ws_ in opts['wsched'].items() for w in ws_}
    for w in range(4, 28):
        size = lambda x: 8192 if x // 7 in (0, 3) else 4096
        for p in range(w):
            if WADDR[p] < WADDR[w] + size(w) and WADDR[w] < WADDR[p] + size(p):
                b = p + 1
                while b in opts['nobar']: b += 1
                assert issue[w] >= b, (w, p, b)
        b = w
        while b in opts['nobar']: b -= 1
        assert issue[w] < b, (w, b)
    _lbl[0] = 0; PROF[0] = opts['prof']; STAMPS.clear(); DBG.clear(); DBG.update(opts['dbg']); KVSC[0] = opts['kvsc']; PRIO_ST[0] = opts['prio_st']; SPINV[0] = opts['spin']
    k = Stream(); k.cold = Stream()
    prologue(k, opts['NH'])
    ids = {}
    head = k
    streams = []; checks = []
    for grp in range(2):
        fb = Stream(); idg = dict(ids); st_id = None
        if grp == 0:
            g = head.fork()
            prologue0(g, idg)
            rot_offsets(g)
            dma_x(g, 1, True); idg[1] = dma_w(g, 1, True)
            setup2(g)
            dma_x(g, 2, True); idg[2] = dma_w(g, 2, True)
            g.e(HEADS()); slice_setup(g); idg[3] = dma_w(g, 3, True); stage0(g, 0, idg, True, opts); pre = g.text(); opts['_gw'] = [g.gw_id, g.wphi_id]
        else:
            h1 = head.fork(); prologue1(h1, opts)
            kk, kv = head.fork(), head.fork()
            for z, kt in ((kv, False), (kk, True)):
                z.e(tr_base0(kt)); stage0(z, 1, dict(ids), kt, opts); st_id = stage0_epilogue(z, kt)
            assert [x[1] for x in kk.vm if not x[1]] == [x[1] for x in kv.vm if not x[1]]
            pre = h1.text() + f'  s_cmp_ge_u32 s{S.j}, 7\n  s_cbranch_scc1 L_vtile\n' + kk.text() + '  s_branch L_mid\nL_vtile:\n' + kv.text() + 'L_mid:\n'
            g = kk
        g = g.fork(); g.cold = Stream(); g.pre = pre
        pend = stages12(g, idg, grp, st_id, opts)
        st = attn_prologue(g, grp, pend, opts)
        js, wo, wa = attention(g, grp, st, opts, pend)
        tail(g, grp, js, wo, wa, opts, fb)
        fb2 = Stream(); fb2.L = fb.L + g.cold.L
        streams.append((g, fb2))
    body = head.text()
    body += streams[0][0].pre + streams[0][0].text() + streams[0][1].text()
    body += 'L_grp1:\n' + streams[1][0].pre + streams[1][0].text() + streams[1][1].text()
    body += 'L_end:\n  s_endpgm\n'
    bl, checks = fix_hazards(body.rstrip('\n').split('\n'));
    if opts['align']: bl, st_ = align_runs([NAME + ':'] + bl); bl = bl[1:]; checks.append(f'align: widened {st_[0]}, nops {st_[1]}, left {st_[2]}')
    for g1 in (0, 1):
        for vt in (0, 1):
            for opt in (0, 1):
                ch = lambda L: (L == 'L_grp1' and g1) or (L == 'L_vtile' and vt) or (L.startswith('L_w_') and opt) or (L.startswith(('L_dup', 'L_ep')) and not opt) or (L.startswith('L_kq') and opt)
                w_ = check_waits(bl, ch)
                assert not w_ or opts['skip'], w_[:5]
    body = '\n'.join(bl) + '\n'
    ref = open('gated_mix__linear_kernel_hedgehog__softmax_full_mha__prompt.s.ref').read()
    hdr = ref[:ref.index('; @launch')]
    txt = hdr + f'''; @launch grid=(256,1,1) block=(512,1,1) lds=163840
.amdgcn_target "amdgcn-amd-amdhsa--gfx950"
.text
.globl {NAME}
.p2align 8
.type {NAME},@function
{NAME}:
{body}.section .rodata,"a"
.p2align 6
.amdhsa_kernel {NAME}
  .amdhsa_next_free_vgpr 256
  .amdhsa_next_free_sgpr 102
  .amdhsa_accum_offset 256
  .amdhsa_group_segment_fixed_size 0
  .amdhsa_kernarg_size 88
  .amdhsa_user_sgpr_count 2
  .amdhsa_user_sgpr_kernarg_segment_ptr 1
  .amdhsa_system_sgpr_workgroup_id_x 1
.end_amdhsa_kernel
'''
    return txt, checks

if __name__ == '__main__':
    out = sys.argv[1] if len(sys.argv) > 1 else 'gated_mix__linear_kernel_hedgehog__softmax_full_mha__prompt.s'
    kw = {}
    for a in sys.argv[2:]:
        n, v = a.split('='); kw[n] = eval(v)
    txt, msgs = build(**kw)
    for m in msgs: print('  auto', m)
    open(out, 'w').write(txt)
    print('wrote', out, len(txt), 'bytes')
    if STAMPS: open(out + '.stamps', 'w').write('\n'.join(STAMPS))
```

```python
import re

class Stream:
    def __init__(self):
        self.L = []
        self.vm = []
        self._id = [0]
        self.dq = []
    def fork(self):
        s = Stream(); s.vm = [list(x) for x in self.vm]; s._id = self._id; s.dq = list(self.dq); return s
    def ds(self, txt):
        if len(self.dq) >= 14:
            self.e('s_waitcnt lgkmcnt(8)'); self.dq = self.dq[-8:]
        self._id[0] += 1; self.dq.append(self._id[0]); self.e(txt); return self._id[0]
    def dswait(self, id):
        if id not in self.dq: return
        i = self.dq.index(id); n = min(14, len(self.dq) - i - 1)
        self.e(f's_waitcnt lgkmcnt({n})'); self.dq = self.dq[len(self.dq)-n:] if n else []
    def dsall(self, emit=True):
        if emit: self.e('s_waitcnt lgkmcnt(0)')
        self.dq = []
    def e(self, txt):
        for ln in txt.strip('\n').split('\n'):
            if ln.strip(): self.L.append(ln.strip())
    def c(self, txt): self.L.append('; ' + txt)
    def vmop(self, txt, opt=False):
        self._id[0] += 1
        self.vm.append([self._id[0], opt]); self.e(txt); return self._id[0]
    def vmcount(self, id, count_opt=False):
        idx = [k for k, x in enumerate(self.vm) if x[0] == id]
        if not idx: return None
        return sum(1 for x in self.vm[idx[0]+1:] if count_opt or not x[1])
    def vmwait(self, id, extra='', count_opt=False, keep=False):
        n = self.vmcount(id, count_opt) if id is not None else None
        if n is None:
            if extra: self.e('s_waitcnt ' + extra)
            return
        assert n <= 63
        self.e(f's_waitcnt vmcnt({n}) {extra}'.strip())
        if not keep:
            idx = [k for k, x in enumerate(self.vm) if x[0] == id][0]
            self.vm = self.vm[idx+1:]
    def vmall(self, extra=''):
        self.e(f's_waitcnt vmcnt(0) {extra}'.strip()); self.vm = []
    def text(self):
        out = []
        for ln in self.L:
            out.append(ln if (ln.endswith(':') or ln.startswith('.')) else '  ' + ln)
        return '\n'.join(out) + '\n'

def regs_of(tok):
    tok = tok.strip()
    m = re.fullmatch(r'-?\|?(?:abs\()?([vsa])(\d+)\)?\|?', tok)
    if m: return [(m.group(1), int(m.group(2)))]
    m = re.fullmatch(r'-?\|?([vsa])\[(\d+):(\d+)\]\|?', tok)
    if m: return [(m.group(1), k) for k in range(int(m.group(2)), int(m.group(3))+1)]
    if tok == 'vcc': return [('s', 'vcc')]
    if tok in ('exec', 'exec_lo', 'exec_hi'): return [('s', 'exec')]
    if tok == 'm0': return [('s', 'm0')]
    return []
TRANS = ('v_exp_', 'v_log_', 'v_rcp_', 'v_rsq_', 'v_sqrt_', 'v_sin_', 'v_cos_')
def parse(ln):
    ln = ln.split(';')[0].strip()
    if not ln or ln.endswith(':') or ln.startswith('.'): return None
    parts = ln.split(None, 1)
    op = parts[0]
    rest = parts[1] if len(parts) > 1 else ''
    ops = [t.strip() for t in rest.split(',')]
    if ops:
        last = ops[-1].split()
        if last: ops[-1] = last[0]
    mods = rest
    d = dict(op=op, ops=ops, mods=mods, W=[], R=[], kind='other')
    R = lambda toks: [x for t in toks for x in regs_of(t)]
    if op.startswith('v_mfma'):
        d.update(kind='mfma', W=R(ops[:1]), A=R(ops[1:3]), C=R(ops[3:4])); d['R'] = d['A'] + d['C']
        d['passes'] = 8 if '32x32' in op else 4
    elif op.startswith('v_smfmac'):
        d.update(kind='mfma', W=R(ops[:1]), A=R(ops[1:4]), C=R(ops[:1])); d['R'] = d['A'] + d['C']
        d['passes'] = 8 if '32x32' in op else 4
    elif op.startswith('v_cmp'):
        d.update(kind='valu', W=R(ops[:1]), R=R(ops[1:]))
    elif op.startswith('v_permlane'):
        d.update(kind='valu', W=R(ops[:2]), R=R(ops[:2]), perm=True)
    elif op.startswith('v_readfirstlane') or op.startswith('v_readlane'):
        d.update(kind='valu', W=R(ops[:1]), R=R(ops[1:]), rdlane=True)
    elif op.startswith('v_'):
        d.update(kind='valu', W=R(ops[:1]), R=R(ops[1:]))
        if op.startswith('v_fmac') or op.startswith('v_dot2c') or 'UNUSED_PRESERVE' in mods: d['R'] += d['W']
        if op.startswith('v_cndmask') and len(ops) == 3: d['R'] += [('s', 'vcc')]
        if '_co_' in op: d['W'] = R(ops[:2]); d['R'] = R(ops[2:])
        d['trans'] = op.startswith(TRANS)
        d['dpp'] = '_dpp' in op or 'row_' in mods or 'quad_perm' in mods
        d['sdwa'] = '_sdwa' in op
    elif op.startswith('buffer_load') or op.startswith('global_load'):
        if ' lds' in (' ' + mods) or '_lds_' in op: d.update(kind='vmem', R=R(ops) + [('s', 'm0')], dma=True)
        else: d.update(kind='vmem', W=R(ops[:1]), R=R(ops[1:]), load=True)
    elif op.startswith('buffer_store') or op.startswith('buffer_atomic'):
        d.update(kind='vmem', R=R(ops), data=R(ops[:1]), wide=('x3' in op or 'x4' in op))
    elif op.startswith('buffer_') or op.startswith('global_'):
        d.update(kind='vmem', R=R(ops))
    elif op.startswith('ds_read') or op.startswith('ds_bpermute') or op.startswith('ds_swizzle'):
        d.update(kind='ds', W=R(ops[:1]), R=R(ops[1:]), load=True)
    elif op.startswith('ds_'):
        d.update(kind='ds', R=R(ops))
    elif op == 's_nop':
        d.update(kind='nop', n=int(ops[0], 0) + 1)
    elif op.startswith('s_'):
        nodst = op.startswith(('s_cmp', 's_cbranch', 's_branch', 's_waitcnt', 's_barrier', 's_endpgm', 's_sleep', 's_setprio', 's_bitcmp'))
        d.update(kind='salu', W=[] if nodst else R(ops[:1]), R=R(ops if nodst else ops[1:]))
        if 'saveexec' in op: d['W'] += [('s', 'exec')]
    return d

def need_between(p, c):
    need = 0; why = ''
    pw = set(p['W']); cr = set(c['R']); cw = set(c['W'])
    vw = {x for x in pw if x[0] in 'va'}; sw = {x for x in pw if x[0] == 's'}
    def up(n, w):
        nonlocal need, why
        if n > need: need, why = n, w
    if p['kind'] == 'valu':
        if c['kind'] == 'mfma' and vw & cr: up(2, 'valu->mfma')
        if c['kind'] == 'valu':
            if p.get('trans') and vw & cr: up(1, 'trans->valu')
            if c.get('perm') and vw & cr: up(2, 'valu->permlane')
            if c.get('dpp') and vw & cr: up(2, 'valu->dpp')
            if c.get('rdlane') and vw & cr: up(1, 'valu->readlane')
            if p.get('sdwa') and vw & (cr | cw): up(1, 'sdwa->valu')
            if sw & cr: up(2, 'valu sgpr->valu')
        if c['kind'] == 'vmem' and sw & cr: up(5, 'valu sgpr->vmem')
        if c['kind'] == 'salu' and sw & cr: up(1, 'valu sgpr->salu')
        if p.get('trans') and c['kind'] in ('vmem', 'ds') and vw & cr: up(1, 'trans->mem')
    if p['kind'] == 'mfma':
        n = {8: 12, 4: 8}[p['passes']]
        if c['kind'] == 'mfma':
            if vw & set(c['A']): up(n, 'mfma D->mfma AB')
            elif vw & set(c['C']):
                if not (p['W'] == c['C'] and p['passes'] == c['passes']): up(n-2, 'mfma D->mfma C overlap')
            elif vw & cw and not (p['W'] == c['W']): up(n-2, 'mfma WAW overlap')
        elif c['kind'] in ('valu', 'vmem', 'ds'):
            if vw & (cr | cw): up(n, 'mfma D->valu/mem')
        if c['kind'] == 'valu' and set(p['C']) & cw: up({8: 7, 4: 3}[p['passes']], 'mfma C WAR valu')
    if p['kind'] == 'vmem' and p.get('wide') and set(p['data']) & cw:
        up(2 if c['kind'] == 'valu' else 1, 'store data WAR')
    if p['kind'] == 'salu' and ('s', 'm0') in pw and c.get('dma'): up(1, 'm0->dma')
    return need, why

def fix_hazards(lines):
    log = []; ins = []; lab = {}
    for k, ln in enumerate(lines):
        t = ln.strip()
        if t.endswith(':'): lab[t[:-1]] = len(ins); continue
        p = parse(t)
        if p: p['k'] = k; p['ln'] = t; p['pad'] = 0; p['live'] = bool(p['W']) or bool(p.get('wide')) or p['kind'] == 'mfma'; ins.append(p)
    br = {}
    for i, p in enumerate(ins):
        if p['op'].startswith(('s_cbranch', 's_branch')): br.setdefault(lab[p['ops'][0]], []).append(i)
    pred = [list(br.get(i, [])) + ([i-1] if i > 0 and ins[i-1]['op'] not in ('s_branch', 's_endpgm') else []) for i in range(len(ins))]
    changed = True
    while changed:
        changed = False
        for i, c in enumerate(ins):
            if c['kind'] in ('nop', 'other') or not (c['R'] or c['W']): continue
            worst = 0; info = None; best = {}; stack = [(j, c['pad']) for j in pred[i]]
            while stack:
                j, d = stack.pop()
                if best.get(j, 99) <= d: continue
                best[j] = d; p = ins[j]
                if p['live'] and (d < 5 or p['kind'] == 'mfma'):
                    n, why = need_between(p, c)
                    if n - d > worst: worst, info = n - d, (why, p['ln'])
                d2 = d + p.get('n', 1) + p['pad']
                if d2 < 12: stack += [(q, d2) for q in pred[j]]
            if worst > 0:
                c['pad'] += worst; changed = True; log.append(f'nop {worst} before [{c["ln"]}] ({info[0]}: {info[1]})')
    out = list(lines)
    for p in reversed(ins):
        if p['pad']: out.insert(p['k'], f'  s_nop {p["pad"]-1}')
    return out, log


import subprocess, os, tempfile
WIDEN = ('v_mov_b32', 'v_add_f32', 'v_mul_f32', 'v_sub_f32', 'v_max_f32', 'v_exp_f32', 'v_rcp_f32', 'v_lshlrev_b32', 'v_lshrrev_b32',
         'v_and_b32', 'v_xor_b32', 'v_or_b32', 'v_add_u32', 'v_sub_u32', 'v_subrev_u32', 'v_max_u32', 'v_min_u32', 'v_mul_u32_u24')
def sizes(lines):
    src = '.amdgcn_target "amdgcn-amd-amdhsa--gfx950"\n.text\n' + '\n'.join(lines) + '\n'
    with tempfile.TemporaryDirectory() as d:
        open(d + '/a.s', 'w').write(src)
        subprocess.run(['clang', '-x', 'assembler', '-target', 'amdgcn-amd-amdhsa', '-mcpu=gfx950', '-c', d + '/a.s', '-o', d + '/a.o'], check=True)
        out = subprocess.run(['llvm-objdump', '-d', '--mcpu=gfx950', d + '/a.o'], capture_output=True, text=True).stdout
    sz = [4*len(m.group(1).split()) for m in re.finditer(r'// [0-9A-F]{12}: ([0-9A-F ]+)', out)]
    idx = [k for k, ln in enumerate(lines) if parse(ln.strip())]
    assert len(sz) == len(idx), (len(sz), len(idx))
    return idx, sz
def align_runs(lines, minrun=4):
    idx, sz = sizes(lines); lines = list(lines); ins = []; shift = 0; addr = 0; n = len(idx); stats = [0, 0, 0]
    i = 0
    while i < n:
        if sz[i] == 8:
            j = i
            while j < n and sz[j] == 8: j += 1
            slow = sum(lines[idx[q]].strip().startswith(('v_mfma', 'v_smfmac', 'buffer_')) for q in range(i, j))
            if (addr + shift) % 8 == 4 and (j - i) - slow >= minrun:
                p = lines[idx[i-1]].strip(); op = p.split()[0]
                contiguous = all(not lines[q].strip().endswith(':') for q in range(idx[i-1], idx[i]))
                if op in WIDEN and sz[i-1] == 4 and contiguous:
                    lines[idx[i-1]] = lines[idx[i-1]].replace(op, op + '_e64', 1); shift += 4; stats[0] += 1
                elif (j - i) - slow >= 6:
                    ins.append(idx[i]); shift += 4; stats[1] += 1
                else: stats[2] += 1
            addr += 8*(j - i); i = j
        else:
            addr += sz[i]; i += 1
    for k in reversed(ins): lines.insert(k, '  s_nop 0')
    return lines, stats


def check_waits(lines, choose):
    lab = {ln.strip()[:-1]: k for k, ln in enumerate(lines) if ln.strip().endswith(':')}
    vm = []; lg = []; msgs = []; i = 0; steps = 0
    while i < len(lines) and steps < 200000:
        steps += 1
        t = lines[i].strip(); p = parse(t); i += 1
        if not p: continue
        op = p['op']
        if op == 's_endpgm': break
        if op == 's_branch': i = lab[p['ops'][0]]; continue
        if op.startswith('s_cbranch'):
            if choose(p['ops'][0]): i = lab[p['ops'][0]]
            continue
        if op == 's_waitcnt':
            m = re.search(r'vmcnt\((\d+)\)', t)
            if m: vm = vm[len(vm)-int(m.group(1)):] if int(m.group(1)) < len(vm) and int(m.group(1)) else ([] if not int(m.group(1)) else vm)
            m = re.search(r'lgkmcnt\((\d+)\)', t)
            if m:
                n = int(m.group(1))
                if n == 0: lg = []
                elif any(x[0] == 'smem' for x in lg): msgs.append(f'counted lgkm wait with a scalar load in flight: line {i}: {t}')
                elif n < len(lg): lg = lg[len(lg)-n:]
            continue
        used = set(p['R']) | set(p['W'])
        for q, name in ((vm, 'vm'), (lg, 'lgkm')):
            for kind, regs, src in q:
                if regs & used and not (p.get('load') and regs & set(p['W']) and not regs & set(p['R'])):
                    msgs.append(f'{name} load still in flight: line {i}: {t}   <- {src}')
        if p['kind'] == 'vmem': vm.append(('v', set(p['W']), t))
        elif p['kind'] == 'ds': lg.append(('ds', set(p['W']), t))
        elif op.startswith(('s_load', 's_memtime', 's_memrealtime')): lg.append(('smem', set(p['W']) - {('s', 75)}, t))
    return msgs


def expand_pk(ln):
    t = ln.strip()
    m = re.match(r'v_pk_(fma|add|mul)_f32 (.*)', t)
    if not m or 'keep' in t: return [ln]
    op = m.group(1); rest = m.group(2)
    mods = dict(re.findall(r'(op_sel_hi|neg_lo|neg_hi):\[([\d,]+)\]', rest))
    ops = [x.strip() for x in re.sub(r'\s+(op_sel_hi|neg_lo|neg_hi):.*', '', rest).split(',')]
    n = len(ops) - 1
    hi = [int(x) for x in mods.get('op_sel_hi', ','.join('1'*n)).split(',')]
    out = []
    for half in range(2):
        neg = [int(x) for x in mods.get('neg_hi' if half else 'neg_lo', ','.join('0'*n)).split(',')]
        def reg(tok, sel):
            r = re.fullmatch(r'([vs])\[(\d+):(\d+)\]', tok)
            return f'{r.group(1)}{int(r.group(2)) + sel}' if r else tok
        src = [('-' if neg[i] else '') + reg(ops[1+i], half and hi[i]) for i in range(n)]
        if op != 'fma' and not src[1].startswith('v'): src.reverse()
        out.append(f'  v_{op}_f32 {reg(ops[0], half)}, ' + ', '.join(src))
    return out
```

```python
import sys, struct
from asmlib import Stream, fix_hazards, align_runs, check_waits, expand_pk

NAME = 'gated_mix__linear_kernel_hedgehog__softmax_full_mha__prompt_kernel'
def fbits(x): return '0x%08x' % struct.unpack('<I', struct.pack('<f', x))[0]
LOG2E = 1.4426950408889634
QSCALE = 28 ** -0.5 * LOG2E

WS_FLAG1, WS_FLAG2, WS_FLAG3A, WS_FLAG3B = 0x40000, 0x20000, 0x60000, 0x80000
WS_KV, WS_KVP, WS_KVF, WS_OX, WS_DBG = 0x100000, 0x500000, 0x700000, 0x800000, 0x1000000
WS_SIZE = 0x2000000
OOB = 0x40000000
L_WR = 65536
WADDR = [(4+c)*8192 for c in range(7)] + [c*4096 for c in range(7)] + [(7+c)*4096 for c in range(7)] + [c*8192 for c in (7, 8, 9, 10, 0, 1, 2)]
L_PHI, L_QX, L_STG = L_WR + 4*8192, L_WR + 6*8192, L_WR + 7*8192
L_WPHI, L_G, L_SEL = 155648, 159744, 161792
HQ = [4, 6, 2, 3, 0, 5, 1, 7, 8, 14, 10, 15, 12, 13, 9, 11]
L_WOA, L_CX = 98304, 32768
SPINV = [0x8000]

class S:
    X, W, WS, M1, M2, W2 = 4, 8, 12, 16, 20, 68
    pX, pWA, pPHI, pWOA, pWB, pWOB, pGW, pOUT, pWS = 24, 26, 28, 30, 32, 34, 36, 38, 40
    h, tb, w, tt, grp, hA, j, tag, r0, hQ, cw, col = 44, 45, 46, 47, 48, 49, 50, 51, 52, 53, 54, 55
    mX, mW, t0, t1, t2, t3, t4, t5 = 56, 57, 58, 59, 60, 61, 62, 63
    vcm = 64
    rot, sK, mK, spin, rdy, rb = 72, 73, 74, 75, 76, 77
    lo28 = 76
    hi32 = 78
    t6, t7, t8, t9 = 80, 81, 82, 83
    ow, ox = 84, 91
def srd(b): return f's[{b}:{b+3}]'
def vr(b, n): return f'v[{b}:{b+n-1}]' if n > 1 else f'v{b}'

class V:
    lane, i32, hh = 1, 2, 3
    xa0, xa1, w0, ws = 4, 5, 6, 7
    xr = 8
    t0r, t1r, t2r = 12, 6, 14
    g = 15
    t3r = 11
    wsb, ws2, ws2b = 13, 244, 245
    acc0, acc1, P, EP, EM = 16, 32, 48, 64, 80
    wf = 96
    xf = 128
    gw0, gw1, ob = 4, 254, 246
    tmp = 247

def mfma(d, a, b, c): return f'v_mfma_f32_32x32x16_bf16 {vr(d,16)}, {vr(a,4)}, {vr(b,4)}, {c if isinstance(c,str) else vr(c,16)}'
def smfma(d, a, b, idx): return f'v_smfmac_f32_32x32x32_bf16 {vr(d,16)}, {vr(a,4)}, {vr(b,8)}, v{idx}'

PROF = [False, 0]
DBG = set()
KVSC = ['sc1']
PRIO_ST = [True]
STAMPS = []
def stamp(k, name):
    if not PROF[0]: return
    if PROF[0] != True and 'abs:' + name in PROF[0]:
        L = lbl('ab')
        k.e(f'''s_cmp_lg_u32 s{S.w}, 0
s_cbranch_scc1 {L}
{'s_memtime' if 'cyc' in PROF[0] else 's_memrealtime'} s[98:99]
s_load_dwordx2 s[84:85], s[0:1], 72
s_waitcnt lgkmcnt(0)
s_mov_b32 s86, 256
s_mov_b32 s87, 0x20000
{'s_sub_u32 s98, s98, s100' if 'cyc' in PROF[0] else ''}
{'s_sub_u32 s98, s98, s101' if 'dur' in PROF[0] else ''}
s_not_b32 s99, {'s98' if ('cyc' in PROF[0] or 'dur' in PROF[0]) else 's101'}
v_mov_b32 v0, 0
v_writelane_b32 v0, 64, 1
v_mov_b32 v{V.tmp+6}, {'s101' if 'start' in PROF[0] else 's98'}
v_writelane_b32 v{V.tmp+6}, s99, 1
s_mov_b64 exec, 3
buffer_atomic_umax v{V.tmp+6}, v0, s[84:87], 0 offen sc1
s_mov_b64 exec, -1
{L}:''')
        k.dq = []
        return
    if PROF[0] != True and name not in PROF[0]: return
    if name not in STAMPS: STAMPS.append(name)
    n = STAMPS.index(name)
    k.e(f's_memtime s[98:99]\ns_waitcnt lgkmcnt(0)\ns_sub_u32 s98, s98, s100\nv_writelane_b32 v0, s98, {n}')
    if PROF[0] != True and 'rt' in PROF[0]:
        k.e(f's_memrealtime s[98:99]\ns_waitcnt lgkmcnt(0)\ns_sub_u32 s98, s98, s101\nv_writelane_b32 v0, s98, {n+30}')
    k.dq = []
def stamp_dump(k):
    if not PROF[0]: return
    sp = [x for x in PROF[0] if x.startswith('spin')]
    if sp:
        L = lbl('spin'); mode = sp[0][4]
        k.e(f's_or_b32 s90, s2, s{S.w}\ns_cmp_lg_u32 s90, 0\ns_cbranch_scc1 {L}_e')
        if mode == 'A': k.e('s_add_u32 s91, s101, 6000')
        if mode == 'B': k.e('s_memrealtime s[98:99]\ns_waitcnt lgkmcnt(0)\ns_sub_u32 s91, s98, s101\ns_mul_i32 s91, s91, 4\ns_add_u32 s91, s91, s98')
        if mode == 'C': k.e('s_memtime s[98:99]\ns_waitcnt lgkmcnt(0)\ns_add_u32 s91, s98, 100000')
        if mode == 'E':
            k.e(f's_load_dwordx2 s[84:85], s[0:1], 72\ns_waitcnt vmcnt(0) lgkmcnt(0)\ns_mov_b32 s86, 256\ns_mov_b32 s87, 0x20000\nbuffer_load_dword v{V.tmp}, v0, s[84:87], 0 offen sc1\ns_memrealtime s[98:99]\ns_waitcnt vmcnt(0) lgkmcnt(0)\nv_readlane_b32 s90, v{V.tmp}, 0\nv_readlane_b32 s91, v{V.tmp}, 1\ns_nop 3\ns_not_b32 s91, s91\ns_sub_u32 s90, s90, s91\ns_lshl_b32 s90, s90, 2\ns_add_u32 s91, s90, s98')
        if mode in 'GH':
            sc = 's_mul_i32 s90, s90, 13107\ns_lshr_b32 s90, s90, 16' if 'cyc' in PROF[0] else 's_lshl_b32 s90, s90, 2'
            k.e(f's_load_dwordx2 s[84:85], s[0:1], 72\ns_waitcnt vmcnt(0) lgkmcnt(0)\ns_mov_b32 s86, 256\ns_mov_b32 s87, 0x20000\nbuffer_load_dword v{V.tmp}, v0, s[84:87], 0 offen sc1\ns_memrealtime s[98:99]\ns_waitcnt vmcnt(0) lgkmcnt(0)\nv_readlane_b32 s90, v{V.tmp}, {0 if mode == "G" else 1}\ns_nop 3\n{"s_not_b32 s90, s90" if mode == "H" else ""}\n{sc}\ns_add_u32 s91, s90, s98')
        if mode == 'F':
            k.e('s_memrealtime s[98:99]\nv_readlane_b32 s90, v0, 30\ns_waitcnt lgkmcnt(0)\ns_lshl_b32 s90, s90, 2\ns_add_u32 s91, s90, s98')
        if mode == 'D':
            k.e('s_memrealtime s[98:99]\nv_readlane_b32 s90, v0, 0\ns_waitcnt lgkmcnt(0)\ns_mul_i32 s90, s90, 13107\ns_lshr_b32 s90, s90, 16\ns_add_u32 s91, s90, s98')
        k.e(f'{L}:\n{"s_memtime" if mode == "C" else "s_memrealtime"} s[98:99]\ns_waitcnt lgkmcnt(0)\ns_sub_u32 s90, s98, s91\ns_cmp_lt_i32 s90, 0\ns_cbranch_scc1 {L}\n{L}_e:')
        return
    if 'dbg' in PROF[0]:
        T = V.tmp
        k.e(f'''s_memrealtime s[98:99]
s_memtime s[96:97]
s_load_dwordx2 s[92:93], s[0:1], 72
s_getreg_b32 s90, hwreg(HW_REG_XCC_ID, 0, 4)
s_waitcnt lgkmcnt(0)
s_mov_b32 s94, 256
s_mov_b32 s95, 0x20000
s_sub_u32 s96, s96, s100
s_sub_u32 s91, s98, s101
s_not_b32 s89, s101
v_mov_b32 v{T}, 0
v_mov_b32 v{T+1}, s98
v_writelane_b32 v{T}, 4, 1
v_writelane_b32 v{T+1}, s89, 1
v_writelane_b32 v{T}, 8, 2
v_writelane_b32 v{T+1}, s101, 2
v_writelane_b32 v{T}, 12, 3
v_writelane_b32 v{T+1}, s96, 3
v_writelane_b32 v{T}, 16, 4
v_writelane_b32 v{T+1}, s91, 4
s_lshl_b32 s90, s90, 2
s_add_u32 s90, s90, 32
v_writelane_b32 v{T}, s90, 5
v_writelane_b32 v{T+1}, s89, 5
s_mov_b64 exec, 63
buffer_atomic_umax v{T+1}, v{T}, s[92:95], 0 offen''')
        return
    k.e(f'''s_memrealtime s[98:99]
s_waitcnt lgkmcnt(0)
v_writelane_b32 v0, s98, 63
v_writelane_b32 v0, s101, 62
s_lshl_b32 s98, s2, 3
s_add_u32 s98, s98, s{S.w}
s_lshl_b32 s98, s98, 8
s_add_u32 s98, s98, {WS_DBG}
v_lshl_add_u32 v{V.tmp}, v{V.lane}, 2, s98
buffer_store_dword v0, v{V.tmp}, {srd(S.WS)}, 0 offen''')

def set_srd(k, b, ptr, n):
    k.e(f's_mov_b32 s{b}, s{ptr}\ns_mov_b32 s{b+1}, s{ptr+1}\ns_mov_b32 s{b+2}, {n}\ns_mov_b32 s{b+3}, 0x20000')

def prologue(k, NH):
    T = V.tmp
    lg = {2: 1, 4: 2, 8: 3, 16: 4}[NH]; ng = 16 // NH
    k.e(f'''
s_cmp_ge_u32 s2, 256
s_cbranch_scc1 L_end
{'s_memtime s[100:101]' if PROF[0] else ''}
{'s_memrealtime s[98:99]' if PROF[0] else ''}
s_load_dwordx4 s[24:27], s[0:1], 0
s_load_dwordx4 s[32:35], s[0:1], 40
v_lshrrev_b32 v{T}, 6, v0
s_load_dwordx2 s[40:41], s[0:1], 80
v_readfirstlane_b32 s{S.w}, v{T}
s_load_dwordx4 s[28:31], s[0:1], 16
s_load_dwordx4 s[36:39], s[0:1], 56
v_and_b32 v{V.lane}, 63, v0
s_and_b32 s{S.t0}, s2, 7
s_lshr_b32 s{S.t1}, s2, 3
s_and_b32 s{S.h}, s{S.t0}, {ng-1}
s_and_b32 s{S.t2}, s{S.t1}, {NH-1}
s_lshl{lg}_add_u32 s{S.h}, s{S.h}, s{S.t2}
s_lshr_b32 s{S.tb}, s{S.t0}, {4-lg}
s_lshr_b32 s{S.t2}, s{S.t1}, {lg}
s_lshl{5-lg}_add_u32 s{S.tb}, s{S.tb}, s{S.t2}
s_and_b32 s{S.tt}, s{S.w}, 3
s_cmp_ge_u32 s{S.w}, 4
s_cbranch_scc1 L_grp1
''')
ROT0 = lambda: f'''; rotation r0 = (2 h + 3 tb) mod 7
s_mul_i32 s{S.t2}, s{S.tb}, 3
s_lshl1_add_u32 s{S.r0}, s{S.h}, s{S.t2}
s_mul_i32 s{S.t2}, s{S.r0}, 147
s_lshr_b32 s{S.t2}, s{S.t2}, 10
s_mul_i32 s{S.t2}, s{S.t2}, 7
s_sub_u32 s{S.r0}, s{S.r0}, s{S.t2}
s_lshl_b32 s{S.ox}, s{S.r0}, 7'''
TILE = lambda: f'''; tile j = h - (h>5) - (h>10); idle when h is 5 or 10
s_cmp_gt_u32 s{S.h}, 5
s_subb_u32 s{S.j}, s{S.h}, 0
s_cmp_gt_u32 s{S.h}, 10
s_subb_u32 s{S.j}, s{S.j}, 0'''
HEADS = lambda: f'''s_xor_b32 s{S.hA}, s{S.h}, 1
s_mov_b32 s{S.vcm}, {sum(HQ[i] << (4*i) for i in range(8))}
s_mov_b32 s{S.vcm+1}, {sum(HQ[8+i] << (4*i) for i in range(8))}
s_lshl_b32 s{S.t2}, s{S.h}, 2
s_lshr_b64 s[{S.vcm}:{S.vcm+1}], s[{S.vcm}:{S.vcm+1}], s{S.t2}
s_and_b32 s{S.hQ}, s{S.vcm}, 15'''
def prologue0(k, ids):
    T = V.tmp
    k.e(ROT0())
    k.e(f'''
s_lshl_b32 s{S.mX}, s{S.w}, 11
v_lshrrev_b32 v{T}, 3, v{V.lane}
v_and_b32 v{T+1}, 7, v{V.lane}
v_bfe_u32 v{T+2}, v{V.lane}, 4, 2
v_xor_b32 v{T+2}, v{T+1}, v{T+2}
v_mul_u32_u24 v{V.xa0}, 896, v{T}
v_lshl_add_u32 v{V.xa0}, v{T+2}, 4, v{V.xa0}
s_lshl3_add_u32 s{S.t2}, s{S.tb}, s{S.w}
s_mul_i32 s{S.t2}, s{S.t2}, 14336
v_add_u32 v{V.xa0}, s{S.t2}, v{V.xa0}
v_add_u32 v{V.xa1}, 7168, v{V.xa0}
v_xor_b32 v{V.xa1}, 64, v{V.xa1}
s_mov_b32 s{S.X+2}, 1835008
s_mov_b32 s{S.X+3}, 0x20000
s_waitcnt lgkmcnt(0)
{'s_mov_b32 s101, s98' if PROF[0] else ''}
s_mov_b32 s{S.X}, s{S.pX}
s_mov_b32 s{S.X+1}, s{S.pX+1}
''')
    dma_x(k, 0, True)
    k.e(TILE())
    k.e(f'''
s_mul_i32 s{S.ow}, s{S.ox}, 1344
s_lshl_b32 s{S.mW}, s{S.w}, 10
s_add_u32 s{S.mW}, s{S.mW}, {L_WR}
v_bfe_u32 v{T+2}, v{V.lane}, 4, 1
v_lshlrev_b32 v{T+2}, 2, v{T+2}
v_xor_b32 v{T+2}, v{T+1}, v{T+2}
v_mul_u32_u24 v{V.w0}, 2688, v{T}
v_lshl_add_u32 v{V.w0}, v{T+2}, 4, v{V.w0}
s_mul_i32 s{S.t2}, s{S.w}, 21504
s_lshl_b32 s{S.t3}, s{S.j}, 7
s_add_u32 s{S.t2}, s{S.t2}, s{S.t3}
s_add_u32 s{S.t2}, s{S.t2}, 896
v_add_u32 v{V.w0}, s{S.t2}, v{V.w0}
s_cmp_eq_u32 s{S.h}, 5
s_cselect_b32 s{S.t4}, 0, 1204224
s_cmp_eq_u32 s{S.h}, 10
s_cselect_b32 s{S.W+2}, 0, s{S.t4}
s_mov_b32 s{S.W+3}, 0x20000
s_mov_b32 s{S.W}, s{S.pWB}
s_mov_b32 s{S.W+1}, s{S.pWB+1}
''')
    ids[0] = dma_w(k, 0, True)
    k.e(f's_load_dword s{S.tag}, s[{S.pWS}:{S.pWS+1}], 0')
def prologue1(k, opts):
    k.e(TILE()); k.e(HEADS())
    if opts['codewarm']:
        k.e(f'''s_getpc_b64 s[{S.vcm}:{S.vcm+1}]
L_pc:
s_lshl2_add_u32 s{S.t2}, s{S.t1}, s{S.tt}
s_mul_i32 s{S.t2}, s{S.t2}, {opts['codewarm']*64}
s_min_u32 s{S.t2}, s{S.t2}, L_end-{NAME}-{opts['codewarm']*64}
s_sub_u32 s{S.vcm}, s{S.vcm}, L_pc-{NAME}
s_subb_u32 s{S.vcm+1}, s{S.vcm+1}, 0
s_add_u32 s{S.vcm}, s{S.vcm}, s{S.t2}
s_addc_u32 s{S.vcm+1}, s{S.vcm+1}, 0''')
    k.e(f'''s_waitcnt lgkmcnt(0)
{'s_mov_b32 s101, s98' if PROF[0] else ''}
s_load_dword s{S.tag}, s[{S.pWS}:{S.pWS+1}], 0''')
    for q in range(opts['codewarm']): k.e(f's_load_dword s{S.spin}, s[{S.vcm}:{S.vcm+1}], {q*64}')
    if opts['flagwarm']:
        ld = f's_load_dword s{S.spin}, s[{S.pWS}:{S.pWS+1}], s{S.t3}'
        k.e(f'''s_lshl4_add_u32 s{S.t2}, s{S.j}, s{S.tb}
s_lshl2_add_u32 s{S.t2}, s{S.t2}, s{S.tt}
s_lshl_b32 s{S.t2}, s{S.t2}, 6
s_add_u32 s{S.t3}, s{S.t2}, {WS_FLAG1}
{ld}
s_lshl3_add_u32 s{S.t2}, s{S.hA}, s{S.tt}
s_lshl4_add_u32 s{S.t2}, s{S.t2}, s{S.tb}
s_lshl_b32 s{S.t2}, s{S.t2}, 6
s_add_u32 s{S.t3}, s{S.t2}, {WS_FLAG2}
{ld}
s_add_u32 s{S.t3}, s{S.t2}, {WS_FLAG2 + 4096}
{ld}
s_lshl2_add_u32 s{S.t4}, s{S.tb}, s{S.tt}
s_lshl4_add_u32 s{S.t2}, s{S.t4}, s{S.hQ}
s_lshl_b32 s{S.t2}, s{S.t2}, 6
s_add_u32 s{S.t3}, s{S.t2}, {WS_FLAG3A}
{ld}
s_lshl4_add_u32 s{S.t2}, s{S.t4}, s{S.h}
s_lshl_b32 s{S.t2}, s{S.t2}, 7
s_add_u32 s{S.t3}, s{S.t2}, {WS_FLAG3B}
{ld}
s_add_u32 s{S.t3}, s{S.t2}, {WS_FLAG3B + 64}
{ld}''')
    if opts['tlbwarm']:
        k.e(f'''s_lshl2_add_u32 s{S.t2}, s{S.t1}, s{S.tt}
s_lshl_b32 s{S.t3}, s{S.t2}, 17
s_load_dword s{S.spin}, s[{S.pWS}:{S.pWS+1}], s{S.t3}
s_add_u32 s{S.t3}, s{S.t3}, 0x10000
s_load_dword s{S.spin}, s[{S.pWS}:{S.pWS+1}], s{S.t3}
s_and_b32 s{S.t3}, s{S.t2}, 31
s_lshl_b32 s{S.t3}, s{S.t3}, 16
s_lshr_b32 s{S.t2}, s{S.t2}, 5
s_mov_b32 s{S.t6}, s{S.pOUT}
s_mov_b32 s{S.t6+1}, s{S.pOUT+1}
s_mov_b32 s{S.t4}, 1835004
s_cmp_eq_u32 s{S.t2}, 1
s_cselect_b32 s{S.t6}, s{S.pWA}, s{S.t6}
s_cselect_b32 s{S.t6+1}, s{S.pWA+1}, s{S.t6+1}
s_cselect_b32 s{S.t4}, 1204220, s{S.t4}
s_cmp_eq_u32 s{S.t2}, 2
s_cselect_b32 s{S.t6}, s{S.pWOA}, s{S.t6}
s_cselect_b32 s{S.t6+1}, s{S.pWOA+1}, s{S.t6+1}
s_cselect_b32 s{S.t4}, 401404, s{S.t4}
s_cmp_eq_u32 s{S.t2}, 3
s_cselect_b32 s{S.t6}, s{S.pWOB}, s{S.t6}
s_cselect_b32 s{S.t6+1}, s{S.pWOB+1}, s{S.t6+1}
s_cselect_b32 s{S.t4}, 401404, s{S.t4}
s_min_u32 s{S.t3}, s{S.t3}, s{S.t4}
s_load_dword s{S.spin}, s[{S.t6}:{S.t6+1}], s{S.t3}''')
    k.e(ROT0()); rot_offsets(k); setup2(k)

def rot_offsets(k):
    for q in range(1, 7):
        k.e(f's_add_u32 s{S.ox+q}, s{S.ox+q-1}, 128\ns_cmp_eq_u32 s{S.ox+q}, 896\ns_cselect_b32 s{S.ox+q}, 0, s{S.ox+q}\ns_mul_i32 s{S.ow+q}, s{S.ox+q}, 1344')
def dma_x(k, s, both=False):
    for p in range(2 if both else 1):
        so = S.ox + s
        for a, v in ((0, V.xa0), (1, V.xa1)):
            k.e(f's_add_u32 m0, s{S.mX}, {(s%4)*16384 + p*8192 + a*1024}')
            if p and not a: k.e(f's_add_u32 s{S.t0}, s{so}, 57344')
            else: k.e('s_nop 0')
            x = k.vmop(f'buffer_load_dwordx4 v{v}, {srd(S.X)}, s{S.t0 if p else so} offen lds')
    return x
def dma_w(k, s, both=False):
    st = s // 7; so = S.ow + s % 7
    for p in range(2 if st in (0, 3) else 1):
        k.e(f's_add_u32 m0, s{S.mW}, {WADDR[s] + p*4096}')
        if st == 0:
            k.e(f's_add_u32 s{S.t0}, s{so}, 86016' if p else 's_nop 0')
            x = k.vmop(f'buffer_load_dwordx4 v{V.w0}, {srd(S.W)}, s{S.t0 if p else so} offen lds')
        else:
            k.e('s_nop 0')
            x = k.vmop(f'buffer_load_dwordx4 v{[[V.ws], [V.ws2], [V.ws2b, V.ws2 if getattr(k, "g1", False) else V.wsb]][st-1][p]}, {srd(S.W2 if (st == 3 and p == 0) else S.M2)}, s{so} offen lds')
    return x
def slice_setup(k, grp=0):
    T = V.tmp
    set_srd(k, S.M2, S.pWA, 1204224); set_srd(k, S.W2, S.pWB, 1204224)
    k.e(f'''s_mul_i32 s{S.t2}, s{S.tt}, 43008
v_lshrrev_b32 v{T}, 2, v{V.lane}
v_mul_u32_u24 v{T}, 2688, v{T}
v_and_b32 v{T+1}, 3, v{V.lane}
v_lshl_add_u32 v{T}, v{T+1}, 4, v{T}
v_lshrrev_b32 v{T+2}, 1, v{T+1}
v_and_b32 v{T+2}, v{T+2}, v{T+1}
v_lshlrev_b32 v{T+2}, 3, v{T+2}
v_sub_u32 v{T}, v{T}, v{T+2}
v_add_u32 v{T}, s{S.t2}, v{T}
s_mul_i32 s{S.t0}, s{S.hA}, 56
s_mul_i32 s{S.t1}, s{S.hQ}, 56
s_mul_i32 s{S.t3}, s{S.h}, 56
s_add_u32 s{S.t0}, s{S.t0}, 896
v_add_u32 v{V.ws2}, s{S.t0}, v{T}
v_add_u32 v{V.ws2b}, s{S.t3}, v{T}''')
    if grp == 0: k.e(f'v_add_u32 v{V.ws}, s{S.t1}, v{T}\nv_add_u32 v{V.wsb}, 896, v{V.ws2}')
    else: k.e(f's_mul_i32 s{S.ow}, s{S.ox}, 1344\nv_add_u32 v{V.ws2}, 896, v{V.ws2}\ns_lshl_b32 s{S.mW}, s{S.tt}, 10\ns_add_u32 s{S.mW}, s{S.mW}, {L_WR}')

def setup2(k, ws=True):
    T = V.tmp
    k.e(f'''
v_and_b32 v{V.i32}, 31, v{V.lane}
v_lshrrev_b32 v{V.hh}, 5, v{V.lane}
v_bfe_u32 v{T}, v{V.lane}, 1, 3
v_xor_b32 v{T}, v{T}, v{V.hh}
v_lshlrev_b32 v{T}, 4, v{T}
v_lshl_add_u32 v{T}, v{V.i32}, 7, v{T}
s_lshl_b32 s{S.t2}, s{S.tt}, 12
v_add_u32 v{V.xr}, s{S.t2}, v{T}
v_xor_b32 v{V.xr+1}, 32, v{V.xr}
v_xor_b32 v{V.xr+2}, 64, v{V.xr}
v_xor_b32 v{V.xr+3}, 96, v{V.xr}
s_mov_b32 s{S.hi32}, 0
s_mov_b32 s{S.hi32+1}, -1
''')
    if ws: set_srd(k, S.WS, S.pWS, WS_SIZE)
def colgrp(dst, swap):
    a = f'v_and_b32 v{dst}, 3, v{V.lane}\n' if not swap else f'v_and_b32 v{dst}, 1, v{V.lane}\nv_bfe_u32 v{dst+1}, v{V.lane}, 1, 1\nv_lshl_or_b32 v{dst}, v{dst}, 1, v{dst+1}\n'
    return a + f'''v_bfe_u32 v{dst+1}, v{V.lane}, 4, 1
v_lshl_or_b32 v{dst}, v{dst+1}, 2, v{dst}
v_bfe_u32 v{dst+1}, v{V.lane}, 2, 2
v_lshl_or_b32 v{dst+1}, v{V.hh}, 3, v{dst+1}
'''
def tr_base0(ktype):
    T = V.tmp
    return colgrp(T, ktype) + f'''v_bfe_u32 v{T+2}, v{V.lane}, 3, 1
v_lshlrev_b32 v{T+2}, 6, v{T+2}
v_lshl_add_u32 v{T+2}, v{T}, 3, v{T+2}
v_lshl_add_u32 v{T+2}, v{T+1}, 7, v{T+2}
v_add_u32 v{V.t0r}, {L_WR + WADDR[0]}, v{T+2}
v_xor_b32 v{V.t0r+1}, 64, v{V.t0r}'''
def tr_base(dst, base, swap, parity):
    T = V.tmp
    a = colgrp(T, swap)
    if parity: a += f's_and_b32 s{S.t3}, s{S.h}, 1\nv_subrev_u32 v{T}, s{S.t3}, v{T}\nv_and_b32 v{T}, 7, v{T}\n'
    return a + f'''v_lshrrev_b32 v{T+2}, 1, v{T}
v_lshrrev_b32 v{T+3}, 2, v{T}
v_and_b32 v{T+2}, v{T+2}, v{T+3}
v_and_b32 v{T+2}, 1, v{T+2}
v_xor_b32 v{T}, v{T}, v{T+2}
v_lshlrev_b32 v{T}, 3, v{T}
v_lshl_add_u32 v{T}, v{T+1}, 6, v{T}
v_add_u32 v{dst}, {L_WR + base}, v{T}'''

def wphi_load(k):
    T = V.tmp
    set_srd(k, S.X, S.pPHI, 25088)
    k.e(f'''
s_lshl_b32 s{S.t2}, s{S.tt}, 3
v_lshrrev_b32 v{T+1}, 3, v{V.lane}
v_add_u32 v{T+1}, s{S.t2}, v{T+1}
v_add_u32 v{T+2}, 1, v{V.lane}
v_and_b32 v{T+2}, 7, v{T+2}
v_max_u32 v{T+2}, 1, v{T+2}
v_mul_u32_u24 v{T+3}, 56, v{T+1}
v_lshl_add_u32 v{T+3}, v{T+2}, 3, v{T+3}
v_add_u32 v{T+1}, 4, v{T+1}
v_lshrrev_b32 v{T+1}, 5, v{T+1}
v_subrev_u32 v{T+3}, 8, v{T+3}
v_lshl_or_b32 v{T+3}, v{T+1}, 30, v{T+3}
s_mul_i32 s{S.t2}, s{S.hA}, 1568
s_mul_i32 s{S.t3}, s{S.hQ}, 1568
''')
    k.vmop(f'buffer_load_dwordx2 v[{V.EM}:{V.EM+1}], v{T+3}, {srd(S.X)}, s{S.t2} offen')
    k.wphi_id = k.vmop(f'buffer_load_dwordx2 v[{V.EM+2}:{V.EM+3}], v{T+3}, {srd(S.X)}, s{S.t3} offen')
def gate_load(k):
    T = V.tmp
    set_srd(k, S.X, S.pGW, 896)
    k.e(f'''v_lshrrev_b32 v{T}, 4, v{V.lane}
v_add_u32 v{T}, s{S.r0}, v{T}
v_and_b32 v{T+2}, 15, v{V.lane}
v_lshlrev_b32 v{T+2}, 1, v{T+2}
s_lshl_b32 s{S.t2}, s{S.tt}, 5
v_add_u32 v{T+2}, s{S.t2}, v{T+2}
v_mov_b32 v{V.gw0+1}, 0
v_mov_b32 v{V.gw1+1}, 0''')
    for a, r in ((0, V.gw0), (4, V.gw1)):
        k.e(f'v_add_u32 v{T+1}, {a}, v{T}\nv_subrev_u32 v{T+3}, 7, v{T+1}\nv_min_u32 v{T+1}, v{T+1}, v{T+3}\nv_lshl_add_u32 v{T+1}, v{T+1}, 7, v{T+2}')
        x = k.vmop(f'buffer_load_ushort v{r}, v{T+1}, {srd(S.X)}, 0 offen')
    k.gw_id = x
    return x

def active(s, grp): return grp == [1, 0, 1, 0][s // 7]
def reads(s, grp):
    st = s // 7; buf = V.wf + 16*(s % 2); out = []
    for q in range(4):
        if st == 0:
            out.append(f'ds_read_b128 {vr(V.xf+16*s+4*q,4)}, v{V.xr+q} offset:{(s % 4)*16384}')
            if grp == 1:
                for cs, b in ((0, buf), (1, [V.P, V.EM][s % 2])):
                    for jh in range(2):
                        out.append(f'ds_read_b64_tr_b16 {vr(b+4*q+2*jh,2)}, v{V.t0r+cs} offset:{WADDR[s]-WADDR[0]+q*2048+jh*512}')
        elif active(s, grp):
            if st < 3:
                for jh in range(2):
                    out.append(f'ds_read_b64_tr_b16 {vr(buf+4*q+2*jh,2)}, v{[V.t0r, V.t1r][st-1]} offset:{WADDR[s]+q*1024+jh*256}')
            else:
                if s == 25 and q == 0: out.append(f'v_subrev_u32 v{V.t2r}, {WADDR[21]}, v{V.t2r}\nv_subrev_u32 v{V.t3r}, {WADDR[21]}, v{V.t3r}')
                for b, t in ((buf, V.t2r), ([V.P, V.EM][s % 2], V.t3r)):
                    for jh in range(2):
                        out.append(f'ds_read_b64_tr_b16 {vr(b+4*q+2*jh,2)}, v{t} offset:{WADDR[s]-(WADDR[21] if s < 25 else 0)+q*1024+jh*256}')
    return out
def mfmas(s, grp, ktype=True):
    st = s // 7; c = s % 7; buf = V.wf + 16*(s % 2); out = []
    if not active(s, grp): return []
    b2 = [V.P, V.EM][s % 2]
    tiles = [[(V.acc0, buf, ktype), (V.acc1, b2, ktype)], [(V.acc1, buf, True)], [(V.acc1, buf, True)], [(V.acc0, buf, True), (V.EP, b2, False)]][st]
    for q in range(4):
        for acc, b, wfirst in tiles:
            x = V.xf + 16*c + 4*q; w = b + 4*q
            cin = '0' if (c == 0 and q == 0) else acc
            out.append(mfma(acc, w, x, cin) if wfirst else mfma(acc, x, w, cin))
    return out
def nlines(p): return sum(2 if l.strip().startswith('v_pk_') else 1 for l in p.strip().split('\n') if l.strip()) if isinstance(p, str) else p.n
class Job:
    def __init__(self, f, n): self.f, self.n = f, n
def emit(k, p):
    if isinstance(p, str): k.e(p)
    else: p.f()
def split_pieces(pieces, nslots):
    tot = sum(nlines(p) for p in pieces); out = [[] for _ in range(nslots)]; acc = 0
    for p in pieces:
        out[min(nslots-1, int((acc + nlines(p)/2) * nslots / max(tot, 1)))].append(p); acc += nlines(p)
    return out
def lines(txt): return [l for l in txt.strip().split('\n') if l.strip()]

def cvt16(k, dst, src):
    for q in range(8): k.e(f'v_cvt_pk_bf16_f32 v{dst+q}, v{src+2*q}, v{src+2*q+1}')

def epi0_addr_k():
    T = V.tmp; k = Stream()
    k.e(f'''
s_lshl_b32 s{S.t2}, s{S.j}, 3
v_and_b32 v{T}, 0x13, v{V.i32}
v_bfe_u32 v{T+1}, v{V.i32}, 2, 1
v_lshl_or_b32 v{T}, v{T+1}, 3, v{T}
v_bfe_u32 v{T+1}, v{V.i32}, 3, 1
v_lshl_or_b32 v{T}, v{T+1}, 2, v{T}
v_lshlrev_b32 v{T}, 4, v{T}
s_lshl_b32 s{S.t3}, s{S.tb}, 2
s_add_u32 s{S.t3}, s{S.t3}, s{S.tt}
s_lshl_b32 s{S.t3}, s{S.t3}, 12
s_add_u32 s{S.t3}, s{S.t3}, {WS_KV}
v_add_u32 v{V.EP+8}, s{S.t3}, v{T}
v_add_u32 v{V.EP+9}, s{S.t2}, v{V.hh}
''')
    out = ['\n'.join(k.L)]
    for n in range(4):
        D = V.EP + 4*(n//2) + n % 2
        out.append(f'''v_add_u32 v{T+1}, {2*n}, v{V.EP+9}
v_mul_u32_u24 v{T+2}, 37, v{T+1}
v_lshrrev_b32 v{T+2}, 8, v{T+2}
v_mul_u32_u24 v{T+3}, 7, v{T+2}
v_sub_u32 v{T+3}, v{T+1}, v{T+3}
v_lshrrev_b32 v{T+4}, 2, v{T+3}
v_lshl_add_u32 v{T+5}, v{T+2}, 1, v{T+4}
v_mul_u32_u24 v{T+4}, 3, v{T+4}
v_sub_u32 v{T+4}, v{T+3}, v{T+4}
v_lshl_add_u32 v{D}, v{T+5}, 18, v{V.EP+8}
v_lshl_add_u32 v{D}, v{T+4}, 9, v{D}
v_lshl_add_u32 v{D+2}, v{T+2}, 19, v{V.EP+8}
v_add_u32 v{D+2}, 0x40000, v{D+2}
v_xor_b32 v{T+3}, 3, v{T+3}
v_min_u32 v{T+3}, 1, v{T+3}
v_lshl_or_b32 v{D+2}, v{T+3}, 30, v{D+2}''')
    return out
def epi0_addr_v():
    T = V.tmp; out = []
    for cs in range(2):
        D = V.EP + 4*cs; C = V.EP + 8 + 4*cs
        out.append(f'''s_sub_u32 s{S.t2}, s{S.j}, 7
s_lshl_b32 s{S.t2}, s{S.t2}, 6
s_add_u32 s{S.t2}, s{S.t2}, {32*cs}
v_add_u32 v{T}, s{S.t2}, v{V.i32}
v_mul_u32_u24 v{T+1}, 2341, v{T}
v_lshrrev_b32 v{T+1}, 16, v{T+1}
v_mul_u32_u24 v{T+2}, 28, v{T+1}
v_sub_u32 v{T+2}, v{T}, v{T+2}
s_lshl_b32 s{S.t3}, s{S.tb}, 2
s_add_u32 s{S.t3}, s{S.t3}, s{S.tt}
s_lshl_b32 s{S.t3}, s{S.t3}, 12
s_add_u32 s{S.t3}, s{S.t3}, {WS_KV + 2048}
v_lshlrev_b32 v{T+1}, 18, v{T+1}
v_lshl_add_u32 v{T+1}, v{T+2}, 4, v{T+1}
v_lshlrev_b32 v{T+3}, 9, v{V.hh}
v_add3_u32 v{D}, v{T+1}, v{T+3}, s{S.t3}
v_add_u32 v{D+1}, 1024, v{D}
v_lshrrev_b32 v{T+3}, 2, v{T+2}
v_min_u32 v{T+3}, 1, v{T+3}
v_add_u32 v{D+2}, 448, v{D}
v_lshl_or_b32 v{D+2}, v{T+3}, 30, v{D+2}
v_add_u32 v{D+3}, 1024, v{D+2}
v_min_u32 v{T+2}, 1, v{T+2}
v_subrev_u32 v{T+2}, 1, v{T+2}
v_and_b32 v{C}, 0x3f803f80, v{T+2}
v_mov_b32 v{C+1}, v{C}
v_mov_b32 v{C+2}, v{C}
v_mov_b32 v{C+3}, v{C}''')
    return out

class A:
    ks, vs, kv0, kv1, idx, m = 12, 126, 8, 9, 10, 11
    a0, a1, a2 = 7, 124, 14
    f0, f1 = 4, 5
    Q, KF, V0, V1, O, NM, SA, SB, PHQ = 128, 136, 144, 112, 160, 176, 192, 208, 32
    l = 152; t = 153
    WOA, OF, RED = 16, 80, 48
    WOB, ACC = 176, 128
    wsrc = 13
    wb = 240
    eps = 6
    one = 125
    y0, y1 = 244, 245

def wphi_reads(grp):
    T = V.tmp
    a = lines(colgrp(T, False) + f'v_lshlrev_b32 v{T}, 3, v{T}\nv_lshl_add_u32 v{T}, v{T+1}, 6, v{T}\nv_add_u32 v{T}, {L_WPHI + grp*2048}, v{T}')
    for s in range(2):
        for jh in range(2): a.append(f'ds_read_b64_tr_b16 {vr(V.EM+4*s+2*jh,2)}, v{T} offset:{s*1024+jh*256}')
    a.append(f's_mov_b32 s{S.t6}, {fbits(LOG2E)}')
    return a

def feat_pieces(src, dst, query, round_p=True):
    T = V.tmp; P, EP, EM = V.P, V.EP, V.EM
    sA = S.t6; c = []
    c += [f'v_cvt_pk_bf16_f32 v{EM+8+q}, v{src+2*q}, v{src+2*q+1}' for q in range(8)]
    c += [mfma(P, EM, EM+8, '0') + '\n' + mfma(P, EM+4, EM+12, P), 'WAITP']
    if round_p:
        c += [f'v_cvt_pk_bf16_f32 v{EP+q}, v{P+2*q}, v{P+2*q+1}' for q in range(8)]
        for q in range(8): c += [f'v_lshlrev_b32 v{P+2*q}, 16, v{EP+q}', f'v_and_b32 v{P+2*q+1}, 0xffff0000, v{EP+q}']
    c += [f'v_max3_f32 v{T}, v{P}, v{P+1}, v{P+2}', f'v_max3_f32 v{T+1}, -v{P}, -v{P+1}, -v{P+2}']
    for q in range(3, 15, 2):
        c += [f'v_max3_f32 v{T}, v{T}, v{P+q}, v{P+q+1}', f'v_max3_f32 v{T+1}, v{T+1}, -v{P+q}, -v{P+q+1}']
    c.append(f'''v_max_f32 v{T}, v{T}, v{P+15}
v_max_f32_e64 v{T+1}, v{T+1}, -v{P+15}
v_sub_u32 v{T+2}, 0, v{V.hh}
v_and_b32 v{T+2}, 0x7f800000, v{T+2}
v_permlane32_swap_b32 v{T}, v{T+1}
v_max_f32 v{T}, v{T}, v{T+1}
v_mul_f32 v{T+1}, s{sA}, v{T}
v_mul_f32 v{T+3}, s{sA}, v{T}
s_nop 1
v_permlane32_swap_b32 v{T+1}, v{T+3}''')
    for q in range(8):
        if q == 6: c.append(f'v_add_f32 v{T+1}, v{T+1}, v{T+2}\nv_add_f32 v{T+3}, v{T+3}, v{T+2}')
        c.append(f'v_pk_fma_f32 {vr(EP+2*q,2)}, {vr(P+2*q,2)}, s[{sA}:{sA+1}], {vr(T+1,2)} op_sel_hi:[1,0,0] neg_lo:[0,0,1] neg_hi:[0,0,1]')
        c.append(f'v_pk_fma_f32 {vr(EM+2*q,2)}, {vr(P+2*q,2)}, s[{sA}:{sA+1}], {vr(T+3,2)} op_sel_hi:[1,0,0] neg_lo:[1,0,1] neg_hi:[1,0,1]')
    c += [f'v_exp_f32 v{EP+q}, v{EP+q}\n; x' for q in range(16)]
    c += [f'v_exp_f32 v{EM+q}, v{EM+q}\n; x' for q in range(16)]
    c += [f'v_pk_add_f32 {vr(T+1,2)}, {vr(EP,2)}, {vr(EP+2,2)}', f'v_pk_add_f32 {vr(T+3,2)}, {vr(EM,2)}, {vr(EM+2,2)}']
    for q in range(2, 8):
        c += [f'v_pk_add_f32 {vr(T+1,2)}, {vr(T+1,2)}, {vr(EP+2*q,2)}', f'v_pk_add_f32 {vr(T+3,2)}, {vr(T+3,2)}, {vr(EM+2*q,2)}']
    a = f'''v_add_f32 v{T+1}, v{T+1}, v{T+2}
v_add_f32 v{T+3}, v{T+3}, v{T+4}
s_nop 1
v_permlane32_swap_b32 v{T+1}, v{T+3}
v_add_f32 v{T+1}, v{T+1}, v{T+3}
'''
    if not query:
        a += f'v_rcp_f32 v{T+1}, v{T+1}\ns_nop 0\nv_mov_b32 v{T+3}, v{T+1}\ns_nop 1\nv_permlane32_swap_b32 v{T+1}, v{T+3}'
    else:
        a += f'v_mov_b32 v{T+3}, v{T+1}\ns_nop 1\nv_permlane32_swap_b32 v{T+1}, v{T+3}\nv_rcp_f32 v{T+3}, v{T+3}\nv_mul_f32 v{A.eps}, {fbits(1e-6)}, v{T+1}\nv_mul_f32 v{T+3}, v{T+3}, v{T+1}'
    c.append(a)
    for q in range(8):
        if not query: c.append(f'v_pk_mul_f32 {vr(EP+2*q,2)}, {vr(EP+2*q,2)}, {vr(T+1,2)} op_sel_hi:[1,0]')
        c.append(f'v_pk_mul_f32 {vr(EM+2*q,2)}, {vr(EM+2*q,2)}, {vr(T+3,2)} op_sel_hi:[1,0]')
    for q in range(8):
        c += [f'v_cvt_pk_bf16_f32 v{dst+q}, v{EP+2*q}, v{EP+2*q+1}', f'v_cvt_pk_bf16_f32 v{dst+8+q}, v{EM+2*q}, v{EM+2*q+1}']
    return c

def phi_base():
    T = V.tmp; D = A.m
    return lines(f'''v_and_b32 v{D}, 1, v{V.i32}
v_bfe_u32 v{T}, v{V.i32}, 2, 2
v_lshl_or_b32 v{D}, v{T}, 1, v{D}
v_bfe_u32 v{T}, v{V.i32}, 1, 1
v_lshl_or_b32 v{D}, v{T}, 3, v{D}
v_xor_b32 v{D}, v{D}, v{V.hh}
v_lshlrev_b32 v{D}, 3, v{D}
v_lshl_add_u32 v{D}, v{V.i32}, 7, v{D}
s_lshl_b32 s{S.t2}, s{S.tt}, 12
s_add_u32 s{S.t2}, s{S.t2}, {L_PHI}
v_add_u32 v{D}, s{S.t2}, v{D}''')
def phi_write(src):
    T = V.tmp; out = []
    for s in range(2):
        for g in range(4):
            u = 8*s + 2*g
            out.append((f'v_xor_b32 v{T}, {u*8}, v{A.m}\n' if u else '') + f'ds_write_b64 v{T if u else A.m}, {vr(src+8*s+2*g,2)}')
    return out

def va_stage():
    T = V.tmp; k = Stream()
    k.e(f's_lshl_b32 s{S.t2}, s{S.tt}, 11\ns_add_u32 s{S.t2}, s{S.t2}, {L_STG}\nv_lshl_add_u32 v{T}, v{V.lane}, 4, s{S.t2}')
    cvt16(k, V.P, V.EP)
    k.e(f's_mov_b32 exec_lo, 0x10000000\ns_mov_b32 exec_hi, 0x10000000')
    for q in range(8): k.e(f'v_mov_b32 v{V.P+q}, 0x3f803f80')
    k.e(f'''s_mov_b64 exec, -1
ds_write_b128 v{T}, {vr(V.P,4)}
ds_write_b128 v{T}, {vr(V.P+4,4)} offset:1024''')
    return '\n'.join(k.L)

KVB = 240
def kv_addr_setup(D):
    T = V.tmp
    return lines(f'''s_lshr_b32 s{S.t2}, s{S.w}, 1
s_lshl_b32 s{S.t3}, s{S.t2}, 2
v_and_b32 v{T}, 3, v{V.lane}
v_or_b32 v{T}, s{S.t3}, v{T}
v_bfe_u32 v{T+1}, v{V.lane}, 2, 1
v_bfe_u32 v{D}, v{V.lane}, 4, 1
v_lshl_or_b32 v{T+1}, v{D}, 1, v{T+1}
v_bfe_u32 v{D+1}, v{V.lane}, 3, 1
v_lshl_or_b32 v{T+1}, v{D+1}, 3, v{T+1}
v_xor_b32 v{T}, v{T}, v{T+1}
v_bfe_u32 v{T+1}, v{V.lane}, 2, 2
v_lshl_or_b32 v{T+1}, v{D}, 2, v{T+1}
v_lshl_or_b32 v{T+1}, v{V.hh}, 4, v{T+1}
v_lshlrev_b32 v{T}, 3, v{T}
v_lshl_add_u32 v{T}, v{T+1}, 7, v{T}
v_and_b32 v{T+1}, 15, v{V.lane}
s_and_b32 s{S.t3}, s{S.w}, 1
s_lshl_b32 s{S.t3}, s{S.t3}, 4
v_add_u32 v{T+1}, s{S.t3}, v{T+1}
s_lshl3_add_u32 s{S.t3}, s{S.hA}, s{S.w}
s_lshl4_add_u32 s{S.t3}, s{S.t3}, s{S.tb}
s_lshl_b32 s{S.t3}, s{S.t3}, 9
s_add_u32 s{S.t3}, s{S.t3}, {WS_KVP}
v_and_b32 v{D+3}, 15, v{V.lane}
v_lshl_or_b32 v{D+3}, v{V.hh}, 4, v{D+3}
v_lshl_or_b32 v{D+3}, v{D+3}, 1, v{D}
v_lshl_add_u32 v{D+3}, v{D+3}, 3, s{S.t3}
v_lshlrev_b32 v{T+1}, 4, v{T+1}
v_lshrrev_b32 v{D+2}, 4, v{V.lane}
v_lshl_add_u32 v{D+2}, v{D+2}, 9, v{T+1}
v_add_u32 v{D+2}, {L_STG}, v{D+2}
v_add_u32 v{D}, {L_PHI}, v{T}
v_add_u32 v{D+1}, 1024, v{D}
v_xor_b32 v{D+1}, 32, v{D+1}''')
def kv_partial(k):
    D = KVB; ids = []
    for Tt in range(4):
        k.ds(f'ds_read_b64_tr_b16 {vr(V.EP+4*Tt,2)}, v{D} offset:{Tt*4096}')
        k.ds(f'ds_read_b64_tr_b16 {vr(V.EP+4*Tt+2,2)}, v{D+1} offset:{Tt*4096}')
        ids.append(k.ds(f'ds_read_b128 {vr(V.EM+4*Tt,4)}, v{D+2} offset:{Tt*2048}'))
    return ids
def kv_partial2(k, ids):
    k.dswait(ids[3])
    return [f'v_mfma_f32_16x16x32_bf16 {vr(V.P,4)}, {vr(V.EP+4*Tt,4)}, {vr(V.EM+4*Tt,4)}, {"0" if Tt == 0 else vr(V.P,4)}' for Tt in range(4)]
def kv_partial3(k):
    k.e(f'v_cvt_pk_bf16_f32 v{V.P+4}, v{V.P}, v{V.P+1}\nv_cvt_pk_bf16_f32 v{V.P+5}, v{V.P+2}, v{V.P+3}')
    return k.vmop(f'buffer_store_dwordx2 {vr(V.P+4,2)}, v{KVB+3}, {srd(S.WS)}, 0 offen sc1')

def flag_store(k, addr_s, val_s, sc='sc1', opt=True, T=None):
    T = T or V.tmp
    k.e(f'v_mov_b32 v{T}, s{addr_s}\nv_mov_b32 v{T+1}, s{val_s}\ns_mov_b64 exec, 1')
    a = k.vmop(f'buffer_store_dword v{T+1}, v{T}, {srd(S.WS)}, 0 offen {sc}', opt=opt)
    k.e('s_mov_b64 exec, -1')
    return a

_lbl = [0]
def lbl(p):
    _lbl[0] += 1; return f'L_{p}_{_lbl[0]}'

def flag_check(k, ld_id, vflag, vaddr, mask=False, keep=False):
    L1, L2 = lbl('poll'), lbl('polled')
    k.vmwait(ld_id, keep=keep)
    T = V.tmp
    cmp = f'v_and_b32 v{T}, -16, v{vflag}\nv_cmp_ne_u32 vcc, s{S.tag}, v{T}' if mask else f'v_cmp_ne_u32 vcc, s{S.tag}, v{vflag}'
    k.e(f'{cmp}\ns_cbranch_vccnz {L1}\n{L2}:')
    k.cold.e(f'''{L1}:
s_mov_b32 s{S.spin}, {SPINV[0]}
{L1}_a:
s_sleep 4
buffer_load_dword v{vflag}, v{vaddr}, {srd(S.WS)}, 0 offen sc1
s_waitcnt vmcnt(0)
{cmp}
s_cbranch_vccz {L2}
s_sub_u32 s{S.spin}, s{S.spin}, 1
s_cbranch_scc0 {L1}_a
s_branch {L2}''')

def step(k, s, grp, ids, opts, pieces=(), tailp=(), ktype=True):
    k.c(f'---- step {s}')
    nobar = s in opts['nobar']
    if not nobar:
        last = s
        while last + 1 in opts['nobar']: last += 1
        for w in range(last, s - 1, -1): k.vmwait(ids.get(w))
    if grp == 0 and s in (7, 11) and not nobar:
        if s == 7: k.vmwait(opts['_gw'][0])
        for s_ in ((7, 11) if 11 in opts['nobar'] else (s,)):
            k.e(f'ds_write_b64 v{V.g}, {vr(V.gw0 if s_ == 7 else V.gw1,2)} offset:{WADDR[s_]}')
    stamp(k, f'step{s}')
    mf = mfmas(s-1, grp, ktype) if s not in (0, 7) else []
    if mf or (not nobar and not (grp == 1 and s == 11)): k.e('s_waitcnt lgkmcnt(0)')
    if not nobar and not (grp == 1 and s == 7 and opts['bar7_at'] is not None): k.e('s_barrier')
    stamp(k, f'bar{s}')
    rd = reads(s, grp)
    n = max(len(mf), 1); nr = max(1, (n+1)//2) if n < 8 else opts['nr8']
    pcs = split_pieces(list(pieces), n)
    for q in range(n):
        if mf: k.e(mf[q])
        if q < nr:
            for r in rd[q*len(rd)//nr:(q+1)*len(rd)//nr]: k.e(r)
        for p in pcs[q]: emit(k, p)
    stamp(k, f'body{s}')
    if grp == 1:
        for p in tailp: emit(k, p)
        tailp = ()
        for w in opts['w1sched'].get(s, ()): ids[w] = dma_w(k, w, True)
    if grp == 0:
        for w in opts['wsched'].get(s, ()):
            if w <= 6:
                assert w - 4 < s or w < 4
                dma_x(k, w, True)
            ids[w] = dma_w(k, w, True)
    for p in tailp: emit(k, p)
    stamp(k, f'done{s}')

def stage0(k, grp, ids, ktype, opts):
    T = V.tmp
    ob = f'''s_lshl_b32 s{S.t2}, s{S.tb}, 2
s_add_u32 s{S.t2}, s{S.t2}, s{S.tt}
s_lshl_b32 s{S.t2}, s{S.t2}, 16
s_lshl_b32 s{S.t3}, s{S.h}, 11
s_add_u32 s{S.t2}, s{S.t2}, s{S.t3}
s_add_u32 s{S.t2}, s{S.t2}, {WS_OX + 32768 + grp*1024}
v_lshl_add_u32 v{V.ob}, v{V.lane}, 4, s{S.t2}
s_add_u32 s{S.tag}, s{S.tag}, 0x9e3779b0'''
    P = {0: [ob, '\n'.join(kv_addr_setup(KVB))]}
    if grp == 1:
        ep = (epi0_addr_k if ktype else epi0_addr_v)()
        P[1] = ep[:len(ep)//2]; P[2] = ep[len(ep)//2:]
        P[3] = [f's_cmp_eq_u32 s{S.h}, 5\ns_cselect_b32 s{S.t4}, 0, {WS_SIZE}\ns_cmp_eq_u32 s{S.h}, 10\ns_cselect_b32 s{S.M1+2}, 0, s{S.t4}\ns_mov_b32 s{S.M1}, s{S.pWS}\ns_mov_b32 s{S.M1+1}, s{S.pWS+1}\ns_mov_b32 s{S.M1+3}, 0x20000']
    else:
        P[1] = [tr_base(V.t0r, 0, True, False)]; P[2] = [tr_base(V.t2r, WADDR[21], True, True)]
        P[4] = [Job(lambda: gate_load(k), 20), f'v_and_b32 v{V.g}, 15, v{V.lane}\nv_lshlrev_b32 v{V.g}, 6, v{V.g}\nv_lshrrev_b32 v{T}, 4, v{V.lane}\nv_lshl_add_u32 v{V.g}, v{T}, 12, v{V.g}\ns_add_u32 s{S.t2}, s{S.mW}, 48\nv_add_u32 v{V.g}, s{S.t2}, v{V.g}']
        P[5] = [Job(lambda: wphi_load(k), 20)]
    for s in range(0, 7): step(k, s, grp, ids, opts, P.get(s, ()), (), ktype)
    if grp == 1:
        k.e('s_waitcnt lgkmcnt(0)')
        for m in mfmas(6, grp, ktype): k.e(m)

def stage0_epilogue(k, ktype, early=None):
    def extra(n):
        L = lbl('dup'); a = V.EP + 4*(n//2) + 2 + n % 2
        k.e(f'v_cmp_gt_u32 vcc, {OOB}, v{a}\ns_cbranch_vccz {L}')
        k.vmop(f'buffer_store_dwordx4 {vr(V.P+4*n if ktype else V.EP+8+4*(n//2),4)}, v{a}, {srd(S.M1)}, 0 offen sc1', opt=True)
        k.e(f'{L}:')
    if PRIO_ST[0]: k.e('s_setprio 3')
    if not ktype:
        for n in range(4): extra(n)
    if early is not None:
        for n in range(16): k.e(f'v_cvt_pk_bf16_f32 v{V.P+n}, v{V.acc0+2*n}, v{V.acc0+2*n+1}')
    for n in range(4):
        if early is None:
            for q in range(4): k.e(f'v_cvt_pk_bf16_f32 v{V.P+4*n+q}, v{V.acc0+8*n+2*q}, v{V.acc0+8*n+2*q+1}')
        if n == early: k.e('s_barrier')
        if ktype: extra(n)
        a = k.vmop(f'buffer_store_dwordx4 {vr(V.P+4*n,4)}, v{V.EP+4*(n//2)+n%2}, {srd(S.M1)}, 0 offen sc1')
    return a

def attn_addr(grp):
    T = V.tmp
    return [f'''s_lshl_b32 s{S.mK}, s{S.w}, 12
s_lshl_b32 s{S.t2}, s{S.h}, 18
s_lshl_b32 s{S.t3}, s{S.tt}, 12
s_add_u32 s{S.t2}, s{S.t2}, s{S.t3}
s_add_u32 s{S.t2}, s{S.t2}, {WS_KV + grp*131072}
v_lshl_add_u32 v{A.ks}, v{V.lane}, 4, s{S.t2}''', f'''v_lshlrev_b32 v{A.kv0}, 4, v{V.lane}
v_add_u32 v{A.kv0}, {grp*16384}, v{A.kv0}
v_add_u32 v{A.kv1}, 0x10000, v{A.kv0}
v_mov_b32 v{A.idx}, 0xdddddddd''', f'''s_mul_i32 s{S.t2}, s{S.h}, 28
s_add_u32 s{S.t3}, s{S.t2}, 27
s_lshr_b32 s{S.t2}, s{S.t2}, 6
s_lshr_b32 s{S.t3}, s{S.t3}, 6
s_sub_u32 s{S.t3}, s{S.t3}, s{S.t2}
v_bfe_u32 v{T+5}, v{V.lane}, 3, 1
v_mul_u32_u24 v{T+5}, s{S.t3}, v{T+5}
v_bfe_u32 v{T+6}, v{V.lane}, 4, 1
v_mul_u32_u24 v{T+6}, 7, v{T+6}
v_add3_u32 v{T+5}, v{T+5}, v{T+6}, s{S.t2}
s_lshr_b32 s{S.t2}, s{S.tb}, 1
s_and_b32 s{S.t3}, s{S.tb}, 1
s_lshl2_add_u32 s{S.rb}, s{S.t3}, s{S.t2}
v_add_u32 v{T+6}, s{S.rb}, v{V.lane}
v_and_b32 v{T+6}, 7, v{T+6}
v_lshl_add_u32 v{T+5}, v{T+5}, 4, v{T+6}
s_lshl_b32 s{S.t2}, s{S.tt}, 6
s_add_u32 s{S.t2}, s{S.t2}, {WS_FLAG1 + grp*2048}
v_lshl_add_u32 v{A.f1}, v{T+5}, 8, s{S.t2}
s_and_b32 s{S.sK}, s{S.rb}, 7
s_lshl_b32 s{S.sK}, s{S.sK}, 14''']
def ready_mask():
    return f'''v_cmp_eq_u32 vcc, s{S.tag}, v{A.f0}
s_nop 0
s_lshr_b32 s{S.rdy}, vcc_lo, 16
s_and_b32 s{S.rdy}, s{S.rdy}, vcc_lo
s_lshr_b32 s{S.t0}, s{S.rdy}, 8
s_and_b32 s{S.rdy}, s{S.rdy}, s{S.t0}
s_and_b32 s{S.rdy}, s{S.rdy}, 0xff'''

def kv_dma_jobs(k, stage, out):
    slot = stage % 3
    def j(q):
        if q == 0:
            L1, L2 = lbl('kp'), lbl('kpd')
            k.e(f's_bitcmp1_b32 s{S.rdy}, {stage}\ns_cbranch_scc0 {L1}\n{L2}:')
            k.cold.e(f'''{L1}:
s_mov_b32 s{S.spin}, {SPINV[0]}
{L1}_a:
buffer_load_dword v{A.f0}, v{A.f1}, {srd(S.WS)}, 0 offen sc1
s_waitcnt vmcnt(0)
{ready_mask()}
s_bitcmp1_b32 s{S.rdy}, {stage}
s_cbranch_scc1 {L2}
s_sleep 2
s_sub_u32 s{S.spin}, s{S.spin}, 1
s_cbranch_scc0 {L1}_a
s_branch {L2}''')
        k.e(f's_add_u32 m0, s{S.mK}, {slot*32768}\ns_nop 0')
        out[(stage, 'n')] = q + 1
        out[stage] = k.vmop(f'buffer_load_dwordx4 v{A.ks}, {srd(S.WS)}, s{S.sK} offen offset:{q*1024} {KVSC[0]} lds')
        if q == 3: k.e(f's_add_u32 s{S.sK}, s{S.sK}, 16384\ns_and_b32 s{S.sK}, s{S.sK}, 0x1ffff')
    return [Job(lambda q=q: j(q), 4) for q in range(4)]

def only(k, w, f):
    def g():
        L = lbl('w'); k.e(f's_cmp_eq_u32 s{S.w}, {w}\ns_cbranch_scc1 {L}\n{L}_b:')
        main = k.L; k.L = [f'{L}:']; f(); k.e(f's_branch {L}_b'); body = k.L; k.L = main
        k.cold.L += body
    g.__name__ = f.__name__
    return g

def warm_lines():
    a = f'''s_lshl2_add_u32 s{S.t2}, s2, s{S.tt}
s_cmp_lt_u32 s{S.t2}, 448
s_cselect_b32 s{S.vcm}, s{S.pWOA}, s{S.pWOB}
s_cselect_b32 s{S.vcm+1}, s{S.pWOA+1}, s{S.pWOB+1}
s_cselect_b32 s{S.t3}, 0, 448
s_sub_u32 s{S.t2}, s{S.t2}, s{S.t3}
s_min_u32 s{S.t2}, s{S.t2}, 447
s_mul_i32 s{S.t2}, s{S.t2}, 896
s_add_u32 s{S.vcm}, s{S.vcm}, s{S.t2}
s_addc_u32 s{S.vcm+1}, s{S.vcm+1}, 0
'''
    for q in range(7): a += f's_load_dword s{S.spin}, s[{S.vcm}:{S.vcm+1}], {q*128}\n'
    a += f'''s_lshl3_add_u32 s{S.t2}, s{S.hA}, s{S.tt}
s_lshl4_add_u32 s{S.t2}, s{S.t2}, s{S.tb}
s_lshl_b32 s{S.t2}, s{S.t2}, 6
s_add_u32 s{S.t2}, s{S.t2}, {WS_FLAG2}
s_load_dword s{S.spin}, s[{S.pWS}:{S.pWS+1}], s{S.t2}
s_add_u32 s{S.t2}, s{S.t2}, 4096
s_load_dword s{S.spin}, s[{S.pWS}:{S.pWS+1}], s{S.t2}
s_lshl4_add_u32 s{S.t2}, s{S.tb}, s{S.h}
s_lshl_b32 s{S.t2}, s{S.t2}, 6
s_add_u32 s{S.t2}, s{S.t2}, {WS_FLAGY}
s_load_dword s{S.spin}, s[{S.pWS}:{S.pWS+1}], s{S.t2}'''
    return a

def stages12(k, ids, grp, st_id, opts):
    T = V.tmp; out = {'st': st_id}; st = {}
    P = {s: [] for s in range(7, 28)}; TP = {s: [] for s in range(7, 28)}
    npre = opts['npre']; pub = opts['f1_step']; c = opts['f1_check']
    assert {8, 9, 10, 12, 13} <= set(opts['nobar']) and not {7, 14, 21} & set(opts['nobar'])
    def f1pub():
        k.vmwait(out['st'])
        k.e(f'''s_lshl4_add_u32 s{S.t2}, s{S.j}, s{S.tb}
s_lshl2_add_u32 s{S.t2}, s{S.t2}, s{S.tt}
s_lshl_b32 s{S.t2}, s{S.t2}, 6
s_add_u32 s{S.t2}, s{S.t2}, {WS_FLAG1}
s_cmp_eq_u32 s{S.M1+2}, 0
s_cselect_b32 s{S.t2}, {OOB}, s{S.t2}''')
        flag_store(k, S.t2, S.tag, opt=False, T=V.tmp+5)
        k.e(f's_setprio {opts["prio_g1"]}')
    qx = f's_lshl_b32 s{S.t2}, s{S.tt}, 11\ns_add_u32 s{S.t2}, s{S.t2}, {L_QX}\nv_lshl_add_u32 v{A.a0}, v{V.lane}, 4, s{S.t2}'
    ozero = [f'v_mov_b32 v{A.O+q}, 0' for q in range(16)]
    if grp == 0:
        late = 11 in opts['nobar']
        (opts['_p6'] if late else P[9]).extend([Job(lambda: (opts['_k0'] if late else k).vmwait(opts['_gw'][1]), 1),
                 f's_lshl_b32 s{S.t2}, s{S.tt}, 9\ns_add_u32 s{S.t2}, s{S.t2}, {L_WPHI}\nv_lshl_add_u32 v{T}, v{V.lane}, 3, s{S.t2}\nds_write_b64 v{T}, {vr(V.EM,2)}\nds_write_b64 v{T}, {vr(V.EM+2,2)} offset:2048'])
        if late:
            for p in opts['_p6']: emit(k, p)
        P[12] += [tr_base(V.t3r, WADDR[21] + 4096, False, False)]
        P[13] += ['\n'.join(wphi_reads(1))]
        fp = feat_pieces(V.acc1, V.acc1, True, opts['round_p']); i = fp.index('WAITP')
        TP[14] += fp[:8] + [f'v_mov_b32 v{T+5}, v{V.acc1+12}\nv_mov_b32 v{V.g}, v{V.acc1+12}'] + fp[8:i]
        TP[14].append(f'v_permlane32_swap_b32 v{T+5}, v{V.g}\nv_mul_f32 v{V.g}, {fbits(-LOG2E)}, v{V.g}\nv_exp_f32 v{V.g}, v{V.g}\ns_nop 0\nv_add_f32 v{V.g}, 1.0, v{V.g}\nv_rcp_f32 v{V.g}, v{V.g}')
        for n, grpp in enumerate(split_pieces(fp[i+1:], 6)): P[15+n] += grpp
        P[14] += attn_addr(grp)
        P[25] += [f'''s_lshr_b32 s{S.t2}, s{S.h}, 3
s_lshl_b32 s{S.t2}, s{S.t2}, 1
s_and_b32 s{S.t3}, s{S.w}, 1
s_add_u32 s{S.t2}, s{S.t2}, s{S.t3}
s_lshl2_add_u32 s{S.col}, s{S.tb}, s{S.t2}
s_lshr_b32 s{S.cw}, s{S.w}, 1
s_and_b32 s{S.t2}, s{S.h}, 7
s_cmp_eq_u32 s{S.t2}, 7
s_cselect_b32 s{S.W+2}, 0, 401408
s_cselect_b32 s{S.X+2}, 0, 401408
s_mov_b32 s{S.W}, s{S.pWOA}
s_mov_b32 s{S.W+1}, s{S.pWOA+1}
s_mov_b32 s{S.X}, s{S.pWOB}
s_mov_b32 s{S.X+1}, s{S.pWOB+1}
s_mov_b32 s{S.W+3}, 0x20000
s_mov_b32 s{S.X+3}, 0x20000
s_lshl_b32 s{S.t2}, s{S.t2}, 7
v_lshrrev_b32 v{T}, 3, v{V.lane}
v_and_b32 v{T+1}, 7, v{V.lane}
v_bfe_u32 v{T+2}, v{V.lane}, 4, 1
v_lshlrev_b32 v{T+2}, 2, v{T+2}
v_xor_b32 v{T+1}, v{T+1}, v{T+2}
v_mul_u32_u24 v{T}, 896, v{T}
v_lshl_add_u32 v{T}, v{T+1}, 4, v{T}
v_add_u32 v{A.wsrc}, s{S.t2}, v{T}
s_mov_b32 s{S.r0}, 4096''']
        P[23] += [qx]; P[26] += ozero
    else:
        sel = f'''v_bfe_u32 v{T}, v{V.lane}, 3, 1
v_bfe_u32 v{T+1}, v{V.lane}, 4, 1
v_xor_b32 v{T}, v{T}, v{T+1}
v_bfe_u32 v{T+1}, v{V.lane}, 1, 2
v_lshl_or_b32 v{T}, v{T}, 2, v{T+1}
v_and_b32 v{T+1}, 1, v{V.lane}
v_lshlrev_b32 v{T+1}, 4, v{T+1}
v_mov_b32 v{T+2}, 0x3f80
v_lshlrev_b32 v{T+1}, v{T+1}, v{T+2}
'''
        for q in range(4): sel += f'v_cmp_eq_u32 s[{S.vcm}:{S.vcm+1}], {q}, v{T}\ns_nop 1\nv_cndmask_b32 v{16+q}, 0, v{T+1}, s[{S.vcm}:{S.vcm+1}]\n'
        sel += f'v_lshlrev_b32 v{T}, 4, v{V.lane}\nv_add_u32 v{T}, {L_SEL}, v{T}\nds_write_b128 v{T}, {vr(16,4)}'
        P[7] += [tr_base(V.t1r, 0, True, False), sel]
        if opts['w1sched']:
            z = Stream(); slice_setup(z, 1); P[7].append('\n'.join(z.L))
        if opts['warm']: P[7].insert(0, warm_lines())
        P[11] += attn_addr(grp) + ['\n'.join(phi_base()), f'''s_lshr_b32 s{S.t2}, s{S.h}, 3
s_lshl_b32 s{S.t2}, s{S.t2}, 1
s_and_b32 s{S.t3}, s{S.w}, 1
s_add_u32 s{S.t2}, s{S.t2}, s{S.t3}
s_lshl2_add_u32 s{S.col}, s{S.tb}, s{S.t2}
s_lshr_b32 s{S.cw}, s{S.w}, 1
s_and_b32 s{S.t2}, s{S.h}, 7
s_cmp_eq_u32 s{S.t2}, 7
s_cselect_b32 s{S.W+2}, 0, 401408
s_cselect_b32 s{S.X+2}, 0, 401408
s_mov_b32 s{S.W}, s{S.pWOA}
s_mov_b32 s{S.W+1}, s{S.pWOA+1}
s_mov_b32 s{S.X}, s{S.pWOB}
s_mov_b32 s{S.X+1}, s{S.pWOB+1}
s_mov_b32 s{S.W+3}, 0x20000
s_mov_b32 s{S.X+3}, 0x20000
s_lshl_b32 s{S.t2}, s{S.t2}, 7
v_lshrrev_b32 v{T}, 3, v{V.lane}
v_and_b32 v{T+1}, 7, v{V.lane}
v_bfe_u32 v{T+2}, v{V.lane}, 4, 1
v_lshlrev_b32 v{T+2}, 2, v{T+2}
v_xor_b32 v{T+1}, v{T+1}, v{T+2}
v_mul_u32_u24 v{T}, 896, v{T}
v_lshl_add_u32 v{T}, v{T+1}, 4, v{T}
v_add_u32 v{A.wsrc}, s{S.t2}, v{T}
s_mov_b32 s{S.r0}, 4096''', qx]
        P[18] += ozero
        P[20] += ['\n'.join(wphi_reads(0))]
        TP[pub].append(Job(f1pub, 8))
        fp = feat_pieces(V.acc1, V.acc1, False, opts['round_p']); i = fp.index('WAITP')
        fp.pop(i)
        if opts['prio_kf']: fp.insert(0, f's_setprio {opts["prio_kf"]}')
        for n, grpp in enumerate(split_pieces(fp + phi_write(V.acc1), 7)): TP[21+n] += grpp
    def f1ld(): out['f1'] = k.vmop(f'buffer_load_dword v{A.f0}, v{A.f1}, {srd(S.WS)}, 0 offen sc1')
    TP[c-2].append(Job(f1ld, 1))
    TP[c].append(Job(lambda: (k.vmwait(out['f1']), k.e(ready_mask())), 8))
    dj = []
    for s_ in range(npre): dj += kv_dma_jobs(k, s_, st)
    for s_ in range(c, 28):
        n = min(len(dj), opts['pre_rate']); TP[s_] += dj[:n]; dj = dj[n:]
    out['left'] = dj
    for s in range(7, 28):
        step(k, s, grp, ids, opts, P[s], TP[s])
    if grp == 0:
        k.e('s_waitcnt lgkmcnt(0)')
        m27 = mfmas(27, grp)
        for m in m27[1::2] + m27[0:4:2]: k.e(m)
        va = va_stage().split('\n')
        for l in va[:7]: k.e(l)
        k.e(m27[4])
        for l in va[7:11]: k.e(l)
        k.e(m27[6])
        for l in va[11:]: k.e(l)
    out['kvst'] = st
    return out

def attn_prologue(k, grp, pend, opts):
    T = V.tmp
    k.c('---- attention prologue')
    stamp(k, 'p1done')
    st = pend['kvst']
    for j in pend['left']: j.f()
    if grp == 0:
        a0 = V.acc0
        k.e(f's_mov_b32 s{S.t6}, {fbits(QSCALE)}\ns_bitcmp1_b32 s{S.h}, 0')
        for q in range(8): k.e(f'v_pk_mul_f32 {vr(a0+2*q,2)}, {vr(a0+2*q,2)}, s[{S.t6}:{S.t6+1}] op_sel_hi:[1,0]')
        cvt16(k, A.Q, a0)
        k.e(f'''s_cselect_b32 exec_lo, -1, 0
s_mov_b32 exec_hi, 0
v_mov_b32 v{A.Q}, 0
v_mov_b32 v{A.Q+1}, 0
s_mov_b32 exec_lo, 0
s_cselect_b32 exec_hi, 0, -1
v_mov_b32 v{A.Q+6}, 0
v_mov_b32 v{A.Q+7}, 0
s_mov_b64 exec, -1
v_lshrrev_b32 v{T}, 2, v{A.a0}
ds_write_b128 v{A.a0}, {vr(A.Q,4)}
ds_write_b128 v{A.a0}, {vr(A.Q+4,4)} offset:1024
v_and_b32 v{T}, 0x7fc, v{T}
v_add_u32 v{T}, {L_G}, v{T}
ds_write_b32 v{T}, v{V.g}''')
    else:
        k.e(f'v_lshrrev_b32 v{T}, 2, v{A.a0}\nv_and_b32 v{T}, 0x7fc, v{T}\nv_add_u32 v{T}, {L_G}, v{T}')
    stamp(k, 'preB0')
    assert st[(0, 'n')] == 4
    k.vmwait(st.get(0), 'lgkmcnt(0)')
    stamp(k, 'B0wait')
    k.e('s_barrier')
    if grp == 1:
        k.ds(f'ds_read_b128 {vr(A.Q,4)}, v{A.a0}')
        k.ds(f'ds_read_b128 {vr(A.Q+4,4)}, v{A.a0} offset:1024')
        k.ds(f'ds_read_b32 v{V.g}, v{T}')
    return st

def kv_addr(t):
    s, T = t // 4, t % 4; slot = s % 3
    base = A.kv0 if slot < 2 else A.kv1
    return base, (slot % 2)*32768 + T*4096
def rdK(k, t, q):
    b, o = kv_addr(t); return k.ds(f'ds_read_b128 {vr(A.KF+4*q,4)}, v{b} offset:{o+q*1024}')
def rdV(k, t):
    b, o = kv_addr(t)
    k.ds(f'ds_read_b128 {vr(A.V0+4*(t%2),4)}, v{b} offset:{o+2048}')
    return k.ds(f'ds_read_b128 {vr(A.V1+4*(t%3),4)}, v{b} offset:{o+3072}')

def both_ways(k, txts):
    for t in txts: a = k.vmop(t + ' sc1')
    return a
def maxchain(dst, src, n):
    out = [f'v_max3_u32 v{dst}, v{src}, v{src+1}, v{src+2}']; q = 3
    while q < n:
        out.append(f'v_max3_u32 v{dst}, v{dst}, v{src+q}, v{src+q+1}' if q+1 < n else f'v_max_u32 v{dst}, v{dst}, v{src+q}'); q += 2
    return out
def sent_check(k, dst, src, n, loads, redo=''):
    L1, L2 = lbl('sp'), lbl('spd')
    k.e(f'v_cmp_eq_u32 vcc, -1, v{dst}\ns_cbranch_vccnz {L1}\n{L2}:')
    k.cold.e(f'{L1}:\ns_mov_b32 s{S.spin}, {SPINV[0]}\n{L1}_a:\ns_sleep 4')
    for l in loads: k.cold.e(l)
    k.cold.e('s_waitcnt vmcnt(0)')
    for l in maxchain(dst, src, n): k.cold.e(l)
    k.cold.e(f'v_cmp_eq_u32 vcc, -1, v{dst}\ns_cbranch_vccz {L1}_b\ns_sub_u32 s{S.spin}, s{S.spin}, 1\ns_cbranch_scc0 {L1}_a\n{L1}_b:')
    if redo: k.cold.e(redo)
    k.cold.e(f's_branch {L2}')

def wo_jobs(k, br, first, n, ldsbase, row0, out, key, rot=False):
    J = []
    for q in range(n):
        def j(q=q):
            if q == 0: k.e(f's_mul_i32 s{S.t8}, s{S.tt}, {first[0]*1024}\ns_mul_i32 s{S.t7}, s{S.tt}, {first[0]*7168}')
            if n == 7 and rot:
                if q == 0: k.e(f's_add_u32 s{S.t8}, s{S.t8}, {ldsbase + first[1]*1024}\ns_add_u32 s{S.t7}, s{S.t7}, {first[1]*7168}')
                k.e(f's_mul_i32 s{S.t9}, s{S.ox+q}, 56\ns_lshl3_add_u32 m0, s{S.ox+q}, s{S.t8}\ns_add_u32 s{S.t9}, s{S.t9}, s{S.t7}')
            else:
                k.e(f's_add_u32 m0, s{S.t8}, {ldsbase + (first[1]+q)*1024}\ns_add_u32 s{S.t9}, s{S.t7}, {row0*896 + (first[1]+q)*7168}')
            out['n' + key] = q + 1
            out[key] = k.vmop(f'buffer_load_dwordx4 v{A.wsrc}, {srd(S.W if br == 0 else S.X)}, s{S.t9} offen lds')
        J.append(Job(j, 3))
    return J

def o_loads(dst, addr):
    return [f'buffer_load_dwordx4 {vr(dst+4*q,4)}, v{addr}, {srd(S.WS)}, {"0" if q < 4 else "s%d" % S.r0} offen offset:{(q%4)*1024} sc1' for q in range(8)]

def side_jobs(k, grp, opts, pend):
    T = V.tmp; J = {}; st = {}
    def at(t, f): J.setdefault(t, []).append(f)
    def kvA(): st['kvi'] = kv_partial(k)
    def kvB(): pend['spr'] += kv_partial2(k, st.get('kvi') or pend['kvi'])
    def kvC(): st['kvp'] = kv_partial3(k)
    def f2pub():
        k.vmwait(st['kvp'])
        k.e(f's_lshl3_add_u32 s{S.t2}, s{S.hA}, s{S.w}\ns_lshl4_add_u32 s{S.t2}, s{S.t2}, s{S.tb}\ns_lshl_b32 s{S.t2}, s{S.t2}, 6\ns_add_u32 s{S.t2}, s{S.t2}, {WS_FLAG2}')
        flag_store(k, S.t2, S.tag, opt=False)
    R = A.RED; I4 = 16; D4 = 20
    def s1():
        k.e(f's_lshl3_add_u32 s{S.t2}, s{S.hQ}, s{S.w}\ns_lshl_b32 s{S.t3}, s{S.t2}, 10\ns_add_u32 s{S.t3}, s{S.t3}, {WS_FLAG2}\nv_and_b32 v{A.a2}, 15, v{V.lane}\nv_lshl_add_u32 v{A.a2}, v{A.a2}, 6, s{S.t3}')
        st['f2'] = k.vmop(f'buffer_load_dword v{A.a1}, v{A.a2}, {srd(S.WS)}, 0 offen sc1')
        k.e(f's_lshl_b32 s{S.t2}, s{S.t2}, 13\ns_add_u32 s{S.t2}, s{S.t2}, {WS_KVP}\nv_lshl_add_u32 v{A.a0}, v{V.lane}, 4, s{S.t2}')
    def s2():
        if grp == 0:
            k.e(f'v_lshlrev_b32 v{T}, 4, v{V.lane}\nv_add_u32 v{T}, {L_SEL}, v{T}'); k.ds(f'ds_read_b128 {vr(I4,4)}, v{T}')
        flag_check(k, st['f2'], A.a1, A.a2)
        def ld(q, l): st[f'kp{q}'] = k.vmop(l)
        pend['hq' if opts['kp_first'] else 'wq'][0:0] = [Job(lambda q=q, l=l: ld(q, l), 1) for q, l in enumerate(o_loads(R, A.a0))]
    def s3():
        assert 'kp7' in st or opts['skip']; k.vmwait(st.get('kp7'))
        pend['spr'] += [f'v_mfma_f32_16x16x32_bf16 {vr(D4,4)}, {vr(I4,4)}, {vr(R+4*q,4)}, {"0" if q == 0 else vr(D4,4)}' for q in range(8)]
    def s4():
        k.e(f'''v_subrev_u32 v{T+2}, {L_STG}, v{KVB+2}
v_and_b32 v{T+2}, 0x3ff, v{T+2}
s_lshr_b32 s{S.t2}, s{S.w}, 1
s_lshl_b32 s{S.t2}, s{S.t2}, 10
s_add_u32 s{S.t2}, s{S.t2}, {L_WPHI}
v_lshl_add_u32 v{T+2}, v{V.hh}, 3, v{T+2}
v_add_u32 v{T+2}, s{S.t2}, v{T+2}
v_cvt_pk_bf16_f32 v{D4}, v{D4}, v{D4+1}
v_cvt_pk_bf16_f32 v{D4+1}, v{D4+2}, v{D4+3}''')
        k.ds(f'ds_write_b64 v{T+2}, {vr(D4,2)}')
    for n, f in enumerate((kvA, kvB, kvC, f2pub, s1, s2, s3, s4)): at(opts['kv_at'][grp][n], f)
    def oclear():
        for q in range(4): k.e(f'v_mov_b32 v{24+q}, -1')
        pend['barwait'] = {opts['ybar']: k.vmop(f'buffer_store_dwordx4 {vr(24,4)}, v{V.ob}, {srd(S.WS)}, 0 offen sc1')}
    at(opts['oclr_at'][grp], oclear)
    assert opts['a5_at'] >= 4*opts['ybar'] - 2
    def wowarm():
        U = T + 5
        k.e(f'''s_and_b32 s{S.t2}, s2, 127
s_mul_i32 s{S.t2}, s{S.t2}, 3136
s_cmp_lt_u32 s2, 128
s_cselect_b32 s{S.M1}, s{S.pWOA}, s{S.pWOB}
s_cselect_b32 s{S.M1+1}, s{S.pWOA+1}, s{S.pWOB+1}
s_mov_b32 s{S.M1+2}, 401408
s_mov_b32 s{S.M1+3}, 0x20000
v_min_u32 v{U}, 48, v{V.lane}
v_lshl_add_u32 v{U}, v{U}, 6, s{S.t2}''')
        k.vmop(f'buffer_load_dword v{A.l}, v{U}, {srd(S.M1)}, 0 offen', opt=True)
    if grp == 1 and opts['wowarm'] is not None: at(opts['wowarm'], only(k, 7, wowarm))
    def f1r(): st['f1r'] = k.vmop(f'buffer_load_dword v{A.f0}, v{A.f1}, {srd(S.WS)}, 0 offen sc1')
    def f1r2(): k.vmwait(st['f1r']); k.e(ready_mask())
    at(opts['f1r_at'][0], f1r); at(opts['f1r_at'][1], f1r2)
    if grp == 0:
        KF_, NUM = 80, 96
        def a2():
            k.e(f'v_lshlrev_b32 v{T}, 4, v{V.lane}\nv_add_u32 v{T}, {L_WPHI}, v{T}')
            for q in range(4): st['kvl'] = k.ds(f'ds_read_b128 {vr(KF_+4*q,4)}, v{T} offset:{q*1024}')
        def a3():
            k.dswait(st['kvl'])
            pend['spr'] += [mfma(NUM, KF_+4*q, A.PHQ+4*q, '0' if q == 0 else NUM) for q in range(4)]
        def a4():
            k.e(f'''v_mov_b32 v{T+1}, v{NUM+12}
v_mov_b32 v{T+3}, v{NUM+12}
s_sub_u32 s{S.t2}, s{S.hQ}, s{S.h}
s_lshl_b32 s{S.t2}, s{S.t2}, 11
v_permlane32_swap_b32 v{T+1}, v{T+3}
v_add_f32 v{T+3}, v{A.eps}, v{T+3}
v_rcp_f32 v{T+3}, v{T+3}
s_sub_u32 s{S.t2}, s{S.t2}, 32768
v_mul_f32 v{T+3}, v{V.g}, v{T+3}
v_add_u32 v{A.a2}, s{S.t2}, v{V.ob}''')
            for q in range(8): k.e(f'v_pk_mul_f32 {vr(NUM+2*q,2)}, {vr(NUM+2*q,2)}, {vr(T+3,2)} op_sel_hi:[1,0]')
            cvt16(k, KF_, NUM)
            k.e(f's_mov_b64 exec, s[{S.hi32}:{S.hi32+1}]\nv_mov_b32 v{KF_+6}, 0\nv_mov_b32 v{KF_+7}, 0\ns_mov_b64 exec, -1')
            st['oast'] = both_ways(k, [f'buffer_store_dwordx4 {vr(KF_,4)}, v{A.a2}, {srd(S.WS)}, 0 offen',
                          f'buffer_store_dwordx4 {vr(KF_+4,4)}, v{A.a2}, {srd(S.WS)}, 0 offen offset:1024'])
        p = opts['afin_at']
        def a5():
            k.vmwait(st['oast'])
            k.e(f's_lshl2_add_u32 s{S.t2}, s{S.tb}, s{S.tt}\ns_lshl4_add_u32 s{S.t2}, s{S.t2}, s{S.hQ}\ns_lshl_b32 s{S.t2}, s{S.t2}, 6\ns_add_u32 s{S.t2}, s{S.t2}, {WS_FLAG3A}')
            flag_store(k, S.t2, S.tag, opt=False)
        at(p, a2); at(p+1, a3); at(p+2, a4); at(opts['a5_at'], a5)
        assert p % 4 == 2 and p > max(opts['kv_at'][0][7], opts['kv_at'][1][7])
    def oa0():
        k.e(f's_lshl_b32 s{S.t2}, s{S.col}, 10\ns_add_u32 s{S.t2}, s{S.t2}, {WS_FLAG3A}\nv_and_b32 v{A.y1}, 15, v{V.lane}\nv_lshl_add_u32 v{A.y1}, v{A.y1}, 6, s{S.t2}')
        st['fa'] = k.vmop(f'buffer_load_dword v{A.y0}, v{A.y1}, {srd(S.WS)}, 0 offen sc1')
    at(opts['oa_at'] - 2, oa0)
    def oa():
        flag_check(k, st['fa'], A.y0, A.y1)
        k.e(f'''s_lshl_b32 s{S.t2}, s{S.col}, 16
s_lshl_b32 s{S.t3}, s{S.cw}, 13
s_add_u32 s{S.t2}, s{S.t2}, s{S.t3}
s_add_u32 s{S.t2}, s{S.t2}, {WS_OX}
s_and_b32 s{S.t3}, s{S.h}, 7
s_cmp_eq_u32 s{S.t3}, 7
s_cselect_b32 s{S.t2}, {OOB}, s{S.t2}
v_lshl_add_u32 v{A.a0}, v{V.lane}, 4, s{S.t2}''')
        def ld(q, l): st[f'oa{q}'] = k.vmop(l)
        pend['wq'] += [Job(lambda q=q, l=l: ld(q, l), 1) for q, l in enumerate(o_loads(A.OF, A.a0))]
    at(opts['oa_at'], oa)
    return J, st

def wo_bases(k, b0, base_s):
    T = V.tmp
    k.e(f'''
v_and_b32 v{T}, 1, v{V.lane}
v_bfe_u32 v{T+1}, v{V.lane}, 1, 1
v_lshl_or_b32 v{T}, v{T}, 1, v{T+1}
v_bfe_u32 v{T+1}, v{V.lane}, 4, 1
v_lshl_or_b32 v{T}, v{T+1}, 2, v{T}
v_bfe_u32 v{T+1}, v{V.lane}, 3, 1
v_lshl_or_b32 v{T}, v{T+1}, 3, v{T}
v_bfe_u32 v{T+1}, v{V.lane}, 2, 2
v_lshlrev_b32 v{T}, 3, v{T}
v_lshl_add_u32 v{T}, v{T+1}, 7, v{T}
v_add_u32 v{b0+2}, s{base_s}, v{T}
v_xor_b32 v{b0+3}, 64, v{b0+2}
v_lshl_add_u32 v{b0}, v{V.hh}, 9, v{b0+2}
v_xor_b32 v{b0+1}, 64, v{b0}
''')
def wo_reads(k, dst, b0, lo, hi):
    a = None
    for n in range(lo, hi):
        hd, t, oc = n // 4, (n // 2) % 2, n % 2
        k.ds(f'ds_read_b64_tr_b16 {vr(dst+4*n,2)}, v{b0+oc} offset:{hd*3584+t*2048}')
        a = k.ds(f'ds_read_b64_tr_b16 {vr(dst+4*n+2,2)}, v{b0+oc+(2 if t else 0)} offset:{hd*3584+t*2048+1024}')
    return a

def attention(k, grp, st, opts, pend):
    T = V.tmp
    wo = {'A': None, 'B': None}
    rdK(k, 0, 0); k0 = rdK(k, 0, 1)
    rdV(k, 0); rdV(k, 1)
    k.dswait(k0)
    k.e(mfma(A.SA, A.KF, A.Q, '0')); rdK(k, 1, 0)
    k.e(mfma(A.SA, A.KF+4, A.Q+4, A.SA)); kk = rdK(k, 1, 1)
    dq = []; wq = pend['wq'] = []; hq = pend['hq'] = []
    for s_ in range(opts['npre'], 3): dq += kv_dma_jobs(k, s_, st)
    for j in dq[:2]: j.f()
    del dq[:2]
    if opts['kv_at'][grp][0] == -2: pend['kvi'] = kv_partial(k)
    k.e(f'v_max3_f32 v{A.m}, v{A.SA}, v{A.SA+1}, v{A.SA+2}')
    for q in range(3, 15, 2): k.e(f'v_max3_f32 v{A.m}, v{A.m}, v{A.SA+q}, v{A.SA+q+1}')
    k.e(f'v_max_f32 v{A.m}, v{A.m}, v{A.SA+15}\nv_mov_b32 v{T}, v{A.m}')
    k.e(f'''s_nop 1
v_permlane32_swap_b32 v{A.m}, v{T}
v_max_f32 v{A.m}, v{A.m}, v{T}
v_sub_f32 v{A.NM}, 0, v{A.m}''')
    for q in range(1, 16): k.e(f'v_mov_b32 v{A.NM+q}, v{A.NM}')
    for q in range(8): k.e(f'v_pk_add_f32 {vr(A.SA+2*q,2)}, {vr(A.SA+2*q,2)}, {vr(A.NM,2)}')
    pend['spr'] = []
    J, js = side_jobs(k, grp, opts, pend)
    def pump(n):
        for _ in range(n):
            if hq or dq or wq:
                j = (hq or dq or wq).pop(0)
                if not opts['nodma']: j.f()
    for f in J.get(-1, []): f()
    for t in range(32):
        cur, oth = (A.SA, A.SB) if t % 2 == 0 else (A.SB, A.SA)
        spr = pend['spr']; pts = {8: (0, 1, 3, 5, 6, 8, 10, 11), 4: (0, 3, 6, 9), 0: ()}[len(spr)]
        def ex(a, b):
            for q in range(a, b):
                k.e(f'v_exp_f32 v{cur+q}, v{cur+q}')
                if q in pts: k.e(spr.pop(0))
        k.c(f'---- tile {t}')
        ex(0, 2)
        if t >= 1: k.e(smfma(A.O, A.V1+4*((t-1) % 3), oth+8, A.idx))
        ex(2, 5)
        if t % 4 == 2:
            b = t//4 + 1
            stamp(k, f'preB{b}')
            assert b == 8 or st[(b, 'n')] == 4
            k.vmwait(pend.get('barwait', {}).get(b))
            k.vmwait(st.get(b), 'lgkmcnt(0)'); k.dsall(False)
            stamp(k, f'B{b}wait')
            k.e('s_barrier')
            if b + 2 <= 7: dq += kv_dma_jobs(k, b + 2, st)
            if b == 6: assert wo.get('nA') == 7 or opts['skip']
            if b in (6, 7) and 'woB' not in opts['skip']:
                wq[0:0] = wo_jobs(k, 1, (3, 16) if grp else (4, 0), 3 if grp else 4, 65536*(7-b), 224*(b-6), wo, 'B')
        elif t + 1 <= 31:
            k.dswait(kk)
        if opts['prio']: k.e(f's_setprio {3 - (t + 2) % 4}')
        if t == opts['wo_at'] and 'woA' not in opts['skip']: wq += wo_jobs(k, 0, (7, 28*grp), 7, L_WOA, 0, wo, 'A', opts['wo_rot'])
        if t + 1 <= 31:
            k.e(mfma(oth, A.KF, A.Q, A.NM))
            if t + 2 <= 31: rdK(k, t+2, 0)
        pump(1 if len(dq) + len(wq) + len(hq) > opts['pump_hi'] else 0)
        ex(5, 8)
        if t + 1 <= 31:
            k.e(mfma(oth, A.KF+4, A.Q+4, oth))
            if t + 2 <= 31: kk = rdK(k, t+2, 1)
        pump(1 if len(dq) + len(wq) + len(hq) > opts['pump_hi2'] else 0)
        ex(8, 13)
        k.e(smfma(A.O, A.V0+4*(t % 2), cur, A.idx))
        if t + 2 <= 31: rdV(k, t+2)
        pump(1)
        wa = None
        ex(13, 16)
        for f in J.get(t, []):
            stamp(k, f'j{t}{grp}pre')
            if f.__name__ not in opts['skip']: f()
            stamp(k, f'j{t}{grp}post')
    assert not dq and len(wq) <= 3; pump(3)
    k.e('s_nop 1')
    k.e(smfma(A.O, A.V1+4*(31 % 3), A.SB+8, A.idx))
    if opts['prio']: k.e('s_setprio 0')
    return js, wo, wa

def fallback(k, grp):
    T = V.tmp; L = lbl('fbl')
    k.e(f'''
s_lshl_b32 s{S.t2}, s{S.tt}, 12
v_subrev_u32 v{A.ks}, s{S.t2}, v{A.ks}
v_mov_b32 v{A.m}, 0xff7fffff
s_mov_b32 s{S.sK}, 0
''')
    for q in range(16): k.e(f'v_mov_b32 v{A.O+q}, 0')
    k.e(f'''{L}:
buffer_load_dwordx4 {vr(A.KF,4)}, v{A.ks}, {srd(S.WS)}, s{S.sK} offen sc1
buffer_load_dwordx4 {vr(A.KF+4,4)}, v{A.ks}, {srd(S.WS)}, s{S.sK} offen offset:1024 sc1
buffer_load_dwordx4 {vr(A.V0,4)}, v{A.ks}, {srd(S.WS)}, s{S.sK} offen offset:2048 sc1
buffer_load_dwordx4 {vr(A.V0+4,4)}, v{A.ks}, {srd(S.WS)}, s{S.sK} offen offset:3072 sc1
s_waitcnt vmcnt(0)''')
    k.e(mfma(A.SA, A.KF, A.Q, '0')); k.e(mfma(A.SA, A.KF+4, A.Q+4, A.SA))
    k.e(f'v_max3_f32 v{T}, v{A.m}, v{A.SA}, v{A.SA+1}')
    for q in range(2, 16, 2): k.e(f'v_max3_f32 v{T}, v{T}, v{A.SA+q}, v{A.SA+q+1}')
    k.e(f'''v_mov_b32 v{T+1}, v{T}
s_nop 1
v_permlane32_swap_b32 v{T}, v{T+1}
v_max_f32 v{T}, v{T}, v{T+1}
v_sub_f32 v{T+1}, v{A.m}, v{T}
v_exp_f32 v{T+1}, v{T+1}
v_mov_b32 v{A.m}, v{T}''')
    for q in range(16): k.e(f'v_sub_f32 v{A.SA+q}, v{A.SA+q}, v{T}\nv_mul_f32 v{A.O+q}, v{A.O+q}, v{T+1}')
    for q in range(16): k.e(f'v_exp_f32 v{A.SA+q}, v{A.SA+q}')
    k.e('s_nop 1')
    k.e(smfma(A.O, A.V0, A.SA, A.idx)); k.e(smfma(A.O, A.V0+4, A.SA+8, A.idx))
    k.e(f'''s_add_u32 s{S.sK}, s{S.sK}, 4096
s_cmp_lt_u32 s{S.sK}, 131072
s_cbranch_scc1 {L}
v_mov_b32 v{A.l}, v{A.O+12}
v_mov_b32 v{T}, v{A.O+12}
s_nop 1
v_permlane32_swap_b32 v{T}, v{A.l}''')

def tail(k, grp, js, wo, wa, opts, fb):
    T = V.tmp
    k.c('---- end of attention: exchange with the partner wave, safety check of the stand-in maximum')
    stamp(k, 'attnend')
    Lfb, Lback = lbl('fb'), lbl('fbback')
    own, oth = (A.O, A.O+8) if grp == 0 else (A.O+8, A.O)
    CXa, CXb, CXl = A.a1, A.f0, A.f1
    k.e(f'''
s_lshl_b32 s{S.t2}, s{S.w}, 12
s_add_u32 s{S.t2}, s{S.t2}, {L_CX}
v_lshl_add_u32 v{CXa}, v{V.lane}, 4, s{S.t2}
v_xor_b32 v{CXb}, 16384, v{CXa}
v_lshl_add_u32 v{CXl}, v{V.lane}, 3, s{S.t2}
v_sub_f32 v{A.kv0}, 1.0, v{V.g}
s_mov_b32 s{S.t3}, {fbits(2.0**60)}
v_mov_b32 v{A.t}, v{A.m}''')
    xw = [f'ds_write_b128 v{CXa}, {vr(oth,4)}', f'ds_write_b128 v{CXa}, {vr(oth+4,4)} offset:1024']
    k.e(f'v_mov_b32 v{A.l}, v{A.O+12}\nv_mov_b32 v{T}, v{A.O+12}')
    for l in xw: k.ds(l)
    k.e(f'''v_permlane32_swap_b32 v{T}, v{A.l}
v_mul_f32 v{T+1}, 0, v{A.O}
v_mul_f32 v{T+2}, 0, v{A.O+1}''')
    k.ds(f'ds_write_b64 v{CXl}, {vr(A.l,2)} offset:2048')
    for q in range(1, 8): k.e(f'v_pk_fma_f32 {vr(T+1,2)}, {vr(A.O+2*q,2)}, 0, {vr(T+1,2)} op_sel_hi:[1,0,1]')
    k.e(f'''v_add_f32 v{T+1}, v{T+1}, v{T+2}
v_add_f32 v{T+1}, v{T+1}, v{A.l}
v_cmp_nge_f32 vcc, s{S.t3}, v{T+1}
s_cbranch_vccnz {Lfb}
{Lback}:''')
    fb.e(f'{Lfb}:'); fallback(fb, grp)
    fb.e(f'v_mov_b32 v{A.t}, v{A.m}')
    for l in xw: fb.e(l)
    fb.e(f'ds_write_b64 v{CXl}, {vr(A.l,2)} offset:2048\ns_branch {Lback}')
    k.e(f's_mul_i32 s{S.t2}, s{S.cw}, 14336\ns_add_u32 s{S.t2}, s{S.t2}, {L_WOA}')
    wo_bases(k, A.wb, S.t2)
    k.e(f'''s_and_b32 s{S.t3}, s{S.cw}, 1
s_mul_i32 s{S.t3}, s{S.t3}, 14336
s_cmp_lt_u32 s{S.cw}, 2
s_cselect_b32 s{S.t4}, 65536, 0
s_add_u32 s{S.t3}, s{S.t3}, s{S.t4}
s_sub_u32 s{S.t3}, s{S.t3}, s{S.t2}''')
    WB2 = A.Q
    for q in range(4): k.e(f'v_add_u32 v{116+q}, s{S.t3}, v{A.wb+q}')
    k.vmwait(wo['A'])
    k.vmwait(wo['B'], 'lgkmcnt(0)'); k.dsall(False)
    k.e(f's_barrier\nv_xor_b32 v{CXl}, 16384, v{CXl}')
    lm = k.ds(f'ds_read_b64 {vr(T+1,2)}, v{CXl} offset:2048')
    k.ds(f'ds_read_b128 {vr(A.SA,4)}, v{CXb}')
    a = k.ds(f'ds_read_b128 {vr(A.SA+4,4)}, v{CXb} offset:1024')
    wr = [wo_reads(k, A.WOA, A.wb, n, n+1) for n in range(5)]
    k.dswait(lm)
    k.e(f'''v_max_f32 v{T}, v{A.m}, v{T+2}
v_sub_f32 v{T+3}, v{A.m}, v{T}
v_sub_f32 v{T+5}, v{T+2}, v{T}
v_exp_f32 v{T+3}, v{T+3}
v_exp_f32 v{T+5}, v{T+5}
v_mul_f32 v{A.l}, v{A.l}, v{T+3}
v_fmac_f32 v{A.l}, v{T+1}, v{T+5}
v_rcp_f32 v{A.l}, v{A.l}
v_mul_f32 v{T+3}, v{T+3}, v{A.kv0}
v_mul_f32 v{T+5}, v{T+5}, v{A.kv0}
v_mul_f32 v{T+3}, v{T+3}, v{A.l}
v_mul_f32 v{T+5}, v{T+5}, v{A.l}''')
    for q in range(4): k.e(f'v_pk_mul_f32 {vr(own+2*q,2)}, {vr(own+2*q,2)}, {vr(T+3,2)} op_sel_hi:[1,0]')
    k.dswait(a)
    wr += [wo_reads(k, A.WOA, A.wb, n, n+1) for n in range(5, 8)]
    for q in range(4): k.e(f'v_pk_fma_f32 {vr(own+2*q,2)}, {vr(A.SA+2*q,2)}, {vr(T+5,2)}, {vr(own+2*q,2)} op_sel_hi:[1,0,1]')
    OB = 112
    for q in range(4): k.e(f'v_cvt_pk_bf16_f32 v{OB+q}, v{own+2*q}, v{own+2*q+1}')
    if grp == 1:
        k.e(f's_mov_b64 exec, s[{S.hi32}:{S.hi32+1}]\nv_mov_b32 v{OB+2}, 0\nv_mov_b32 v{OB+3}, 0\ns_mov_b64 exec, -1')
    ob = both_ways(k, [f'buffer_store_dwordx4 {vr(OB,4)}, v{V.ob}, {srd(S.WS)}, 0 offen'])
    stamp(k, 'obstored')
    Lidle = lbl('idle')
    k.e(f's_and_b32 s{S.t3}, s{S.h}, 7\ns_cmp_eq_u32 s{S.t3}, 7\ns_cbranch_scc1 {Lidle}')
    ACC = AC2 = A.ACC; OF2 = A.OF
    k.e(f'v_add_u32 v{A.kv1}, 32768, v{A.a0}')
    k.vmwait(js.get('oa7'))
    amf = [mfma(ACC+16*oc, A.WOA+4*(2*n+oc), A.OF+4*n, '0' if n == 0 else ACC+16*oc) for n in range(8) for oc in range(2)]
    ol = o_loads(OF2, A.kv1)
    for n, m in enumerate(amf):
        k.dswait(wr[n]); k.e(m)
        if n < 8: wr.append(wo_reads(k, A.WOA, A.wb, n+8, n+9))
        else: wo_reads(k, A.WOB, 116, 2*(n-8), 2*(n-8)+2)
    stamp(k, 'Ahalf')
    k.vmwait(ob); ids = [k.vmop(l) for l in ol]
    set_srd(k, S.M1, S.pOUT, 1835008)
    k.e(f'''s_lshl_b32 s{S.t2}, s{S.col}, 5
v_add_u32 v{T}, s{S.t2}, v{V.i32}
v_mul_u32_u24 v{T}, 896, v{T}
v_lshl_add_u32 v{T}, v{V.hh}, 4, v{T}
s_and_b32 s{S.t2}, s{S.h}, 7
s_lshl_b32 s{S.t2}, s{S.t2}, 7
s_lshl_b32 s{S.t3}, s{S.cw}, 5
s_add_u32 s{S.t2}, s{S.t2}, s{S.t3}
v_add_u32 v{A.a2}, s{S.t2}, v{T}
s_and_b32 s{S.t2}, s{S.w}, 1
s_lshl_b32 s{S.t2}, s{S.t2}, 15
s_lshl_b32 s{S.t3}, s{S.cw}, 11
s_add_u32 s{S.t3}, s{S.t3}, s{S.t2}
v_lshl_add_u32 v{A.ks}, v{V.lane}, 4, s{S.t3}
s_lshl_b32 s{S.t3}, s{S.cw}, 13
s_add_u32 s{S.t3}, s{S.t3}, s{S.t2}
v_lshl_add_u32 v{A.vs}, v{V.lane}, 4, s{S.t3}
s_mov_b32 s{S.spin}, {SPINV[0]}''')
    k.dsall()
    k.e('s_barrier')
    for n in range(8):
        L1, L2 = lbl('ob'), lbl('obd'); F = OF2 + 4*n
        chk = f'v_max3_u32 v{T}, v{F}, v{F+1}, v{F+2}\nv_max_u32 v{T}, v{T}, v{F+3}\nv_cmp_eq_u32 vcc, -1, v{T}'
        k.vmwait(ids[n])
        if n in (0, 7): stamp(k, f'ld{n}')
        k.e(f'{chk}\ns_cbranch_vccnz {L1}\n{L2}:')
        for oc in range(2): k.e(mfma(ACC+16*oc, A.WOB+4*(2*n+oc), F, ACC+16*oc))
        c = k.cold
        c.e(f'{L1}:\ns_sleep {opts["rsleep"]}')
        for l in ol[n:]: c.e(l)
        c.e(f's_waitcnt vmcnt({7-n})\n{chk}\ns_sub_u32 s{S.spin}, s{S.spin}, 1\ns_cbranch_scc1 {L2}\ns_cbranch_vccnz {L1}\ns_branch {L2}')
    stamp(k, 'Bhalf')
    Ls = [lbl('kq') for _ in range(2)]; Lj = lbl('kqj')
    k.e(f's_bitcmp1_b32 s{S.cw}, 0\ns_cbranch_scc1 {Ls[1]}')
    for par in range(2):
        kq = 2*grp + par
        if par: k.e(f'{Ls[1]}:')
        srcs = [p for p in range(4) if p != kq]
        if opts['pack']:
            for n, p in enumerate(srcs):
                for q in range(4): k.e(f'v_cvt_pk_bf16_f32 v{A.OF+4*n+q}, v{AC2+8*p+2*q}, v{AC2+8*p+2*q+1}')
                k.e(f'ds_write_b128 v{A.ks}, {vr(A.OF+4*n,4)} offset:{p*8192}')
            k.e(f's_mov_b32 s{S.t2}, 0x3f80\ns_mov_b32 s{S.t3}, 0x3f800000\ns_waitcnt lgkmcnt(0)\ns_barrier')
            for n, p in enumerate(srcs): k.e(f'ds_read_b128 {vr(A.OF+16+4*n,4)}, v{A.vs} offset:{p*2048}')
            for n in range(3):
                k.e(f's_waitcnt lgkmcnt({2-n})')
                for q in range(8): k.e(f'v_dot2_f32_bf16 v{AC2+8*kq+q}, v{A.OF+16+4*n+q//2}, s{S.t2 + q % 2}, v{AC2+8*kq+q}')
        else:
            for p in srcs:
                k.e(f'ds_write_b128 v{A.ks}, {vr(AC2+8*p,4)} offset:{p*8192}\nds_write_b128 v{A.ks}, {vr(AC2+8*p+4,4)} offset:{p*8192+1024}')
            k.e('s_waitcnt lgkmcnt(0)\ns_barrier')
            for n, p in enumerate(srcs):
                k.e(f'ds_read_b128 {vr(A.OF+8*n,4)}, v{A.vs} offset:{p*2048}\nds_read_b128 {vr(A.OF+8*n+4,4)}, v{A.vs} offset:{p*2048+1024}')
            for n in range(3):
                k.e(f's_waitcnt lgkmcnt({4-2*n})')
                for q in range(4): k.e(f'v_pk_add_f32 {vr(AC2+8*kq+2*q,2)}, {vr(AC2+8*kq+2*q,2)}, {vr(A.OF+8*n+2*q,2)} ; keep')
        if opts['pack']: k.e('s_nop 2')
        for q in range(4): k.e(f'v_cvt_pk_bf16_f32 v{A.OF+q}, v{AC2+8*kq+2*q}, v{AC2+8*kq+2*q+1}')
        if par == 0: k.e(f's_branch {Lj}')
    k.e(f'{Lj}:\nbuffer_store_dwordx4 {vr(A.OF,4)}, v{A.a2}, {srd(S.M1)}, 0 offen {opts["outsc"]}')
    if grp == 0:
        L = lbl('ep')
        k.e(f'''s_or_b32 s{S.t2}, s{S.h}, s{S.tb}
s_or_b32 s{S.t2}, s{S.t2}, s{S.w}
s_cmp_lg_u32 s{S.t2}, 0
s_cbranch_scc1 {L}''')
        flag_store(k, S.t2, S.tag)
        k.e(f'{L}:')
    k.e(f'{Lidle}:')
    stamp(k, 'end'); stamp_dump(k)
    k.e('s_endpgm')

DEFAULTS = dict(NH=8, kp_first=False, nopk=True, prio_kf=0, bar7_at=None, w1sched={14: [22], 15: [23], 16: [24], 17: [25], 18: [26], 19: [27]}, tlbwarm=False, flagwarm=True, oclr_at=(6, 7), ybar=4, rsleep=6, outsc='sc1', a5_at=22, pack=False, codewarm=5, wowarm=5, warm=False, wo_rot=True, nr8=6, prio_st=True, prio_g1=0, skip=(), spin=0x40000, kvsc='sc1', dbg=(), nodma=False, round_p=True, prio=True, align=True, prof=False,
                nobar=(8, 9, 10, 12, 13, 15, 16, 18, 19, 20, 22, 24, 26), npre=1, f1_step=11, f1_check=24, pre_rate=2, f1r_at=(1, 3),
                wsched={-1: [1, 2], 0: [3], 1: [4], 2: [5], 3: [6, 7, 14], 4: [21, 8, 9], 5: [10, 11], 6: [12, 13], 7: [15, 16], 9: [17, 18], 11: [19, 20]},
                pump_hi=2, pump_hi2=5,  wo_at=15,
                kv_at=((0, 1, 2, 5, 8, 10, 16, 17), (0, 1, 2, 5, 9, 11, 16, 17)), afin_at=18, oa_at=27)

def build(**kw):
    opts = dict(DEFAULTS); opts.update(kw)
    issue = {w: s_ for sch in (opts['wsched'], opts['w1sched']) for s_, ws_ in sch.items() for w in ws_}
    for w in range(1, 28):
        size = lambda x: 8192 if x // 7 in (0, 3) else 4096
        for p in range(w):
            if WADDR[p] < WADDR[w] + size(w) and WADDR[w] < WADDR[p] + size(p):
                b = p + 1
                while b in opts['nobar']: b += 1
                assert issue[w] >= b, (w, p, b)
        b = w
        while b in opts['nobar']: b -= 1
        assert issue[w] < b, (w, b)
    _lbl[0] = 0; PROF[0] = opts['prof']; STAMPS.clear(); DBG.clear(); DBG.update(opts['dbg']); KVSC[0] = opts['kvsc']; PRIO_ST[0] = opts['prio_st']; SPINV[0] = opts['spin']
    k = Stream(); k.cold = Stream()
    prologue(k, opts['NH'])
    ids = {}
    head = k
    streams = []; checks = []
    for grp in range(2):
        fb = Stream(); idg = {}; st_id = None
        if grp == 0:
            g = head.fork()
            prologue0(g, idg)
            rot_offsets(g)
            pro = opts['wsched'][-1]
            if 1 in pro: dma_x(g, 1, True); idg[1] = dma_w(g, 1, True)
            setup2(g)
            if 2 in pro: dma_x(g, 2, True); idg[2] = dma_w(g, 2, True)
            g.e(HEADS()); slice_setup(g); stage0(g, 0, idg, True, opts); pre = g.text(); opts['_gw'] = [g.gw_id, g.wphi_id]; opts['_p6'] = []
        else:
            h1 = head.fork(); prologue1(h1, opts)
            kk, kv = head.fork(), head.fork()
            for z, kt in ((kv, False), (kk, True)):
                z.e(tr_base0(kt)); stage0(z, 1, dict(ids), kt, opts); st_id = stage0_epilogue(z, kt, opts['bar7_at'])
            assert [x[1] for x in kk.vm if not x[1]] == [x[1] for x in kv.vm if not x[1]]
            pre = h1.text() + f'  s_cmp_ge_u32 s{S.j}, 7\n  s_cbranch_scc1 L_vtile\n' + kk.text() + '  s_branch L_mid\nL_vtile:\n' + kv.text() + 'L_mid:\n'
            g = kk
        g = g.fork(); g.cold = Stream(); g.pre = pre
        opts['_k0'] = g; g.g1 = grp == 1
        pend = stages12(g, idg, grp, st_id, opts)
        st = attn_prologue(g, grp, pend, opts)
        js, wo, wa = attention(g, grp, st, opts, pend)
        tail(g, grp, js, wo, wa, opts, fb)
        fb2 = Stream(); fb2.L = fb.L + g.cold.L
        streams.append((g, fb2))
    body = head.text()
    body += streams[0][0].pre + streams[0][0].text() + streams[0][1].text()
    body += 'L_grp1:\n' + streams[1][0].pre + streams[1][0].text() + streams[1][1].text()
    body += 'L_end:\n  s_endpgm\n'
    bl = body.rstrip('\n').split('\n')
    if opts['nopk']: bl = [x for l in bl for x in expand_pk(l)]
    bl, checks = fix_hazards(bl);
    if opts['align']: bl, st_ = align_runs([NAME + ':'] + bl); bl = bl[1:]; checks.append(f'align: widened {st_[0]}, nops {st_[1]}, left {st_[2]}')
    for g1 in (0, 1):
        for vt in (0, 1):
            for opt in (0, 1):
                ch = lambda L: (L == 'L_grp1' and g1) or (L == 'L_vtile' and vt) or (L.startswith('L_w_') and opt) or (L.startswith(('L_dup', 'L_ep')) and not opt) or (L.startswith('L_kq') and opt)
                w_ = check_waits(bl, ch)
                assert not w_ or opts['skip'], w_[:5]
    body = '\n'.join(bl) + '\n'
    ref = open('gated_mix__linear_kernel_hedgehog__softmax_full_mha__prompt.s.ref').read()
    hdr = ref[:ref.index('; @launch')]
    txt = hdr + f'''; @launch grid=(256,1,1) block=(512,1,1) lds=163840
.amdgcn_target "amdgcn-amd-amdhsa--gfx950"
.text
.globl {NAME}
.p2align 8
.type {NAME},@function
{NAME}:
{body}.section .rodata,"a"
.p2align 6
.amdhsa_kernel {NAME}
  .amdhsa_next_free_vgpr 256
  .amdhsa_next_free_sgpr 102
  .amdhsa_accum_offset 256
  .amdhsa_group_segment_fixed_size 0
  .amdhsa_kernarg_size 88
  .amdhsa_user_sgpr_count 2
  .amdhsa_user_sgpr_kernarg_segment_ptr 1
  .amdhsa_system_sgpr_workgroup_id_x 1
.end_amdhsa_kernel
'''
    return txt, checks

if __name__ == '__main__':
    out = sys.argv[1] if len(sys.argv) > 1 else 'gated_mix__linear_kernel_hedgehog__softmax_full_mha__prompt.s'
    kw = {}
    for a in sys.argv[2:]:
        n, v = a.split('='); kw[n] = eval(v)
    txt, msgs = build(**kw)
    for m in msgs: print('  auto', m)
    open(out, 'w').write(txt)
    print('wrote', out, len(txt), 'bytes')
    if STAMPS: open(out + '.stamps', 'w').write('\n'.join(STAMPS))
```

```python
import sys, struct
from asmlib import Stream, fix_hazards, align_runs, check_waits, expand_pk

NAME = 'gated_mix__linear_kernel_hedgehog__softmax_full_mha__prompt_kernel'
def fbits(x): return '0x%08x' % struct.unpack('<I', struct.pack('<f', x))[0]
LOG2E = 1.4426950408889634
QSCALE = 28 ** -0.5 * LOG2E

WS_FLAG1, WS_FLAG2, WS_FLAG3A, WS_FLAG3B = 0x40000, 0x20000, 0x60000, 0x80000
WS_KV, WS_KVP, WS_KVF, WS_OX, WS_DBG = 0x100000, 0x500000, 0x700000, 0x800000, 0x1000000
WS_SIZE = 0x2000000
OOB = 0x40000000
L_WR = 65536
WADDR = [(4+c)*8192 for c in range(7)] + [c*4096 for c in range(7)] + [(7+c)*4096 for c in range(7)] + [c*8192 for c in (7, 8, 9, 10, 0, 1, 2)]
L_PHI, L_QX, L_STG = L_WR + 4*8192, L_WR + 6*8192, L_WR + 7*8192
L_WPHI, L_G, L_SEL = 155648, 159744, 161792
HQ = [4, 6, 2, 3, 0, 5, 1, 7, 8, 14, 10, 15, 12, 13, 9, 11]
L_WOA, L_CX = 98304, 32768
SPINV = [0x8000]

class S:
    X, W, WS, M1, M2, W2 = 4, 8, 12, 16, 20, 68
    pX, pWA, pPHI, pWOA, pWB, pWOB, pGW, pOUT, pWS = 24, 26, 28, 30, 32, 34, 36, 38, 40
    h, tb, w, tt, grp, hA, j, tag, r0, hQ, cw, col = 44, 45, 46, 47, 48, 49, 50, 51, 52, 53, 54, 55
    mX, mW, t0, t1, t2, t3, t4, t5 = 56, 57, 58, 59, 60, 61, 62, 63
    vcm = 64
    rot, sK, mK, spin, rdy, rb = 72, 73, 74, 75, 76, 77
    lo28 = 76
    hi32 = 78
    t6, t7, t8, t9 = 80, 81, 82, 83
    ow, ox = 84, 91
def srd(b): return f's[{b}:{b+3}]'
def vr(b, n): return f'v[{b}:{b+n-1}]' if n > 1 else f'v{b}'

class V:
    lane, i32, hh = 1, 2, 3
    xa0, xa1, w0, ws = 4, 5, 6, 7
    xr = 8
    t0r, t1r, t2r = 12, 6, 14
    g = 15
    t3r = 11
    wsb, ws2, ws2b = 13, 244, 245
    acc0, acc1, P, EP, EM = 16, 32, 48, 64, 80
    wf = 96
    xf = 128
    gw0, gw1, ob = 4, 254, 246
    tmp = 247

def mfma(d, a, b, c): return f'v_mfma_f32_32x32x16_bf16 {vr(d,16)}, {vr(a,4)}, {vr(b,4)}, {c if isinstance(c,str) else vr(c,16)}'
def smfma(d, a, b, idx): return f'v_smfmac_f32_32x32x32_bf16 {vr(d,16)}, {vr(a,4)}, {vr(b,8)}, v{idx}'

PROF = [False, 0]
DBG = set()
KVSC = ['sc1']
PRIO_ST = [True]
STAMPS = []
def stamp(k, name):
    if not PROF[0]: return
    if PROF[0] != True and 'abs:' + name in PROF[0]:
        L = lbl('ab')
        k.e(f'''s_cmp_lg_u32 s{S.w}, 0
s_cbranch_scc1 {L}
s_memrealtime s[98:99]
s_load_dwordx2 s[84:85], s[0:1], 72
s_waitcnt lgkmcnt(0)
s_mov_b32 s86, 256
s_mov_b32 s87, 0x20000
s_not_b32 s99, s101
v_mov_b32 v0, 0
v_writelane_b32 v0, 64, 1
v_mov_b32 v{V.tmp+6}, {'s101' if 'start' in PROF[0] else 's98'}
v_writelane_b32 v{V.tmp+6}, s99, 1
s_mov_b64 exec, 3
buffer_atomic_umax v{V.tmp+6}, v0, s[84:87], 0 offen sc1
s_mov_b64 exec, -1
{L}:''')
        k.dq = []
        return
    if PROF[0] != True and name not in PROF[0]: return
    if name not in STAMPS: STAMPS.append(name)
    n = STAMPS.index(name)
    k.e(f's_memtime s[98:99]\ns_waitcnt lgkmcnt(0)\ns_sub_u32 s98, s98, s100\nv_writelane_b32 v0, s98, {n}')
    if PROF[0] != True and 'rt' in PROF[0]:
        k.e(f's_memrealtime s[98:99]\ns_waitcnt lgkmcnt(0)\ns_sub_u32 s98, s98, s101\nv_writelane_b32 v0, s98, {n+30}')
    k.dq = []
def stamp_dump(k):
    if not PROF[0]: return
    sp = [x for x in PROF[0] if x.startswith('spin')]
    if sp:
        L = lbl('spin'); mode = sp[0][4]
        k.e(f's_or_b32 s90, s2, s{S.w}\ns_cmp_lg_u32 s90, 0\ns_cbranch_scc1 {L}_e')
        if mode == 'A': k.e('s_add_u32 s91, s101, 6000')
        if mode == 'B': k.e('s_memrealtime s[98:99]\ns_waitcnt lgkmcnt(0)\ns_sub_u32 s91, s98, s101\ns_mul_i32 s91, s91, 4\ns_add_u32 s91, s91, s98')
        if mode == 'C': k.e('s_memtime s[98:99]\ns_waitcnt lgkmcnt(0)\ns_add_u32 s91, s98, 100000')
        if mode == 'E':
            k.e(f's_load_dwordx2 s[84:85], s[0:1], 72\ns_waitcnt vmcnt(0) lgkmcnt(0)\ns_mov_b32 s86, 256\ns_mov_b32 s87, 0x20000\nbuffer_load_dword v{V.tmp}, v0, s[84:87], 0 offen sc1\ns_memrealtime s[98:99]\ns_waitcnt vmcnt(0) lgkmcnt(0)\nv_readlane_b32 s90, v{V.tmp}, 0\nv_readlane_b32 s91, v{V.tmp}, 1\ns_nop 3\ns_not_b32 s91, s91\ns_sub_u32 s90, s90, s91\ns_lshl_b32 s90, s90, 2\ns_add_u32 s91, s90, s98')
        if mode == 'F':
            k.e('s_memrealtime s[98:99]\nv_readlane_b32 s90, v0, 30\ns_waitcnt lgkmcnt(0)\ns_lshl_b32 s90, s90, 2\ns_add_u32 s91, s90, s98')
        if mode == 'D':
            k.e('s_memrealtime s[98:99]\nv_readlane_b32 s90, v0, 0\ns_waitcnt lgkmcnt(0)\ns_mul_i32 s90, s90, 13107\ns_lshr_b32 s90, s90, 16\ns_add_u32 s91, s90, s98')
        k.e(f'{L}:\n{"s_memtime" if mode == "C" else "s_memrealtime"} s[98:99]\ns_waitcnt lgkmcnt(0)\ns_sub_u32 s90, s98, s91\ns_cmp_lt_i32 s90, 0\ns_cbranch_scc1 {L}\n{L}_e:')
        return
    if 'dbg' in PROF[0]:
        T = V.tmp
        k.e(f'''s_memrealtime s[98:99]
s_memtime s[96:97]
s_load_dwordx2 s[92:93], s[0:1], 72
s_getreg_b32 s90, hwreg(HW_REG_XCC_ID, 0, 4)
s_waitcnt lgkmcnt(0)
s_mov_b32 s94, 256
s_mov_b32 s95, 0x20000
s_sub_u32 s96, s96, s100
s_sub_u32 s91, s98, s101
s_not_b32 s89, s101
v_mov_b32 v{T}, 0
v_mov_b32 v{T+1}, s98
v_writelane_b32 v{T}, 4, 1
v_writelane_b32 v{T+1}, s89, 1
v_writelane_b32 v{T}, 8, 2
v_writelane_b32 v{T+1}, s101, 2
v_writelane_b32 v{T}, 12, 3
v_writelane_b32 v{T+1}, s96, 3
v_writelane_b32 v{T}, 16, 4
v_writelane_b32 v{T+1}, s91, 4
s_lshl_b32 s90, s90, 2
s_add_u32 s90, s90, 32
v_writelane_b32 v{T}, s90, 5
v_writelane_b32 v{T+1}, s89, 5
s_mov_b64 exec, 63
buffer_atomic_umax v{T+1}, v{T}, s[92:95], 0 offen''')
        return
    k.e(f'''s_memrealtime s[98:99]
s_waitcnt lgkmcnt(0)
v_writelane_b32 v0, s98, 63
v_writelane_b32 v0, s101, 62
s_lshl_b32 s98, s2, 3
s_add_u32 s98, s98, s{S.w}
s_lshl_b32 s98, s98, 8
s_add_u32 s98, s98, {WS_DBG}
v_lshl_add_u32 v{V.tmp}, v{V.lane}, 2, s98
buffer_store_dword v0, v{V.tmp}, {srd(S.WS)}, 0 offen''')

def set_srd(k, b, ptr, n):
    k.e(f's_mov_b32 s{b}, s{ptr}\ns_mov_b32 s{b+1}, s{ptr+1}\ns_mov_b32 s{b+2}, {n}\ns_mov_b32 s{b+3}, 0x20000')

def prologue(k, NH):
    T = V.tmp
    lg = {2: 1, 4: 2, 8: 3, 16: 4}[NH]; ng = 16 // NH
    k.e(f'''
s_cmp_ge_u32 s2, 256
s_cbranch_scc1 L_end
{'s_memtime s[100:101]' if PROF[0] else ''}
{'s_memrealtime s[98:99]' if PROF[0] else ''}
s_load_dwordx4 s[24:27], s[0:1], 0
s_load_dwordx4 s[32:35], s[0:1], 40
v_lshrrev_b32 v{T}, 6, v0
s_load_dwordx2 s[40:41], s[0:1], 80
v_readfirstlane_b32 s{S.w}, v{T}
s_load_dwordx4 s[28:31], s[0:1], 16
s_load_dwordx4 s[36:39], s[0:1], 56
v_and_b32 v{V.lane}, 63, v0
s_and_b32 s{S.t0}, s2, 7
s_lshr_b32 s{S.t1}, s2, 3
s_and_b32 s{S.h}, s{S.t0}, {ng-1}
s_and_b32 s{S.t2}, s{S.t1}, {NH-1}
s_lshl{lg}_add_u32 s{S.h}, s{S.h}, s{S.t2}
s_lshr_b32 s{S.tb}, s{S.t0}, {4-lg}
s_lshr_b32 s{S.t2}, s{S.t1}, {lg}
s_lshl{5-lg}_add_u32 s{S.tb}, s{S.tb}, s{S.t2}
s_and_b32 s{S.tt}, s{S.w}, 3
s_cmp_ge_u32 s{S.w}, 4
s_cbranch_scc1 L_grp1
''')
ROT0 = lambda: f'''; rotation r0 = (2 h + 3 tb) mod 7
s_mul_i32 s{S.t2}, s{S.tb}, 3
s_lshl1_add_u32 s{S.r0}, s{S.h}, s{S.t2}
s_mul_i32 s{S.t2}, s{S.r0}, 147
s_lshr_b32 s{S.t2}, s{S.t2}, 10
s_mul_i32 s{S.t2}, s{S.t2}, 7
s_sub_u32 s{S.r0}, s{S.r0}, s{S.t2}
s_lshl_b32 s{S.ox}, s{S.r0}, 7'''
TILE = lambda: f'''; tile j = h - (h>5) - (h>10); idle when h is 5 or 10
s_cmp_gt_u32 s{S.h}, 5
s_subb_u32 s{S.j}, s{S.h}, 0
s_cmp_gt_u32 s{S.h}, 10
s_subb_u32 s{S.j}, s{S.j}, 0'''
HEADS = lambda: f'''s_xor_b32 s{S.hA}, s{S.h}, 1
s_mov_b32 s{S.vcm}, {sum(HQ[i] << (4*i) for i in range(8))}
s_mov_b32 s{S.vcm+1}, {sum(HQ[8+i] << (4*i) for i in range(8))}
s_lshl_b32 s{S.t2}, s{S.h}, 2
s_lshr_b64 s[{S.vcm}:{S.vcm+1}], s[{S.vcm}:{S.vcm+1}], s{S.t2}
s_and_b32 s{S.hQ}, s{S.vcm}, 15'''
def prologue0(k, ids):
    T = V.tmp
    k.e(ROT0())
    k.e(f'''
s_lshl_b32 s{S.mX}, s{S.w}, 11
v_lshrrev_b32 v{T}, 3, v{V.lane}
v_and_b32 v{T+1}, 7, v{V.lane}
v_bfe_u32 v{T+2}, v{V.lane}, 4, 2
v_xor_b32 v{T+2}, v{T+1}, v{T+2}
v_mul_u32_u24 v{V.xa0}, 896, v{T}
v_lshl_add_u32 v{V.xa0}, v{T+2}, 4, v{V.xa0}
s_lshl3_add_u32 s{S.t2}, s{S.tb}, s{S.w}
s_mul_i32 s{S.t2}, s{S.t2}, 14336
v_add_u32 v{V.xa0}, s{S.t2}, v{V.xa0}
v_add_u32 v{V.xa1}, 7168, v{V.xa0}
v_xor_b32 v{V.xa1}, 64, v{V.xa1}
s_mov_b32 s{S.X+2}, 1835008
s_mov_b32 s{S.X+3}, 0x20000
s_waitcnt lgkmcnt(0)
{'s_mov_b32 s101, s98' if PROF[0] else ''}
s_mov_b32 s{S.X}, s{S.pX}
s_mov_b32 s{S.X+1}, s{S.pX+1}
''')
    dma_x(k, 0, True)
    k.e(TILE())
    k.e(f'''
s_mul_i32 s{S.ow}, s{S.ox}, 1344
s_lshl_b32 s{S.mW}, s{S.w}, 10
s_add_u32 s{S.mW}, s{S.mW}, {L_WR}
v_bfe_u32 v{T+2}, v{V.lane}, 4, 1
v_lshlrev_b32 v{T+2}, 2, v{T+2}
v_xor_b32 v{T+2}, v{T+1}, v{T+2}
v_mul_u32_u24 v{V.w0}, 2688, v{T}
v_lshl_add_u32 v{V.w0}, v{T+2}, 4, v{V.w0}
s_mul_i32 s{S.t2}, s{S.w}, 21504
s_lshl_b32 s{S.t3}, s{S.j}, 7
s_add_u32 s{S.t2}, s{S.t2}, s{S.t3}
s_add_u32 s{S.t2}, s{S.t2}, 896
v_add_u32 v{V.w0}, s{S.t2}, v{V.w0}
s_cmp_eq_u32 s{S.h}, 5
s_cselect_b32 s{S.t4}, 0, 1204224
s_cmp_eq_u32 s{S.h}, 10
s_cselect_b32 s{S.W+2}, 0, s{S.t4}
s_mov_b32 s{S.W+3}, 0x20000
s_mov_b32 s{S.W}, s{S.pWB}
s_mov_b32 s{S.W+1}, s{S.pWB+1}
''')
    ids[0] = dma_w(k, 0, True)
    k.e(f's_load_dword s{S.tag}, s[{S.pWS}:{S.pWS+1}], 0')
def prologue1(k, opts):
    k.e(TILE()); k.e(HEADS())
    if opts['codewarm']:
        k.e(f'''s_getpc_b64 s[{S.vcm}:{S.vcm+1}]
L_pc:
s_lshl2_add_u32 s{S.t2}, s{S.t1}, s{S.tt}
s_mul_i32 s{S.t2}, s{S.t2}, {opts['codewarm']*64}
s_min_u32 s{S.t2}, s{S.t2}, L_end-{NAME}-{opts['codewarm']*64}
s_sub_u32 s{S.vcm}, s{S.vcm}, L_pc-{NAME}
s_subb_u32 s{S.vcm+1}, s{S.vcm+1}, 0
s_add_u32 s{S.vcm}, s{S.vcm}, s{S.t2}
s_addc_u32 s{S.vcm+1}, s{S.vcm+1}, 0''')
    k.e(f'''s_waitcnt lgkmcnt(0)
{'s_mov_b32 s101, s98' if PROF[0] else ''}
s_load_dword s{S.tag}, s[{S.pWS}:{S.pWS+1}], 0''')
    for q in range(opts['codewarm']): k.e(f's_load_dword s{S.spin}, s[{S.vcm}:{S.vcm+1}], {q*64}')
    if opts['flagwarm']:
        ld = f's_load_dword s{S.spin}, s[{S.pWS}:{S.pWS+1}], s{S.t3}'
        k.e(f'''s_lshl4_add_u32 s{S.t2}, s{S.j}, s{S.tb}
s_lshl2_add_u32 s{S.t2}, s{S.t2}, s{S.tt}
s_lshl_b32 s{S.t2}, s{S.t2}, 6
s_add_u32 s{S.t3}, s{S.t2}, {WS_FLAG1}
{ld}
s_lshl3_add_u32 s{S.t2}, s{S.hA}, s{S.tt}
s_lshl4_add_u32 s{S.t2}, s{S.t2}, s{S.tb}
s_lshl_b32 s{S.t2}, s{S.t2}, 6
s_add_u32 s{S.t3}, s{S.t2}, {WS_FLAG2}
{ld}
s_add_u32 s{S.t3}, s{S.t2}, {WS_FLAG2 + 4096}
{ld}
s_lshl2_add_u32 s{S.t4}, s{S.tb}, s{S.tt}
s_lshl4_add_u32 s{S.t2}, s{S.t4}, s{S.hQ}
s_lshl_b32 s{S.t2}, s{S.t2}, 6
s_add_u32 s{S.t3}, s{S.t2}, {WS_FLAG3A}
{ld}
s_lshl4_add_u32 s{S.t2}, s{S.t4}, s{S.h}
s_lshl_b32 s{S.t2}, s{S.t2}, 7
s_add_u32 s{S.t3}, s{S.t2}, {WS_FLAG3B}
{ld}
s_add_u32 s{S.t3}, s{S.t2}, {WS_FLAG3B + 64}
{ld}''')
    if opts['tlbwarm']:
        k.e(f'''s_lshl2_add_u32 s{S.t2}, s{S.t1}, s{S.tt}
s_lshl_b32 s{S.t3}, s{S.t2}, 17
s_load_dword s{S.spin}, s[{S.pWS}:{S.pWS+1}], s{S.t3}
s_add_u32 s{S.t3}, s{S.t3}, 0x10000
s_load_dword s{S.spin}, s[{S.pWS}:{S.pWS+1}], s{S.t3}
s_and_b32 s{S.t3}, s{S.t2}, 31
s_lshl_b32 s{S.t3}, s{S.t3}, 16
s_lshr_b32 s{S.t2}, s{S.t2}, 5
s_mov_b32 s{S.t6}, s{S.pOUT}
s_mov_b32 s{S.t6+1}, s{S.pOUT+1}
s_mov_b32 s{S.t4}, 1835004
s_cmp_eq_u32 s{S.t2}, 1
s_cselect_b32 s{S.t6}, s{S.pWA}, s{S.t6}
s_cselect_b32 s{S.t6+1}, s{S.pWA+1}, s{S.t6+1}
s_cselect_b32 s{S.t4}, 1204220, s{S.t4}
s_cmp_eq_u32 s{S.t2}, 2
s_cselect_b32 s{S.t6}, s{S.pWOA}, s{S.t6}
s_cselect_b32 s{S.t6+1}, s{S.pWOA+1}, s{S.t6+1}
s_cselect_b32 s{S.t4}, 401404, s{S.t4}
s_cmp_eq_u32 s{S.t2}, 3
s_cselect_b32 s{S.t6}, s{S.pWOB}, s{S.t6}
s_cselect_b32 s{S.t6+1}, s{S.pWOB+1}, s{S.t6+1}
s_cselect_b32 s{S.t4}, 401404, s{S.t4}
s_min_u32 s{S.t3}, s{S.t3}, s{S.t4}
s_load_dword s{S.spin}, s[{S.t6}:{S.t6+1}], s{S.t3}''')
    k.e(ROT0()); rot_offsets(k); setup2(k)

def rot_offsets(k):
    for q in range(1, 7):
        k.e(f's_add_u32 s{S.ox+q}, s{S.ox+q-1}, 128\ns_cmp_eq_u32 s{S.ox+q}, 896\ns_cselect_b32 s{S.ox+q}, 0, s{S.ox+q}\ns_mul_i32 s{S.ow+q}, s{S.ox+q}, 1344')
def dma_x(k, s, both=False):
    for p in range(2 if both else 1):
        so = S.ox + s
        for a, v in ((0, V.xa0), (1, V.xa1)):
            k.e(f's_add_u32 m0, s{S.mX}, {(s%4)*16384 + p*8192 + a*1024}')
            if p and not a: k.e(f's_add_u32 s{S.t0}, s{so}, 57344')
            else: k.e('s_nop 0')
            x = k.vmop(f'buffer_load_dwordx4 v{v}, {srd(S.X)}, s{S.t0 if p else so} offen lds')
    return x
def dma_w(k, s, both=False):
    st = s // 7; so = S.ow + s % 7
    for p in range(2 if st in (0, 3) else 1):
        k.e(f's_add_u32 m0, s{S.mW}, {WADDR[s] + p*4096}')
        if st == 0:
            k.e(f's_add_u32 s{S.t0}, s{so}, 86016' if p else 's_nop 0')
            x = k.vmop(f'buffer_load_dwordx4 v{V.w0}, {srd(S.W)}, s{S.t0 if p else so} offen lds')
        else:
            k.e('s_nop 0')
            x = k.vmop(f'buffer_load_dwordx4 v{[[V.ws], [V.ws2], [V.ws2b, V.ws2 if getattr(k, "g1", False) else V.wsb]][st-1][p]}, {srd(S.W2 if (st == 3 and p == 0) else S.M2)}, s{so} offen lds')
    return x
def slice_setup(k, grp=0):
    T = V.tmp
    set_srd(k, S.M2, S.pWA, 1204224); set_srd(k, S.W2, S.pWB, 1204224)
    k.e(f'''s_mul_i32 s{S.t2}, s{S.tt}, 43008
v_lshrrev_b32 v{T}, 2, v{V.lane}
v_mul_u32_u24 v{T}, 2688, v{T}
v_and_b32 v{T+1}, 3, v{V.lane}
v_lshl_add_u32 v{T}, v{T+1}, 4, v{T}
v_lshrrev_b32 v{T+2}, 1, v{T+1}
v_and_b32 v{T+2}, v{T+2}, v{T+1}
v_lshlrev_b32 v{T+2}, 3, v{T+2}
v_sub_u32 v{T}, v{T}, v{T+2}
v_add_u32 v{T}, s{S.t2}, v{T}
s_mul_i32 s{S.t0}, s{S.hA}, 56
s_mul_i32 s{S.t1}, s{S.hQ}, 56
s_mul_i32 s{S.t3}, s{S.h}, 56
s_add_u32 s{S.t0}, s{S.t0}, 896
v_add_u32 v{V.ws2}, s{S.t0}, v{T}
v_add_u32 v{V.ws2b}, s{S.t3}, v{T}''')
    if grp == 0: k.e(f'v_add_u32 v{V.ws}, s{S.t1}, v{T}\nv_add_u32 v{V.wsb}, 896, v{V.ws2}')
    else: k.e(f's_mul_i32 s{S.ow}, s{S.ox}, 1344\nv_add_u32 v{V.ws2}, 896, v{V.ws2}\ns_lshl_b32 s{S.mW}, s{S.tt}, 10\ns_add_u32 s{S.mW}, s{S.mW}, {L_WR}')

def setup2(k, ws=True):
    T = V.tmp
    k.e(f'''
v_and_b32 v{V.i32}, 31, v{V.lane}
v_lshrrev_b32 v{V.hh}, 5, v{V.lane}
v_bfe_u32 v{T}, v{V.lane}, 1, 3
v_xor_b32 v{T}, v{T}, v{V.hh}
v_lshlrev_b32 v{T}, 4, v{T}
v_lshl_add_u32 v{T}, v{V.i32}, 7, v{T}
s_lshl_b32 s{S.t2}, s{S.tt}, 12
v_add_u32 v{V.xr}, s{S.t2}, v{T}
v_xor_b32 v{V.xr+1}, 32, v{V.xr}
v_xor_b32 v{V.xr+2}, 64, v{V.xr}
v_xor_b32 v{V.xr+3}, 96, v{V.xr}
s_mov_b32 s{S.hi32}, 0
s_mov_b32 s{S.hi32+1}, -1
''')
    if ws: set_srd(k, S.WS, S.pWS, WS_SIZE)
def colgrp(dst, swap):
    a = f'v_and_b32 v{dst}, 3, v{V.lane}\n' if not swap else f'v_and_b32 v{dst}, 1, v{V.lane}\nv_bfe_u32 v{dst+1}, v{V.lane}, 1, 1\nv_lshl_or_b32 v{dst}, v{dst}, 1, v{dst+1}\n'
    return a + f'''v_bfe_u32 v{dst+1}, v{V.lane}, 4, 1
v_lshl_or_b32 v{dst}, v{dst+1}, 2, v{dst}
v_bfe_u32 v{dst+1}, v{V.lane}, 2, 2
v_lshl_or_b32 v{dst+1}, v{V.hh}, 3, v{dst+1}
'''
def tr_base0(ktype):
    T = V.tmp
    return colgrp(T, ktype) + f'''v_bfe_u32 v{T+2}, v{V.lane}, 3, 1
v_lshlrev_b32 v{T+2}, 6, v{T+2}
v_lshl_add_u32 v{T+2}, v{T}, 3, v{T+2}
v_lshl_add_u32 v{T+2}, v{T+1}, 7, v{T+2}
v_add_u32 v{V.t0r}, {L_WR + WADDR[0]}, v{T+2}
v_xor_b32 v{V.t0r+1}, 64, v{V.t0r}'''
def tr_base(dst, base, swap, parity):
    T = V.tmp
    a = colgrp(T, swap)
    if parity: a += f's_and_b32 s{S.t3}, s{S.h}, 1\nv_subrev_u32 v{T}, s{S.t3}, v{T}\nv_and_b32 v{T}, 7, v{T}\n'
    return a + f'''v_lshrrev_b32 v{T+2}, 1, v{T}
v_lshrrev_b32 v{T+3}, 2, v{T}
v_and_b32 v{T+2}, v{T+2}, v{T+3}
v_and_b32 v{T+2}, 1, v{T+2}
v_xor_b32 v{T}, v{T}, v{T+2}
v_lshlrev_b32 v{T}, 3, v{T}
v_lshl_add_u32 v{T}, v{T+1}, 6, v{T}
v_add_u32 v{dst}, {L_WR + base}, v{T}'''

def wphi_load(k):
    T = V.tmp
    set_srd(k, S.X, S.pPHI, 25088)
    k.e(f'''
s_lshl_b32 s{S.t2}, s{S.tt}, 3
v_lshrrev_b32 v{T+1}, 3, v{V.lane}
v_add_u32 v{T+1}, s{S.t2}, v{T+1}
v_add_u32 v{T+2}, 1, v{V.lane}
v_and_b32 v{T+2}, 7, v{T+2}
v_max_u32 v{T+2}, 1, v{T+2}
v_mul_u32_u24 v{T+3}, 56, v{T+1}
v_lshl_add_u32 v{T+3}, v{T+2}, 3, v{T+3}
v_add_u32 v{T+1}, 4, v{T+1}
v_lshrrev_b32 v{T+1}, 5, v{T+1}
v_subrev_u32 v{T+3}, 8, v{T+3}
v_lshl_or_b32 v{T+3}, v{T+1}, 30, v{T+3}
s_mul_i32 s{S.t2}, s{S.hA}, 1568
s_mul_i32 s{S.t3}, s{S.hQ}, 1568
''')
    k.vmop(f'buffer_load_dwordx2 v[{V.EM}:{V.EM+1}], v{T+3}, {srd(S.X)}, s{S.t2} offen')
    k.wphi_id = k.vmop(f'buffer_load_dwordx2 v[{V.EM+2}:{V.EM+3}], v{T+3}, {srd(S.X)}, s{S.t3} offen')
def gate_load(k):
    T = V.tmp
    set_srd(k, S.X, S.pGW, 896)
    k.e(f'''v_lshrrev_b32 v{T}, 4, v{V.lane}
v_add_u32 v{T}, s{S.r0}, v{T}
v_and_b32 v{T+2}, 15, v{V.lane}
v_lshlrev_b32 v{T+2}, 1, v{T+2}
s_lshl_b32 s{S.t2}, s{S.tt}, 5
v_add_u32 v{T+2}, s{S.t2}, v{T+2}
v_mov_b32 v{V.gw0+1}, 0
v_mov_b32 v{V.gw1+1}, 0''')
    for a, r in ((0, V.gw0), (4, V.gw1)):
        k.e(f'v_add_u32 v{T+1}, {a}, v{T}\nv_subrev_u32 v{T+3}, 7, v{T+1}\nv_min_u32 v{T+1}, v{T+1}, v{T+3}\nv_lshl_add_u32 v{T+1}, v{T+1}, 7, v{T+2}')
        x = k.vmop(f'buffer_load_ushort v{r}, v{T+1}, {srd(S.X)}, 0 offen')
    k.gw_id = x
    return x

def active(s, grp): return grp == [1, 0, 1, 0][s // 7]
def reads(s, grp):
    st = s // 7; buf = V.wf + 16*(s % 2); out = []
    for q in range(4):
        if st == 0:
            out.append(f'ds_read_b128 {vr(V.xf+16*s+4*q,4)}, v{V.xr+q} offset:{(s % 4)*16384}')
            if grp == 1:
                for cs, b in ((0, buf), (1, [V.P, V.EM][s % 2])):
                    for jh in range(2):
                        out.append(f'ds_read_b64_tr_b16 {vr(b+4*q+2*jh,2)}, v{V.t0r+cs} offset:{WADDR[s]-WADDR[0]+q*2048+jh*512}')
        elif active(s, grp):
            if st < 3:
                for jh in range(2):
                    out.append(f'ds_read_b64_tr_b16 {vr(buf+4*q+2*jh,2)}, v{[V.t0r, V.t1r][st-1]} offset:{WADDR[s]+q*1024+jh*256}')
            else:
                if s == 25 and q == 0: out.append(f'v_subrev_u32 v{V.t2r}, {WADDR[21]}, v{V.t2r}\nv_subrev_u32 v{V.t3r}, {WADDR[21]}, v{V.t3r}')
                for b, t in ((buf, V.t2r), ([V.P, V.EM][s % 2], V.t3r)):
                    for jh in range(2):
                        out.append(f'ds_read_b64_tr_b16 {vr(b+4*q+2*jh,2)}, v{t} offset:{WADDR[s]-(WADDR[21] if s < 25 else 0)+q*1024+jh*256}')
    return out
def mfmas(s, grp, ktype=True):
    st = s // 7; c = s % 7; buf = V.wf + 16*(s % 2); out = []
    if not active(s, grp): return []
    b2 = [V.P, V.EM][s % 2]
    tiles = [[(V.acc0, buf, ktype), (V.acc1, b2, ktype)], [(V.acc1, buf, True)], [(V.acc1, buf, True)], [(V.acc0, buf, True), (V.EP, b2, False)]][st]
    for q in range(4):
        for acc, b, wfirst in tiles:
            x = V.xf + 16*c + 4*q; w = b + 4*q
            cin = '0' if (c == 0 and q == 0) else acc
            out.append(mfma(acc, w, x, cin) if wfirst else mfma(acc, x, w, cin))
    return out
def nlines(p): return sum(2 if l.strip().startswith('v_pk_') else 1 for l in p.strip().split('\n') if l.strip()) if isinstance(p, str) else p.n
class Job:
    def __init__(self, f, n): self.f, self.n = f, n
def emit(k, p):
    if isinstance(p, str): k.e(p)
    else: p.f()
def split_pieces(pieces, nslots):
    tot = sum(nlines(p) for p in pieces); out = [[] for _ in range(nslots)]; acc = 0
    for p in pieces:
        out[min(nslots-1, int((acc + nlines(p)/2) * nslots / max(tot, 1)))].append(p); acc += nlines(p)
    return out
def lines(txt): return [l for l in txt.strip().split('\n') if l.strip()]

def cvt16(k, dst, src):
    for q in range(8): k.e(f'v_cvt_pk_bf16_f32 v{dst+q}, v{src+2*q}, v{src+2*q+1}')

def epi0_addr_k():
    T = V.tmp; k = Stream()
    k.e(f'''
s_lshl_b32 s{S.t2}, s{S.j}, 3
v_and_b32 v{T}, 0x13, v{V.i32}
v_bfe_u32 v{T+1}, v{V.i32}, 2, 1
v_lshl_or_b32 v{T}, v{T+1}, 3, v{T}
v_bfe_u32 v{T+1}, v{V.i32}, 3, 1
v_lshl_or_b32 v{T}, v{T+1}, 2, v{T}
v_lshlrev_b32 v{T}, 4, v{T}
s_lshl_b32 s{S.t3}, s{S.tb}, 2
s_add_u32 s{S.t3}, s{S.t3}, s{S.tt}
s_lshl_b32 s{S.t3}, s{S.t3}, 12
s_add_u32 s{S.t3}, s{S.t3}, {WS_KV}
v_add_u32 v{V.EP+8}, s{S.t3}, v{T}
v_add_u32 v{V.EP+9}, s{S.t2}, v{V.hh}
''')
    out = ['\n'.join(k.L)]
    for n in range(4):
        D = V.EP + 4*(n//2) + n % 2
        out.append(f'''v_add_u32 v{T+1}, {2*n}, v{V.EP+9}
v_mul_u32_u24 v{T+2}, 37, v{T+1}
v_lshrrev_b32 v{T+2}, 8, v{T+2}
v_mul_u32_u24 v{T+3}, 7, v{T+2}
v_sub_u32 v{T+3}, v{T+1}, v{T+3}
v_lshrrev_b32 v{T+4}, 2, v{T+3}
v_lshl_add_u32 v{T+5}, v{T+2}, 1, v{T+4}
v_mul_u32_u24 v{T+4}, 3, v{T+4}
v_sub_u32 v{T+4}, v{T+3}, v{T+4}
v_lshl_add_u32 v{D}, v{T+5}, 18, v{V.EP+8}
v_lshl_add_u32 v{D}, v{T+4}, 9, v{D}
v_lshl_add_u32 v{D+2}, v{T+2}, 19, v{V.EP+8}
v_add_u32 v{D+2}, 0x40000, v{D+2}
v_xor_b32 v{T+3}, 3, v{T+3}
v_min_u32 v{T+3}, 1, v{T+3}
v_lshl_or_b32 v{D+2}, v{T+3}, 30, v{D+2}''')
    return out
def epi0_addr_v():
    T = V.tmp; out = []
    for cs in range(2):
        D = V.EP + 4*cs; C = V.EP + 8 + 4*cs
        out.append(f'''s_sub_u32 s{S.t2}, s{S.j}, 7
s_lshl_b32 s{S.t2}, s{S.t2}, 6
s_add_u32 s{S.t2}, s{S.t2}, {32*cs}
v_add_u32 v{T}, s{S.t2}, v{V.i32}
v_mul_u32_u24 v{T+1}, 2341, v{T}
v_lshrrev_b32 v{T+1}, 16, v{T+1}
v_mul_u32_u24 v{T+2}, 28, v{T+1}
v_sub_u32 v{T+2}, v{T}, v{T+2}
s_lshl_b32 s{S.t3}, s{S.tb}, 2
s_add_u32 s{S.t3}, s{S.t3}, s{S.tt}
s_lshl_b32 s{S.t3}, s{S.t3}, 12
s_add_u32 s{S.t3}, s{S.t3}, {WS_KV + 2048}
v_lshlrev_b32 v{T+1}, 18, v{T+1}
v_lshl_add_u32 v{T+1}, v{T+2}, 4, v{T+1}
v_lshlrev_b32 v{T+3}, 9, v{V.hh}
v_add3_u32 v{D}, v{T+1}, v{T+3}, s{S.t3}
v_add_u32 v{D+1}, 1024, v{D}
v_lshrrev_b32 v{T+3}, 2, v{T+2}
v_min_u32 v{T+3}, 1, v{T+3}
v_add_u32 v{D+2}, 448, v{D}
v_lshl_or_b32 v{D+2}, v{T+3}, 30, v{D+2}
v_add_u32 v{D+3}, 1024, v{D+2}
v_min_u32 v{T+2}, 1, v{T+2}
v_subrev_u32 v{T+2}, 1, v{T+2}
v_and_b32 v{C}, 0x3f803f80, v{T+2}
v_mov_b32 v{C+1}, v{C}
v_mov_b32 v{C+2}, v{C}
v_mov_b32 v{C+3}, v{C}''')
    return out

class A:
    ks, vs, kv0, kv1, idx, m = 12, 126, 8, 9, 10, 11
    a0, a1, a2 = 7, 124, 14
    f0, f1 = 4, 5
    Q, KF, V0, V1, O, NM, SA, SB, PHQ = 128, 136, 144, 112, 160, 176, 192, 208, 32
    l = 152; t = 153
    WOA, OF, RED = 16, 80, 48
    WOB, ACC = 176, 128
    wsrc = 13
    wb = 240
    eps = 6
    one = 125
    y0, y1 = 244, 245

def wphi_reads(grp):
    T = V.tmp
    a = lines(colgrp(T, False) + f'v_lshlrev_b32 v{T}, 3, v{T}\nv_lshl_add_u32 v{T}, v{T+1}, 6, v{T}\nv_add_u32 v{T}, {L_WPHI + grp*2048}, v{T}')
    for s in range(2):
        for jh in range(2): a.append(f'ds_read_b64_tr_b16 {vr(V.EM+4*s+2*jh,2)}, v{T} offset:{s*1024+jh*256}')
    a.append(f's_mov_b32 s{S.t6}, {fbits(LOG2E)}')
    return a

def feat_pieces(src, dst, query, round_p=True):
    T = V.tmp; P, EP, EM = V.P, V.EP, V.EM
    sA = S.t6; c = []
    c += [f'v_cvt_pk_bf16_f32 v{EM+8+q}, v{src+2*q}, v{src+2*q+1}' for q in range(8)]
    c += [mfma(P, EM, EM+8, '0') + '\n' + mfma(P, EM+4, EM+12, P), 'WAITP']
    if round_p:
        c += [f'v_cvt_pk_bf16_f32 v{EP+q}, v{P+2*q}, v{P+2*q+1}' for q in range(8)]
        for q in range(8): c += [f'v_lshlrev_b32 v{P+2*q}, 16, v{EP+q}', f'v_and_b32 v{P+2*q+1}, 0xffff0000, v{EP+q}']
    c += [f'v_max3_f32 v{T}, v{P}, v{P+1}, v{P+2}', f'v_max3_f32 v{T+1}, -v{P}, -v{P+1}, -v{P+2}']
    for q in range(3, 15, 2):
        c += [f'v_max3_f32 v{T}, v{T}, v{P+q}, v{P+q+1}', f'v_max3_f32 v{T+1}, v{T+1}, -v{P+q}, -v{P+q+1}']
    c.append(f'''v_max_f32 v{T}, v{T}, v{P+15}
v_max_f32_e64 v{T+1}, v{T+1}, -v{P+15}
v_sub_u32 v{T+2}, 0, v{V.hh}
v_and_b32 v{T+2}, 0x7f800000, v{T+2}
v_permlane32_swap_b32 v{T}, v{T+1}
v_max_f32 v{T}, v{T}, v{T+1}
v_mul_f32 v{T+1}, s{sA}, v{T}
v_mul_f32 v{T+3}, s{sA}, v{T}
s_nop 1
v_permlane32_swap_b32 v{T+1}, v{T+3}''')
    for q in range(8):
        if q == 6: c.append(f'v_add_f32 v{T+1}, v{T+1}, v{T+2}\nv_add_f32 v{T+3}, v{T+3}, v{T+2}')
        c.append(f'v_pk_fma_f32 {vr(EP+2*q,2)}, {vr(P+2*q,2)}, s[{sA}:{sA+1}], {vr(T+1,2)} op_sel_hi:[1,0,0] neg_lo:[0,0,1] neg_hi:[0,0,1]')
        c.append(f'v_pk_fma_f32 {vr(EM+2*q,2)}, {vr(P+2*q,2)}, s[{sA}:{sA+1}], {vr(T+3,2)} op_sel_hi:[1,0,0] neg_lo:[1,0,1] neg_hi:[1,0,1]')
    c += [f'v_exp_f32 v{EP+q}, v{EP+q}\n; x' for q in range(16)]
    c += [f'v_exp_f32 v{EM+q}, v{EM+q}\n; x' for q in range(16)]
    c += [f'v_pk_add_f32 {vr(T+1,2)}, {vr(EP,2)}, {vr(EP+2,2)}', f'v_pk_add_f32 {vr(T+3,2)}, {vr(EM,2)}, {vr(EM+2,2)}']
    for q in range(2, 8):
        c += [f'v_pk_add_f32 {vr(T+1,2)}, {vr(T+1,2)}, {vr(EP+2*q,2)}', f'v_pk_add_f32 {vr(T+3,2)}, {vr(T+3,2)}, {vr(EM+2*q,2)}']
    a = f'''v_add_f32 v{T+1}, v{T+1}, v{T+2}
v_add_f32 v{T+3}, v{T+3}, v{T+4}
s_nop 1
v_permlane32_swap_b32 v{T+1}, v{T+3}
v_add_f32 v{T+1}, v{T+1}, v{T+3}
'''
    if not query:
        a += f'v_rcp_f32 v{T+1}, v{T+1}\ns_nop 0\nv_mov_b32 v{T+3}, v{T+1}\ns_nop 1\nv_permlane32_swap_b32 v{T+1}, v{T+3}'
    else:
        a += f'v_mov_b32 v{T+3}, v{T+1}\ns_nop 1\nv_permlane32_swap_b32 v{T+1}, v{T+3}\nv_rcp_f32 v{T+3}, v{T+3}\nv_mul_f32 v{A.eps}, {fbits(1e-6)}, v{T+1}\nv_mul_f32 v{T+3}, v{T+3}, v{T+1}'
    c.append(a)
    for q in range(8):
        if not query: c.append(f'v_pk_mul_f32 {vr(EP+2*q,2)}, {vr(EP+2*q,2)}, {vr(T+1,2)} op_sel_hi:[1,0]')
        c.append(f'v_pk_mul_f32 {vr(EM+2*q,2)}, {vr(EM+2*q,2)}, {vr(T+3,2)} op_sel_hi:[1,0]')
    for q in range(8):
        c += [f'v_cvt_pk_bf16_f32 v{dst+q}, v{EP+2*q}, v{EP+2*q+1}', f'v_cvt_pk_bf16_f32 v{dst+8+q}, v{EM+2*q}, v{EM+2*q+1}']
    return c

def phi_base():
    T = V.tmp; D = A.m
    return lines(f'''v_and_b32 v{D}, 1, v{V.i32}
v_bfe_u32 v{T}, v{V.i32}, 2, 2
v_lshl_or_b32 v{D}, v{T}, 1, v{D}
v_bfe_u32 v{T}, v{V.i32}, 1, 1
v_lshl_or_b32 v{D}, v{T}, 3, v{D}
v_xor_b32 v{D}, v{D}, v{V.hh}
v_lshlrev_b32 v{D}, 3, v{D}
v_lshl_add_u32 v{D}, v{V.i32}, 7, v{D}
s_lshl_b32 s{S.t2}, s{S.tt}, 12
s_add_u32 s{S.t2}, s{S.t2}, {L_PHI}
v_add_u32 v{D}, s{S.t2}, v{D}''')
def phi_write(src):
    T = V.tmp; out = []
    for s in range(2):
        for g in range(4):
            u = 8*s + 2*g
            out.append((f'v_xor_b32 v{T}, {u*8}, v{A.m}\n' if u else '') + f'ds_write_b64 v{T if u else A.m}, {vr(src+8*s+2*g,2)}')
    return out

def va_stage():
    T = V.tmp; k = Stream()
    k.e(f's_lshl_b32 s{S.t2}, s{S.tt}, 11\ns_add_u32 s{S.t2}, s{S.t2}, {L_STG}\nv_lshl_add_u32 v{T}, v{V.lane}, 4, s{S.t2}')
    cvt16(k, V.P, V.EP)
    k.e(f's_mov_b32 exec_lo, 0x10000000\ns_mov_b32 exec_hi, 0x10000000')
    for q in range(8): k.e(f'v_mov_b32 v{V.P+q}, 0x3f803f80')
    k.e(f'''s_mov_b64 exec, -1
ds_write_b128 v{T}, {vr(V.P,4)}
ds_write_b128 v{T}, {vr(V.P+4,4)} offset:1024''')
    return '\n'.join(k.L)

KVB = 240
def kv_addr_setup(D):
    T = V.tmp
    return lines(f'''s_lshr_b32 s{S.t2}, s{S.w}, 1
s_lshl_b32 s{S.t3}, s{S.t2}, 2
v_and_b32 v{T}, 3, v{V.lane}
v_or_b32 v{T}, s{S.t3}, v{T}
v_bfe_u32 v{T+1}, v{V.lane}, 2, 1
v_bfe_u32 v{D}, v{V.lane}, 4, 1
v_lshl_or_b32 v{T+1}, v{D}, 1, v{T+1}
v_bfe_u32 v{D+1}, v{V.lane}, 3, 1
v_lshl_or_b32 v{T+1}, v{D+1}, 3, v{T+1}
v_xor_b32 v{T}, v{T}, v{T+1}
v_bfe_u32 v{T+1}, v{V.lane}, 2, 2
v_lshl_or_b32 v{T+1}, v{D}, 2, v{T+1}
v_lshl_or_b32 v{T+1}, v{V.hh}, 4, v{T+1}
v_lshlrev_b32 v{T}, 3, v{T}
v_lshl_add_u32 v{T}, v{T+1}, 7, v{T}
v_and_b32 v{T+1}, 15, v{V.lane}
s_and_b32 s{S.t3}, s{S.w}, 1
s_lshl_b32 s{S.t3}, s{S.t3}, 4
v_add_u32 v{T+1}, s{S.t3}, v{T+1}
s_lshl3_add_u32 s{S.t3}, s{S.hA}, s{S.w}
s_lshl4_add_u32 s{S.t3}, s{S.t3}, s{S.tb}
s_lshl_b32 s{S.t3}, s{S.t3}, 9
s_add_u32 s{S.t3}, s{S.t3}, {WS_KVP}
v_and_b32 v{D+3}, 15, v{V.lane}
v_lshl_or_b32 v{D+3}, v{V.hh}, 4, v{D+3}
v_lshl_or_b32 v{D+3}, v{D+3}, 1, v{D}
v_lshl_add_u32 v{D+3}, v{D+3}, 3, s{S.t3}
v_lshlrev_b32 v{T+1}, 4, v{T+1}
v_lshrrev_b32 v{D+2}, 4, v{V.lane}
v_lshl_add_u32 v{D+2}, v{D+2}, 9, v{T+1}
v_add_u32 v{D+2}, {L_STG}, v{D+2}
v_add_u32 v{D}, {L_PHI}, v{T}
v_add_u32 v{D+1}, 1024, v{D}
v_xor_b32 v{D+1}, 32, v{D+1}''')
def kv_partial(k):
    D = KVB; ids = []
    for Tt in range(4):
        k.ds(f'ds_read_b64_tr_b16 {vr(V.EP+4*Tt,2)}, v{D} offset:{Tt*4096}')
        k.ds(f'ds_read_b64_tr_b16 {vr(V.EP+4*Tt+2,2)}, v{D+1} offset:{Tt*4096}')
        ids.append(k.ds(f'ds_read_b128 {vr(V.EM+4*Tt,4)}, v{D+2} offset:{Tt*2048}'))
    return ids
def kv_partial2(k, ids):
    k.dswait(ids[3])
    return [f'v_mfma_f32_16x16x32_bf16 {vr(V.P,4)}, {vr(V.EP+4*Tt,4)}, {vr(V.EM+4*Tt,4)}, {"0" if Tt == 0 else vr(V.P,4)}' for Tt in range(4)]
def kv_partial3(k):
    k.e(f'v_cvt_pk_bf16_f32 v{V.P+4}, v{V.P}, v{V.P+1}\nv_cvt_pk_bf16_f32 v{V.P+5}, v{V.P+2}, v{V.P+3}')
    return k.vmop(f'buffer_store_dwordx2 {vr(V.P+4,2)}, v{KVB+3}, {srd(S.WS)}, 0 offen sc1')

def flag_store(k, addr_s, val_s, sc='sc1', opt=True, T=None):
    T = T or V.tmp
    k.e(f'v_mov_b32 v{T}, s{addr_s}\nv_mov_b32 v{T+1}, s{val_s}\ns_mov_b64 exec, 1')
    a = k.vmop(f'buffer_store_dword v{T+1}, v{T}, {srd(S.WS)}, 0 offen {sc}', opt=opt)
    k.e('s_mov_b64 exec, -1')
    return a

_lbl = [0]
def lbl(p):
    _lbl[0] += 1; return f'L_{p}_{_lbl[0]}'

def flag_check(k, ld_id, vflag, vaddr, mask=False, keep=False):
    L1, L2 = lbl('poll'), lbl('polled')
    k.vmwait(ld_id, keep=keep)
    T = V.tmp
    cmp = f'v_and_b32 v{T}, -16, v{vflag}\nv_cmp_ne_u32 vcc, s{S.tag}, v{T}' if mask else f'v_cmp_ne_u32 vcc, s{S.tag}, v{vflag}'
    k.e(f'{cmp}\ns_cbranch_vccnz {L1}\n{L2}:')
    k.cold.e(f'''{L1}:
s_mov_b32 s{S.spin}, {SPINV[0]}
{L1}_a:
s_sleep 4
buffer_load_dword v{vflag}, v{vaddr}, {srd(S.WS)}, 0 offen sc1
s_waitcnt vmcnt(0)
{cmp}
s_cbranch_vccz {L2}
s_sub_u32 s{S.spin}, s{S.spin}, 1
s_cbranch_scc0 {L1}_a
s_branch {L2}''')

def step(k, s, grp, ids, opts, pieces=(), tailp=(), ktype=True):
    k.c(f'---- step {s}')
    nobar = s in opts['nobar']
    if not nobar:
        last = s
        while last + 1 in opts['nobar']: last += 1
        for w in range(last, s - 1, -1): k.vmwait(ids.get(w))
    if grp == 0 and s in (7, 11) and not nobar:
        if s == 7: k.vmwait(opts['_gw'][0])
        for s_ in ((7, 11) if 11 in opts['nobar'] else (s,)):
            k.e(f'ds_write_b64 v{V.g}, {vr(V.gw0 if s_ == 7 else V.gw1,2)} offset:{WADDR[s_]}')
    stamp(k, f'step{s}')
    mf = mfmas(s-1, grp, ktype) if s not in (0, 7) else []
    if mf or (not nobar and not (grp == 1 and s == 11)): k.e('s_waitcnt lgkmcnt(0)')
    if not nobar and not (grp == 1 and s == 7 and opts['bar7_at'] is not None): k.e('s_barrier')
    stamp(k, f'bar{s}')
    rd = reads(s, grp)
    n = max(len(mf), 1); nr = max(1, (n+1)//2) if n < 8 else opts['nr8']
    pcs = split_pieces(list(pieces), n)
    for q in range(n):
        if mf: k.e(mf[q])
        if q < nr:
            for r in rd[q*len(rd)//nr:(q+1)*len(rd)//nr]: k.e(r)
        for p in pcs[q]: emit(k, p)
    stamp(k, f'body{s}')
    if grp == 1:
        for p in tailp: emit(k, p)
        tailp = ()
        for w in opts['w1sched'].get(s, ()): ids[w] = dma_w(k, w, True)
    if grp == 0:
        for w in opts['wsched'].get(s, ()):
            if w <= 6:
                assert w - 4 < s or w < 4
                dma_x(k, w, True)
            ids[w] = dma_w(k, w, True)
    for p in tailp: emit(k, p)
    stamp(k, f'done{s}')

def stage0(k, grp, ids, ktype, opts):
    T = V.tmp
    ob = f'''s_lshl_b32 s{S.t2}, s{S.tb}, 2
s_add_u32 s{S.t2}, s{S.t2}, s{S.tt}
s_lshl_b32 s{S.t2}, s{S.t2}, 16
s_lshl_b32 s{S.t3}, s{S.h}, 11
s_add_u32 s{S.t2}, s{S.t2}, s{S.t3}
s_add_u32 s{S.t2}, s{S.t2}, {WS_OX + 32768 + grp*1024}
v_lshl_add_u32 v{V.ob}, v{V.lane}, 4, s{S.t2}
s_add_u32 s{S.tag}, s{S.tag}, 0x9e3779b0'''
    P = {0: [ob, '\n'.join(kv_addr_setup(KVB))]}
    if grp == 1:
        ep = (epi0_addr_k if ktype else epi0_addr_v)()
        P[1] = ep[:len(ep)//2]; P[2] = ep[len(ep)//2:]
        P[3] = [f's_cmp_eq_u32 s{S.h}, 5\ns_cselect_b32 s{S.t4}, 0, {WS_SIZE}\ns_cmp_eq_u32 s{S.h}, 10\ns_cselect_b32 s{S.M1+2}, 0, s{S.t4}\ns_mov_b32 s{S.M1}, s{S.pWS}\ns_mov_b32 s{S.M1+1}, s{S.pWS+1}\ns_mov_b32 s{S.M1+3}, 0x20000']
    else:
        P[1] = [tr_base(V.t0r, 0, True, False)]; P[2] = [tr_base(V.t2r, WADDR[21], True, True)]
        P[4] = [Job(lambda: gate_load(k), 20), f'v_and_b32 v{V.g}, 15, v{V.lane}\nv_lshlrev_b32 v{V.g}, 6, v{V.g}\nv_lshrrev_b32 v{T}, 4, v{V.lane}\nv_lshl_add_u32 v{V.g}, v{T}, 12, v{V.g}\ns_add_u32 s{S.t2}, s{S.mW}, 48\nv_add_u32 v{V.g}, s{S.t2}, v{V.g}']
        P[5] = [Job(lambda: wphi_load(k), 20)]
    for s in range(0, 7): step(k, s, grp, ids, opts, P.get(s, ()), (), ktype)
    if grp == 1:
        k.e('s_waitcnt lgkmcnt(0)')
        for m in mfmas(6, grp, ktype): k.e(m)

def stage0_epilogue(k, ktype, early=None):
    def extra(n):
        L = lbl('dup'); a = V.EP + 4*(n//2) + 2 + n % 2
        k.e(f'v_cmp_gt_u32 vcc, {OOB}, v{a}\ns_cbranch_vccz {L}')
        k.vmop(f'buffer_store_dwordx4 {vr(V.P+4*n if ktype else V.EP+8+4*(n//2),4)}, v{a}, {srd(S.M1)}, 0 offen sc1', opt=True)
        k.e(f'{L}:')
    if PRIO_ST[0]: k.e('s_setprio 3')
    if not ktype:
        for n in range(4): extra(n)
    if early is not None:
        for n in range(16): k.e(f'v_cvt_pk_bf16_f32 v{V.P+n}, v{V.acc0+2*n}, v{V.acc0+2*n+1}')
    for n in range(4):
        if early is None:
            for q in range(4): k.e(f'v_cvt_pk_bf16_f32 v{V.P+4*n+q}, v{V.acc0+8*n+2*q}, v{V.acc0+8*n+2*q+1}')
        if n == early: k.e('s_barrier')
        if ktype: extra(n)
        a = k.vmop(f'buffer_store_dwordx4 {vr(V.P+4*n,4)}, v{V.EP+4*(n//2)+n%2}, {srd(S.M1)}, 0 offen sc1')
    return a

def attn_addr(grp):
    T = V.tmp
    return [f'''s_lshl_b32 s{S.mK}, s{S.w}, 12
s_lshl_b32 s{S.t2}, s{S.h}, 18
s_lshl_b32 s{S.t3}, s{S.tt}, 12
s_add_u32 s{S.t2}, s{S.t2}, s{S.t3}
s_add_u32 s{S.t2}, s{S.t2}, {WS_KV + grp*131072}
v_lshl_add_u32 v{A.ks}, v{V.lane}, 4, s{S.t2}''', f'''v_lshlrev_b32 v{A.kv0}, 4, v{V.lane}
v_add_u32 v{A.kv0}, {grp*16384}, v{A.kv0}
v_add_u32 v{A.kv1}, 0x10000, v{A.kv0}
v_mov_b32 v{A.idx}, 0xdddddddd''', f'''s_mul_i32 s{S.t2}, s{S.h}, 28
s_add_u32 s{S.t3}, s{S.t2}, 27
s_lshr_b32 s{S.t2}, s{S.t2}, 6
s_lshr_b32 s{S.t3}, s{S.t3}, 6
s_sub_u32 s{S.t3}, s{S.t3}, s{S.t2}
v_bfe_u32 v{T+5}, v{V.lane}, 3, 1
v_mul_u32_u24 v{T+5}, s{S.t3}, v{T+5}
v_bfe_u32 v{T+6}, v{V.lane}, 4, 1
v_mul_u32_u24 v{T+6}, 7, v{T+6}
v_add3_u32 v{T+5}, v{T+5}, v{T+6}, s{S.t2}
s_lshr_b32 s{S.t2}, s{S.tb}, 1
s_and_b32 s{S.t3}, s{S.tb}, 1
s_lshl2_add_u32 s{S.rb}, s{S.t3}, s{S.t2}
v_add_u32 v{T+6}, s{S.rb}, v{V.lane}
v_and_b32 v{T+6}, 7, v{T+6}
v_lshl_add_u32 v{T+5}, v{T+5}, 4, v{T+6}
s_lshl_b32 s{S.t2}, s{S.tt}, 6
s_add_u32 s{S.t2}, s{S.t2}, {WS_FLAG1 + grp*2048}
v_lshl_add_u32 v{A.f1}, v{T+5}, 8, s{S.t2}
s_and_b32 s{S.sK}, s{S.rb}, 7
s_lshl_b32 s{S.sK}, s{S.sK}, 14''']
def ready_mask():
    return f'''v_cmp_eq_u32 vcc, s{S.tag}, v{A.f0}
s_nop 0
s_lshr_b32 s{S.rdy}, vcc_lo, 16
s_and_b32 s{S.rdy}, s{S.rdy}, vcc_lo
s_lshr_b32 s{S.t0}, s{S.rdy}, 8
s_and_b32 s{S.rdy}, s{S.rdy}, s{S.t0}
s_and_b32 s{S.rdy}, s{S.rdy}, 0xff'''

def kv_dma_jobs(k, stage, out):
    slot = stage % 3
    def j(q):
        if q == 0:
            L1, L2 = lbl('kp'), lbl('kpd')
            k.e(f's_bitcmp1_b32 s{S.rdy}, {stage}\ns_cbranch_scc0 {L1}\n{L2}:')
            k.cold.e(f'''{L1}:
s_mov_b32 s{S.spin}, {SPINV[0]}
{L1}_a:
buffer_load_dword v{A.f0}, v{A.f1}, {srd(S.WS)}, 0 offen sc1
s_waitcnt vmcnt(0)
{ready_mask()}
s_bitcmp1_b32 s{S.rdy}, {stage}
s_cbranch_scc1 {L2}
s_sleep 2
s_sub_u32 s{S.spin}, s{S.spin}, 1
s_cbranch_scc0 {L1}_a
s_branch {L2}''')
        k.e(f's_add_u32 m0, s{S.mK}, {slot*32768}\ns_nop 0')
        out[(stage, 'n')] = q + 1
        out[stage] = k.vmop(f'buffer_load_dwordx4 v{A.ks}, {srd(S.WS)}, s{S.sK} offen offset:{q*1024} {KVSC[0]} lds')
        if q == 3: k.e(f's_add_u32 s{S.sK}, s{S.sK}, 16384\ns_and_b32 s{S.sK}, s{S.sK}, 0x1ffff')
    return [Job(lambda q=q: j(q), 4) for q in range(4)]

def only(k, w, f):
    def g():
        L = lbl('w'); k.e(f's_cmp_eq_u32 s{S.w}, {w}\ns_cbranch_scc1 {L}\n{L}_b:')
        main = k.L; k.L = [f'{L}:']; f(); k.e(f's_branch {L}_b'); body = k.L; k.L = main
        k.cold.L += body
    g.__name__ = f.__name__
    return g

def warm_lines():
    a = f'''s_lshl2_add_u32 s{S.t2}, s2, s{S.tt}
s_cmp_lt_u32 s{S.t2}, 448
s_cselect_b32 s{S.vcm}, s{S.pWOA}, s{S.pWOB}
s_cselect_b32 s{S.vcm+1}, s{S.pWOA+1}, s{S.pWOB+1}
s_cselect_b32 s{S.t3}, 0, 448
s_sub_u32 s{S.t2}, s{S.t2}, s{S.t3}
s_min_u32 s{S.t2}, s{S.t2}, 447
s_mul_i32 s{S.t2}, s{S.t2}, 896
s_add_u32 s{S.vcm}, s{S.vcm}, s{S.t2}
s_addc_u32 s{S.vcm+1}, s{S.vcm+1}, 0
'''
    for q in range(7): a += f's_load_dword s{S.spin}, s[{S.vcm}:{S.vcm+1}], {q*128}\n'
    a += f'''s_lshl3_add_u32 s{S.t2}, s{S.hA}, s{S.tt}
s_lshl4_add_u32 s{S.t2}, s{S.t2}, s{S.tb}
s_lshl_b32 s{S.t2}, s{S.t2}, 6
s_add_u32 s{S.t2}, s{S.t2}, {WS_FLAG2}
s_load_dword s{S.spin}, s[{S.pWS}:{S.pWS+1}], s{S.t2}
s_add_u32 s{S.t2}, s{S.t2}, 4096
s_load_dword s{S.spin}, s[{S.pWS}:{S.pWS+1}], s{S.t2}
s_lshl4_add_u32 s{S.t2}, s{S.tb}, s{S.h}
s_lshl_b32 s{S.t2}, s{S.t2}, 6
s_add_u32 s{S.t2}, s{S.t2}, {WS_FLAGY}
s_load_dword s{S.spin}, s[{S.pWS}:{S.pWS+1}], s{S.t2}'''
    return a

def stages12(k, ids, grp, st_id, opts):
    T = V.tmp; out = {'st': st_id}; st = {}
    P = {s: [] for s in range(7, 28)}; TP = {s: [] for s in range(7, 28)}
    npre = opts['npre']; pub = opts['f1_step']; c = opts['f1_check']
    assert {8, 9, 10, 12, 13} <= set(opts['nobar']) and not {7, 14, 21} & set(opts['nobar'])
    def f1pub():
        k.vmwait(out['st'])
        k.e(f'''s_lshl4_add_u32 s{S.t2}, s{S.j}, s{S.tb}
s_lshl2_add_u32 s{S.t2}, s{S.t2}, s{S.tt}
s_lshl_b32 s{S.t2}, s{S.t2}, 6
s_add_u32 s{S.t2}, s{S.t2}, {WS_FLAG1}
s_cmp_eq_u32 s{S.M1+2}, 0
s_cselect_b32 s{S.t2}, {OOB}, s{S.t2}''')
        flag_store(k, S.t2, S.tag, opt=False, T=V.tmp+5)
        k.e(f's_setprio {opts["prio_g1"]}')
    qx = f's_lshl_b32 s{S.t2}, s{S.tt}, 11\ns_add_u32 s{S.t2}, s{S.t2}, {L_QX}\nv_lshl_add_u32 v{A.a0}, v{V.lane}, 4, s{S.t2}'
    ozero = [f'v_mov_b32 v{A.O+q}, 0' for q in range(16)]
    if grp == 0:
        late = 11 in opts['nobar']
        (opts['_p6'] if late else P[9]).extend([Job(lambda: (opts['_k0'] if late else k).vmwait(opts['_gw'][1]), 1),
                 f's_lshl_b32 s{S.t2}, s{S.tt}, 9\ns_add_u32 s{S.t2}, s{S.t2}, {L_WPHI}\nv_lshl_add_u32 v{T}, v{V.lane}, 3, s{S.t2}\nds_write_b64 v{T}, {vr(V.EM,2)}\nds_write_b64 v{T}, {vr(V.EM+2,2)} offset:2048'])
        if late:
            for p in opts['_p6']: emit(k, p)
        P[12] += [tr_base(V.t3r, WADDR[21] + 4096, False, False)]
        P[13] += ['\n'.join(wphi_reads(1))]
        fp = feat_pieces(V.acc1, V.acc1, True, opts['round_p']); i = fp.index('WAITP')
        TP[14] += fp[:8] + [f'v_mov_b32 v{T+5}, v{V.acc1+12}\nv_mov_b32 v{V.g}, v{V.acc1+12}'] + fp[8:i]
        TP[14].append(f'v_permlane32_swap_b32 v{T+5}, v{V.g}\nv_mul_f32 v{V.g}, {fbits(-LOG2E)}, v{V.g}\nv_exp_f32 v{V.g}, v{V.g}\ns_nop 0\nv_add_f32 v{V.g}, 1.0, v{V.g}\nv_rcp_f32 v{V.g}, v{V.g}')
        for n, grpp in enumerate(split_pieces(fp[i+1:], 6)): P[15+n] += grpp
        P[14] += attn_addr(grp)
        P[25] += [f'''s_lshr_b32 s{S.t2}, s{S.h}, 3
s_lshl_b32 s{S.t2}, s{S.t2}, 1
s_and_b32 s{S.t3}, s{S.w}, 1
s_add_u32 s{S.t2}, s{S.t2}, s{S.t3}
s_lshl2_add_u32 s{S.col}, s{S.tb}, s{S.t2}
s_lshr_b32 s{S.cw}, s{S.w}, 1
s_and_b32 s{S.t2}, s{S.h}, 7
s_cmp_eq_u32 s{S.t2}, 7
s_cselect_b32 s{S.W+2}, 0, 401408
s_cselect_b32 s{S.X+2}, 0, 401408
s_mov_b32 s{S.W}, s{S.pWOA}
s_mov_b32 s{S.W+1}, s{S.pWOA+1}
s_mov_b32 s{S.X}, s{S.pWOB}
s_mov_b32 s{S.X+1}, s{S.pWOB+1}
s_mov_b32 s{S.W+3}, 0x20000
s_mov_b32 s{S.X+3}, 0x20000
s_lshl_b32 s{S.t2}, s{S.t2}, 7
v_lshrrev_b32 v{T}, 3, v{V.lane}
v_and_b32 v{T+1}, 7, v{V.lane}
v_bfe_u32 v{T+2}, v{V.lane}, 4, 1
v_lshlrev_b32 v{T+2}, 2, v{T+2}
v_xor_b32 v{T+1}, v{T+1}, v{T+2}
v_mul_u32_u24 v{T}, 896, v{T}
v_lshl_add_u32 v{T}, v{T+1}, 4, v{T}
v_add_u32 v{A.wsrc}, s{S.t2}, v{T}
s_mov_b32 s{S.r0}, 4096''']
        P[23] += [qx]; P[26] += ozero
    else:
        sel = f'''v_bfe_u32 v{T}, v{V.lane}, 3, 1
v_bfe_u32 v{T+1}, v{V.lane}, 4, 1
v_xor_b32 v{T}, v{T}, v{T+1}
v_bfe_u32 v{T+1}, v{V.lane}, 1, 2
v_lshl_or_b32 v{T}, v{T}, 2, v{T+1}
v_and_b32 v{T+1}, 1, v{V.lane}
v_lshlrev_b32 v{T+1}, 4, v{T+1}
v_mov_b32 v{T+2}, 0x3f80
v_lshlrev_b32 v{T+1}, v{T+1}, v{T+2}
'''
        for q in range(4): sel += f'v_cmp_eq_u32 s[{S.vcm}:{S.vcm+1}], {q}, v{T}\ns_nop 1\nv_cndmask_b32 v{16+q}, 0, v{T+1}, s[{S.vcm}:{S.vcm+1}]\n'
        sel += f'v_lshlrev_b32 v{T}, 4, v{V.lane}\nv_add_u32 v{T}, {L_SEL}, v{T}\nds_write_b128 v{T}, {vr(16,4)}'
        P[7] += [tr_base(V.t1r, 0, True, False), sel]
        if opts['w1sched']:
            z = Stream(); slice_setup(z, 1); P[7].append('\n'.join(z.L))
        if opts['warm']: P[7].insert(0, warm_lines())
        P[11] += attn_addr(grp) + ['\n'.join(phi_base()), f'''s_lshr_b32 s{S.t2}, s{S.h}, 3
s_lshl_b32 s{S.t2}, s{S.t2}, 1
s_and_b32 s{S.t3}, s{S.w}, 1
s_add_u32 s{S.t2}, s{S.t2}, s{S.t3}
s_lshl2_add_u32 s{S.col}, s{S.tb}, s{S.t2}
s_lshr_b32 s{S.cw}, s{S.w}, 1
s_and_b32 s{S.t2}, s{S.h}, 7
s_cmp_eq_u32 s{S.t2}, 7
s_cselect_b32 s{S.W+2}, 0, 401408
s_cselect_b32 s{S.X+2}, 0, 401408
s_mov_b32 s{S.W}, s{S.pWOA}
s_mov_b32 s{S.W+1}, s{S.pWOA+1}
s_mov_b32 s{S.X}, s{S.pWOB}
s_mov_b32 s{S.X+1}, s{S.pWOB+1}
s_mov_b32 s{S.W+3}, 0x20000
s_mov_b32 s{S.X+3}, 0x20000
s_lshl_b32 s{S.t2}, s{S.t2}, 7
v_lshrrev_b32 v{T}, 3, v{V.lane}
v_and_b32 v{T+1}, 7, v{V.lane}
v_bfe_u32 v{T+2}, v{V.lane}, 4, 1
v_lshlrev_b32 v{T+2}, 2, v{T+2}
v_xor_b32 v{T+1}, v{T+1}, v{T+2}
v_mul_u32_u24 v{T}, 896, v{T}
v_lshl_add_u32 v{T}, v{T+1}, 4, v{T}
v_add_u32 v{A.wsrc}, s{S.t2}, v{T}
s_mov_b32 s{S.r0}, 4096''', qx]
        P[18] += ozero
        P[20] += ['\n'.join(wphi_reads(0))]
        TP[pub].append(Job(f1pub, 8))
        fp = feat_pieces(V.acc1, V.acc1, False, opts['round_p']); i = fp.index('WAITP')
        fp.pop(i)
        if opts['prio_kf']: fp.insert(0, f's_setprio {opts["prio_kf"]}')
        for n, grpp in enumerate(split_pieces(fp + phi_write(V.acc1), 7)): TP[21+n] += grpp
    def f1ld(): out['f1'] = k.vmop(f'buffer_load_dword v{A.f0}, v{A.f1}, {srd(S.WS)}, 0 offen sc1')
    TP[c-2].append(Job(f1ld, 1))
    TP[c].append(Job(lambda: (k.vmwait(out['f1']), k.e(ready_mask())), 8))
    dj = []
    for s_ in range(npre): dj += kv_dma_jobs(k, s_, st)
    for s_ in range(c, 28):
        n = min(len(dj), opts['pre_rate']); TP[s_] += dj[:n]; dj = dj[n:]
    out['left'] = dj
    for s in range(7, 28):
        step(k, s, grp, ids, opts, P[s], TP[s])
    if grp == 0:
        k.e('s_waitcnt lgkmcnt(0)')
        m27 = mfmas(27, grp)
        for m in m27[1::2] + m27[0:4:2]: k.e(m)
        va = va_stage().split('\n')
        for l in va[:7]: k.e(l)
        k.e(m27[4])
        for l in va[7:11]: k.e(l)
        k.e(m27[6])
        for l in va[11:]: k.e(l)
    out['kvst'] = st
    return out

def attn_prologue(k, grp, pend, opts):
    T = V.tmp
    k.c('---- attention prologue')
    stamp(k, 'p1done')
    st = pend['kvst']
    for j in pend['left']: j.f()
    if grp == 0:
        a0 = V.acc0
        k.e(f's_mov_b32 s{S.t6}, {fbits(QSCALE)}\ns_bitcmp1_b32 s{S.h}, 0')
        for q in range(8): k.e(f'v_pk_mul_f32 {vr(a0+2*q,2)}, {vr(a0+2*q,2)}, s[{S.t6}:{S.t6+1}] op_sel_hi:[1,0]')
        cvt16(k, A.Q, a0)
        k.e(f'''s_cselect_b32 exec_lo, -1, 0
s_mov_b32 exec_hi, 0
v_mov_b32 v{A.Q}, 0
v_mov_b32 v{A.Q+1}, 0
s_mov_b32 exec_lo, 0
s_cselect_b32 exec_hi, 0, -1
v_mov_b32 v{A.Q+6}, 0
v_mov_b32 v{A.Q+7}, 0
s_mov_b64 exec, -1
v_lshrrev_b32 v{T}, 2, v{A.a0}
ds_write_b128 v{A.a0}, {vr(A.Q,4)}
ds_write_b128 v{A.a0}, {vr(A.Q+4,4)} offset:1024
v_and_b32 v{T}, 0x7fc, v{T}
v_add_u32 v{T}, {L_G}, v{T}
ds_write_b32 v{T}, v{V.g}''')
    else:
        k.e(f'v_lshrrev_b32 v{T}, 2, v{A.a0}\nv_and_b32 v{T}, 0x7fc, v{T}\nv_add_u32 v{T}, {L_G}, v{T}')
    stamp(k, 'preB0')
    assert st[(0, 'n')] == 4
    k.vmwait(st.get(0), 'lgkmcnt(0)')
    stamp(k, 'B0wait')
    k.e('s_barrier')
    if grp == 1:
        k.ds(f'ds_read_b128 {vr(A.Q,4)}, v{A.a0}')
        k.ds(f'ds_read_b128 {vr(A.Q+4,4)}, v{A.a0} offset:1024')
        k.ds(f'ds_read_b32 v{V.g}, v{T}')
    return st

def kv_addr(t):
    s, T = t // 4, t % 4; slot = s % 3
    base = A.kv0 if slot < 2 else A.kv1
    return base, (slot % 2)*32768 + T*4096
def rdK(k, t, q):
    b, o = kv_addr(t); return k.ds(f'ds_read_b128 {vr(A.KF+4*q,4)}, v{b} offset:{o+q*1024}')
def rdV(k, t):
    b, o = kv_addr(t)
    k.ds(f'ds_read_b128 {vr(A.V0+4*(t%2),4)}, v{b} offset:{o+2048}')
    return k.ds(f'ds_read_b128 {vr(A.V1+4*(t%3),4)}, v{b} offset:{o+3072}')

def both_ways(k, txts):
    for t in txts: a = k.vmop(t + ' sc1')
    return a
def maxchain(dst, src, n):
    out = [f'v_max3_u32 v{dst}, v{src}, v{src+1}, v{src+2}']; q = 3
    while q < n:
        out.append(f'v_max3_u32 v{dst}, v{dst}, v{src+q}, v{src+q+1}' if q+1 < n else f'v_max_u32 v{dst}, v{dst}, v{src+q}'); q += 2
    return out
def sent_check(k, dst, src, n, loads, redo=''):
    L1, L2 = lbl('sp'), lbl('spd')
    k.e(f'v_cmp_eq_u32 vcc, -1, v{dst}\ns_cbranch_vccnz {L1}\n{L2}:')
    k.cold.e(f'{L1}:\ns_mov_b32 s{S.spin}, {SPINV[0]}\n{L1}_a:\ns_sleep 4')
    for l in loads: k.cold.e(l)
    k.cold.e('s_waitcnt vmcnt(0)')
    for l in maxchain(dst, src, n): k.cold.e(l)
    k.cold.e(f'v_cmp_eq_u32 vcc, -1, v{dst}\ns_cbranch_vccz {L1}_b\ns_sub_u32 s{S.spin}, s{S.spin}, 1\ns_cbranch_scc0 {L1}_a\n{L1}_b:')
    if redo: k.cold.e(redo)
    k.cold.e(f's_branch {L2}')

def wo_jobs(k, br, first, n, ldsbase, row0, out, key, rot=False):
    J = []
    for q in range(n):
        def j(q=q):
            if q == 0: k.e(f's_mul_i32 s{S.t8}, s{S.tt}, {first[0]*1024}\ns_mul_i32 s{S.t7}, s{S.tt}, {first[0]*7168}')
            if n == 7 and rot:
                if q == 0: k.e(f's_add_u32 s{S.t8}, s{S.t8}, {ldsbase + first[1]*1024}\ns_add_u32 s{S.t7}, s{S.t7}, {first[1]*7168}')
                k.e(f's_mul_i32 s{S.t9}, s{S.ox+q}, 56\ns_lshl3_add_u32 m0, s{S.ox+q}, s{S.t8}\ns_add_u32 s{S.t9}, s{S.t9}, s{S.t7}')
            else:
                k.e(f's_add_u32 m0, s{S.t8}, {ldsbase + (first[1]+q)*1024}\ns_add_u32 s{S.t9}, s{S.t7}, {row0*896 + (first[1]+q)*7168}')
            out['n' + key] = q + 1
            out[key] = k.vmop(f'buffer_load_dwordx4 v{A.wsrc}, {srd(S.W if br == 0 else S.X)}, s{S.t9} offen lds')
        J.append(Job(j, 3))
    return J

def o_loads(dst, addr):
    return [f'buffer_load_dwordx4 {vr(dst+4*q,4)}, v{addr}, {srd(S.WS)}, {"0" if q < 4 else "s%d" % S.r0} offen offset:{(q%4)*1024} sc1' for q in range(8)]

def side_jobs(k, grp, opts, pend):
    T = V.tmp; J = {}; st = {}
    def at(t, f): J.setdefault(t, []).append(f)
    def kvA(): st['kvi'] = kv_partial(k)
    def kvB(): pend['spr'] += kv_partial2(k, st.get('kvi') or pend['kvi'])
    def kvC(): st['kvp'] = kv_partial3(k)
    def f2pub():
        k.vmwait(st['kvp'])
        k.e(f's_lshl3_add_u32 s{S.t2}, s{S.hA}, s{S.w}\ns_lshl4_add_u32 s{S.t2}, s{S.t2}, s{S.tb}\ns_lshl_b32 s{S.t2}, s{S.t2}, 6\ns_add_u32 s{S.t2}, s{S.t2}, {WS_FLAG2}')
        flag_store(k, S.t2, S.tag, opt=False)
    R = A.RED; I4 = 16; D4 = 20
    def s1():
        k.e(f's_lshl3_add_u32 s{S.t2}, s{S.hQ}, s{S.w}\ns_lshl_b32 s{S.t3}, s{S.t2}, 10\ns_add_u32 s{S.t3}, s{S.t3}, {WS_FLAG2}\nv_and_b32 v{A.a2}, 15, v{V.lane}\nv_lshl_add_u32 v{A.a2}, v{A.a2}, 6, s{S.t3}')
        st['f2'] = k.vmop(f'buffer_load_dword v{A.a1}, v{A.a2}, {srd(S.WS)}, 0 offen sc1')
        k.e(f's_lshl_b32 s{S.t2}, s{S.t2}, 13\ns_add_u32 s{S.t2}, s{S.t2}, {WS_KVP}\nv_lshl_add_u32 v{A.a0}, v{V.lane}, 4, s{S.t2}')
    def s2():
        if grp == 0:
            k.e(f'v_lshlrev_b32 v{T}, 4, v{V.lane}\nv_add_u32 v{T}, {L_SEL}, v{T}'); k.ds(f'ds_read_b128 {vr(I4,4)}, v{T}')
        flag_check(k, st['f2'], A.a1, A.a2)
        def ld(q, l): st[f'kp{q}'] = k.vmop(l)
        pend['hq' if opts['kp_first'] else 'wq'][0:0] = [Job(lambda q=q, l=l: ld(q, l), 1) for q, l in enumerate(o_loads(R, A.a0))]
    def s3():
        assert 'kp7' in st or opts['skip']; k.vmwait(st.get('kp7'))
        pend['spr'] += [f'v_mfma_f32_16x16x32_bf16 {vr(D4,4)}, {vr(I4,4)}, {vr(R+4*q,4)}, {"0" if q == 0 else vr(D4,4)}' for q in range(8)]
    def s4():
        k.e(f'''v_subrev_u32 v{T+2}, {L_STG}, v{KVB+2}
v_and_b32 v{T+2}, 0x3ff, v{T+2}
s_lshr_b32 s{S.t2}, s{S.w}, 1
s_lshl_b32 s{S.t2}, s{S.t2}, 10
s_add_u32 s{S.t2}, s{S.t2}, {L_WPHI}
v_lshl_add_u32 v{T+2}, v{V.hh}, 3, v{T+2}
v_add_u32 v{T+2}, s{S.t2}, v{T+2}
v_cvt_pk_bf16_f32 v{D4}, v{D4}, v{D4+1}
v_cvt_pk_bf16_f32 v{D4+1}, v{D4+2}, v{D4+3}''')
        k.ds(f'ds_write_b64 v{T+2}, {vr(D4,2)}')
    for n, f in enumerate((kvA, kvB, kvC, f2pub, s1, s2, s3, s4)): at(opts['kv_at'][grp][n], f)
    def oclear():
        for q in range(4): k.e(f'v_mov_b32 v{24+q}, -1')
        pend['barwait'] = {opts['ybar']: k.vmop(f'buffer_store_dwordx4 {vr(24,4)}, v{V.ob}, {srd(S.WS)}, 0 offen sc1')}
    at(opts['oclr_at'][grp], oclear)
    assert opts['a5_at'] >= 4*opts['ybar'] - 2
    def wowarm():
        U = T + 5
        k.e(f'''s_and_b32 s{S.t2}, s2, 127
s_mul_i32 s{S.t2}, s{S.t2}, 3136
s_cmp_lt_u32 s2, 128
s_cselect_b32 s{S.M1}, s{S.pWOA}, s{S.pWOB}
s_cselect_b32 s{S.M1+1}, s{S.pWOA+1}, s{S.pWOB+1}
s_mov_b32 s{S.M1+2}, 401408
s_mov_b32 s{S.M1+3}, 0x20000
v_min_u32 v{U}, 48, v{V.lane}
v_lshl_add_u32 v{U}, v{U}, 6, s{S.t2}''')
        k.vmop(f'buffer_load_dword v{A.l}, v{U}, {srd(S.M1)}, 0 offen', opt=True)
    if grp == 1 and opts['wowarm'] is not None: at(opts['wowarm'], only(k, 7, wowarm))
    def f1r(): st['f1r'] = k.vmop(f'buffer_load_dword v{A.f0}, v{A.f1}, {srd(S.WS)}, 0 offen sc1')
    def f1r2(): k.vmwait(st['f1r']); k.e(ready_mask())
    at(opts['f1r_at'][0], f1r); at(opts['f1r_at'][1], f1r2)
    if grp == 0:
        KF_, NUM = 80, 96
        def a2():
            k.e(f'v_lshlrev_b32 v{T}, 4, v{V.lane}\nv_add_u32 v{T}, {L_WPHI}, v{T}')
            for q in range(4): st['kvl'] = k.ds(f'ds_read_b128 {vr(KF_+4*q,4)}, v{T} offset:{q*1024}')
        def a3():
            k.dswait(st['kvl'])
            pend['spr'] += [mfma(NUM, KF_+4*q, A.PHQ+4*q, '0' if q == 0 else NUM) for q in range(4)]
        def a4():
            k.e(f'''v_mov_b32 v{T+1}, v{NUM+12}
v_mov_b32 v{T+3}, v{NUM+12}
s_sub_u32 s{S.t2}, s{S.hQ}, s{S.h}
s_lshl_b32 s{S.t2}, s{S.t2}, 11
v_permlane32_swap_b32 v{T+1}, v{T+3}
v_add_f32 v{T+3}, v{A.eps}, v{T+3}
v_rcp_f32 v{T+3}, v{T+3}
s_sub_u32 s{S.t2}, s{S.t2}, 32768
v_mul_f32 v{T+3}, v{V.g}, v{T+3}
v_add_u32 v{A.a2}, s{S.t2}, v{V.ob}''')
            for q in range(8): k.e(f'v_pk_mul_f32 {vr(NUM+2*q,2)}, {vr(NUM+2*q,2)}, {vr(T+3,2)} op_sel_hi:[1,0]')
            cvt16(k, KF_, NUM)
            k.e(f's_mov_b64 exec, s[{S.hi32}:{S.hi32+1}]\nv_mov_b32 v{KF_+6}, 0\nv_mov_b32 v{KF_+7}, 0\ns_mov_b64 exec, -1')
            st['oast'] = both_ways(k, [f'buffer_store_dwordx4 {vr(KF_,4)}, v{A.a2}, {srd(S.WS)}, 0 offen',
                          f'buffer_store_dwordx4 {vr(KF_+4,4)}, v{A.a2}, {srd(S.WS)}, 0 offen offset:1024'])
        p = opts['afin_at']
        def a5():
            k.vmwait(st['oast'])
            k.e(f's_lshl2_add_u32 s{S.t2}, s{S.tb}, s{S.tt}\ns_lshl4_add_u32 s{S.t2}, s{S.t2}, s{S.hQ}\ns_lshl_b32 s{S.t2}, s{S.t2}, 6\ns_add_u32 s{S.t2}, s{S.t2}, {WS_FLAG3A}')
            flag_store(k, S.t2, S.tag, opt=False)
        at(p, a2); at(p+1, a3); at(p+2, a4); at(opts['a5_at'], a5)
        assert p % 4 == 2 and p > max(opts['kv_at'][0][7], opts['kv_at'][1][7])
    def oa0():
        k.e(f's_lshl_b32 s{S.t2}, s{S.col}, 10\ns_add_u32 s{S.t2}, s{S.t2}, {WS_FLAG3A}\nv_and_b32 v{A.y1}, 15, v{V.lane}\nv_lshl_add_u32 v{A.y1}, v{A.y1}, 6, s{S.t2}')
        st['fa'] = k.vmop(f'buffer_load_dword v{A.y0}, v{A.y1}, {srd(S.WS)}, 0 offen sc1')
    at(opts['oa_at'] - 2, oa0)
    def oa():
        flag_check(k, st['fa'], A.y0, A.y1)
        k.e(f'''s_lshl_b32 s{S.t2}, s{S.col}, 16
s_lshl_b32 s{S.t3}, s{S.cw}, 13
s_add_u32 s{S.t2}, s{S.t2}, s{S.t3}
s_add_u32 s{S.t2}, s{S.t2}, {WS_OX}
s_and_b32 s{S.t3}, s{S.h}, 7
s_cmp_eq_u32 s{S.t3}, 7
s_cselect_b32 s{S.t2}, {OOB}, s{S.t2}
v_lshl_add_u32 v{A.a0}, v{V.lane}, 4, s{S.t2}''')
        def ld(q, l): st[f'oa{q}'] = k.vmop(l)
        pend['wq'] += [Job(lambda q=q, l=l: ld(q, l), 1) for q, l in enumerate(o_loads(A.OF, A.a0))]
    at(opts['oa_at'], oa)
    return J, st

def wo_bases(k, b0, base_s):
    T = V.tmp
    k.e(f'''
v_and_b32 v{T}, 1, v{V.lane}
v_bfe_u32 v{T+1}, v{V.lane}, 1, 1
v_lshl_or_b32 v{T}, v{T}, 1, v{T+1}
v_bfe_u32 v{T+1}, v{V.lane}, 4, 1
v_lshl_or_b32 v{T}, v{T+1}, 2, v{T}
v_bfe_u32 v{T+1}, v{V.lane}, 3, 1
v_lshl_or_b32 v{T}, v{T+1}, 3, v{T}
v_bfe_u32 v{T+1}, v{V.lane}, 2, 2
v_lshlrev_b32 v{T}, 3, v{T}
v_lshl_add_u32 v{T}, v{T+1}, 7, v{T}
v_add_u32 v{b0+2}, s{base_s}, v{T}
v_xor_b32 v{b0+3}, 64, v{b0+2}
v_lshl_add_u32 v{b0}, v{V.hh}, 9, v{b0+2}
v_xor_b32 v{b0+1}, 64, v{b0}
''')
def wo_reads(k, dst, b0, lo, hi):
    a = None
    for n in range(lo, hi):
        hd, t, oc = n // 4, (n // 2) % 2, n % 2
        k.ds(f'ds_read_b64_tr_b16 {vr(dst+4*n,2)}, v{b0+oc} offset:{hd*3584+t*2048}')
        a = k.ds(f'ds_read_b64_tr_b16 {vr(dst+4*n+2,2)}, v{b0+oc+(2 if t else 0)} offset:{hd*3584+t*2048+1024}')
    return a

def attention(k, grp, st, opts, pend):
    T = V.tmp
    wo = {'A': None, 'B': None}
    rdK(k, 0, 0); k0 = rdK(k, 0, 1)
    rdV(k, 0); rdV(k, 1)
    k.dswait(k0)
    k.e(mfma(A.SA, A.KF, A.Q, '0')); rdK(k, 1, 0)
    k.e(mfma(A.SA, A.KF+4, A.Q+4, A.SA)); kk = rdK(k, 1, 1)
    dq = []; wq = pend['wq'] = []; hq = pend['hq'] = []
    for s_ in range(opts['npre'], 3): dq += kv_dma_jobs(k, s_, st)
    for j in dq[:2]: j.f()
    del dq[:2]
    if opts['kv_at'][grp][0] == -2: pend['kvi'] = kv_partial(k)
    k.e(f'v_max3_f32 v{A.m}, v{A.SA}, v{A.SA+1}, v{A.SA+2}')
    for q in range(3, 15, 2): k.e(f'v_max3_f32 v{A.m}, v{A.m}, v{A.SA+q}, v{A.SA+q+1}')
    k.e(f'v_max_f32 v{A.m}, v{A.m}, v{A.SA+15}\nv_mov_b32 v{T}, v{A.m}')
    k.e(f'''s_nop 1
v_permlane32_swap_b32 v{A.m}, v{T}
v_max_f32 v{A.m}, v{A.m}, v{T}
v_sub_f32 v{A.NM}, 0, v{A.m}''')
    for q in range(1, 16): k.e(f'v_mov_b32 v{A.NM+q}, v{A.NM}')
    for q in range(8): k.e(f'v_pk_add_f32 {vr(A.SA+2*q,2)}, {vr(A.SA+2*q,2)}, {vr(A.NM,2)}')
    pend['spr'] = []
    J, js = side_jobs(k, grp, opts, pend)
    def pump(n):
        for _ in range(n):
            if hq or dq or wq:
                j = (hq or dq or wq).pop(0)
                if not opts['nodma']: j.f()
    for f in J.get(-1, []): f()
    for t in range(32):
        cur, oth = (A.SA, A.SB) if t % 2 == 0 else (A.SB, A.SA)
        spr = pend['spr']; pts = {8: (0, 1, 3, 5, 6, 8, 10, 11), 4: (0, 3, 6, 9), 0: ()}[len(spr)]
        def ex(a, b):
            for q in range(a, b):
                k.e(f'v_exp_f32 v{cur+q}, v{cur+q}')
                if q in pts: k.e(spr.pop(0))
        k.c(f'---- tile {t}')
        ex(0, 2)
        if t >= 1: k.e(smfma(A.O, A.V1+4*((t-1) % 3), oth+8, A.idx))
        ex(2, 5)
        if t % 4 == 2:
            b = t//4 + 1
            stamp(k, f'preB{b}')
            assert b == 8 or st[(b, 'n')] == 4
            k.vmwait(pend.get('barwait', {}).get(b))
            k.vmwait(st.get(b), 'lgkmcnt(0)'); k.dsall(False)
            stamp(k, f'B{b}wait')
            k.e('s_barrier')
            if b + 2 <= 7: dq += kv_dma_jobs(k, b + 2, st)
            if b == 6: assert wo.get('nA') == 7 or opts['skip']
            if b in (6, 7) and 'woB' not in opts['skip']:
                wq[0:0] = wo_jobs(k, 1, (3, 16) if grp else (4, 0), 3 if grp else 4, 65536*(7-b), 224*(b-6), wo, 'B')
        elif t + 1 <= 31:
            k.dswait(kk)
        if opts['prio']: k.e(f's_setprio {3 - (t + 2) % 4}')
        if t == opts['wo_at'] and 'woA' not in opts['skip']: wq += wo_jobs(k, 0, (7, 28*grp), 7, L_WOA, 0, wo, 'A', opts['wo_rot'])
        if t + 1 <= 31:
            k.e(mfma(oth, A.KF, A.Q, A.NM))
            if t + 2 <= 31: rdK(k, t+2, 0)
        pump(1 if len(dq) + len(wq) + len(hq) > opts['pump_hi'] else 0)
        ex(5, 8)
        if t + 1 <= 31:
            k.e(mfma(oth, A.KF+4, A.Q+4, oth))
            if t + 2 <= 31: kk = rdK(k, t+2, 1)
        pump(1 if len(dq) + len(wq) + len(hq) > opts['pump_hi2'] else 0)
        ex(8, 13)
        k.e(smfma(A.O, A.V0+4*(t % 2), cur, A.idx))
        if t + 2 <= 31: rdV(k, t+2)
        pump(1)
        wa = None
        ex(13, 16)
        for f in J.get(t, []):
            stamp(k, f'j{t}{grp}pre')
            if f.__name__ not in opts['skip']: f()
            stamp(k, f'j{t}{grp}post')
    assert not dq and len(wq) <= 3; pump(3)
    k.e('s_nop 1')
    k.e(smfma(A.O, A.V1+4*(31 % 3), A.SB+8, A.idx))
    if opts['prio']: k.e('s_setprio 0')
    return js, wo, wa

def fallback(k, grp):
    T = V.tmp; L = lbl('fbl')
    k.e(f'''
s_lshl_b32 s{S.t2}, s{S.tt}, 12
v_subrev_u32 v{A.ks}, s{S.t2}, v{A.ks}
v_mov_b32 v{A.m}, 0xff7fffff
s_mov_b32 s{S.sK}, 0
''')
    for q in range(16): k.e(f'v_mov_b32 v{A.O+q}, 0')
    k.e(f'''{L}:
buffer_load_dwordx4 {vr(A.KF,4)}, v{A.ks}, {srd(S.WS)}, s{S.sK} offen sc1
buffer_load_dwordx4 {vr(A.KF+4,4)}, v{A.ks}, {srd(S.WS)}, s{S.sK} offen offset:1024 sc1
buffer_load_dwordx4 {vr(A.V0,4)}, v{A.ks}, {srd(S.WS)}, s{S.sK} offen offset:2048 sc1
buffer_load_dwordx4 {vr(A.V0+4,4)}, v{A.ks}, {srd(S.WS)}, s{S.sK} offen offset:3072 sc1
s_waitcnt vmcnt(0)''')
    k.e(mfma(A.SA, A.KF, A.Q, '0')); k.e(mfma(A.SA, A.KF+4, A.Q+4, A.SA))
    k.e(f'v_max3_f32 v{T}, v{A.m}, v{A.SA}, v{A.SA+1}')
    for q in range(2, 16, 2): k.e(f'v_max3_f32 v{T}, v{T}, v{A.SA+q}, v{A.SA+q+1}')
    k.e(f'''v_mov_b32 v{T+1}, v{T}
s_nop 1
v_permlane32_swap_b32 v{T}, v{T+1}
v_max_f32 v{T}, v{T}, v{T+1}
v_sub_f32 v{T+1}, v{A.m}, v{T}
v_exp_f32 v{T+1}, v{T+1}
v_mov_b32 v{A.m}, v{T}''')
    for q in range(16): k.e(f'v_sub_f32 v{A.SA+q}, v{A.SA+q}, v{T}\nv_mul_f32 v{A.O+q}, v{A.O+q}, v{T+1}')
    for q in range(16): k.e(f'v_exp_f32 v{A.SA+q}, v{A.SA+q}')
    k.e('s_nop 1')
    k.e(smfma(A.O, A.V0, A.SA, A.idx)); k.e(smfma(A.O, A.V0+4, A.SA+8, A.idx))
    k.e(f'''s_add_u32 s{S.sK}, s{S.sK}, 4096
s_cmp_lt_u32 s{S.sK}, 131072
s_cbranch_scc1 {L}
v_mov_b32 v{A.l}, v{A.O+12}
v_mov_b32 v{T}, v{A.O+12}
s_nop 1
v_permlane32_swap_b32 v{T}, v{A.l}''')

def tail(k, grp, js, wo, wa, opts, fb):
    T = V.tmp
    k.c('---- end of attention: exchange with the partner wave, safety check of the stand-in maximum')
    stamp(k, 'attnend')
    Lfb, Lback = lbl('fb'), lbl('fbback')
    own, oth = (A.O, A.O+8) if grp == 0 else (A.O+8, A.O)
    CXa, CXb, CXl = A.a1, A.f0, A.f1
    k.e(f'''
s_lshl_b32 s{S.t2}, s{S.w}, 12
s_add_u32 s{S.t2}, s{S.t2}, {L_CX}
v_lshl_add_u32 v{CXa}, v{V.lane}, 4, s{S.t2}
v_xor_b32 v{CXb}, 16384, v{CXa}
v_lshl_add_u32 v{CXl}, v{V.lane}, 3, s{S.t2}
v_sub_f32 v{A.kv0}, 1.0, v{V.g}
s_mov_b32 s{S.t3}, {fbits(2.0**60)}
v_mov_b32 v{A.t}, v{A.m}''')
    xw = [f'ds_write_b128 v{CXa}, {vr(oth,4)}', f'ds_write_b128 v{CXa}, {vr(oth+4,4)} offset:1024']
    k.e(f'v_mov_b32 v{A.l}, v{A.O+12}\nv_mov_b32 v{T}, v{A.O+12}')
    for l in xw: k.ds(l)
    k.e(f'''v_permlane32_swap_b32 v{T}, v{A.l}
v_mul_f32 v{T+1}, 0, v{A.O}
v_mul_f32 v{T+2}, 0, v{A.O+1}''')
    k.ds(f'ds_write_b64 v{CXl}, {vr(A.l,2)} offset:2048')
    for q in range(1, 8): k.e(f'v_pk_fma_f32 {vr(T+1,2)}, {vr(A.O+2*q,2)}, 0, {vr(T+1,2)} op_sel_hi:[1,0,1]')
    k.e(f'''v_add_f32 v{T+1}, v{T+1}, v{T+2}
v_add_f32 v{T+1}, v{T+1}, v{A.l}
v_cmp_nge_f32 vcc, s{S.t3}, v{T+1}
s_cbranch_vccnz {Lfb}
{Lback}:''')
    fb.e(f'{Lfb}:'); fallback(fb, grp)
    fb.e(f'v_mov_b32 v{A.t}, v{A.m}')
    for l in xw: fb.e(l)
    fb.e(f'ds_write_b64 v{CXl}, {vr(A.l,2)} offset:2048\ns_branch {Lback}')
    k.e(f's_mul_i32 s{S.t2}, s{S.cw}, 14336\ns_add_u32 s{S.t2}, s{S.t2}, {L_WOA}')
    wo_bases(k, A.wb, S.t2)
    k.e(f'''s_and_b32 s{S.t3}, s{S.cw}, 1
s_mul_i32 s{S.t3}, s{S.t3}, 14336
s_cmp_lt_u32 s{S.cw}, 2
s_cselect_b32 s{S.t4}, 65536, 0
s_add_u32 s{S.t3}, s{S.t3}, s{S.t4}
s_sub_u32 s{S.t3}, s{S.t3}, s{S.t2}''')
    WB2 = A.Q
    for q in range(4): k.e(f'v_add_u32 v{116+q}, s{S.t3}, v{A.wb+q}')
    k.vmwait(wo['A'])
    k.vmwait(wo['B'], 'lgkmcnt(0)'); k.dsall(False)
    k.e(f's_barrier\nv_xor_b32 v{CXl}, 16384, v{CXl}')
    lm = k.ds(f'ds_read_b64 {vr(T+1,2)}, v{CXl} offset:2048')
    k.ds(f'ds_read_b128 {vr(A.SA,4)}, v{CXb}')
    a = k.ds(f'ds_read_b128 {vr(A.SA+4,4)}, v{CXb} offset:1024')
    wr = [wo_reads(k, A.WOA, A.wb, n, n+1) for n in range(5)]
    k.dswait(lm)
    k.e(f'''v_max_f32 v{T}, v{A.m}, v{T+2}
v_sub_f32 v{T+3}, v{A.m}, v{T}
v_sub_f32 v{T+5}, v{T+2}, v{T}
v_exp_f32 v{T+3}, v{T+3}
v_exp_f32 v{T+5}, v{T+5}
v_mul_f32 v{A.l}, v{A.l}, v{T+3}
v_fmac_f32 v{A.l}, v{T+1}, v{T+5}
v_rcp_f32 v{A.l}, v{A.l}
v_mul_f32 v{T+3}, v{T+3}, v{A.kv0}
v_mul_f32 v{T+5}, v{T+5}, v{A.kv0}
v_mul_f32 v{T+3}, v{T+3}, v{A.l}
v_mul_f32 v{T+5}, v{T+5}, v{A.l}''')
    for q in range(4): k.e(f'v_pk_mul_f32 {vr(own+2*q,2)}, {vr(own+2*q,2)}, {vr(T+3,2)} op_sel_hi:[1,0]')
    k.dswait(a)
    wr += [wo_reads(k, A.WOA, A.wb, n, n+1) for n in range(5, 8)]
    for q in range(4): k.e(f'v_pk_fma_f32 {vr(own+2*q,2)}, {vr(A.SA+2*q,2)}, {vr(T+5,2)}, {vr(own+2*q,2)} op_sel_hi:[1,0,1]')
    OB = 112
    for q in range(4): k.e(f'v_cvt_pk_bf16_f32 v{OB+q}, v{own+2*q}, v{own+2*q+1}')
    if grp == 1:
        k.e(f's_mov_b64 exec, s[{S.hi32}:{S.hi32+1}]\nv_mov_b32 v{OB+2}, 0\nv_mov_b32 v{OB+3}, 0\ns_mov_b64 exec, -1')
    ob = both_ways(k, [f'buffer_store_dwordx4 {vr(OB,4)}, v{V.ob}, {srd(S.WS)}, 0 offen'])
    stamp(k, 'obstored')
    Lidle = lbl('idle')
    k.e(f's_and_b32 s{S.t3}, s{S.h}, 7\ns_cmp_eq_u32 s{S.t3}, 7\ns_cbranch_scc1 {Lidle}')
    ACC = AC2 = A.ACC; OF2 = A.OF
    k.e(f'v_add_u32 v{A.kv1}, 32768, v{A.a0}')
    k.vmwait(js.get('oa7'))
    amf = [mfma(ACC+16*oc, A.WOA+4*(2*n+oc), A.OF+4*n, '0' if n == 0 else ACC+16*oc) for n in range(8) for oc in range(2)]
    ol = o_loads(OF2, A.kv1)
    for n, m in enumerate(amf):
        k.dswait(wr[n]); k.e(m)
        if n < 8: wr.append(wo_reads(k, A.WOA, A.wb, n+8, n+9))
        else: wo_reads(k, A.WOB, 116, 2*(n-8), 2*(n-8)+2)
    stamp(k, 'Ahalf')
    k.vmwait(ob); ids = [k.vmop(l) for l in ol]
    set_srd(k, S.M1, S.pOUT, 1835008)
    k.e(f'''s_lshl_b32 s{S.t2}, s{S.col}, 5
v_add_u32 v{T}, s{S.t2}, v{V.i32}
v_mul_u32_u24 v{T}, 896, v{T}
v_lshl_add_u32 v{T}, v{V.hh}, 4, v{T}
s_and_b32 s{S.t2}, s{S.h}, 7
s_lshl_b32 s{S.t2}, s{S.t2}, 7
s_lshl_b32 s{S.t3}, s{S.cw}, 5
s_add_u32 s{S.t2}, s{S.t2}, s{S.t3}
v_add_u32 v{A.a2}, s{S.t2}, v{T}
s_and_b32 s{S.t2}, s{S.w}, 1
s_lshl_b32 s{S.t2}, s{S.t2}, 15
s_lshl_b32 s{S.t3}, s{S.cw}, 11
s_add_u32 s{S.t3}, s{S.t3}, s{S.t2}
v_lshl_add_u32 v{A.ks}, v{V.lane}, 4, s{S.t3}
s_lshl_b32 s{S.t3}, s{S.cw}, 13
s_add_u32 s{S.t3}, s{S.t3}, s{S.t2}
v_lshl_add_u32 v{A.vs}, v{V.lane}, 4, s{S.t3}
s_mov_b32 s{S.spin}, {SPINV[0]}''')
    k.dsall()
    k.e('s_barrier')
    for n in range(8):
        L1, L2 = lbl('ob'), lbl('obd'); F = OF2 + 4*n
        chk = f'v_max3_u32 v{T}, v{F}, v{F+1}, v{F+2}\nv_max_u32 v{T}, v{T}, v{F+3}\nv_cmp_eq_u32 vcc, -1, v{T}'
        k.vmwait(ids[n])
        if n in (0, 7): stamp(k, f'ld{n}')
        k.e(f'{chk}\ns_cbranch_vccnz {L1}\n{L2}:')
        for oc in range(2): k.e(mfma(ACC+16*oc, A.WOB+4*(2*n+oc), F, ACC+16*oc))
        c = k.cold
        c.e(f'{L1}:\ns_sleep {opts["rsleep"]}')
        for l in ol[n:]: c.e(l)
        c.e(f's_waitcnt vmcnt({7-n})\n{chk}\ns_sub_u32 s{S.spin}, s{S.spin}, 1\ns_cbranch_scc1 {L2}\ns_cbranch_vccnz {L1}\ns_branch {L2}')
    stamp(k, 'Bhalf')
    Ls = [lbl('kq') for _ in range(2)]; Lj = lbl('kqj')
    k.e(f's_bitcmp1_b32 s{S.cw}, 0\ns_cbranch_scc1 {Ls[1]}')
    for par in range(2):
        kq = 2*grp + par
        if par: k.e(f'{Ls[1]}:')
        srcs = [p for p in range(4) if p != kq]
        if opts['pack']:
            for n, p in enumerate(srcs):
                for q in range(4): k.e(f'v_cvt_pk_bf16_f32 v{A.OF+4*n+q}, v{AC2+8*p+2*q}, v{AC2+8*p+2*q+1}')
                k.e(f'ds_write_b128 v{A.ks}, {vr(A.OF+4*n,4)} offset:{p*8192}')
            k.e(f's_mov_b32 s{S.t2}, 0x3f80\ns_mov_b32 s{S.t3}, 0x3f800000\ns_waitcnt lgkmcnt(0)\ns_barrier')
            for n, p in enumerate(srcs): k.e(f'ds_read_b128 {vr(A.OF+16+4*n,4)}, v{A.vs} offset:{p*2048}')
            for n in range(3):
                k.e(f's_waitcnt lgkmcnt({2-n})')
                for q in range(8): k.e(f'v_dot2_f32_bf16 v{AC2+8*kq+q}, v{A.OF+16+4*n+q//2}, s{S.t2 + q % 2}, v{AC2+8*kq+q}')
        else:
            for p in srcs:
                k.e(f'ds_write_b128 v{A.ks}, {vr(AC2+8*p,4)} offset:{p*8192}\nds_write_b128 v{A.ks}, {vr(AC2+8*p+4,4)} offset:{p*8192+1024}')
            k.e('s_waitcnt lgkmcnt(0)\ns_barrier')
            for n, p in enumerate(srcs):
                k.e(f'ds_read_b128 {vr(A.OF+8*n,4)}, v{A.vs} offset:{p*2048}\nds_read_b128 {vr(A.OF+8*n+4,4)}, v{A.vs} offset:{p*2048+1024}')
            for n in range(3):
                k.e(f's_waitcnt lgkmcnt({4-2*n})')
                for q in range(4): k.e(f'v_pk_add_f32 {vr(AC2+8*kq+2*q,2)}, {vr(AC2+8*kq+2*q,2)}, {vr(A.OF+8*n+2*q,2)} ; keep')
        if opts['pack']: k.e('s_nop 2')
        for q in range(4): k.e(f'v_cvt_pk_bf16_f32 v{A.OF+q}, v{AC2+8*kq+2*q}, v{AC2+8*kq+2*q+1}')
        if par == 0: k.e(f's_branch {Lj}')
    k.e(f'{Lj}:\nbuffer_store_dwordx4 {vr(A.OF,4)}, v{A.a2}, {srd(S.M1)}, 0 offen {opts["outsc"]}')
    if grp == 0:
        L = lbl('ep')
        k.e(f'''s_or_b32 s{S.t2}, s{S.h}, s{S.tb}
s_or_b32 s{S.t2}, s{S.t2}, s{S.w}
s_cmp_lg_u32 s{S.t2}, 0
s_cbranch_scc1 {L}''')
        flag_store(k, S.t2, S.tag)
        k.e(f'{L}:')
    k.e(f'{Lidle}:')
    stamp(k, 'end'); stamp_dump(k)
    k.e('s_endpgm')

DEFAULTS = dict(NH=8, kp_first=False, nopk=True, prio_kf=0, bar7_at=None, w1sched={14: [22], 15: [23], 16: [24], 17: [25], 18: [26], 19: [27]}, tlbwarm=False, flagwarm=True, oclr_at=(6, 7), ybar=4, rsleep=6, outsc='sc1', a5_at=22, pack=False, codewarm=5, wowarm=5, warm=False, wo_rot=True, nr8=6, prio_st=True, prio_g1=0, skip=(), spin=0x40000, kvsc='sc1', dbg=(), nodma=False, round_p=True, prio=True, align=True, prof=False,
                nobar=(8, 9, 10, 12, 13, 15, 16, 18, 19, 20, 22, 24, 26), npre=1, f1_step=11, f1_check=24, pre_rate=2, f1r_at=(1, 3),
                wsched={-1: [1, 2], 0: [3], 1: [4], 2: [5], 3: [6, 7, 14], 4: [21, 8, 9], 5: [10, 11], 6: [12, 13], 7: [15, 16], 9: [17, 18], 11: [19, 20]},
                pump_hi=2, pump_hi2=5,  wo_at=15,
                kv_at=((0, 1, 2, 5, 8, 10, 16, 17), (0, 1, 2, 5, 9, 11, 16, 17)), afin_at=18, oa_at=27)

def build(**kw):
    opts = dict(DEFAULTS); opts.update(kw)
    issue = {w: s_ for sch in (opts['wsched'], opts['w1sched']) for s_, ws_ in sch.items() for w in ws_}
    for w in range(1, 28):
        size = lambda x: 8192 if x // 7 in (0, 3) else 4096
        for p in range(w):
            if WADDR[p] < WADDR[w] + size(w) and WADDR[w] < WADDR[p] + size(p):
                b = p + 1
                while b in opts['nobar']: b += 1
                assert issue[w] >= b, (w, p, b)
        b = w
        while b in opts['nobar']: b -= 1
        assert issue[w] < b, (w, b)
    _lbl[0] = 0; PROF[0] = opts['prof']; STAMPS.clear(); DBG.clear(); DBG.update(opts['dbg']); KVSC[0] = opts['kvsc']; PRIO_ST[0] = opts['prio_st']; SPINV[0] = opts['spin']
    k = Stream(); k.cold = Stream()
    prologue(k, opts['NH'])
    ids = {}
    head = k
    streams = []; checks = []
    for grp in range(2):
        fb = Stream(); idg = {}; st_id = None
        if grp == 0:
            g = head.fork()
            prologue0(g, idg)
            rot_offsets(g)
            pro = opts['wsched'][-1]
            if 1 in pro: dma_x(g, 1, True); idg[1] = dma_w(g, 1, True)
            setup2(g)
            if 2 in pro: dma_x(g, 2, True); idg[2] = dma_w(g, 2, True)
            g.e(HEADS()); slice_setup(g); stage0(g, 0, idg, True, opts); pre = g.text(); opts['_gw'] = [g.gw_id, g.wphi_id]; opts['_p6'] = []
        else:
            h1 = head.fork(); prologue1(h1, opts)
            kk, kv = head.fork(), head.fork()
            for z, kt in ((kv, False), (kk, True)):
                z.e(tr_base0(kt)); stage0(z, 1, dict(ids), kt, opts); st_id = stage0_epilogue(z, kt, opts['bar7_at'])
            assert [x[1] for x in kk.vm if not x[1]] == [x[1] for x in kv.vm if not x[1]]
            pre = h1.text() + f'  s_cmp_ge_u32 s{S.j}, 7\n  s_cbranch_scc1 L_vtile\n' + kk.text() + '  s_branch L_mid\nL_vtile:\n' + kv.text() + 'L_mid:\n'
            g = kk
        g = g.fork(); g.cold = Stream(); g.pre = pre
        opts['_k0'] = g; g.g1 = grp == 1
        pend = stages12(g, idg, grp, st_id, opts)
        st = attn_prologue(g, grp, pend, opts)
        js, wo, wa = attention(g, grp, st, opts, pend)
        tail(g, grp, js, wo, wa, opts, fb)
        fb2 = Stream(); fb2.L = fb.L + g.cold.L
        streams.append((g, fb2))
    body = head.text()
    body += streams[0][0].pre + streams[0][0].text() + streams[0][1].text()
    body += 'L_grp1:\n' + streams[1][0].pre + streams[1][0].text() + streams[1][1].text()
    body += 'L_end:\n  s_endpgm\n'
    bl = body.rstrip('\n').split('\n')
    if opts['nopk']: bl = [x for l in bl for x in expand_pk(l)]
    bl, checks = fix_hazards(bl);
    if opts['align']: bl, st_ = align_runs([NAME + ':'] + bl); bl = bl[1:]; checks.append(f'align: widened {st_[0]}, nops {st_[1]}, left {st_[2]}')
    for g1 in (0, 1):
        for vt in (0, 1):
            for opt in (0, 1):
                ch = lambda L: (L == 'L_grp1' and g1) or (L == 'L_vtile' and vt) or (L.startswith('L_w_') and opt) or (L.startswith(('L_dup', 'L_ep')) and not opt) or (L.startswith('L_kq') and opt)
                w_ = check_waits(bl, ch)
                assert not w_ or opts['skip'], w_[:5]
    body = '\n'.join(bl) + '\n'
    ref = open('gated_mix__linear_kernel_hedgehog__softmax_full_mha__prompt.s.ref').read()
    hdr = ref[:ref.index('; @launch')]
    txt = hdr + f'''; @launch grid=(256,1,1) block=(512,1,1) lds=163840
.amdgcn_target "amdgcn-amd-amdhsa--gfx950"
.text
.globl {NAME}
.p2align 8
.type {NAME},@function
{NAME}:
{body}.section .rodata,"a"
.p2align 6
.amdhsa_kernel {NAME}
  .amdhsa_next_free_vgpr 256
  .amdhsa_next_free_sgpr 102
  .amdhsa_accum_offset 256
  .amdhsa_group_segment_fixed_size 0
  .amdhsa_kernarg_size 88
  .amdhsa_user_sgpr_count 2
  .amdhsa_user_sgpr_kernarg_segment_ptr 1
  .amdhsa_system_sgpr_workgroup_id_x 1
.end_amdhsa_kernel
'''
    return txt, checks

if __name__ == '__main__':
    out = sys.argv[1] if len(sys.argv) > 1 else 'gated_mix__linear_kernel_hedgehog__softmax_full_mha__prompt.s'
    kw = {}
    for a in sys.argv[2:]:
        n, v = a.split('='); kw[n] = eval(v)
    txt, msgs = build(**kw)
    for m in msgs: print('  auto', m)
    open(out, 'w').write(txt)
    print('wrote', out, len(txt), 'bytes')
    if STAMPS: open(out + '.stamps', 'w').write('\n'.join(STAMPS))
```
